```python
import torch

def _softmax(x, axis=-1):
    return torch.softmax(x, dim=axis)

def _gelu(x):
    return torch.nn.functional.gelu(x, approximate='tanh')

def _silu(x):
    return torch.nn.functional.silu(x)

def _sigmoid(x):
    return torch.sigmoid(x)

def _layernorm(x, axis=-1, eps=1e-05):
    m = x.mean(dim=axis, keepdim=True)
    v = x.var(dim=axis, keepdim=True, unbiased=False)
    return (x - m) / torch.sqrt(v + eps)

def _scatter_add(tgt, idx, src, axis=0):
    return tgt.clone().index_add_(axis, idx, src)

def _segment_sum(src, seg, n):
    out = torch.zeros((n,) + src.shape[1:], dtype=src.dtype)
    return out.index_add_(0, seg, src)

def _pad(x, pw):
    flat = tuple((v for pair in reversed(pw) for v in pair))
    return torch.nn.functional.pad(x, flat)
kernel_name = 'interleave_layers__ssm_conv_h3__memory_aug_recurrent_mem_tr__prompt'

def setup_inputs():

    _w = lambda a: (lambda t: t.to(torch.bfloat16) if t.is_floating_point() else t)(torch.as_tensor(a))

    def _A_setup():
        B, S, D = (1, 2048, 512)
        ks = 4
        return {'q': _w((lambda *s: torch.randn(*s, dtype=torch.bfloat16) * 0.05)(B, S, D)), 'k': _w((lambda *s: torch.randn(*s, dtype=torch.bfloat16) * 0.2)(B, S, D)), 'v': _w((lambda *s: torch.randn(*s, dtype=torch.bfloat16) * 0.2)(B, S, D)), 'shift_k': _w((lambda *s: torch.randn(*s, dtype=torch.bfloat16) * 0.2)(D, ks) * 0.5), 'ssm_k': _w((lambda *s: torch.randn(*s, dtype=torch.bfloat16) * 0.4)(D, S) * (1.0 / S ** 0.5)), 'ssm_D': _w((lambda *s: torch.randn(*s, dtype=torch.bfloat16) * 0.2)(D))}
    _A_in = _A_setup()

    def _B_setup():
        B, S, Dm = (1, 2048, 512)
        H, Dh = (32, 128)
        M, seg = (8, 32)
        seg = min(seg, S)
        S = S // seg * seg
        return {'x': _w((lambda *s: torch.randn(*s, dtype=torch.bfloat16) * 0.05)(B, S, Dm)), 'mem0': _w((lambda *s: torch.randn(*s, dtype=torch.bfloat16) * 0.2)(B, M, Dm)), 'Wq': _w((lambda *s: torch.randn(*s, dtype=torch.bfloat16) * 1.6)(Dm, H, Dh) * Dm ** (-0.5)), 'Wk': _w((lambda *s: torch.randn(*s, dtype=torch.bfloat16) * 1.6)(Dm, H, Dh) * Dm ** (-0.5)), 'Wv': _w((lambda *s: torch.randn(*s, dtype=torch.bfloat16) * 0.2)(Dm, H, Dh) * Dm ** (-0.5)), 'Wo': _w((lambda *s: torch.randn(*s, dtype=torch.bfloat16) * 0.2)(H, Dh, Dm) * (H * Dh) ** (-0.5)), 'seg_len': seg}
    _B_in = _B_setup()
    return {'A_q': _A_in['q'], 'A_k': _A_in['k'], 'A_v': _A_in['v'], 'A_shift_k': _A_in['shift_k'], 'A_ssm_k': _A_in['ssm_k'], 'A_ssm_D': _A_in['ssm_D'], 'B_x': _B_in['x'], 'B_mem0': _B_in['mem0'], 'B_Wq': _B_in['Wq'], 'B_Wk': _B_in['Wk'], 'B_Wv': _B_in['Wv'], 'B_Wo': _B_in['Wo'], 'B_seg_len': _B_in['seg_len']}

def reference(A_q, A_k, A_v, A_shift_k, A_ssm_k, A_ssm_D, B_x, B_mem0, B_Wq, B_Wk, B_Wv, B_Wo, B_seg_len):

    def _A_ref(q, k, v, shift_k, ssm_k, ssm_D):
        B, S, D = q.shape
        ks = shift_k.shape[-1]
        k_pad = _pad(k, ((0, 0), (ks - 1, 0), (0, 0)))
        k_shift = torch.zeros_like(k)
        for t in range(ks):
            k_shift = k_shift + k_pad[:, t:t + S, :] * shift_k[:, ks - 1 - t][None, None, :]
        kv = k_shift * v
        L = 2 * S
        kv_pad = _pad(kv, ((0, 0), (0, S), (0, 0)))
        kf_pad = _pad(ssm_k, ((0, 0), (0, S)))
        kv_f = (lambda x, axes=(-2, -1): torch.fft.rfft2(x.float(), dim=axes))(kv_pad[:, None, :, :], axes=(1, 2))
        kf_f = (lambda x, axes=(-2, -1): torch.fft.rfft2(x.float(), dim=axes))(kf_pad[:, None, :], axes=(1, 2))
        kf_f = (lambda x, *d: x.permute(*d))(kf_f, 1, 2, 0)
        y_f = kv_f * kf_f[None, :, :, :]
        y = (lambda x, s, axes=(-2, -1): torch.fft.irfft2(x, s=s, dim=axes).to(torch.bfloat16))(y_f, (1, L), axes=(1, 2))[:, 0, :S, :]
        y = y + kv * ssm_D[None, None, :]
        return q * y

    def _B_ref(x, mem0, Wq, Wk, Wv, Wo, seg_len):
        B, S, Dm = x.shape
        H, Dh = (Wq.shape[1], Wq.shape[2])
        M = mem0.shape[1]
        scale = Dh ** (-0.5)
        n_seg = S // seg_len
        L = M + seg_len
        idx = torch.arange(L)
        mask = (idx[:, None] < M) | (idx[:, None] >= idx[None, :])
        mem = mem0
        outs = []
        for s in range(n_seg):
            xs = x[:, s * seg_len:(s + 1) * seg_len, :].clone()
            h = torch.concatenate([mem, xs], axis=1)
            q = torch.einsum('btd,dhe->bhte', h, Wq)
            k = torch.einsum('btd,dhe->bhte', h, Wk)
            v = torch.einsum('btd,dhe->bhte', h, Wv)
            scores = torch.einsum('bhqe,bhke->bhqk', q, k) * scale
            scores = torch.where(mask[None, None], scores, -1000000000.0)
            p = _softmax(scores, axis=-1)
            o = torch.einsum('bhqk,bhke->bhqe', p, v)
            o = torch.einsum('bhte,hed->btd', o, Wo)
            mem = o[:, :M, :].clone()
            outs.append(o[:, M:, :])
        return torch.concatenate(outs, axis=1)
    x = A_q
    x = x + _A_ref(_layernorm(x, axis=-1), A_k, A_v, A_shift_k, A_ssm_k, A_ssm_D)
    x = x + _B_ref(_layernorm(x, axis=-1), B_mem0, B_Wq, B_Wk, B_Wv, B_Wo, B_seg_len)
    x = x + _A_ref(_layernorm(x, axis=-1), A_k, A_v, A_shift_k, A_ssm_k, A_ssm_D)
    x = x + _B_ref(_layernorm(x, axis=-1), B_mem0, B_Wq, B_Wk, B_Wv, B_Wo, B_seg_len)
    return x
```

```python
import re

REG_RE = re.compile(r'^(-|abs\()?([vas])(\d+|\[(\d+):(\d+)\])\)?$')


def regs_of(tok):
    tok = tok.strip()
    if tok in ('vcc',):
        return {('s', 106), ('s', 107)}
    if tok == 'vcc_lo':
        return {('s', 106)}
    if tok == 'vcc_hi':
        return {('s', 107)}
    if tok == 'exec':
        return {('s', 126), ('s', 127)}
    if tok == 'exec_lo':
        return {('s', 126)}
    if tok == 'exec_hi':
        return {('s', 127)}
    if tok == 'm0':
        return {('s', 124)}
    t = tok
    if t.startswith('-'):
        t = t[1:]
    if t.startswith('abs(') and t.endswith(')'):
        t = t[4:-1]
    if t.startswith('|') and t.endswith('|'):
        t = t[1:-1]
    m = re.match(r'^([vas])(\d+)$', t)
    if m:
        return {(m.group(1), int(m.group(2)))}
    m = re.match(r'^([vas])\[(\d+):(\d+)\]$', t)
    if m:
        return {(m.group(1), i) for i in range(int(m.group(2)), int(m.group(3)) + 1)}
    return set()


TRANS = ('v_exp_f32', 'v_log_f32', 'v_rcp_f32', 'v_rsq_f32', 'v_sqrt_f32', 'v_sin_f32', 'v_cos_f32',
         'v_rcp_iflag_f32')
EXEC = {('s', 126), ('s', 127)}
VCC = {('s', 106), ('s', 107)}
M0 = {('s', 124)}


class Ins:
    __slots__ = ('text', 'mn', 'ops', 'mods', 'defs', 'uses', 'kind', 'label', 'target', 'passes',
                 'srcc', 'srcab', 'dpp', 'auto', 'vm', 'lgkm', 'store_data', 'states')

    def __init__(self, text, auto=False):
        self.text = text
        self.auto = auto
        self.label = None
        self.target = None
        self.defs = set()
        self.uses = set()
        self.kind = 'other'
        self.passes = 0
        self.srcc = set()
        self.srcab = set()
        self.dpp = False
        self.vm = None
        self.lgkm = None
        self.store_data = set()
        self.states = 1
        body = text.split(';')[0].strip()
        self.mn = ''
        self.ops = []
        self.mods = ''
        if not body:
            self.kind = 'blank'
            self.states = 0
            return
        if body.endswith(':'):
            self.label = body[:-1]
            self.kind = 'label'
            self.states = 0
            return
        if body.startswith('.'):
            self.kind = 'directive'
            self.states = 0
            return
        parts = body.split(None, 1)
        mn = parts[0]
        self.mn = mn
        rest = parts[1] if len(parts) > 1 else ''
        toks = []
        depth = 0
        cur = ''
        for ch in rest:
            if ch in '[(':
                depth += 1
            if ch in '])':
                depth -= 1
            if ch == ',' and depth == 0:
                toks.append(cur.strip())
                cur = ''
            else:
                cur += ch
        if cur.strip():
            toks.append(cur.strip())
        if toks:
            last = toks[-1].split(None, 1)
            if len(last) > 1 and not mn.startswith('s_waitcnt'):
                toks[-1] = last[0]
                self.mods = last[1]
        self.ops = toks
        R = [regs_of(t) for t in toks]
        allr = set().union(*R) if R else set()
        base = re.sub(r'_(e32|e64|dpp|sdwa)$', '', mn)
        if mn == 's_waitcnt':
            self.kind = 'wait'
            m = re.search(r'vmcnt\((\d+)\)', rest)
            self.vm = int(m.group(1)) if m else None
            m = re.search(r'lgkmcnt\((\d+)\)', rest)
            self.lgkm = int(m.group(1)) if m else None
        elif mn == 's_nop':
            self.kind = 'nop'
            self.states = int(toks[0], 0) + 1
        elif mn in ('s_branch',) or mn.startswith('s_cbranch'):
            self.kind = 'branch'
            self.target = toks[0]
            if 'vcc' in mn:
                self.uses |= VCC
            if 'exec' in mn:
                self.uses |= EXEC
        elif mn == 's_endpgm':
            self.kind = 'end'
        elif mn in ('s_barrier', 's_sleep', 's_setprio'):
            self.kind = 'salu'
        elif mn.startswith('s_load') or mn.startswith('s_buffer_load') or mn in ('s_memtime', 's_memrealtime'):
            self.kind = 'smem'
            self.defs = R[0]
            self.uses = set().union(*R[1:]) if len(R) > 1 else set()
        elif mn.startswith('s_cmp') or mn.startswith('s_bitcmp'):
            self.kind = 'salu'
            self.uses = allr
        elif mn.startswith('s_'):
            self.kind = 'salu'
            self.defs = set(R[0]) if R else set()
            self.uses = set().union(*R[1:]) if len(R) > 1 else set()
            if 'saveexec' in mn:
                self.defs |= EXEC
                self.uses |= EXEC
            if mn in ('s_addk_i32', 's_mulk_i32'):
                self.uses |= R[0]
        elif mn.startswith('v_mfma'):
            self.kind = 'mfma'
            self.defs = R[0]
            self.srcab = R[1] | R[2]
            self.srcc = R[3]
            self.uses = self.srcab | self.srcc
            if '32x32' in mn:
                self.passes = 8
            elif '16x16' in mn:
                self.passes = 4
            else:
                raise ValueError(mn)
            assert mn.endswith('bf16'), mn
        elif mn.startswith('v_'):
            self.kind = 'valu'
            self.dpp = any(k in self.mods for k in ('row_', 'quad_perm', 'wave_')) or mn.endswith('_dpp')
            if base.startswith('v_cmpx'):
                self.defs = R[0] | EXEC
                self.uses = set().union(*R[1:])
            elif base.startswith('v_permlane') and 'swap' in base:
                self.defs = R[0] | R[1]
                self.uses = R[0] | R[1]
            elif base in ('v_add_co_u32', 'v_sub_co_u32', 'v_addc_co_u32', 'v_subb_co_u32', 'v_mad_u64_u32'):
                self.defs = R[0] | R[1]
                self.uses = set().union(*R[2:])
            elif base == 'v_nop':
                pass
            else:
                self.defs = set(R[0])
                self.uses = set().union(*R[1:]) if len(R) > 1 else set()
                if base.startswith('v_fmac') or base.startswith('v_pk_fmac') or self.dpp or base.startswith('v_writelane') \
                        or base.startswith('v_dot2c'):
                    self.uses |= R[0]
        elif mn.startswith('ds_'):
            self.kind = 'ds'
            if mn.startswith('ds_read') or mn.startswith('ds_bpermute') or mn.startswith('ds_permute') \
                    or mn.startswith('ds_swizzle') or '_rtn' in mn:
                self.defs = R[0]
                self.uses = set().union(*R[1:])
            else:
                self.uses = allr
        elif mn.startswith('buffer_') or mn.startswith('global_'):
            self.kind = 'vmem'
            mods = self.mods.split()
            is_lds = 'lds' in mods or '_lds_' in mn
            if is_lds:
                self.uses = allr | M0
            elif '_load' in mn:
                self.defs = R[0]
                self.uses = set().union(*R[1:])
                if 'd16' in mn:
                    self.uses |= R[0]
            elif '_store' in mn:
                self.uses = allr
                data = R[0] if mn.startswith('buffer_') else R[1]
                if len(data) >= 3:
                    self.store_data = data
            elif '_atomic' in mn:
                self.uses = allr
                if 'sc0' in mods:
                    self.defs = R[0]
            elif mn.startswith('buffer_inv') or mn.startswith('buffer_wbl2'):
                pass
            else:
                raise ValueError('unknown vmem ' + text)
        else:
            raise ValueError('unknown instruction ' + text)

    @property
    def base(self):
        return re.sub(r'_(e32|e64|dpp|sdwa)$', '', self.mn)


def vr(s):
    return {r for r in s if r[0] in 'va'}


def sr(s):
    return {r for r in s if r[0] == 's'}


XDL_RD = {4: 8, 8: 12}
XDL_OVL = {4: 6, 8: 10}
XDL_WARC = {4: 3, 8: 7}


def need_states(p, c):
    n = 0
    if p.kind == 'valu':
        pv = vr(p.defs)
        ps = sr(p.defs)
        if c.kind == 'mfma' and pv & c.uses:
            n = max(n, 2)
        if c.kind == 'valu':
            if c.dpp and pv & vr(c.uses):
                n = max(n, 2)
            if c.base.startswith('v_permlane') and pv & vr(c.uses):
                n = max(n, 2)
            if c.base in ('v_readfirstlane_b32', 'v_readlane_b32') and pv & vr(c.uses):
                n = max(n, 1)
            if p.base in TRANS and c.base not in TRANS and pv & vr(c.uses):
                n = max(n, 1)
            if ps & sr(c.uses):
                n = max(n, 4 if c.base in ('v_readlane_b32', 'v_writelane_b32') else 2)
            if ps & EXEC:
                if c.dpp:
                    n = max(n, 5)
                if c.base.startswith('v_permlane') or c.base in ('v_readfirstlane_b32', 'v_readlane_b32'):
                    n = max(n, 4)
            if ('op_sel' in p.mods or p.mn.endswith('sdwa')) and pv & (vr(c.uses) | vr(c.defs)):
                n = max(n, 1)
        if c.kind == 'mfma' and ps & EXEC:
            n = max(n, 4)
        if c.kind == 'vmem' and ps & sr(c.uses):
            n = max(n, 5)
        if c.kind == 'salu' and ps & sr(c.uses):
            n = max(n, 1)
    if p.kind == 'mfma':
        D = p.defs
        if c.kind == 'mfma':
            if D & c.srcab:
                n = max(n, XDL_RD[p.passes])
            if D & c.srcc:
                if not (c.srcc == D and c.passes == p.passes):
                    n = max(n, XDL_OVL[p.passes])
            elif D & c.defs:
                n = max(n, XDL_OVL[p.passes])
        elif c.kind in ('valu', 'vmem', 'ds'):
            if D & (c.uses | c.defs):
                n = max(n, XDL_RD[p.passes])
            if c.kind == 'valu' and p.srcc & c.defs:
                n = max(n, XDL_WARC[p.passes])
    if p.kind == 'vmem' and p.store_data:
        if c.kind in ('valu', 'mfma') and p.store_data & c.defs:
            n = max(n, 2)
        elif p.store_data & c.defs:
            n = max(n, 1)
    if p.kind == 'salu' and p.defs & M0:
        if c.kind == 'vmem' and c.uses & M0:
            n = max(n, 1)
    return n


def build_cfg(ins):
    labels = {i.label: k for k, i in enumerate(ins) if i.kind == 'label'}
    succ = [[] for _ in ins]
    for k, i in enumerate(ins):
        if i.kind == 'end':
            continue
        if i.kind == 'branch':
            succ[k].append(labels[i.target])
            if i.mn != 's_branch' and k + 1 < len(ins):
                succ[k].append(k + 1)
        elif k + 1 < len(ins):
            succ[k].append(k + 1)
    pred = [[] for _ in ins]
    for k, s in enumerate(succ):
        for t in s:
            pred[t].append(k)
    return succ, pred


def fix_hazards(ins):
    MAXD = 12
    added = 0
    while True:
        succ, pred = build_cfg(ins)
        out = []
        changed = False
        for k, c in enumerate(ins):
            if c.kind in ('valu', 'mfma', 'vmem', 'ds', 'salu'):
                lack = 0
                stack = [(p, 0) for p in pred[k]]
                seen = {}
                while stack:
                    q, d = stack.pop()
                    if seen.get(q, 99) <= d:
                        continue
                    seen[q] = d
                    p = ins[q]
                    n = need_states(p, c)
                    if n > d:
                        lack = max(lack, n - d)
                    d2 = d + p.states
                    if d2 < MAXD:
                        for pp in pred[q]:
                            stack.append((pp, d2))
                if lack > 0:
                    out.append(Ins('    s_nop %d ; hazard' % (lack - 1), auto=True))
                    added += lack
                    changed = True
                    out.extend(ins[k:])
                    break
            out.append(c)
        ins = out
        if not changed:
            return ins, added


def fix_hazards_fast(ins):
    MAXD = 12
    total = 0
    for _ in range(50):
        succ, pred = build_cfg(ins)
        extra = [0] * len(ins)
        any_ = False
        for k, c in enumerate(ins):
            if c.kind not in ('valu', 'mfma', 'vmem', 'ds', 'salu'):
                continue
            lack = 0
            stack = [(p, 0) for p in pred[k]]
            seen = {}
            while stack:
                q, d = stack.pop()
                if seen.get(q, 99) <= d:
                    continue
                seen[q] = d
                p = ins[q]
                n = need_states(p, c)
                if n > d:
                    lack = max(lack, n - d)
                d2 = d + p.states + extra[q]
                if d2 < MAXD:
                    for pp in pred[q]:
                        stack.append((pp, d2))
            if lack > 0:
                extra[k] = lack
                any_ = True
        if not any_:
            return ins, total
        out = []
        for k, c in enumerate(ins):
            if extra[k]:
                out.append(Ins('    s_nop %d' % (extra[k] - 1), auto=True))
                total += extra[k]
            out.append(c)
        ins = out
    raise RuntimeError('hazard fixing did not converge')


def _merge(a, b):
    if a is None:
        return b
    n = max(len(a), len(b))
    res = []
    for i in range(n):
        x = a[i] if i < len(a) else frozenset()
        y = b[i] if i < len(b) else frozenset()
        res.append(x | y)
    return tuple(res)


SM = ('smem', 0)


def insert_waits(ins):
    for _ in range(200):
        succ, pred = build_cfg(ins)
        st_in = [None] * len(ins)
        entries = [k for k in range(len(ins)) if not pred[k]]
        work = list(entries)
        for k in entries:
            st_in[k] = ((), ())
        need = {}

        def transfer(k, st):
            vm, lg = st
            i = ins[k]
            touched = i.uses | i.defs
            nv = nl = None
            if touched and i.kind != 'wait':
                for pos, s in enumerate(vm):
                    if s & touched:
                        nv = pos
                        break
                for pos, s in enumerate(lg):
                    if s & touched:
                        nl = pos
                        break
                if nl is not None and any(SM in s for s in lg):
                    nl = 0
            if nv is not None or nl is not None:
                o = need.get(k, (None, None))
                a = nv if o[0] is None else (o[0] if nv is None else min(nv, o[0]))
                b = nl if o[1] is None else (o[1] if nl is None else min(nl, o[1]))
                need[k] = (a, b)
                if nv is not None:
                    vm = vm[:nv]
                if nl is not None:
                    lg = lg[:nl]
            if i.kind == 'wait':
                if i.vm is not None:
                    vm = vm[:i.vm]
                if i.lgkm is not None:
                    if i.lgkm == 0 or not any(SM in s for s in lg):
                        lg = lg[:i.lgkm]
            elif i.kind == 'vmem':
                vm = (frozenset(i.defs),) + vm
                if len(vm) > 64:
                    vm = vm[:63] + (frozenset().union(*vm[63:]),)
            elif i.kind == 'ds':
                lg = (frozenset(i.defs),) + lg
                if len(lg) > 16:
                    lg = lg[:15] + (frozenset().union(*lg[15:]),)
            elif i.kind == 'smem':
                lg = (frozenset(i.defs | {SM}),) + lg
                if len(lg) > 16:
                    lg = lg[:15] + (frozenset().union(*lg[15:]),)
            return (vm, lg)

        while work:
            k = work.pop()
            out = transfer(k, st_in[k])
            for t in succ[k]:
                if st_in[t] is None:
                    st_in[t] = out
                    work.append(t)
                else:
                    m = (_merge(st_in[t][0], out[0]), _merge(st_in[t][1], out[1]))
                    if m != st_in[t]:
                        st_in[t] = m
                        work.append(t)
        if not need:
            return ins
        out = []
        for k, i in enumerate(ins):
            if k in need:
                a, b = need[k]
                t = '    s_waitcnt'
                if a is not None:
                    t += ' vmcnt(%d)' % min(a, 63)
                if b is not None:
                    t += ' lgkmcnt(%d)' % min(b, 15)
                out.append(Ins(t, auto=True))
            out.append(i)
        ins = out
    raise RuntimeError('wait insertion did not converge')


class Prog:
    def __init__(self):
        self.lines = []
        self._uid = 0

    def __call__(self, text):
        for ln in text.split('\n'):
            ln = ln.rstrip()
            if not ln.strip():
                continue
            s = ln.strip()
            if s.endswith(':') or s.startswith('.') or s.startswith(';'):
                self.lines.append(s)
            else:
                self.lines.append('    ' + s)

    def label(self, name):
        self.lines.append(name + ':')

    def uid(self, p='L'):
        self._uid += 1
        return '%s_%d' % (p, self._uid)

    def finish(self):
        ins = [Ins(l) for l in self.lines]
        ins = insert_waits(ins)
        ins, n = fix_hazards_fast(ins)
        return '\n'.join(i.text for i in ins) + '\n'


def interleave(main, side, ratio=None, start=0, end=None):
    main = list(main)
    side = list(side)
    if end is None:
        end = len(main)
    n = end - start
    out = main[:start]
    j = 0
    for i in range(n):
        out.append(main[start + i])
        upto = (i + 1) * len(side) // n if ratio is None else min(len(side), (i + 1) * ratio)
        while j < upto:
            out.append(side[j])
            j += 1
    out.extend(side[j:])
    out.extend(main[end:])
    return out
```

```python
from layout import *

SENT = 0xFF81FF81

S_WS = 's[8:11]'
S_W = 's12'
S_H = 's13'
S_G = 's14'
S_PURE = 's15'
S_LAYER = 's16'
S_S = 's17'
S_C = 's18'
S_SENT = 's19'

NLDSQ = 32
L_MEM = 4 * NLDSQ * 1024
L_SC = L_MEM + 8192
L_O = L_SC + 12288
L_END = L_O + 4096
DPPF = 'row_mask:0xf bank_mask:0xf'
MF = 'v_mfma_f32_16x16x32_bf16'
MF16 = 'v_mfma_f32_16x16x16_bf16'


GUARD = 's_sub_u32 s3, s3, 1\ns_cbranch_scc1 main_timeout'


def q4(b):
    return 'v[%d:%d]' % (b, b + 3)


def q2(b):
    return 'v[%d:%d]' % (b, b + 1)


V_L16, V_WL, V_MW, V_SCW, V_SCX, V_SCM, V_OW, V_PST, V_MST, V_T0, V_T1 = range(1, 12)
V_FL = 0
V_SEL = 12
MEM = 16
AQ = 48
AK = 64
AV = 80
KX = 96
VX = 104
WB = 112
WV0 = 128
NWB = 4


def streams():
    st = []
    for p in range(2):
        for par in range(2):
            st += [('q', 0, p, par), ('q', 1, p, par), ('k', 0, p, par), ('k', 1, p, par)]
    for p in range(2, 8):
        for par in range(2):
            st += [('q', 0, p, par), ('q', 1, p, par)]
    for t in range(2):
        for p in range(2, 8):
            for par in range(2):
                st.append(('k', t, p, par))
    for t in range(2):
        for p in range(8):
            for par in range(2):
                st.append(('v', t, p, par))
    ost = [('o', T_, 0) for T_ in range(8)]
    for half in range(2):
        for pp in range(1, 4):
            for T_ in range(4 * half, 4 * half + 4):
                ost.append(('o', T_, pp))
    lds_pos = [3 * i + 1 for i in range(NLDSQ)]
    home = {}
    regs = ['a[%d:%d]' % (4 * i, 4 * i + 3) for i in range(64)] + [q4(WV0 + 4 * i) for i in range(32)]
    ri = 0
    for i, it in enumerate(st):
        if i in lds_pos:
            home[it] = ('lds', lds_pos.index(i))
        else:
            home[it] = ('reg', regs[ri])
            ri += 1
    for it in ost:
        home[it] = ('reg', regs[ri])
        ri += 1
    assert ri == len(regs)
    return st, ost, home


def gen_chain(P, opt):
    RS = opt.get('RS', 2048)
    stream, ostream, home = streams()
    P.label('chain_role')
    P(f'''
    v_and_b32 v0, 63, v0
    v_lshlrev_b32 v{V_L16}, 4, v0
    s_mul_i32 s20, {S_W}, {NLDSQ * 1024}
    v_add_u32 v{V_WL}, s20, v{V_L16}
    s_lshl_b32 s21, {S_W}, 11
    s_add_u32 s22, s21, {L_MEM}
    v_add_u32 v{V_MW}, s22, v{V_L16}
    s_mul_i32 s22, {S_W}, 3072
    s_add_u32 s22, s22, {L_SC}
    v_add_u32 v{V_SCW}, s22, v{V_L16}
    v_and_b32 v{V_T0}, 0x37, v0
    v_lshlrev_b32 v{V_T0}, 4, v{V_T0}
    v_bfe_u32 v{V_T1}, v0, 3, 1
    v_lshl_add_u32 v{V_SCX}, v{V_T1}, 10, v{V_T0}
    v_add_u32 v{V_SCX}, {L_SC + 1024}, v{V_SCX}
    v_and_b32 v{V_T0}, 0x17, v0
    v_lshlrev_b32 v{V_T0}, 4, v{V_T0}
    v_lshl_add_u32 v{V_SCM}, v{V_T1}, 3, v{V_T0}
    v_add_u32 v{V_SCM}, {L_SC}, v{V_SCM}
    s_lshl_b32 s22, {S_W}, 10
    s_add_u32 s22, s22, {L_O}
    v_add_u32 v{V_OW}, s22, v{V_L16}
    ''')
    assert L_MEM % 8192 == 0 and L_O % 4096 == 0
    P(f'''
    v_lshrrev_b32 v{V_T0}, 2, v0
    s_lshl_b32 s22, {S_W}, 5
    v_add_u32 v{V_T0}, s22, v{V_T0}
    s_mov_b32 s23, {RS}
    v_mul_lo_u32 v{V_T0}, v{V_T0}, s23
    v_and_b32 v{V_T1}, 3, v0
    v_lshlrev_b32 v{V_T1}, 4, v{V_T1}
    s_lshl_b32 s22, {S_H}, 6
    v_add3_u32 v{V_PST}, v{V_T0}, v{V_T1}, s22
    v_lshrrev_b32 v{V_T0}, 4, v0
    v_lshlrev_b32 v{V_T0}, 3, v{V_T0}
    s_lshl_b32 s22, {S_H}, 2
    s_add_u32 s24, s22, {S_W}
    s_lshl_b32 s22, s24, 6
    v_add3_u32 v{V_MST}, v{V_T0}, v{V_T1}, s22
    v_and_b32 v{V_T0}, 15, v0
    ''')
    for i in range(4):
        P(f'''
        v_mov_b32 v{V_SEL + i}, 0
        v_mov_b32 v{V_T1}, 0x3f80
        v_cmp_eq_u32 vcc, {2 * i}, v{V_T0}
        v_cndmask_b32 v{V_SEL + i}, v{V_SEL + i}, v{V_T1}, vcc
        v_mov_b32 v{V_T1}, 0x3f800000
        v_cmp_eq_u32 vcc, {2 * i + 1}, v{V_T0}
        v_cndmask_b32 v{V_SEL + i}, v{V_SEL + i}, v{V_T1}, vcc
        ''')
    P(f'''
    s_lshl_b32 s25, {S_LAYER}, 20
    s_add_u32 s25, s25, {CPART}
    s_lshl_b32 s26, {S_LAYER}, 14
    s_add_u32 s26, s26, {CMEM}
    s_mul_i32 s27, s24, {RS}
    s_lshl_b32 s22, {S_LAYER}, 24
    s_lshl_b32 s23, s24, 11
    s_add_u32 s22, s22, s23
    s_add_u32 s28, s22, {KIMG}
    s_add_u32 s29, s22, {VIMG}
    s_add_u32 s30, s22, {KMVM}
    s_lshl_b32 s22, {S_LAYER}, 15
    s_lshl_b32 s23, s24, 2
    s_add_u32 s22, s22, s23
    s_add_u32 s31, s22, {F_KV}
    s_add_u32 s32, s22, {F_KM}
    s_mov_b32 s34, 0x00ff00ff
    s_mov_b32 s35, 0x00ff00ff
    s_mov_b32 s36, 0xff00ff00
    s_mov_b32 s37, 0xff00ff00
    s_mov_b32 s38, 0
    s_mov_b32 s39, -1
    s_mov_b32 s54, -1
    s_mov_b32 s55, 0
    s_lshl_b32 s40, {S_H}, 17
    s_lshl_b32 s41, {S_W}, 15
    s_add_u32 s40, s40, s41
    s_lshl_b32 s41, {S_W}, 12
    s_lshl_b32 s42, {S_W}, 10
    ''')
    XI = {'q': 0, 'k': 1, 'v': 2, 'o': 3}
    for it in stream + ostream:
        if it[0] == 'o':
            _, T_, pp = it
            P(f's_xor_b32 s43, s42, {pp * 1024}')
            P(f's_add_u32 s43, s43, {WIMG + 3 * 4 * MB + T_ * 4096}')
        else:
            X, t, p, par = it
            P(f's_xor_b32 s43, s41, {(2 * p + par) * 1024}')
            P(f's_add_u32 s43, s43, {WIMG + XI[X] * 4 * MB + t * 16384}')
        P('s_add_u32 s43, s43, s40')
        kind, where = home[it]
        if kind == 'reg':
            P(f'buffer_load_dwordx4 {where}, v{V_L16}, {S_WS}, s43 offen')
        else:
            P(f's_add_u32 m0, s20, {where * 1024}')
            P(f'buffer_load_dwordx4 v{V_L16}, {S_WS}, s43 offen lds')
    P(f'''
    v_and_b32 v{V_T0}, 7, v0
    v_lshlrev_b32 v{V_T0}, 10, v{V_T0}
    v_bfe_u32 v{V_T1}, v0, 3, 1
    v_lshl_add_u32 v{V_T0}, v{V_T1}, 6, v{V_T0}
    v_lshrrev_b32 v{V_T1}, 4, v0
    v_lshl_add_u32 v{V_T0}, v{V_T1}, 4, v{V_T0}
    s_lshl_b32 s22, {S_W}, 8
    buffer_load_dwordx4 {q4(MEM)}, v{V_T0}, s[44:47], s22 offen
    buffer_load_dwordx4 {q4(MEM + 4)}, v{V_T0}, s[44:47], s22 offen offset:128
    ''')
    opt['resolve_pure'](P, V_T0, V_T1)
    lw = P.uid('ch_kv0')
    P(f'''
    {lw}:
    {GUARD}
    buffer_load_dword v{V_T1}, off, {S_WS}, s31 sc1
    s_waitcnt vmcnt(0)
    v_cmp_eq_u32 vcc, 0, v{V_T1}
    s_cbranch_vccnz {lw}
    buffer_load_dwordx4 {q4(KX)}, v{V_L16}, {S_WS}, s28 offen sc1
    buffer_load_dwordx4 {q4(KX + 4)}, v{V_L16}, {S_WS}, s28 offen offset:1024 sc1
    buffer_load_dwordx4 {q4(VX)}, v{V_L16}, {S_WS}, s29 offen sc1
    buffer_load_dwordx4 {q4(VX + 4)}, v{V_L16}, {S_WS}, s29 offen offset:1024 sc1
    s_waitcnt vmcnt(0)
    s_barrier
    ''')
    for i in range(NWB):
        P(f'ds_read_b128 {q4(WB + 4 * i)}, v{V_WL} offset:{i * 1024}')
    P(f's_mov_b32 {S_S}, 0')
    if opt.get('stamp'):
        P('s_memtime s[60:61]\ns_memrealtime s[62:63]\ns_waitcnt lgkmcnt(0)')
        for i in range(8):
            P(f's_mov_b32 s{70 + i}, 0')
        P('s_mov_b32 s68, s60')
    P(f's_cmp_eq_u32 {S_PURE}, 0\ns_cbranch_scc1 chain_slow_step')
    chain_loop(P, opt, 'fast')
    chain_loop(P, opt, 'slow')
    P.label('chain_done')
    if opt.get('stamp'):
        P(f'''
        s_memtime s[64:65]
        s_memrealtime s[66:67]
        s_waitcnt lgkmcnt(0)
        s_sub_u32 s64, s64, s60
        s_sub_u32 s66, s66, s62
        s_lshl_b32 s22, {S_G}, 7
        s_add_u32 s22, s22, s24
        s_lshl_b32 s22, s22, 6
        s_add_u32 s22, s22, {STAMP}
        v_mov_b32 v16, s64
        v_mov_b32 v17, s66
        v_mov_b32 v18, {S_PURE}
        v_mov_b32 v19, s62
        buffer_store_dwordx4 v[16:19], off, {S_WS}, s22
        v_mov_b32 v20, s70
        v_mov_b32 v21, s71
        v_mov_b32 v22, s72
        v_mov_b32 v23, s73
        buffer_store_dwordx4 v[20:23], off, {S_WS}, s22 offset:16
        v_mov_b32 v24, s74
        v_mov_b32 v25, s75
        v_mov_b32 v26, s76
        v_mov_b32 v27, s77
        buffer_store_dwordx4 v[24:27], off, {S_WS}, s22 offset:32
        ''')
    P('s_waitcnt vmcnt(0)\ns_endpgm')


def chain_loop(P, opt, mode):
    RS = opt.get('RS', 2048)
    stream, ostream, home = streams()
    XS = '' if mode == 'fast' else ' sc1'
    tag = 'chain_' + mode
    QOP = AQ + 4
    SX = AQ + 8
    XSC = AQ + 0
    RD = AV
    OX = AQ + 8
    KOP = AK + 4
    SM = AK + 0
    RM = AK + 8
    PX = AK + 0
    PM = AK + 10
    MX, NM, SUM = AK + 12, AK + 13, AK + 14
    VOP = AQ + 4
    OOP = AK + 4
    OIN = [AV, AV + 4, AV + 8]
    AO = MEM
    PK = [AQ + 0, AQ + 4]
    PKT = AQ + 8
    RED = [AK + 0, AK + 8]
    RDD = AQ + 12

    def stamp(i):
        if opt.get('stamp', 0) >= 2:
            return ['s_memtime s[64:65]', 's_waitcnt lgkmcnt(0)', 's_sub_u32 s69, s64, s68',
                    f's_add_u32 s{70 + i}, s{70 + i}, s69', 's_mov_b32 s68, s64']
        return []

    def acc(X, t, par):
        return {'q': AQ, 'k': AK, 'v': AV}[X] + 8 * t + 4 * par

    first = set()
    main = []
    for it in stream:
        X, t, p, par = it
        kind, where = home[it]
        wreg = where if kind == 'reg' else q4(WB + 4 * (where % NWB))
        a = acc(X, t, par)
        c = q4(a) if (X, t, par) in first else '0'
        first.add((X, t, par))
        if X == 'v':
            grp = [f'{MF} {q4(a)}, {q4(MEM + 4 * p)}, {wreg}, {c}']
        else:
            grp = [f'{MF} {q4(a)}, {wreg}, {q4(MEM + 4 * p)}, {c}']
        if kind == 'lds':
            nxt = (where + NWB) % NLDSQ
            grp.append(f'ds_read_b128 {q4(WB + 4 * (nxt % NWB))}, v{V_WL} offset:{nxt * 1024}')
        main.append(grp)

    def put(pos, instrs, per=2):
        k = pos
        instrs = list(instrs)
        while instrs:
            if k >= len(main):
                main.append([])
            main[k].extend(instrs[:per])
            instrs = instrs[per:]
            k += 1
        return k

    def dppadd(d, a, b, ror=8):
        return f'v_add_f32_dpp v{d}, v{a}, v{b} row_ror:{ror} {DPPF}'

    def cvt(d, a):
        return f'v_cvt_pk_bf16_f32 v{d}, v{a}, v{a + 1}'

    def xlane(op, x, t):
        return [f'v_mov_b32 v{t}, v{x}', f'v_permlane16_swap_b32 v{x}, v{t}', f'{op} v{x}, v{x}, v{t}',
                f'v_mov_b32 v{t}, v{x}', f'v_permlane32_swap_b32 v{x}, v{t}', f'{op} v{x}, v{x}, v{t}']

    P.label(tag + '_step')
    P(f'ds_write_b128 v{V_MW}, {q4(MEM)}')
    P(f'ds_write_b128 v{V_MW}, {q4(MEM + 4)} offset:1024')
    put(0, [f'v_xor_b32 v{V_T0}, 2048, v{V_MW}', f'v_xor_b32 v{V_T1}, 4096, v{V_MW}'], 1)
    put(4, ['s_waitcnt lgkmcnt(0)', 's_barrier',
            f'ds_read_b128 {q4(MEM + 8)}, v{V_T0}', f'ds_read_b128 {q4(MEM + 12)}, v{V_T0} offset:1024',
            f'ds_read_b128 {q4(MEM + 16)}, v{V_T1}', f'ds_read_b128 {q4(MEM + 20)}, v{V_T1} offset:1024',
            f'v_xor_b32 v{V_T0}, 6144, v{V_MW}',
            f'ds_read_b128 {q4(MEM + 24)}, v{V_T0}', f'ds_read_b128 {q4(MEM + 28)}, v{V_T0} offset:1024'], 4)
    side = [
        f's_add_u32 s48, {S_S}, 1',
        's_and_b32 s48, s48, 1',
        's_lshl_b32 s49, s48, 19',
        's_add_u32 s49, s49, s25',
        's_add_u32 s49, s49, s27',
        f'v_mov_b32 v{RD}, {S_SENT}', f'v_mov_b32 v{RD + 1}, {S_SENT}',
        f'v_mov_b32 v{RD + 2}, {S_SENT}', f'v_mov_b32 v{RD + 3}, {S_SENT}',
        's_add_u32 s31, s31, 512',
        f'buffer_store_dwordx4 {q4(RD)}, v{V_L16}, {S_WS}, s49 offen{XS}',
        f'buffer_store_dwordx4 {q4(RD)}, v{V_L16}, {S_WS}, s49 offen offset:1024{XS}',
        's_lshl_b32 s48, s48, 13',
        's_add_u32 s48, s48, s26',
    ]
    put(8, [f'v_mov_b32 v{RD + 4}, {S_S}', f'buffer_store_dword v{RD + 4}, off, {S_WS}, s32 sc1',
             f's_min_u32 s33, {S_S}, 1', 's_lshl_b32 s33, s33, 9', 's_add_u32 s32, s32, s33'], 1)
    k = put(16, side, 2)
    main[k].extend(['s_mov_b64 exec, 0x000f000f',
                    f'buffer_store_dwordx2 {q2(RD)}, v{V_MST}, {S_WS}, s48 offen{XS}',
                    's_mov_b64 exec, -1',
                    f'buffer_load_dword v{V_FL}, off, {S_WS}, s31 sc1'])
    put(k + 1, [f's_and_b32 s50, {S_S}, 1', 's_lshl_b32 s50, s50, 19', 's_add_u32 s50, s50, s25',
                's_add_u32 s51, s50, s27', f's_add_u32 s53, s50, {16 * RS}', 's_add_u32 s52, s48, s21',
                's_add_u32 s28, s28, 0x40000', 's_add_u32 s29, s29, 0x40000'], 2)
    sb = [dppadd(AQ + 8 * t + r, AQ + 8 * t + 4 + r, AQ + 8 * t + r) for t in range(2) for r in range(4)]
    sb += [cvt(QOP + 2 * t + i, AQ + 8 * t + 2 * i) for t in range(2) for i in range(2)]
    k = put(42, sb, 2)
    k = put(k, [f'{MF} {q4(SX)}, {q4(KX)}, {q4(QOP)}, 0', f'{MF} {q4(SX + 4)}, {q4(KX + 4)}, {q4(QOP)}, 0'], 2)
    k = put(k + 3, [f'ds_write_b128 v{V_SCW}, {q4(SX)} offset:1024',
                    f'ds_write_b128 v{V_SCW}, {q4(SX + 4)} offset:2048'], 1)
    k = put(k, [dppadd(AK + r, AK + 4 + r, AK + r) for r in range(4)] + [cvt(KOP, AK), cvt(KOP + 1, AK + 2)], 2)
    k = put(k, ['s_waitcnt lgkmcnt(0)', 's_barrier'] +
            [f'ds_read_b128 {q4(RD + 4 * u)}, v{V_SCX} offset:{3072 * u}' for u in range(4)], 3)
    sx = [f'v_add_f32 v{RD + r}, v{RD + r}, v{RD + 4 + r}' for r in range(4)]
    sx += [f'v_add_f32 v{RD + 8 + r}, v{RD + 8 + r}, v{RD + 12 + r}' for r in range(4)]
    sx += [f'v_add_f32 v{XSC + r}, v{RD + r}, v{RD + 8 + r}' for r in range(4)]
    assert k + 2 <= 62, k
    k = put(62, sx, 6)
    assert k <= 64
    k = put(66, [dppadd(AK + 8 + r, AK + 12 + r, AK + 8 + r) for r in range(4)] +
            [cvt(KOP + 2, AK + 8), cvt(KOP + 3, AK + 10)], 3)
    k = put(k, [f'{MF} {q4(SM)}, {q4(KOP)}, {q4(QOP)}, 0',
                f'buffer_store_dwordx4 {q4(KOP)}, v{V_L16}, {S_WS}, s30 offen sc1'], 2)
    k = put(k + 2, [f'ds_write_b128 v{V_SCW}, {q4(SM)}'], 1)
    k = put(k + 2, ['s_waitcnt lgkmcnt(0)', 's_barrier'] +
            [f'ds_read_b64 {q2(RM + 2 * u)}, v{V_SCM} offset:{3072 * u}' for u in range(4)], 6)
    sx = [f'v_add_f32 v{RM + r}, v{RM + r}, v{RM + 2 + r}' for r in range(2)]
    sx += [f'v_add_f32 v{RM + 4 + r}, v{RM + 4 + r}, v{RM + 6 + r}' for r in range(2)]
    sx += [f'v_add_f32 v{RM + r}, v{RM + r}, v{RM + 4 + r}' for r in range(2)]
    sx += [f'v_max3_f32 v{MX}, v{XSC}, v{XSC + 1}, v{XSC + 2}',
           f'v_max3_f32 v{NM}, v{XSC + 3}, v{RM}, v{RM + 1}',
           f'v_max_f32 v{MX}, v{MX}, v{NM}',
           f'v_max_f32_dpp v{MX}, v{MX}, v{MX} row_ror:8 {DPPF}']
    sx += xlane('v_max_f32', MX, NM)
    sx += [f'v_mul_f32 v{NM}, {S_C}, v{MX}']
    vals = [XSC + r for r in range(4)] + [RM, RM + 1]
    sx += [f'v_fma_f32 v{x}, v{x}, {S_C}, -v{NM}' for x in vals]
    sx += [f'v_exp_f32 v{x}, v{x}' for x in vals]
    sx += [f'v_add_f32 v{SUM}, v{XSC}, v{XSC + 1}',
           f'v_add_f32 v{NM}, v{XSC + 2}, v{XSC + 3}',
           f'v_add_f32 v{MX}, v{RM}, v{RM + 1}',
           f'v_add_f32 v{SUM}, v{SUM}, v{NM}',
           f'v_fma_f32 v{SUM}, v{MX}, 0.5, v{SUM}',
           dppadd(SUM, SUM, SUM)]
    sx += xlane('v_add_f32', SUM, NM)
    sx += [f'v_rcp_f32 v{SUM}, v{SUM}']
    sx += [f'v_mul_f32 v{x}, v{x}, v{SUM}' for x in vals]
    sx += [cvt(PX, XSC), cvt(PX + 1, XSC + 2), cvt(PX + 2, XSC), cvt(PX + 3, XSC + 2), cvt(PM, RM), cvt(PM + 1, RM)]
    sx += [f'v_mov_b32_dpp v{PX}, v{PX + 2} row_ror:8 row_mask:0xf bank_mask:0xc',
           f'v_mov_b32_dpp v{PX + 1}, v{PX + 3} row_ror:8 row_mask:0xf bank_mask:0xc',
           f'v_mov_b32_dpp v{PM}, v{PM + 1} row_ror:8 row_mask:0xf bank_mask:0xc',
           f'v_mov_b32_dpp v{PX + 2}, v{PX + 2} row_ror:8 row_mask:0xf bank_mask:0x3',
           f'v_mov_b32_dpp v{PX + 3}, v{PX + 3} row_ror:8 row_mask:0xf bank_mask:0x3',
           f'v_mov_b32_dpp v{PM + 1}, v{PM + 1} row_ror:8 row_mask:0xf bank_mask:0x3']
    start = k + 3
    nslots = 96 - start
    per = -(-len(sx) // nslots)
    put(start, sx, per)
    assert len(main) == 96
    for gi, grp in enumerate(main):
        for i in grp:
            P(i)
        if opt.get('stamp') == 3 and gi in (6, 39):
            for i in stamp(4 + (6, 39).index(gi)):
                P(i)
        if opt.get('stamp') == 4 and gi in (63, 75):
            for i in stamp(4 + (63, 75).index(gi)):
                P(i)
    for i in stamp(0):
        P(i)
    KL = f'''buffer_load_dwordx4 {q4(KX)}, v{V_L16}, {S_WS}, s28 offen sc1
    buffer_load_dwordx4 {q4(KX + 4)}, v{V_L16}, {S_WS}, s28 offen offset:1024 sc1'''
    VL = f'''buffer_load_dwordx4 {q4(VX)}, v{V_L16}, {S_WS}, s29 offen sc1
    buffer_load_dwordx4 {q4(VX + 4)}, v{V_L16}, {S_WS}, s29 offen offset:1024 sc1'''
    if opt.get('nokv'):
        KL = VL = ''
    P(f'''
    {MF} {q4(OX)}, {q4(VX)}, {q4(PX)}, 0
    {MF} {q4(OX + 4)}, {q4(VX + 4)}, {q4(PX)}, 0
    s_mov_b64 exec, s[54:55]
    {cvt(VOP, AV)}
    {cvt(VOP + 1, AV + 2)}
    {cvt(VOP + 2, AV + 8)}
    {cvt(VOP + 3, AV + 10)}
    s_mov_b64 exec, s[38:39]
    {cvt(VOP, AV + 4)}
    {cvt(VOP + 1, AV + 6)}
    {cvt(VOP + 2, AV + 12)}
    {cvt(VOP + 3, AV + 14)}
    s_mov_b64 exec, -1
    {MF16} {q4(OX)}, {q2(VOP)}, {q2(PM)}, {q4(OX)}
    {MF16} {q4(OX + 4)}, {q2(VOP + 2)}, {q2(PM)}, {q4(OX + 4)}
    buffer_store_dwordx4 {q4(VOP)}, v{V_L16}, {S_WS}, s30 offen offset:1024 sc1
    s_cmp_eq_u32 {S_S}, {NS - 1}
    s_cbranch_scc1 {tag}_last
    v_cmp_eq_u32 vcc, 0, v{V_FL}
    s_cbranch_vccnz {tag}_kvwait
    {tag}_kvok:
    {KL}
    {cvt(OOP, OX)}
    {cvt(OOP + 1, OX + 2)}
    {cvt(OOP + 2, OX + 4)}
    {cvt(OOP + 3, OX + 6)}
    ds_write_b128 v{V_OW}, {q4(OOP)}
    {VL}
    ''')
    om = []
    for (_, T_, pp) in ostream:
        b = q4(OOP) if pp == 0 else q4(OIN[pp - 1])
        c = '0' if pp == 0 else q4(AO + 4 * T_)
        om.append([f'{MF} {q4(AO + 4 * T_)}, {home[("o", T_, pp)][1]}, {b}, {c}'])
    main = om
    put(0, [f'v_xor_b32 v{V_T0}, 1024, v{V_OW}', f'v_xor_b32 v{V_T1}, 2048, v{V_OW}'], 1)
    put(2, ['s_waitcnt lgkmcnt(0)', 's_barrier', f'ds_read_b128 {q4(OIN[0])}, v{V_T0}',
            f'ds_read_b128 {q4(OIN[1])}, v{V_T1}', f'v_xor_b32 v{V_T0}, 3072, v{V_OW}',
            f'ds_read_b128 {q4(OIN[2])}, v{V_T0}'], 6)
    pk = [cvt(PK[0] + i, AO + 2 * i) for i in range(4)] + [cvt(PKT + i, AO + 8 + 2 * i) for i in range(4)]
    pk += [f'v_mov_b32_dpp v{PK[0] + i}, v{PKT + i} quad_perm:[0,1,2,3] row_mask:0xf bank_mask:0xc' for i in range(4)]
    pk += [f'buffer_store_dwordx4 {q4(PK[0])}, v{V_PST}, {S_WS}, s50 offen{XS}']
    put(14, ['s_add_u32 s30, s30, 0x40000'], 2)
    put(22, pk, 2)
    assert len(main) == 32
    for grp in main:
        for i in grp:
            P(i)
    P('s_mov_b64 exec, s[34:35]')
    for i in range(4):
        P(cvt(PK[1] + i, AO + 16 + 2 * i))
    P('s_mov_b64 exec, s[36:37]')
    for i in range(4):
        P(cvt(PK[1] + i, AO + 24 + 2 * i))
    P('s_mov_b64 exec, -1')
    P(f'buffer_store_dwordx4 {q4(PK[1])}, v{V_PST}, {S_WS}, s53 offen{XS}')
    for i in stamp(1):
        P(i)
    P(f'''
    {tag}_rpoll:
    buffer_load_dwordx4 {q4(RED[0])}, v{V_L16}, {S_WS}, s51 offen sc1
    buffer_load_dwordx4 {q4(RED[1])}, v{V_L16}, {S_WS}, s51 offen offset:1024 sc1
    s_mov_b64 exec, -1
    s_waitcnt vmcnt(0)
    {MF} {q4(RDD)}, {q4(V_SEL)}, {q4(RED[0])}, 0
    {MF} {q4(RDD)}, {q4(V_SEL)}, {q4(RED[1])}, {q4(RDD)}
    v_max3_u32 v{V_T0}, v{RED[0]}, v{RED[0] + 1}, v{RED[0] + 2}
    v_max3_u32 v{V_T1}, v{RED[0] + 3}, v{RED[1]}, v{RED[1] + 1}
    v_max3_u32 v{V_T0}, v{V_T0}, v{RED[1] + 2}, v{RED[1] + 3}
    v_max_u32 v{V_T0}, v{V_T0}, v{V_T1}
    v_cmp_eq_u32 vcc, {S_SENT}, v{V_T0}
    s_cbranch_vccz {tag}_rok
    s_mov_b64 exec, vcc
    ''')
    if opt.get('stamp'):
        P('s_add_u32 s76, s76, 1')
    P(f'''
    {GUARD}
    s_branch {tag}_rpoll
    {tag}_rok:
    ''')
    for ror in (4, 8):
        for r in range(4):
            P(dppadd(RDD + r, RDD + r, RDD + r, ror))
    P(f'''
    {cvt(RDD, RDD)}
    {cvt(RDD + 1, RDD + 2)}
    s_mov_b64 exec, 0x000f000f
    buffer_store_dwordx2 {q2(RDD)}, v{V_MST}, {S_WS}, s48 offen{XS}
    s_mov_b64 exec, -1
    s_add_u32 {S_S}, {S_S}, 1
    ''')
    for i in stamp(2):
        P(i)
    P(f'''
    {tag}_gpoll:
    buffer_load_dwordx4 {q4(MEM)}, v{V_L16}, {S_WS}, s52 offen sc1
    buffer_load_dwordx4 {q4(MEM + 4)}, v{V_L16}, {S_WS}, s52 offen offset:1024 sc1
    s_mov_b64 exec, -1
    s_waitcnt vmcnt(0)
    v_max3_u32 v{V_T0}, v{MEM}, v{MEM + 1}, v{MEM + 2}
    v_max3_u32 v{V_T1}, v{MEM + 3}, v{MEM + 4}, v{MEM + 5}
    v_max3_u32 v{V_T0}, v{V_T0}, v{MEM + 6}, v{MEM + 7}
    v_max_u32 v{V_T0}, v{V_T0}, v{V_T1}
    v_cmp_eq_u32 vcc, {S_SENT}, v{V_T0}
    ''')
    if opt.get('stamp', 0) >= 2:
        P(f's_cbranch_vccnz {tag}_gre')
        for i in stamp(3):
            P(i)
        P(f's_branch {tag}_step\n{tag}_gre:')
    else:
        P(f's_cbranch_vccz {tag}_step')
    P('s_mov_b64 exec, vcc')
    if opt.get('stamp'):
        P('s_add_u32 s77, s77, 1')
    P(f'''
    {GUARD}
    s_branch {tag}_gpoll
    {tag}_kvwait:
    {GUARD}
    buffer_load_dword v{V_FL}, off, {S_WS}, s31 sc1
    s_waitcnt vmcnt(0)
    v_cmp_eq_u32 vcc, 0, v{V_FL}
    s_cbranch_vccnz {tag}_kvwait
    s_branch {tag}_kvok
    {tag}_last:
    s_waitcnt vmcnt(0)
    v_mov_b32 v{V_T1}, 1
    buffer_store_dword v{V_T1}, off, {S_WS}, s32 sc1
    s_branch chain_done
    ''')
```

```python
MB = 1 << 20
KB = 1 << 10
S, D, H, E, M, L, NS = 2048, 512, 32, 128, 8, 32, 64

WIMG = 0
KIMG = 16 * MB
VIMG = 48 * MB
KMVM = 80 * MB
APART = 112 * MB
KVT = 120 * MB
YT = 122 * MB
YTOT = 124 * MB
X1 = 126 * MB
X3 = 128 * MB
H1 = 130 * MB
H2 = 132 * MB
CPART = 134 * MB
CMEM = 136 * MB
FLAGS = 137 * MB
F_KV = FLAGS
F_KM = FLAGS + 64 * KB
F_H = FLAGS + 128 * KB
F_AP = FLAGS + 144 * KB
FLAGS_BYTES = 160 * KB
STAMP = 138 * MB
WS_BYTES = 256 * MB


def perm16(t, r):
    return 8 * (r >> 2) + 4 * t + (r & 3)
```

```python
from layout import *
from chain import SENT, q4, q2, DPPF
from roles import cvt, unpack8, row_block

WSRD = 's[8:11]'


def srd(P, base, karg, nbytes):
    P(f's_load_dwordx2 s[{base}:{base + 1}], s[0:1], {karg}')
    P(f's_mov_b32 s{base + 2}, {nbytes}')
    P(f's_mov_b32 s{base + 3}, 0x00020000')


def gen_prep(P, opt):
    P('prep_kernel:')
    P('s_cmp_ge_u32 s2, 256\ns_cbranch_scc1 prep_exit')
    srd(P, 8, 120, WS_BYTES)
    srd(P, 12, 8, S * D * 2)
    srd(P, 16, 16, S * D * 2)
    srd(P, 20, 24, D * 4 * 2)
    P('s_load_dwordx8 s[36:43], s[0:1], 64')
    P(f'''
    v_lshrrev_b32 v1, 6, v0
    v_and_b32 v2, 63, v0
    v_readfirstlane_b32 s4, v1
    s_lshr_b32 s5, s2, 6
    s_bfe_u32 s6, s2, 0x50001
    s_and_b32 s7, s2, 1
    s_mov_b32 s26, {4 * MB}
    s_mov_b32 s27, 0x00020000
    s_waitcnt lgkmcnt(0)
    s_mov_b64 s[24:25], s[36:37]
    s_cmp_eq_u32 s5, 1
    s_cselect_b64 s[24:25], s[38:39], s[24:25]
    s_cmp_eq_u32 s5, 2
    s_cselect_b64 s[24:25], s[40:41], s[24:25]
    s_cmp_eq_u32 s5, 3
    s_cselect_b64 s[24:25], s[42:43], s[24:25]
    ''')
    KR, VR, SH = 64, 76, 84
    P(f'''
    s_and_b32 s28, s2, 7
    s_lshl_b32 s28, s28, 6
    s_and_b32 s29, s4, 1
    s_lshl_b32 s29, s29, 5
    s_add_u32 s28, s28, s29
    s_lshr_b32 s29, s2, 3
    s_lshl_b32 s29, s29, 6
    s_lshr_b32 s30, s4, 1
    s_lshl_b32 s30, s30, 5
    s_add_u32 s29, s29, s30
    v_and_b32 v3, 15, v2
    v_lshl_add_u32 v3, v3, 1, s28
    v_lshrrev_b32 v4, 4, v2
    v_lshl_add_u32 v4, v4, 3, s29
    v_lshlrev_b32 v5, 10, v4
    v_lshl_add_u32 v5, v3, 1, v5
    v_subrev_u32 v6, 3072, v5
    v_lshlrev_b32 v7, 3, v3
    buffer_load_dwordx4 {q4(SH)}, v7, s[20:23], 0 offen
    s_movk_i32 s31, 4096
    s_movk_i32 s32, 8192
    ''')
    for i in range(11):
        so, off = ('0', 1024 * i) if i < 4 else (('s31', 1024 * (i - 4)) if i < 8 else ('s32', 1024 * (i - 8)))
        if i < 3:
            P(f'v_add_u32 v8, {1024 * i}, v6')
            P(f'buffer_load_dword v{KR + i}, v8, s[12:15], 0 offen')
        else:
            j = i - 3
            so, off = ('0', 1024 * j) if j < 4 else ('s31', 1024 * (j - 4))
            P(f'buffer_load_dword v{KR + i}, v5, s[12:15], {so} offen offset:{off}')
    for j in range(8):
        so, off = ('0', 1024 * j) if j < 4 else ('s31', 1024 * (j - 4))
        P(f'buffer_load_dword v{VR + j}, v5, s[16:19], {so} offen offset:{off}')
    IN, OUT = 96, 160
    P(f'''
    v_and_b32 v9, 15, v2
    v_lshrrev_b32 v10, 4, v2
    s_cmp_eq_u32 s5, 3
    s_cbranch_scc1 prep_wo
    v_lshlrev_b32 v11, 16, v10
    v_lshl_add_u32 v11, v9, 4, v11
    s_lshl_b32 s33, s7, 21
    s_lshl_b32 s34, s4, 19
    s_add_u32 s33, s33, s34
    s_lshl_b32 s34, s6, 8
    s_add_u32 s33, s33, s34
    s_mov_b32 s34, 8192
    s_mov_b32 s35, 0x40000
    v_lshrrev_b32 v12, 2, v9
    v_lshlrev_b32 v12, 15, v12
    s_lshl_b32 s44, s7, 13
    s_lshl_b32 s45, s4, 11
    s_add_u32 s44, s44, s45
    s_mov_b32 s45, 1024
    s_mov_b32 s46, 16384
    s_branch prep_wgo
    prep_wo:
    v_lshlrev_b32 v11, 13, v10
    v_lshl_add_u32 v11, v9, 4, v11
    s_lshl_b32 s33, s6, 17
    s_lshl_b32 s34, s4, 15
    s_add_u32 s33, s33, s34
    s_lshl_b32 s34, s7, 9
    s_add_u32 s33, s33, s34
    s_mov_b32 s34, 1024
    s_mov_b32 s35, 256
    v_lshrrev_b32 v12, 2, v9
    v_lshlrev_b32 v12, 13, v12
    s_lshl_b32 s44, s7, 16
    s_lshl_b32 s45, s4, 10
    s_add_u32 s44, s44, s45
    s_mov_b32 s45, 32768
    s_mov_b32 s46, 4096
    prep_wgo:
    v_lshl_add_u32 v12, v10, 8, v12
    v_and_b32 v13, 3, v9
    v_lshl_add_u32 v12, v13, 6, v12
    s_lshl_b32 s47, s5, 22
    s_add_u32 s44, s44, s47
    s_lshl_b32 s47, s6, 17
    s_add_u32 s44, s44, s47
    s_add_u32 s44, s44, {WIMG}
    ''')
    for rnd in range(2):
        P('s_mov_b32 s47, s33' if rnd == 0 else 's_add_u32 s47, s33, s35')
        for j in range(8):
            P(f'buffer_load_dwordx4 {q4(IN + 32 * rnd + 4 * j)}, v11, s[24:27], s47 offen')
            if j < 7:
                P('s_add_u32 s47, s47, s34')
    P(f'''
    s_lshl_b32 s48, s2, 11
    v_lshlrev_b32 v14, 3, v0
    v_mov_b32 v16, {SENT}
    v_mov_b32 v17, {SENT}
    s_lshr_b32 s49, s2, 7
    s_mul_i32 s49, s49, {MB - 256 * KB}
    s_add_u32 s49, s49, s48
    s_add_u32 s49, s49, {CPART}
    buffer_store_dwordx2 v[16:17], v14, {WSRD}, s49 offen
    s_cmp_ge_u32 s2, {FLAGS_BYTES // 2048}
    s_cbranch_scc1 prep_noflag
    s_sub_u32 s49, s2, {(F_H - FLAGS) // 2048}
    s_cmp_lt_u32 s49, 4
    s_cselect_b32 s49, {0 if opt.get('rows_in_main') else 1}, 0
    v_mov_b32 v18, s49
    v_mov_b32 v19, s49
    s_add_u32 s48, s48, {FLAGS}
    buffer_store_dwordx2 v[18:19], v14, {WSRD}, s48 offen
    prep_noflag:
    ''')
    C = 20
    KF = 28
    AC = 40
    PKV = 48
    for ch in range(2):
        for i in range(2):
            P(f'v_lshlrev_b32 v{C + 4 * ch + 2 * i}, 16, v{SH + 2 * ch + i}')
            P(f'v_and_b32 v{C + 4 * ch + 2 * i + 1}, 0xffff0000, v{SH + 2 * ch + i}')
    P(f'''
    v_sub_u32 v15, {S - 8}, v4
    v_lshlrev_b32 v15, 1, v15
    v_lshl_add_u32 v15, v3, 12, v15
    s_mov_b32 s48, {KVT}
    s_mov_b32 s49, {KVT + 4096}
    ''')
    for ch in range(2):
        for i in range(11):
            P(f'v_lshlrev_b32 v{KF + i}, 16, v{KR + i}' if ch == 0 else f'v_and_b32 v{KF + i}, 0xffff0000, v{KR + i}')
        for j in range(8):
            P(f'v_mul_f32 v{AC + j}, v{KF + j + 3}, v{C + 4 * ch}')
        for tap in range(1, 4):
            for j in range(8):
                P(f'v_fmac_f32 v{AC + j}, v{KF + j + 3 - tap}, v{C + 4 * ch + tap}')
        for j in range(8):
            P(f'v_lshlrev_b32 v{KF + j}, 16, v{VR + j}' if ch == 0 else f'v_and_b32 v{KF + j}, 0xffff0000, v{VR + j}')
        for j in range(8):
            P(f'v_mul_f32 v{AC + j}, v{AC + j}, v{KF + j}')
        for i in range(4):
            P(f'v_cvt_pk_bf16_f32 v{PKV + 4 * ch + i}, v{AC + 7 - 2 * i}, v{AC + 6 - 2 * i}')
        P(f'buffer_store_dwordx4 {q4(PKV + 4 * ch)}, v15, {WSRD}, s{48 + ch} offen')
    P('s_mov_b32 s50, 0x05040100\ns_mov_b32 s51, 0x07060302')
    for rnd in range(2):
        b = IN + 32 * rnd
        o = OUT + 32 * rnd
        if rnd:
            P('s_add_u32 s44, s44, s45')
        P('s_add_u32 s47, s44, s46')
        for i in range(8):
            for rr in range(4):
                P(f'v_perm_b32 v{o + 4 * i + rr}, v{b + 4 * (2 * rr + 1) + (i >> 1)}, v{b + 4 * (2 * rr) + (i >> 1)}, s{50 + (i & 1)}')
            sreg = 's44' if i < 4 else 's47'
            P(f'buffer_store_dwordx4 {q4(o + 4 * i)}, v12, {WSRD}, {sreg} offen offset:{16 * (i & 3)}')
    P('s_waitcnt vmcnt(0)\nprep_exit:\ns_endpgm')


CA_STRIDE = 4160
CH_A = 8 * CA_STRIDE
CH_B = 96 * 80
CH_BYTES = CH_A + CH_B
LDS_CONV = 2 * CH_BYTES


def gen_conv(P, opt):
    MF32 = 'v_mfma_f32_32x32x16_bf16'
    P('conv_kernel:')
    P('s_cmp_ge_u32 s2, 256\ns_cbranch_scc1 conv_exit')
    srd(P, 8, 120, WS_BYTES)
    srd(P, 12, 32, D * S * 2)
    srd(P, 16, 40, D * 2)
    P(f'''
    v_lshrrev_b32 v1, 6, v0
    v_and_b32 v2, 63, v0
    v_readfirstlane_b32 s4, v1
    v_and_b32 v3, 127, v0
    s_lshr_b32 s5, s4, 1
    s_and_b32 s6, s4, 1
    s_lshl_b32 s7, s2, 1
    s_add_u32 s7, s7, s5
    s_mul_i32 s20, s5, {CH_BYTES}
    s_lshl_b32 s21, s7, 12
    s_add_u32 s22, s21, {KVT}
    s_lshl_b32 s23, s7, 1
    v_lshlrev_b32 v4, 4, v3
    v_subrev_u32 v5, 16, v4
    v_cmp_eq_u32 vcc, 0, v3
    v_mov_b32 v6, 0x7ffffff0
    v_cndmask_b32 v5, v5, v6, vcc
    s_waitcnt lgkmcnt(0)
    buffer_load_dwordx4 v[16:19], v5, s[12:15], s21 offen
    buffer_load_dwordx4 v[20:23], v4, s[12:15], s21 offen
    buffer_load_dwordx4 v[24:27], v4, s[12:15], s21 offen offset:2032
    buffer_load_dwordx4 v[28:31], v4, s[12:15], s21 offen offset:2048
    buffer_load_ushort v7, off, s[16:19], s23
    buffer_load_dwordx4 v[32:35], v4, {WSRD}, s22 offen
    buffer_load_dwordx4 v[36:39], v4, {WSRD}, s22 offen offset:2048
    v_mov_b32 v40, 0
    v_mov_b32 v41, 0
    v_mov_b32 v42, 0
    v_mov_b32 v43, 0
    v_add_u32 v8, {CH_A + 64 * 80}, v4
    v_add_u32 v8, s20, v8
    ds_write_b128 v8, v[40:43]
    v_and_b32 v9, 31, v3
    v_lshlrev_b32 v9, 4, v9
    v_add_u32 v9, {CH_A + 64 * 80 + 2048}, v9
    v_add_u32 v9, s20, v9
    ds_write_b128 v9, v[40:43]
    v_and_b32 v9, 7, v3
    v_mul_u32_u24 v9, {CA_STRIDE}, v9
    v_add_u32 v9, s20, v9
    ds_write_b128 v9, v[40:43]
    ds_write_b128 v9, v[40:43] offset:16
    ds_write_b128 v9, v[40:43] offset:32
    v_lshrrev_b32 v10, 2, v3
    v_mul_u32_u24 v10, 80, v10
    v_and_b32 v11, 3, v3
    v_lshl_add_u32 v10, v11, 4, v10
    v_add_u32 v10, s20, v10
    ds_write_b128 v10, v[32:35] offset:{CH_A}
    ds_write_b128 v10, v[36:39] offset:{CH_A + 32 * 80}
    v_lshlrev_b32 v7, 16, v7
    v_lshlrev_b32 v12, 16, v20
    v_add_f32 v12, v12, v7
    v_cvt_pk_bf16_f32 v12, v12, v12
    v_mov_b32 v13, 0xffff
    v_bfi_b32 v12, v13, v12, v20
    v_cmp_eq_u32 vcc, 0, v3
    v_cndmask_b32 v20, v20, v12, vcc
    v_add_u32 v14, s20, v4
    ''')
    for half in range(2):
        b = 16 + 8 * half
        for c in range(8):
            sh = 1 + c
            o = 44 + 4 * (c & 1)
            if sh == 8:
                src = q4(b + 4)
            else:
                for i in range(4):
                    lo = b + (sh >> 1) + i
                    if sh & 1:
                        P(f'v_alignbit_b32 v{o + i}, v{lo + 1}, v{lo}, 16')
                    else:
                        P(f'v_mov_b32 v{o + i}, v{lo}')
                src = q4(o)
            P(f'ds_write_b128 v14, {src} offset:{c * CA_STRIDE + 48 + 2048 * half}')
    P(f'''
    v_and_b32 v3, 31, v2
    v_lshrrev_b32 v4, 5, v2
    v_and_b32 v5, 7, v3
    v_mul_u32_u24 v5, {CA_STRIDE}, v5
    v_lshrrev_b32 v6, 3, v3
    v_add_u32 v6, v6, v4
    v_lshl_add_u32 v5, v6, 4, v5
    s_lshl_b32 s24, s6, 10
    s_add_u32 s24, s24, s20
    v_add_u32 v5, s24, v5
    v_sub_u32 v6, 31, v3
    v_mul_u32_u24 v6, 80, v6
    v_lshl_add_u32 v6, v4, 4, v6
    s_mul_i32 s24, s6, {16 * 80}
    s_add_u32 s24, s24, s20
    s_add_u32 s24, s24, {CH_A}
    v_add_u32 v6, s24, v6
    s_waitcnt lgkmcnt(0)
    s_barrier
    ''')
    Y0, Y1, OPS = 64, 80, 16
    NB = 3

    def reads(st):
        m, be = st >> 1, st & 1
        b = OPS + 16 * (st % NB)
        return [f'ds_read_b128 {q4(b)}, v5 offset:{64 * m + 32 * be}',
                f'ds_read_b128 {q4(b + 4)}, v6 offset:{80 * (32 + m) + 32 * be}',
                f'ds_read_b128 {q4(b + 8)}, v6 offset:{80 * m + 32 * be}',
                f'ds_read_b128 {q4(b + 12)}, v5 offset:{2048 + 64 * m + 32 * be}']
    for st in range(NB - 1):
        for i in reads(st):
            P(i)
    y0, y1 = f'v[{Y0}:{Y0 + 15}]', f'v[{Y1}:{Y1 + 15}]'
    for st in range(32):
        b = OPS + 16 * (st % NB)
        r = reads(st + NB - 1) if st + NB - 1 < 32 else []
        P(f'{MF32} {y0}, {q4(b)}, {q4(b + 4)}, {y0 if st else 0}')
        for i in r[:2]:
            P(i)
        P(f'{MF32} {y1}, {q4(b)}, {q4(b + 8)}, {y1 if st else 0}')
        for i in r[2:]:
            P(i)
        P(f'{MF32} {y1}, {q4(b + 12)}, {q4(b + 4)}, {y1}')
    P(f'''
    s_barrier
    s_lshl_b32 s24, s4, 12
    v_lshl_add_u32 v7, v2, 4, s24
    v_xor_b32 v8, 4096, v7
    s_cmp_eq_u32 s6, 0
    s_cbranch_scc1 conv_p0
    ''')
    for i in range(4):
        P(f'ds_write_b128 v7, {q4(Y0 + 4 * i)} offset:{1024 * i}')
    for i in range(16):
        P(f'v_mov_b32 v{Y0 + i}, v{Y1 + i}')
    P('s_branch conv_x\nconv_p0:')
    for i in range(4):
        P(f'ds_write_b128 v7, {q4(Y1 + 4 * i)} offset:{1024 * i}')
    P('conv_x:\ns_waitcnt lgkmcnt(0)\ns_barrier')
    for i in range(4):
        P(f'ds_read_b128 {q4(OPS + 4 * i)}, v8 offset:{1024 * i}')
    P(f'''
    v_lshlrev_b32 v9, 6, v3
    v_lshl_add_u32 v9, v4, 3, v9
    s_lshl_b32 s24, s6, 11
    s_add_u32 s24, s24, s21
    s_add_u32 s24, s24, {YT}
    ''')
    for i in range(16):
        P(f'v_add_f32 v{Y0 + i}, v{Y0 + i}, v{OPS + i}')
    for i in range(4):
        P(cvt(40 + 2 * i, Y0 + 4 * i))
        P(cvt(41 + 2 * i, Y0 + 4 * i + 2))
        P(f'buffer_store_dwordx2 {q2(40 + 2 * i)}, v9, {WSRD}, s24 offen offset:{16 * i}')
    P('s_waitcnt vmcnt(0)\nconv_exit:\ns_endpgm')


def gen_rows(P, opt):
    P('rows_kernel:')
    P('s_cmp_ge_u32 s2, 256\ns_cbranch_scc1 rows_exit')
    srd(P, 8, 120, WS_BYTES)
    srd(P, 12, 0, S * D * 2)
    P(f'''
    v_lshrrev_b32 v1, 6, v0
    v_and_b32 v2, 63, v0
    v_readfirstlane_b32 s4, v1
    v_lshlrev_b32 v3, 13, v0
    s_lshl_b32 s5, s2, 4
    s_add_u32 s5, s5, {YT}
    s_add_u32 s6, s5, 4096
    s_lshl_b32 s7, s2, 13
    s_lshl_b32 s20, s4, 11
    s_add_u32 s7, s7, s20
    v_lshlrev_b32 v4, 4, v2
    s_waitcnt lgkmcnt(0)
    buffer_load_dwordx4 v[8:11], v3, {WSRD}, s5 offen
    buffer_load_dwordx4 v[12:15], v3, {WSRD}, s6 offen
    buffer_load_dwordx4 v[16:19], v4, s[12:15], s7 offen
    buffer_load_dwordx4 v[20:23], v4, s[12:15], s7 offen offset:1024
    s_mov_b32 s22, 0x05040100
    s_mov_b32 s23, 0x07060302
    v_lshlrev_b32 v5, 2, v0
    ''')
    for t in range(8):
        P(f'v_perm_b32 v6, v{12 + (t >> 1)}, v{8 + (t >> 1)}, s{22 + (t & 1)}')
        P(f'ds_write_b32 v5, v6 offset:{1024 * t}')
    P(f'''
    v_add_u32 v5, s20, v4
    s_waitcnt lgkmcnt(0)
    s_barrier
    ds_read_b128 v[24:27], v5
    ds_read_b128 v[28:31], v5 offset:1024
    s_add_u32 s24, s7, {YTOT}
    s_add_u32 s25, s7, {X1}
    s_add_u32 s26, s7, {H1}
    buffer_store_dwordx4 v[24:27], v4, {WSRD}, s24 offen
    buffer_store_dwordx4 v[28:31], v4, {WSRD}, s24 offen offset:1024
    ''')
    seqs = []
    for rr in range(2):
        b = 32 + 40 * rr
        X, Y, N_, PKX, PH, TT = b, b + 8, b + 16, b + 24, b + 28, b + 32
        sq = unpack8(X, 16 + 4 * rr) + unpack8(Y, 24 + 4 * rr) + row_block(X, Y, N_, PKX, PH, TT)
        sq += [f'buffer_store_dwordx4 {q4(PKX)}, v4, {WSRD}, s25 offen offset:{1024 * rr}',
               f'buffer_store_dwordx4 {q4(PH)}, v4, {WSRD}, s26 offen offset:{1024 * rr}']
        seqs.append(sq)
    for a, b in zip(*seqs):
        P(a)
        P(b)
    P('s_waitcnt vmcnt(0)\nrows_exit:\ns_endpgm')
```

```python
from layout import *
from chain import (S_WS, S_W, S_H, S_G, S_PURE, S_LAYER, S_S, S_C, GUARD, MF, MF16, DPPF, q4, q2)


def a4(b):
    return 'a[%d:%d]' % (b, b + 3)


def cvt(d, a):
    return f'v_cvt_pk_bf16_f32 v{d}, v{a}, v{a + 1}'


def xlane(op, x, t):
    return [f'v_mov_b32 v{t}, v{x}', f'v_permlane16_swap_b32 v{x}, v{t}', f'{op} v{x}, v{x}, v{t}',
            f'v_mov_b32 v{t}, v{x}', f'v_permlane32_swap_b32 v{x}, v{t}', f'{op} v{x}, v{x}, v{t}']


def wave_sum(x, t):
    o = [f'v_add_f32_dpp v{x}, v{x}, v{x} row_ror:{r} {DPPF}' for r in (1, 2, 4, 8)]
    return o + xlane('v_add_f32', x, t)


def load_weights(P, mats, vl16):
    P(f'''
    s_lshl_b32 s40, {S_H}, 17
    s_lshl_b32 s41, {S_W}, 15
    s_add_u32 s40, s40, s41
    ''')
    for mi, X in enumerate(mats):
        for blk in range(8):
            P(f's_add_u32 s43, s40, {WIMG + X * 4 * MB + blk * 4096}')
            for i in range(4):
                P(f'buffer_load_dwordx4 {a4(128 * mi + 16 * blk + 4 * i)}, v{vl16}, {S_WS}, s43 offen offset:{1024 * i}')


def h_dma_addr(P, vd, t0):
    P(f'''
    v_bfe_u32 v{t0}, v0, 2, 2
    v_lshlrev_b32 v{vd}, 13, v{t0}
    v_and_b32 v{t0}, 3, v0
    v_lshl_add_u32 v{vd}, v{t0}, 10, v{vd}
    v_lshrrev_b32 v{t0}, 4, v0
    v_lshl_add_u32 v{vd}, v{t0}, 4, v{vd}
    ''')


def h_dma(vd, s_src, s_lds):
    o = []
    for i in range(4):
        for t in range(2):
            o += [f's_add_u32 m0, {s_lds}, {(2 * i + t) * 1024}',
                  f's_add_u32 s43, {s_src}, {i * 64 + t * 4096}',
                  f'buffer_load_dwordx4 v{vd}, {S_WS}, s43 offen sc1 lds']
    return o


def gen_kv(P, opt):
    V_L16, V_HD, V_F, V_FA, V_T0, V_LR = 1, 2, 3, 4, 5, 6
    HB = 16
    AK = 32
    AV = 48
    PK = 64
    P.label('kv_role')
    P(f'''
    v_and_b32 v0, 63, v0
    v_lshlrev_b32 v{V_L16}, 4, v0
    v_and_b32 v{V_FA}, 31, v0
    v_lshlrev_b32 v{V_FA}, 2, v{V_FA}
    ''')
    h_dma_addr(P, V_HD, V_T0)
    load_weights(P, (1, 2), V_L16)
    P(f'''
    s_lshl_b32 s20, {S_LAYER}, 21
    s_add_u32 s20, s20, {H1}
    s_lshl_b32 s23, {S_W}, 8
    s_add_u32 s20, s20, s23
    s_lshl_b32 s21, {S_W}, 13
    s_lshl_b32 s24, {S_LAYER}, 13
    s_add_u32 s24, s24, {F_H}
    s_lshl_b32 s25, {S_H}, 2
    s_add_u32 s25, s25, {S_W}
    s_lshl_b32 s22, {S_LAYER}, 24
    s_lshl_b32 s23, s25, 11
    s_add_u32 s22, s22, s23
    s_add_u32 s28, s22, {KIMG}
    s_add_u32 s29, s22, {VIMG}
    s_lshl_b32 s22, {S_LAYER}, 15
    s_lshl_b32 s23, s25, 2
    s_add_u32 s22, s22, s23
    s_add_u32 s31, s22, {F_KV}
    s_mov_b32 {S_S}, 0
    s_mov_b32 s26, 0
    s_mov_b32 s27, 0
    v_mov_b32 v{V_LR}, v{V_L16}
    kv_loop:
    s_cmp_eq_u32 s26, 1
    s_cbranch_scc1 kv_have
    kv_poll:
    buffer_load_dword v{V_F}, v{V_FA}, {S_WS}, s24 offen sc1
    s_waitcnt vmcnt(0)
    s_cmp_eq_u32 s27, 0
    s_cbranch_scc1 kv_poll2
    v_mov_b32 v{V_T0}, 1
    buffer_store_dword v{V_T0}, off, {S_WS}, s31 sc1
    s_add_u32 s31, s31, 512
    s_mov_b32 s27, 0
    kv_poll2:
    v_cmp_eq_u32 vcc, 0, v{V_F}
    s_cbranch_vccz kv_go
    {GUARD}
    s_branch kv_poll
    kv_go:
    ''')
    for i in h_dma(V_HD, 's20', 's21'):
        P(i)
    P(f'''
    kv_have:
    s_waitcnt vmcnt(0)
    s_cmp_eq_u32 s27, 0
    s_cbranch_scc1 kv_have2
    v_mov_b32 v{V_T0}, 1
    buffer_store_dword v{V_T0}, off, {S_WS}, s31 sc1
    s_add_u32 s31, s31, 512
    s_mov_b32 s27, 0
    kv_have2:
    s_barrier
    s_add_u32 s24, s24, 128
    s_add_u32 s20, s20, 32768
    s_xor_b32 s21, s21, 32768
    s_mov_b32 s26, 0
    buffer_load_dword v{V_F}, v{V_FA}, {S_WS}, s24 offen sc1
    ds_read_b128 {q4(HB)}, v{V_LR}
    ds_read_b128 {q4(HB + 4)}, v{V_LR} offset:1024
    ''')
    for kk in range(16):
        b = HB + 8 * (kk & 1)
        nb = HB + 8 * ((kk + 1) & 1)
        ms = []
        for te in range(2):
            for tt in range(2):
                d = AK + 8 * tt + 4 * te
                ms.append(f'{MF} {q4(d)}, {a4(4 * (16 * te + kk))}, {q4(b + 4 * tt)}, {q4(d) if kk else 0}')
        for te in range(2):
            for tt in range(2):
                d = AV + 8 * te + 4 * tt
                ms.append(f'{MF} {q4(d)}, {q4(b + 4 * tt)}, {a4(128 + 4 * (16 * te + kk))}, {q4(d) if kk else 0}')
        P(ms[0])
        if kk < 15:
            P(f'ds_read_b128 {q4(nb)}, v{V_LR} offset:{(kk + 1) * 2048}')
        P(ms[1])
        if kk < 15:
            P(f'ds_read_b128 {q4(nb + 4)}, v{V_LR} offset:{(kk + 1) * 2048 + 1024}')
        for m in ms[2:]:
            P(m)
        if kk == 7:
            P(f'''
            s_cmp_eq_u32 {S_S}, {NS - 1}
            s_cbranch_scc1 kv_nopf
            v_cmp_eq_u32 vcc, 0, v{V_F}
            s_cbranch_vccnz kv_nopf
            ''')
            for i in h_dma(V_HD, 's20', 's21'):
                P(i)
            P('s_mov_b32 s26, 1\nkv_nopf:')
    P(f'v_xor_b32 v{V_LR}, 32768, v{V_LR}')
    for qd in range(4):
        src = AK + 8 * qd
        for i in range(4):
            P(cvt(PK + 4 * qd + i, src + 2 * i))
        sreg = 's28' if qd < 2 else 's29'
        P(f'buffer_store_dwordx4 {q4(PK + 4 * qd)}, v{V_L16}, {S_WS}, {sreg} offen offset:{1024 * (qd & 1)} sc1')
    P(f'''
    s_add_u32 s28, s28, 0x40000
    s_add_u32 s29, s29, 0x40000
    s_mov_b32 s27, 1
    s_add_u32 {S_S}, {S_S}, 1
    s_cmp_lt_u32 {S_S}, {NS}
    s_cbranch_scc1 kv_loop
    s_waitcnt vmcnt(0)
    v_mov_b32 v{V_T0}, 1
    buffer_store_dword v{V_T0}, off, {S_WS}, s31 sc1
    s_waitcnt vmcnt(0)
    s_endpgm
    ''')


def unpack8(dst, src):
    o = []
    for i in range(4):
        o += [f'v_and_b32 v{dst + 2 * i + 1}, 0xffff0000, v{src + i}', f'v_lshlrev_b32 v{dst + 2 * i}, 16, v{src + i}']
    return o


def ln8(x, n, t):
    a, b, c = t, t + 1, t + 2
    o = [f'v_add_f32 v{a}, v{x}, v{x + 1}', f'v_add_f32 v{b}, v{x + 2}, v{x + 3}',
         f'v_add_f32 v{c}, v{x + 4}, v{x + 5}', f'v_add_f32 v{a}, v{a}, v{b}',
         f'v_add_f32 v{b}, v{x + 6}, v{x + 7}', f'v_add_f32 v{a}, v{a}, v{c}', f'v_add_f32 v{a}, v{a}, v{b}']
    o += wave_sum(a, b)
    o += [f'v_mul_f32 v{a}, 0x3b000000, v{a}']
    o += [f'v_sub_f32 v{n + i}, v{x + i}, v{a}' for i in range(8)]
    o += [f'v_mul_f32 v{a}, v{n}, v{n}', f'v_mul_f32 v{b}, v{n + 1}, v{n + 1}']
    for i in range(2, 8, 2):
        o += [f'v_fmac_f32 v{a}, v{n + i}, v{n + i}', f'v_fmac_f32 v{b}, v{n + i + 1}, v{n + i + 1}']
    o += [f'v_add_f32 v{a}, v{a}, v{b}']
    o += wave_sum(a, b)
    o += [f'v_mov_b32 v{b}, 0x3727c5ac', f'v_fmac_f32 v{b}, 0x3b000000, v{a}', f'v_rsq_f32 v{a}, v{b}']
    o += [f'v_mul_f32 v{n + i}, v{n + i}, v{a}' for i in range(8)]
    return o


def row_block(x, y, n, pk, ph, t):
    o = ln8(x, n, t)
    o += [f'v_fmac_f32 v{x + i}, v{n + i}, v{y + i}' for i in range(8)]
    o += [cvt(pk + i, x + 2 * i) for i in range(4)]
    o += unpack8(x, pk)
    o += ln8(x, n, t)
    o += [cvt(ph + i, n + 2 * i) for i in range(4)]
    return o


def gen_at(P, opt):
    L_H = 0
    L_Q = 65536
    L_OB = L_Q + 8192
    L_ROW = L_OB + 8192
    (V_L16, V_HD, V_F, V_FA, V_T0, V_T1, V_LR, V_QW, V_QR, V_OW, V_KMA, V_PST, V_RLD, V_RW, V_RR) = range(1, 16)
    SEL = 16
    BIAS = 20
    HB = 28
    AQ = 44
    QP = 60
    Q = 68
    KX = 84
    VX = 116
    KM = 132
    VM = 148
    SX = 156
    SM = 164
    PX = 168
    PM = 172
    MX, NM, SUM = 174, 175, 176
    FL = 180
    O = 184
    OP = 200
    XR = 208
    YR = 212
    OB = 28
    AO = 84
    PK = 216
    RED = 28
    RD = 60
    X, Y, N_, PKX, PH, TT = 84, 92, 100, 108, 112, 116
    P.label('at_role')
    P(f'''
    v_and_b32 v0, 63, v0
    v_lshlrev_b32 v{V_L16}, 4, v0
    v_and_b32 v{V_FA}, 31, v0
    v_lshlrev_b32 v{V_FA}, 2, v{V_FA}
    s_bfe_u32 {S_LAYER}, {S_G}, 0x10001
    s_and_b32 {S_S}, {S_G}, 1
    s_and_b32 s33, {S_W}, 1
    s_lshr_b32 s34, {S_W}, 1
    ''')
    h_dma_addr(P, V_HD, V_T0)
    load_weights(P, (0, 3), V_L16)
    P(f'''
    s_lshl_b32 s22, {S_W}, 11
    s_add_u32 s22, s22, {L_Q}
    v_add_u32 v{V_QW}, s22, v{V_L16}
    s_lshl_b32 s22, s33, 10
    s_add_u32 s23, s22, {L_Q}
    v_add_u32 v{V_QR}, s23, v{V_L16}
    s_lshl_b32 s23, s34, 12
    s_add_u32 s22, s22, s23
    s_add_u32 s22, s22, {L_OB}
    v_add_u32 v{V_OW}, s22, v{V_L16}
    v_and_b32 v{V_KMA}, 0x37, v0
    v_lshlrev_b32 v{V_KMA}, 4, v{V_KMA}
    v_bfe_u32 v{V_T0}, v0, 2, 2
    v_lshlrev_b32 v{V_PST}, 18, v{V_T0}
    v_and_b32 v{V_T0}, 3, v0
    v_lshl_add_u32 v{V_PST}, v{V_T0}, 15, v{V_PST}
    v_lshrrev_b32 v{V_T0}, 4, v0
    v_lshl_add_u32 v{V_PST}, v{V_T0}, 4, v{V_PST}
    s_lshl_b32 s22, {S_H}, 10
    s_lshl_b32 s23, {S_W}, 8
    s_add_u32 s22, s22, s23
    v_add_u32 v{V_PST}, s22, v{V_PST}
    v_and_b32 v{V_T1}, 15, v0
    v_lshlrev_b32 v{V_RLD}, 4, v{V_T1}
    v_lshl_add_u32 v{V_RLD}, v{V_T0}, 10, v{V_RLD}
    s_lshl_b32 s22, {S_H}, 15
    s_add_u32 s22, s22, s23
    v_add_u32 v{V_RLD}, s22, v{V_RLD}
    v_lshlrev_b32 v{V_RW}, 5, v{V_T1}
    v_lshl_add_u32 v{V_RW}, v{V_T0}, 4, v{V_RW}
    s_lshl_b32 s22, {S_W}, 9
    s_add_u32 s22, s22, {L_ROW}
    v_add_u32 v{V_RW}, s22, v{V_RW}
    v_lshlrev_b32 v{V_RR}, 5, v0
    v_add_u32 v{V_RR}, {L_ROW}, v{V_RR}
    ''')
    for i in range(4):
        P(f'''
        v_mov_b32 v{SEL + i}, 0
        v_mov_b32 v{V_F}, 0x3f80
        v_cmp_eq_u32 vcc, {2 * i}, v{V_T1}
        v_cndmask_b32 v{SEL + i}, v{SEL + i}, v{V_F}, vcc
        v_mov_b32 v{V_F}, 0x3f800000
        v_cmp_eq_u32 vcc, {2 * i + 1}, v{V_T1}
        v_cndmask_b32 v{SEL + i}, v{SEL + i}, v{V_F}, vcc
        ''')
    P(f'''
    v_bfe_u32 v{V_T1}, v0, 2, 2
    v_lshlrev_b32 v{V_T1}, 3, v{V_T1}
    v_and_b32 v{V_F}, 3, v0
    v_add_u32 v{V_T1}, v{V_T1}, v{V_F}
    s_lshl_b32 s22, s33, 2
    v_add_u32 v{V_T1}, s22, v{V_T1}
    v_lshlrev_b32 v{V_T0}, 3, v{V_T0}
    v_sub_u32 v{V_T1}, v{V_T1}, v{V_T0}
    v_mov_b32 v{V_F}, 0xf149f2ca
    ''')
    for i in range(8):
        P(f'v_cmp_gt_i32 vcc, {i}, v{V_T1}\nv_cndmask_b32 v{BIAS + i}, 0, v{V_F}, vcc')
    P(f'''
    s_lshl_b32 s20, {S_LAYER}, 21
    s_add_u32 s20, s20, {H1}
    s_lshl_b32 s23, {S_W}, 8
    s_add_u32 s20, s20, s23
    s_lshl_b32 s23, {S_S}, 15
    s_add_u32 s20, s20, s23
    s_lshl_b32 s39, {S_H}, 10
    s_add_u32 s39, s39, s23
    s_lshl_b32 s21, {S_W}, 13
    s_lshl_b32 s24, {S_LAYER}, 13
    s_add_u32 s24, s24, {F_H}
    s_lshl_b32 s23, {S_S}, 7
    s_add_u32 s24, s24, s23
    s_lshl_b32 s22, {S_LAYER}, 24
    s_lshl_b32 s23, {S_H}, 13
    s_add_u32 s22, s22, s23
    s_lshl_b32 s23, {S_S}, 18
    s_add_u32 s22, s22, s23
    s_add_u32 s28, s22, {KIMG}
    s_add_u32 s30, s22, {KMVM}
    s_lshl_b32 s23, s34, 12
    s_add_u32 s29, s22, s23
    s_add_u32 s29, s29, {VIMG}
    s_lshl_b32 s22, {S_LAYER}, 15
    s_lshl_b32 s23, {S_H}, 4
    s_add_u32 s22, s22, s23
    s_lshl_b32 s23, {S_S}, 9
    s_add_u32 s22, s22, s23
    s_add_u32 s31, s22, {F_KV}
    s_add_u32 s32, s22, {F_KM}
    s_and_b32 s22, {S_G}, 3
    s_lshl_b32 s35, s22, 21
    s_add_u32 s35, s35, {APART}
    s_lshl_b32 s36, s22, 9
    s_lshl_b32 s23, {S_W}, 7
    s_add_u32 s36, s36, s23
    s_add_u32 s36, s36, {F_AP}
    s_lshl_b32 s23, {S_H}, 2
    s_add_u32 s37, s36, s23
    s_mov_b32 s38, 1
    v_mov_b32 v{V_LR}, v{V_L16}
    at_loop:
    at_hpoll:
    buffer_load_dword v{V_F}, v{V_FA}, {S_WS}, s24 offen sc1
    s_waitcnt vmcnt(0)
    v_cmp_eq_u32 vcc, 0, v{V_F}
    s_cbranch_vccz at_hgo
    {GUARD}
    s_sleep 1
    s_branch at_hpoll
    at_hgo:
    ''')
    for i in h_dma(V_HD, 's20', 's21'):
        P(i)
    P(f'''
    s_lshl_b32 s22, {S_LAYER}, 21
    s_add_u32 s22, s22, s39
    s_add_u32 s22, s22, {X1}
    buffer_load_dwordx4 {q4(XR)}, v{V_L16}, {S_WS}, s22 offen sc1
    s_add_u32 s22, s39, {YTOT}
    buffer_load_dwordx4 {q4(YR)}, v{V_L16}, {S_WS}, s22 offen
    s_waitcnt vmcnt(0)
    s_barrier
    ds_read_b128 {q4(HB)}, v{V_LR}
    ds_read_b128 {q4(HB + 4)}, v{V_LR} offset:1024
    ''')
    for kk in range(16):
        b = HB + 8 * (kk & 1)
        nb = HB + 8 * ((kk + 1) & 1)
        ms = []
        for te in range(2):
            for tt in range(2):
                d = AQ + 8 * tt + 4 * te
                ms.append(f'{MF} {q4(d)}, {a4(4 * (16 * te + kk))}, {q4(b + 4 * tt)}, {q4(d) if kk else 0}')
        P(ms[0])
        if kk < 15:
            P(f'ds_read_b128 {q4(nb)}, v{V_LR} offset:{(kk + 1) * 2048}')
        P(ms[1])
        if kk < 15:
            P(f'ds_read_b128 {q4(nb + 4)}, v{V_LR} offset:{(kk + 1) * 2048 + 1024}')
        for m in ms[2:]:
            P(m)
    for tt in range(2):
        for i in range(4):
            P(cvt(QP + 4 * tt + i, AQ + 8 * tt + 2 * i))
        P(f'ds_write_b128 v{V_QW}, {q4(QP + 4 * tt)} offset:{1024 * tt}')
    P(f'''
    at_kvpoll:
    buffer_load_dwordx4 {q4(FL)}, off, {S_WS}, s31 sc1
    s_waitcnt vmcnt(0)
    v_min_u32 v{FL}, v{FL}, v{FL + 1}
    v_min3_u32 v{FL}, v{FL}, v{FL + 2}, v{FL + 3}
    v_cmp_eq_u32 vcc, 0, v{FL}
    s_cbranch_vccz at_kvgo
    {GUARD}
    s_sleep 1
    s_branch at_kvpoll
    at_kvgo:
    s_add_u32 s22, s28, 4096
    ''')
    for i in range(8):
        sreg = 's28' if i < 4 else 's22'
        P(f'buffer_load_dwordx4 {q4(KX + 4 * i)}, v{V_L16}, {S_WS}, {sreg} offen offset:{1024 * (i & 3)} sc1')
    for i in range(4):
        P(f'buffer_load_dwordx4 {q4(VX + 4 * i)}, v{V_L16}, {S_WS}, s29 offen offset:{1024 * i} sc1')
    P('s_waitcnt lgkmcnt(0)\ns_barrier')
    for kk in range(4):
        P(f'ds_read_b128 {q4(Q + 4 * kk)}, v{V_QR} offset:{2048 * kk}')
    for kk in range(4):
        for t in range(2):
            c = q4(SX + 4 * t) if kk else q4(BIAS + 4 * t)
            P(f'{MF} {q4(SX + 4 * t)}, {q4(KX + 8 * kk + 4 * t)}, {q4(Q + 4 * kk)}, {c}')
    P(f'''
    at_kmpoll:
    buffer_load_dwordx4 {q4(FL)}, off, {S_WS}, s32 sc1
    s_waitcnt vmcnt(0)
    v_min_u32 v{FL}, v{FL}, v{FL + 1}
    v_min3_u32 v{FL}, v{FL}, v{FL + 2}, v{FL + 3}
    v_cmp_eq_u32 vcc, 0, v{FL}
    s_cbranch_vccz at_kmgo
    {GUARD}
    s_sleep 1
    s_branch at_kmpoll
    at_kmgo:
    s_add_u32 s22, s30, 4096
    s_lshl_b32 s23, s34, 12
    s_add_u32 s23, s23, s30
    ''')
    for kk in range(4):
        sreg = 's30' if kk < 2 else 's22'
        P(f'buffer_load_dwordx4 {q4(KM + 4 * kk)}, v{V_KMA}, {S_WS}, {sreg} offen offset:{2048 * (kk & 1)} sc1')
    for i in range(2):
        P(f'buffer_load_dwordx4 {q4(VM + 4 * i)}, v{V_L16}, {S_WS}, s23 offen offset:{2048 * i + 1024} sc1')
    for kk in range(4):
        P(f'{MF} {q4(SM)}, {q4(KM + 4 * kk)}, {q4(Q + 4 * kk)}, {q4(SM) if kk else 0}')
    vals = [SX + i for i in range(8)] + [SM + i for i in range(4)]
    sx = [f'v_max3_f32 v{MX}, v{SX}, v{SX + 1}, v{SX + 2}', f'v_max3_f32 v{NM}, v{SX + 3}, v{SX + 4}, v{SX + 5}',
          f'v_max3_f32 v{MX}, v{MX}, v{SX + 6}, v{SX + 7}', f'v_max3_f32 v{NM}, v{NM}, v{SM}, v{SM + 1}',
          f'v_max3_f32 v{MX}, v{MX}, v{SM + 2}, v{SM + 3}', f'v_max_f32 v{MX}, v{MX}, v{NM}']
    sx += xlane('v_max_f32', MX, NM)
    sx += [f'v_mul_f32 v{NM}, {S_C}, v{MX}']
    sx += [f'v_fma_f32 v{x}, v{x}, {S_C}, -v{NM}' for x in vals]
    sx += [f'v_exp_f32 v{x}, v{x}' for x in vals]
    sx += [cvt(PX + i, SX + 2 * i) for i in range(4)] + [cvt(PM + i, SM + 2 * i) for i in range(2)]
    for tau in range(4):
        sx.append(f'{MF} {q4(O + 4 * tau)}, {q4(VX + 4 * tau)}, {q4(PX)}, 0')
    for tau in range(4):
        sx.append(f'{MF16} {q4(O + 4 * tau)}, {q2(VM + 2 * tau)}, {q2(PM)}, {q4(O + 4 * tau)}')
    sx += [f'v_add_f32 v{SUM}, v{SM}, v{SM + 1}', f'v_add_f32 v{NM}, v{SM + 2}, v{SM + 3}',
           f'v_add_f32 v{SUM}, v{SUM}, v{NM}', f'v_fma_f32 v{SUM}, v{SUM}, 0.5, v{SX}',
           f'v_add_f32 v{NM}, v{SX + 1}, v{SX + 2}', f'v_add_f32 v{MX}, v{SX + 3}, v{SX + 4}',
           f'v_add_f32 v{SUM}, v{SUM}, v{SX + 5}', f'v_add_f32 v{NM}, v{NM}, v{SX + 6}',
           f'v_add_f32 v{MX}, v{MX}, v{SX + 7}', f'v_add_f32 v{SUM}, v{SUM}, v{NM}', f'v_add_f32 v{SUM}, v{SUM}, v{MX}']
    sx += xlane('v_add_f32', SUM, NM)
    sx += [f'v_rcp_f32 v{SUM}, v{SUM}']
    sx += [f'v_mul_f32 v{O + i}, v{O + i}, v{SUM}' for i in range(16)]
    sx += [cvt(OP + i, O + 2 * i) for i in range(8)]
    sx += [f'ds_write_b128 v{V_OW}, {q4(OP)}', f'ds_write_b128 v{V_OW}, {q4(OP + 4)} offset:2048']
    for i in sx:
        P(i)
    P(f's_waitcnt lgkmcnt(0)\ns_barrier\nv_add_u32 v{V_T0}, {L_OB}, v{V_L16}')
    for i in range(8):
        P(f'ds_read_b128 {q4(OB + 4 * i)}, v{V_T0} offset:{1024 * i}')
    P('s_add_u32 s22, s35, 0x20000')
    for Pp in range(4):
        for kk in range(4):
            for t in range(2):
                for qt in range(2):
                    d = AO + 16 * Pp + 8 * qt + 4 * t
                    P(f'{MF} {q4(d)}, {a4(128 + 4 * (4 * (2 * Pp + t) + kk))}, {q4(OB + 8 * kk + 4 * qt)}, {q4(d) if kk else 0}')
    for Pp in range(4):
        for qt in range(2):
            for i in range(4):
                P(cvt(PK + 8 * Pp + 4 * qt + i, AO + 16 * Pp + 8 * qt + 2 * i))
            sreg = 's22' if qt else 's35'
            P(f'buffer_store_dwordx4 {q4(PK + 8 * Pp + 4 * qt)}, v{V_PST}, {S_WS}, {sreg} offen offset:{64 * Pp} sc1')
    P(f'''
    v_mov_b32 v{V_T0}, s38
    s_waitcnt vmcnt(0)
    buffer_store_dword v{V_T0}, off, {S_WS}, s37 sc1
    at_appoll:
    buffer_load_dword v{V_F}, v{V_FA}, {S_WS}, s36 offen sc1
    s_waitcnt vmcnt(0)
    v_cmp_gt_u32 vcc, s38, v{V_F}
    s_cbranch_vccz at_apgo
    {GUARD}
    s_branch at_appoll
    at_apgo:
    ''')
    for i in range(8):
        P(f's_add_u32 s22, s35, {4096 * i}')
        P(f'buffer_load_dwordx4 {q4(RED + 4 * i)}, v{V_RLD}, {S_WS}, s22 offen sc1')
    for i in range(8):
        P(f'{MF} {q4(RD)}, {q4(SEL)}, {q4(RED + 4 * i)}, {q4(RD) if i else 0}')
    P(f'''
    s_mov_b32 exec_hi, 0
    ds_write_b128 v{V_RW}, {q4(RD)}
    s_mov_b64 exec, -1
    s_waitcnt lgkmcnt(0)
    s_barrier
    s_cmp_lg_u32 {S_W}, 0
    s_cbranch_scc1 at_next
    ds_read_b128 {q4(N_)}, v{V_RR}
    ds_read_b128 {q4(N_ + 4)}, v{V_RR} offset:16
    ''')
    for i in unpack8(X, XR):
        P(i)
    for i in range(8):
        P(f'v_add_f32 v{X + i}, v{X + i}, v{N_ + i}')
    for i in range(4):
        P(cvt(PKX + i, X + 2 * i))
    P(f'''
    s_cmp_eq_u32 {S_LAYER}, 0
    s_cbranch_scc1 at_row1
    buffer_store_dwordx4 {q4(PKX)}, v{V_L16}, s[56:59], s39 offen
    s_branch at_next
    at_row1:
    ''')
    for i in unpack8(X, PKX) + unpack8(Y, YR) + row_block(X, Y, N_, PKX, PH, TT):
        P(i)
    P(f'''
    s_add_u32 s22, s39, {X3}
    s_add_u32 s23, s39, {H2}
    buffer_store_dwordx4 {q4(PKX)}, v{V_L16}, {S_WS}, s22 offen sc1
    buffer_store_dwordx4 {q4(PH)}, v{V_L16}, {S_WS}, s23 offen sc1
    s_lshl_b32 s22, {S_H}, 2
    s_add_u32 s22, s22, s24
    v_mov_b32 v{V_T0}, 1
    s_add_u32 s22, s22, 8192
    s_waitcnt vmcnt(0)
    buffer_store_dword v{V_T0}, off, {S_WS}, s22 sc1
    at_next:
    s_add_u32 s20, s20, 65536
    s_add_u32 s39, s39, 65536
    s_add_u32 s24, s24, 256
    s_add_u32 s28, s28, 0x80000
    s_add_u32 s29, s29, 0x80000
    s_add_u32 s30, s30, 0x80000
    s_add_u32 s31, s31, 1024
    s_add_u32 s32, s32, 1024
    s_xor_b32 s35, s35, 0x100000
    s_add_u32 s38, s38, 1
    s_add_u32 {S_S}, {S_S}, 2
    s_cmp_lt_u32 {S_S}, {NS}
    s_cbranch_scc1 at_loop
    s_waitcnt vmcnt(0)
    s_endpgm
    ''')
```

```python
import sys
import math
import struct
from asmtool import Prog
from layout import *
import chain
import roles
import pre
from chain import S_WS, S_W, S_H, S_G, S_PURE, S_LAYER, S_S, S_C, S_SENT, SENT, GUARD

NAME = 'interleave_layers__ssm_conv_h3__memory_aug_recurrent_mem_tr__prompt'
LDS_MAIN = 160 * 1024
HEADER = ''


def f32bits(x):
    return struct.unpack('<I', struct.pack('<f', x))[0]


def kd(name, vgpr, accum, sgpr=102):
    return f'''.amdhsa_kernel {name}
  .amdhsa_next_free_vgpr {vgpr}
  .amdhsa_next_free_sgpr {sgpr}
  .amdhsa_accum_offset {accum}
  .amdhsa_group_segment_fixed_size 0
  .amdhsa_kernarg_size 128
  .amdhsa_user_sgpr_count 2
  .amdhsa_user_sgpr_kernarg_segment_ptr 1
  .amdhsa_system_sgpr_workgroup_id_x 1
.end_amdhsa_kernel
'''


def resolve_pure(P, t0, t1):
    a, b, c = P.uid('rp'), P.uid('rp'), P.uid('rp')
    P(f'''
    s_cmp_eq_u32 {S_PURE}, 2
    s_cbranch_scc0 {c}
    s_lshl_b32 s22, {S_G}, 2
    {a}:
    buffer_load_dword v{t1}, off, s[4:7], 0 offset:32 sc1
    s_waitcnt vmcnt(0)
    buffer_load_dword v{t0}, off, s[4:7], s22 sc1
    s_waitcnt vmcnt(0)
    v_readfirstlane_b32 s23, v{t0}
    v_readfirstlane_b32 s33, v{t1}
    s_mov_b32 {S_PURE}, 1
    s_cmp_ge_u32 s23, 32
    s_cbranch_scc1 {c}
    s_mov_b32 {S_PURE}, 0
    s_cmp_ge_u32 s33, 256
    s_cbranch_scc1 {c}
    {GUARD}
    s_sleep 2
    s_branch {a}
    {c}:
    ''')


def gen_main(P, opt):
    P(f'''
    main_kernel:
    s_cmp_ge_u32 s2, 256
    s_cbranch_scc1 main_exit
    s_load_dwordx2 s[4:5], s[0:1], 112
    s_load_dwordx2 s[8:9], s[0:1], 120
    s_load_dwordx2 s[44:45], s[0:1], 56
    s_load_dwordx2 s[56:57], s[0:1], 104
    s_mov_b32 s3, 1000000
    s_mov_b32 s6, 256
    s_mov_b32 s7, 0x00020000
    s_mov_b32 s10, {WS_BYTES}
    s_mov_b32 s11, 0x00020000
    s_mov_b32 s46, 8192
    s_mov_b32 s47, 0x00020000
    s_mov_b32 s58, {S * D * 2}
    s_mov_b32 s59, 0x00020000
    v_lshrrev_b32 v1, 6, v0
    s_nop 0
    v_readfirstlane_b32 {S_W}, v1
    s_mov_b32 {S_C}, {f32bits(E ** -0.5 * math.log2(math.e))}
    s_mov_b32 {S_SENT}, {SENT}
    s_getreg_b32 s20, hwreg(HW_REG_XCC_ID, 0, 4)
    s_waitcnt lgkmcnt(0)
    ''')
    if opt.get('scramble'):
        P('s_mov_b32 s20, 15')
    P(f'''
    s_cmp_lg_u32 {S_W}, 0
    s_cbranch_scc1 main_ticket_wait
    s_mov_b64 exec, 1
    v_mov_b32 v2, 1
    s_mov_b32 s21, 64
    s_cmp_ge_u32 s20, 8
    s_cbranch_scc1 main_ticket_total
    s_lshl_b32 s22, s20, 2
    buffer_atomic_add v2, off, s[4:7], s22 sc0
    s_waitcnt vmcnt(0)
    v_readfirstlane_b32 s21, v2
    main_ticket_total:
    v_mov_b32 v2, 1
    buffer_atomic_add v2, off, s[4:7], 0 offset:32
    s_mov_b32 s23, 2
    s_cmp_lt_u32 s21, 32
    s_cbranch_scc1 main_ticket_done
    v_mov_b32 v2, 1
    buffer_atomic_add v2, off, s[4:7], 0 offset:36 sc0
    s_waitcnt vmcnt(0)
    v_readfirstlane_b32 s24, v2
    main_ovf_wait:
    buffer_load_dword v2, off, s[4:7], 0 offset:32 sc1
    s_waitcnt vmcnt(0)
    v_readfirstlane_b32 s22, v2
    s_cmp_ge_u32 s22, 256
    s_cbranch_scc1 main_ovf_go
    {GUARD}
    s_sleep 2
    s_branch main_ovf_wait
    main_ovf_go:
    s_mov_b32 s20, 0
    main_ovf_scan:
    s_lshl_b32 s22, s20, 2
    buffer_load_dword v2, off, s[4:7], s22 sc1
    s_waitcnt vmcnt(0)
    v_readfirstlane_b32 s21, v2
    s_min_u32 s21, s21, 32
    s_sub_u32 s22, 32, s21
    s_cmp_lt_u32 s24, s22
    s_cbranch_scc1 main_ovf_found
    s_sub_u32 s24, s24, s22
    s_add_u32 s20, s20, 1
    s_cmp_lt_u32 s20, 7
    s_cbranch_scc1 main_ovf_scan
    buffer_load_dword v2, off, s[4:7], 0 offset:28 sc1
    s_waitcnt vmcnt(0)
    v_readfirstlane_b32 s21, v2
    main_ovf_found:
    s_add_u32 s21, s21, s24
    s_mov_b32 s23, 0
    main_ticket_done:
    v_mov_b32 v2, s20
    v_mov_b32 v3, s21
    v_mov_b32 v4, s23
    v_mov_b32 v5, {LDS_MAIN - 16}
    ds_write_b96 v5, v[2:4]
    s_waitcnt lgkmcnt(0)
    s_mov_b64 exec, -1
    main_ticket_wait:
    s_barrier
    v_mov_b32 v5, {LDS_MAIN - 16}
    ds_read_b96 v[2:4], v5
    s_waitcnt lgkmcnt(0)
    v_readfirstlane_b32 {S_G}, v2
    v_readfirstlane_b32 {S_H}, v3
    v_readfirstlane_b32 {S_PURE}, v4
    s_and_b32 {S_G}, {S_G}, 7
    s_and_b32 {S_H}, {S_H}, 31
    s_and_b32 {S_LAYER}, {S_G}, 1
    s_cmp_lt_u32 {S_G}, 2
    s_cbranch_scc1 chain_role
    {'s_endpgm' if opt.get('chainonly') else ''}
    s_cmp_lt_u32 {S_G}, 4
    s_cbranch_scc1 kv_role
    s_branch at_role
    main_exit:
    s_endpgm
    main_timeout:
    s_mov_b64 exec, 1
    v_mov_b32 v2, 1
    buffer_atomic_add v2, off, s[4:7], 0 offset:40
    s_waitcnt vmcnt(0)
    s_endpgm
    ''')
    opt['resolve_pure'] = resolve_pure
    chain.gen_chain(P, opt)
    roles.gen_kv(P, opt)
    roles.gen_at(P, opt)


def build(opt):
    ks = []
    if not opt.get('mainonly'):
        ks += [('prep_kernel', pre.gen_prep, 0, 224, 224), ('conv_kernel', pre.gen_conv, pre.LDS_CONV, 96, 96),
               ('rows_kernel', pre.gen_rows, 8192, 112, 112)]
    ks.append(('main_kernel', gen_main, LDS_MAIN, 512, 256))
    head = HEADER
    for name, _, lds, _, _ in ks:
        head += f'; @launch kernel={name} grid=(256,1,1) block=(256,1,1) lds={lds}\n'
    head += '.amdgcn_target "amdgcn-amd-amdhsa--gfx950"\n.text\n'
    body = ''
    tail = '.section .rodata,"a"\n'
    for name, fn, lds, vg, acc in ks:
        P = Prog()
        fn(P, opt)
        body += f'.globl {name}\n.p2align 8\n.type {name},@function\n' + P.finish()
        tail += '.p2align 6\n' + kd(name, vg, acc)
    return head + body + tail


if __name__ == '__main__':
    opt = {}
    for a in sys.argv[2:]:
        k, v = a.split('=')
        opt[k] = int(v)
    open(sys.argv[1], 'w').write(build(opt))
```

```python
import re

REG_RE = re.compile(r'^(-|abs\()?([vas])(\d+|\[(\d+):(\d+)\])\)?$')


def regs_of(tok):
    tok = tok.strip()
    if tok in ('vcc',):
        return {('s', 106), ('s', 107)}
    if tok == 'vcc_lo':
        return {('s', 106)}
    if tok == 'vcc_hi':
        return {('s', 107)}
    if tok == 'exec':
        return {('s', 126), ('s', 127)}
    if tok == 'exec_lo':
        return {('s', 126)}
    if tok == 'exec_hi':
        return {('s', 127)}
    if tok == 'm0':
        return {('s', 124)}
    t = tok
    if t.startswith('-'):
        t = t[1:]
    if t.startswith('abs(') and t.endswith(')'):
        t = t[4:-1]
    if t.startswith('|') and t.endswith('|'):
        t = t[1:-1]
    m = re.match(r'^([vas])(\d+)$', t)
    if m:
        return {(m.group(1), int(m.group(2)))}
    m = re.match(r'^([vas])\[(\d+):(\d+)\]$', t)
    if m:
        return {(m.group(1), i) for i in range(int(m.group(2)), int(m.group(3)) + 1)}
    return set()


TRANS = ('v_exp_f32', 'v_log_f32', 'v_rcp_f32', 'v_rsq_f32', 'v_sqrt_f32', 'v_sin_f32', 'v_cos_f32',
         'v_rcp_iflag_f32')
SMFMAC_PASSES = 4
EXEC = {('s', 126), ('s', 127)}
VCC = {('s', 106), ('s', 107)}
M0 = {('s', 124)}


class Ins:
    __slots__ = ('text', 'mn', 'ops', 'mods', 'defs', 'uses', 'kind', 'label', 'target', 'passes',
                 'srcc', 'srcab', 'dpp', 'auto', 'vm', 'lgkm', 'store_data', 'states')

    def __init__(self, text, auto=False):
        self.text = text
        self.auto = auto
        self.label = None
        self.target = None
        self.defs = set()
        self.uses = set()
        self.kind = 'other'
        self.passes = 0
        self.srcc = set()
        self.srcab = set()
        self.dpp = False
        self.vm = None
        self.lgkm = None
        self.store_data = set()
        self.states = 1
        body = text.split(';')[0].strip()
        self.mn = ''
        self.ops = []
        self.mods = ''
        if not body:
            self.kind = 'blank'
            self.states = 0
            return
        if body.endswith(':'):
            self.label = body[:-1]
            self.kind = 'label'
            self.states = 0
            return
        if body.startswith('.'):
            self.kind = 'directive'
            self.states = 0
            return
        parts = body.split(None, 1)
        mn = parts[0]
        self.mn = mn
        rest = parts[1] if len(parts) > 1 else ''
        toks = []
        depth = 0
        cur = ''
        for ch in rest:
            if ch in '[(':
                depth += 1
            if ch in '])':
                depth -= 1
            if ch == ',' and depth == 0:
                toks.append(cur.strip())
                cur = ''
            else:
                cur += ch
        if cur.strip():
            toks.append(cur.strip())
        if toks:
            last = toks[-1].split(None, 1)
            if len(last) > 1 and not mn.startswith('s_waitcnt'):
                toks[-1] = last[0]
                self.mods = last[1]
        self.ops = toks
        R = [regs_of(t) for t in toks]
        allr = set().union(*R) if R else set()
        base = re.sub(r'_(e32|e64|dpp|sdwa)$', '', mn)
        if mn == 's_waitcnt':
            self.kind = 'wait'
            m = re.search(r'vmcnt\((\d+)\)', rest)
            self.vm = int(m.group(1)) if m else None
            m = re.search(r'lgkmcnt\((\d+)\)', rest)
            self.lgkm = int(m.group(1)) if m else None
        elif mn == 's_nop':
            self.kind = 'nop'
            self.states = int(toks[0], 0) + 1
        elif mn in ('s_branch',) or mn.startswith('s_cbranch'):
            self.kind = 'branch'
            self.target = toks[0]
            if 'vcc' in mn:
                self.uses |= VCC
            if 'exec' in mn:
                self.uses |= EXEC
        elif mn == 's_endpgm':
            self.kind = 'end'
        elif mn in ('s_barrier', 's_sleep', 's_setprio'):
            self.kind = 'salu'
        elif mn.startswith('s_load') or mn.startswith('s_buffer_load') or mn in ('s_memtime', 's_memrealtime'):
            self.kind = 'smem'
            self.defs = R[0]
            self.uses = set().union(*R[1:]) if len(R) > 1 else set()
        elif mn.startswith('s_cmp') or mn.startswith('s_bitcmp'):
            self.kind = 'salu'
            self.uses = allr
        elif mn.startswith('s_'):
            self.kind = 'salu'
            self.defs = set(R[0]) if R else set()
            self.uses = set().union(*R[1:]) if len(R) > 1 else set()
            if 'saveexec' in mn:
                self.defs |= EXEC
                self.uses |= EXEC
            if mn in ('s_addk_i32', 's_mulk_i32', 's_bitset1_b32'):
                self.uses |= R[0]
        elif mn.startswith('v_smfmac'):
            self.kind = 'mfma'
            self.defs = R[0]
            self.srcab = R[1] | R[2] | R[3]
            self.srcc = R[0]
            self.uses = self.srcab | self.srcc
            self.passes = SMFMAC_PASSES if '16x16' in mn else 2 * SMFMAC_PASSES
        elif mn.startswith('v_mfma'):
            self.kind = 'mfma'
            self.defs = R[0]
            self.srcab = R[1] | R[2]
            self.srcc = R[3]
            self.uses = self.srcab | self.srcc
            if '32x32' in mn:
                self.passes = 8
            elif '16x16' in mn:
                self.passes = 4
            else:
                raise ValueError(mn)
            assert mn.endswith('bf16'), mn
        elif mn.startswith('v_'):
            self.kind = 'valu'
            self.dpp = any(k in self.mods for k in ('row_', 'quad_perm', 'wave_')) or mn.endswith('_dpp')
            if base.startswith('v_cmpx'):
                self.defs = R[0] | EXEC
                self.uses = set().union(*R[1:])
            elif base.startswith('v_permlane') and 'swap' in base:
                self.defs = R[0] | R[1]
                self.uses = R[0] | R[1]
            elif base in ('v_add_co_u32', 'v_sub_co_u32', 'v_addc_co_u32', 'v_subb_co_u32', 'v_mad_u64_u32'):
                self.defs = R[0] | R[1]
                self.uses = set().union(*R[2:])
            elif base == 'v_nop':
                pass
            else:
                self.defs = set(R[0])
                self.uses = set().union(*R[1:]) if len(R) > 1 else set()
                if base.startswith('v_fmac') or base.startswith('v_pk_fmac') or self.dpp or base.startswith('v_writelane') \
                        or base.startswith('v_dot2c'):
                    self.uses |= R[0]
        elif mn.startswith('ds_'):
            self.kind = 'ds'
            if mn.startswith('ds_read') or mn.startswith('ds_bpermute') or mn.startswith('ds_permute') \
                    or mn.startswith('ds_swizzle') or '_rtn' in mn:
                self.defs = R[0]
                self.uses = set().union(*R[1:])
            else:
                self.uses = allr
        elif mn.startswith('buffer_') or mn.startswith('global_'):
            self.kind = 'vmem'
            mods = self.mods.split()
            is_lds = 'lds' in mods or '_lds_' in mn
            if is_lds:
                self.uses = allr | M0
            elif '_load' in mn:
                self.defs = R[0]
                self.uses = set().union(*R[1:])
                if 'd16' in mn:
                    self.uses |= R[0]
            elif '_store' in mn:
                self.uses = allr
                data = R[0] if mn.startswith('buffer_') else R[1]
                if len(data) >= 3:
                    self.store_data = data
            elif '_atomic' in mn:
                self.uses = allr
                if 'sc0' in mods:
                    self.defs = R[0]
            elif mn.startswith('buffer_inv') or mn.startswith('buffer_wbl2'):
                pass
            else:
                raise ValueError('unknown vmem ' + text)
        else:
            raise ValueError('unknown instruction ' + text)

    @property
    def base(self):
        return re.sub(r'_(e32|e64|dpp|sdwa)$', '', self.mn)


def vr(s):
    return {r for r in s if r[0] in 'va'}


def sr(s):
    return {r for r in s if r[0] == 's'}


XDL_RD = {4: 8, 8: 12, 16: 20}
XDL_OVL = {4: 6, 8: 10, 16: 18}
XDL_WARC = {4: 3, 8: 7, 16: 15}


def need_states(p, c):
    n = 0
    if p.kind == 'valu':
        pv = vr(p.defs)
        ps = sr(p.defs)
        if c.kind == 'mfma' and pv & c.uses:
            n = max(n, 2)
        if c.kind == 'valu':
            if c.dpp and pv & vr(c.uses):
                n = max(n, 2)
            if c.base.startswith('v_permlane') and pv & vr(c.uses):
                n = max(n, 2)
            if c.base in ('v_readfirstlane_b32', 'v_readlane_b32') and pv & vr(c.uses):
                n = max(n, 1)
            if p.base in TRANS and c.base not in TRANS and pv & vr(c.uses):
                n = max(n, 1)
            if ps & sr(c.uses):
                n = max(n, 4 if c.base in ('v_readlane_b32', 'v_writelane_b32') else 2)
            if ps & EXEC:
                if c.dpp:
                    n = max(n, 5)
                if c.base.startswith('v_permlane') or c.base in ('v_readfirstlane_b32', 'v_readlane_b32'):
                    n = max(n, 4)
            if ('op_sel' in p.mods or p.mn.endswith('sdwa')) and pv & (vr(c.uses) | vr(c.defs)):
                n = max(n, 1)
        if c.kind == 'mfma' and ps & EXEC:
            n = max(n, 4)
        if c.kind == 'vmem' and ps & sr(c.uses):
            n = max(n, 5)
        if c.kind == 'salu' and ps & sr(c.uses):
            n = max(n, 1)
    if p.kind == 'mfma':
        D = p.defs
        if c.kind == 'mfma':
            if D & c.srcab:
                n = max(n, XDL_RD[p.passes])
            if D & c.srcc:
                if not (c.srcc == D and c.mn == p.mn):
                    n = max(n, XDL_OVL[p.passes])
            elif D & c.defs:
                n = max(n, XDL_OVL[p.passes])
        elif c.kind in ('valu', 'vmem', 'ds'):
            if D & (c.uses | c.defs):
                n = max(n, XDL_RD[p.passes])
            if c.kind == 'valu' and p.srcc & c.defs:
                n = max(n, XDL_WARC[p.passes])
    if p.kind == 'vmem' and p.store_data:
        if c.kind in ('valu', 'mfma') and p.store_data & c.defs:
            n = max(n, 2)
        elif p.store_data & c.defs:
            n = max(n, 1)
    if p.kind == 'salu' and p.defs & M0:
        if c.kind == 'vmem' and c.uses & M0:
            n = max(n, 1)
    return n


def build_cfg(ins):
    labels = {i.label: k for k, i in enumerate(ins) if i.kind == 'label'}
    succ = [[] for _ in ins]
    for k, i in enumerate(ins):
        if i.kind == 'end':
            continue
        if i.kind == 'branch':
            succ[k].append(labels[i.target])
            if i.mn != 's_branch' and k + 1 < len(ins):
                succ[k].append(k + 1)
        elif k + 1 < len(ins):
            succ[k].append(k + 1)
    pred = [[] for _ in ins]
    for k, s in enumerate(succ):
        for t in s:
            pred[t].append(k)
    return succ, pred


def fix_hazards(ins):
    MAXD = 12
    added = 0
    while True:
        succ, pred = build_cfg(ins)
        out = []
        changed = False
        for k, c in enumerate(ins):
            if c.kind in ('valu', 'mfma', 'vmem', 'ds', 'salu'):
                lack = 0
                stack = [(p, 0) for p in pred[k]]
                seen = {}
                while stack:
                    q, d = stack.pop()
                    if seen.get(q, 99) <= d:
                        continue
                    seen[q] = d
                    p = ins[q]
                    n = need_states(p, c)
                    if n > d:
                        lack = max(lack, n - d)
                    d2 = d + p.states
                    if d2 < MAXD:
                        for pp in pred[q]:
                            stack.append((pp, d2))
                if lack > 0:
                    out.append(Ins('    s_nop %d ; hazard' % (lack - 1), auto=True))
                    added += lack
                    changed = True
                    out.extend(ins[k:])
                    break
            out.append(c)
        ins = out
        if not changed:
            return ins, added


def fix_hazards_fast(ins):
    MAXD = 20
    total = 0
    for _ in range(50):
        succ, pred = build_cfg(ins)
        extra = [0] * len(ins)
        any_ = False
        for k, c in enumerate(ins):
            if c.kind not in ('valu', 'mfma', 'vmem', 'ds', 'salu'):
                continue
            lack = 0
            dm0 = -1 if c.kind == 'mfma' else None
            stack = [(p, 0, dm0) for p in pred[k]]
            seen = {}
            while stack:
                q, d, dm = stack.pop()
                p = ins[q]
                if p.kind == 'mfma' and dm is not None and PHYS:
                    d = max(d, dm + p.passes)
                key = (q, dm is None)
                old_ = seen.get(key)
                cur = (d, 99 if dm is None else dm)
                if old_ is not None and old_[0] <= cur[0] and old_[1] <= cur[1]:
                    continue
                seen[key] = cur
                n = need_states(p, c)
                if n > d:
                    lack = max(lack, n - d)
                d2 = d + p.states + extra[q]
                dm2 = d if p.kind == 'mfma' else dm
                if d2 < MAXD:
                    for pp in pred[q]:
                        stack.append((pp, d2, dm2))
            if lack > 0:
                if c.kind == 'mfma' and PHYS:
                    lack = plain_lack(ins, pred, extra, k, lack)
                extra[k] = lack
                any_ = True
        if not any_:
            return ins, total
        out = []
        for k, c in enumerate(ins):
            if extra[k]:
                out.append(Ins('    s_nop %d' % (extra[k] - 1), auto=True))
                total += extra[k]
            out.append(c)
        ins = out
    raise RuntimeError('hazard fixing did not converge')


PHYS = True


def plain_lack(ins, pred, extra, k, lack):
    q = k
    d = 0
    while pred[q] and len(pred[q]) == 1 and d < 8:
        q = pred[q][0]
        p = ins[q]
        if p.kind == 'mfma':
            credit = max(0, p.passes - 1 - d)
            c = ins[k]
            inner = 0
            qq, dd = k, 0
            while qq != q:
                qq = pred[qq][0]
                if qq != q:
                    inner = max(inner, need_states(ins[qq], c) - dd)
                    dd += ins[qq].states + extra[qq]
            if inner >= lack:
                return lack
            return lack + credit
        d += p.states + extra[q]
    return lack


def _merge(a, b):
    if a is None:
        return b
    n = max(len(a), len(b))
    res = []
    for i in range(n):
        x = a[i] if i < len(a) else frozenset()
        y = b[i] if i < len(b) else frozenset()
        res.append(x | y)
    return tuple(res)


SM = ('smem', 0)


def insert_waits(ins):
    for _ in range(200):
        succ, pred = build_cfg(ins)
        st_in = [None] * len(ins)
        entries = [k for k in range(len(ins)) if not pred[k]]
        work = list(entries)
        for k in entries:
            st_in[k] = ((), ())
        need = {}

        def transfer(k, st):
            vm, lg = st
            i = ins[k]
            touched = i.uses | i.defs
            nv = nl = None
            if touched and i.kind != 'wait':
                for pos, s in enumerate(vm):
                    if s & touched:
                        nv = pos
                        break
                for pos, s in enumerate(lg):
                    if s & touched:
                        nl = pos
                        break
                if nl is not None and any(SM in s for s in lg):
                    nl = 0
            if nv is not None or nl is not None:
                o = need.get(k, (None, None))
                a = nv if o[0] is None else (o[0] if nv is None else min(nv, o[0]))
                b = nl if o[1] is None else (o[1] if nl is None else min(nl, o[1]))
                need[k] = (a, b)
                if nv is not None:
                    vm = vm[:nv]
                if nl is not None:
                    lg = lg[:nl]
            if i.kind == 'wait':
                if i.vm is not None:
                    vm = vm[:i.vm]
                if i.lgkm is not None:
                    if i.lgkm == 0 or not any(SM in s for s in lg):
                        lg = lg[:i.lgkm]
            elif i.kind == 'vmem':
                vm = (frozenset() if ';nodep' in i.text else frozenset(i.defs),) + vm
                if len(vm) > 64:
                    vm = vm[:63] + (frozenset().union(*vm[63:]),)
            elif i.kind == 'ds':
                lg = (frozenset(i.defs),) + lg
                if len(lg) > 16:
                    lg = lg[:15] + (frozenset().union(*lg[15:]),)
            elif i.kind == 'smem' and ';nodep' not in i.text:
                lg = (frozenset(i.defs | {SM}),) + lg
                if len(lg) > 16:
                    lg = lg[:15] + (frozenset().union(*lg[15:]),)
            return (vm, lg)

        while work:
            k = work.pop()
            out = transfer(k, st_in[k])
            for t in succ[k]:
                if st_in[t] is None:
                    st_in[t] = out
                    work.append(t)
                else:
                    m = (_merge(st_in[t][0], out[0]), _merge(st_in[t][1], out[1]))
                    if m != st_in[t]:
                        st_in[t] = m
                        work.append(t)
        if not need:
            return ins
        out = []
        for k, i in enumerate(ins):
            if k in need:
                a, b = need[k]
                t = '    s_waitcnt'
                if a is not None:
                    t += ' vmcnt(%d)' % min(a, 63)
                if b is not None:
                    t += ' lgkmcnt(%d)' % min(b, 15)
                out.append(Ins(t, auto=True))
            out.append(i)
        ins = out
    raise RuntimeError('wait insertion did not converge')


class Prog:
    def __init__(self):
        self.lines = []
        self._uid = 0

    def __call__(self, text):
        for ln in text.split('\n'):
            ln = ln.rstrip()
            if not ln.strip():
                continue
            s = ln.strip()
            if s.endswith(':') or s.startswith('.') or s.startswith(';'):
                self.lines.append(s)
            else:
                self.lines.append('    ' + s)

    def label(self, name):
        self.lines.append(name + ':')

    def uid(self, p='L'):
        self._uid += 1
        return '%s_%d' % (p, self._uid)

    def finish(self):
        ins = [Ins(l) for l in self.lines]
        ins = insert_waits(ins)
        ins, n = fix_hazards_fast(ins)
        return '\n'.join(i.text for i in ins) + '\n'


def interleave(main, side, ratio=None, start=0, end=None):
    main = list(main)
    side = list(side)
    if end is None:
        end = len(main)
    n = end - start
    out = main[:start]
    j = 0
    for i in range(n):
        out.append(main[start + i])
        upto = (i + 1) * len(side) // n if ratio is None else min(len(side), (i + 1) * ratio)
        while j < upto:
            out.append(side[j])
            j += 1
    out.extend(side[j:])
    out.extend(main[end:])
    return out


class Node:
    __slots__ = ('ins', 'group', 'kind', 'defs', 'uses', 'preds', 'succs', 'prio', 'wtag', 'rtag', 'btag', 'idx',
                 'cost', 'first', 'boost', 'notbefore')


def _lat(p, c, raw):
    a, b = p.first, c.first
    l = 4 * (need_group(p, c) + 1)
    if raw:
        if a.kind == 'ds':
            l = max(l, 84)
        if a.kind == 'vmem':
            m = re.search(r';lat:(\d+)', a.text)
            l = max(l, int(m.group(1)) if m else 12)
        if a.kind == 'valu' and a.base in TRANS:
            l = max(l, 12)
    return l


def need_group(p, c):
    return max(need_states(x, y) for x in p.group for y in c.group)


def schedule(items, verbose=False, anneal=0, seed=0):
    nodes = []
    for it in items:
        n = Node()
        texts = [it] if isinstance(it, str) else list(it)
        n.btag = None
        if texts[0].startswith('@bar'):
            n.btag = texts[0].split()[1]
            n.group = [Ins('s_barrier')]
            n.ins = texts
        else:
            n.group = [Ins(t) for t in texts]
            n.ins = texts
        n.first = next((g for g in n.group if g.kind in ('mfma', 'valu', 'ds', 'vmem')), n.group[0])
        n.kind = n.first.kind
        n.defs = set().union(*[g.defs for g in n.group])
        n.uses = set().union(*[g.uses for g in n.group])
        if len(n.group) > 1:
            n.defs -= EXEC
            n.uses -= EXEC
        alltext = ' '.join(texts)
        n.wtag = re.findall(r';(?:w|before):(\w+)', alltext)
        n.rtag = re.findall(r';(?:r|after):(\w+)', alltext)
        m = re.search(r';p:(-?\d+)', alltext)
        n.boost = int(m.group(1)) if m else 0
        m = re.search(r';t:(\d+)', alltext)
        n.notbefore = int(m.group(1)) if m else 0
        cost = 0
        for g in n.group:
            c = 4
            if g.kind == 'valu':
                c = 9 if g.base in TRANS else 4.7
            elif g.kind == 'ds' and g.mn.startswith('ds_write_b128'):
                c = 34
            elif g.kind == 'ds' and g.mn.startswith('ds_write_b64'):
                c = 18
            elif g.kind == 'ds':
                c = 8
            elif g.kind == 'vmem' and '_store_dwordx4' in g.mn:
                c = 36
            elif g.kind == 'vmem':
                c = 8
            cost += c
        if n.btag:
            cost = 8
        n.cost = cost
        n.preds = {}
        n.succs = {}
        n.idx = len(nodes)
        nodes.append(n)

    def dep(p, c, lat):
        if p is c:
            return
        if lat > c.preds.get(p.idx, -1):
            c.preds[p.idx] = lat
            p.succs[c.idx] = lat

    lastw = {}
    readers = {}
    lastvm = None
    lastbar = None
    bars = {}
    pendw = {}
    for n in nodes:
        for r in n.uses:
            if r in lastw:
                p = lastw[r]
                if p.kind == 'mfma' and n.kind == 'mfma' and need_group(p, n) == 0:
                    dep(p, n, 16)
                else:
                    dep(p, n, _lat(p, n, r[0] != 's'))
        for r in n.defs:
            if r in lastw:
                dep(lastw[r], n, _lat(lastw[r], n, r[0] != 's' and lastw[r].kind in ('ds', 'vmem')))
            for p in readers.get(r, []):
                dep(p, n, 4 * (need_group(p, n) + 1))
        for r in n.uses:
            readers.setdefault(r, []).append(n)
        for r in n.defs:
            lastw[r] = n
            readers[r] = []
        if any(g.kind == 'vmem' for g in n.group) and ';free' not in ' '.join(n.ins):
            if lastvm:
                dep(lastvm, n, 4)
            lastvm = n
        for t in n.wtag:
            pendw.setdefault(t, []).append(n)
        if n.btag:
            for p in pendw.get(n.btag, []):
                dep(p, n, 76 if p.kind == 'ds' else 4)
            if lastbar:
                dep(lastbar, n, 8)
            lastbar = n
            bars[n.btag] = n
        for t in n.rtag:
            dep(bars[t], n, 12)
    for n in reversed(nodes):
        n.prio = n.boost + max([lat + nodes[s].prio for s, lat in n.succs.items()] + [n.cost])
    t = 0.0
    pipe = 0.0
    vblock = 0.0
    done = {}
    order = []
    remaining = set(range(len(nodes)))
    while remaining:
        best = None
        for i in remaining:
            n = nodes[i]
            if any(p not in done for p in n.preds):
                continue
            rt = max([t, n.notbefore] + [done[p] + lat for p, lat in n.preds.items()])
            if n.kind == 'mfma':
                rt = max(rt, pipe)
            elif n.kind == 'valu':
                rt = max(rt, vblock)
            key = (max(rt - t - 2, 0) > 0, rt if rt - t > 2 else 0, -n.prio, i)
            if best is None or key < best[0]:
                best = (key, n, rt)
        _, n, rt = best
        for i in remaining:
            u = nodes[i]
            if u is n or u.prio <= n.prio + 40 or any(p not in done for p in u.preds):
                continue
            ut = max([t, u.notbefore] + [done[p] + lat for p, lat in u.preds.items()])
            ut = max(ut, pipe) if u.kind == 'mfma' else (max(ut, vblock) if u.kind == 'valu' else ut)
            end = rt + n.cost
            if n.kind == 'mfma':
                end = rt + (16 if u.kind == 'mfma' else 12 if u.kind == 'valu' else 4)
            if ut + 8 < end and u.prio > n.prio:
                n, rt = u, ut
        done[n.idx] = rt
        t = rt + n.cost
        if n.kind == 'mfma':
            pipe = rt + 4 * n.first.passes
            vblock = rt + (12 if n.first.mn.startswith('v_smfmac') else (4 if 'x16_bf16' in n.first.mn and '16x16' in n.first.mn else 8))
        remaining.discard(n.idx)
        order.append(n)
        if verbose and not anneal:
            print('%6.0f %s' % (rt, ' | '.join(n.ins)))
    if anneal:
        order, t = _anneal(nodes, order, anneal, seed, verbose)
    out = []
    for k, n in enumerate(order):
        if n.btag:
            cnt = 0
            found = False
            for m_ in reversed(order[:k]):
                if n.btag in m_.wtag and m_.kind == 'ds':
                    found = True
                    break
                cnt += sum(g.kind == 'ds' for g in m_.group)
            if found:
                out.append('s_waitcnt lgkmcnt(%d)' % min(cnt, 15))
            out.append('s_barrier')
        else:
            out += [re.sub(r'\s*;(?!nodep).*$', '', x) for x in n.ins]
    return out, t


_CACHE = {}


def _anneal(nodes, order, iters, seed, verbose):
    import random
    import math
    import hashlib
    import json
    import os
    N = len(nodes)
    key = hashlib.md5(json.dumps([[re.sub(r' sc1', '', x) for x in n.ins] for n in nodes] + [n.cost for n in nodes] +
                                 [sorted(n.preds.items()) for n in nodes] + [iters, seed, 2]).encode()).hexdigest()
    path = os.path.join(os.path.dirname(os.path.abspath(__file__)), 'sched_cache', key + '.json')
    kind = [1 if n.kind == 'mfma' else 2 if n.kind == 'valu' else 3 if (n.kind == 'vmem' and 'x4' in n.first.mn and ';nota' not in n.first.text) else 0
            for n in nodes]
    vb = [(12 if n.first.mn.startswith('v_smfmac') else (4 if 'x16_bf16' in n.first.mn and '16x16' in n.first.mn else 8))
          if n.kind == 'mfma' else 0 for n in nodes]
    pl = [4 * n.first.passes if n.kind == 'mfma' else 0 for n in nodes]
    cost = [n.cost for n in nodes]
    nb = [n.notbefore for n in nodes]
    preds = [list(n.preds.items()) for n in nodes]
    isds = [n.kind == 'ds' for n in nodes]
    dsdep = [[p for p, lat in preds[i] if isds[p] and lat >= 60] for i in range(N)]

    def tag(n, k):
        m = re.search(r';%s:(-?[\d.]+)' % k, ' '.join(n.ins))
        return float(m.group(1)) if m else None
    dl = [(n.idx, tag(n, 'dl')) for n in nodes if tag(n, 'dl') is not None]
    by = [(n.idx, tag(n, 'by')) for n in nodes if tag(n, 'by') is not None]
    ew = [(n.idx, tag(n, 'e')) for n in nodes if tag(n, 'e') is not None]
    done = [0.0] * N

    def sim(o):
        t = pipe = vblock = ta = 0.0
        waited = -1.0
        for i in o:
            rt = t
            for p in dsdep[i]:
                if done[p] > waited:
                    waited = done[p]
                    rt = t + 4
            if nb[i] > rt:
                rt = nb[i]
            for p, lat in preds[i]:
                x = done[p] + lat
                if x > rt:
                    rt = x
            k = kind[i]
            if k == 1:
                if pipe > rt:
                    rt = pipe
                pipe = rt + pl[i]
                vblock = rt + vb[i]
            elif k == 2 and vblock > rt:
                rt = vblock
            elif k == 3:
                if ta - 96 > rt:
                    rt = ta - 96
                ta = (ta if ta > rt else rt) + 64
            done[i] = rt
            t = rt + cost[i]
        f = t
        for i, d in dl:
            if done[i] + d > t:
                f += done[i] + d - t
        for i, d in by:
            if done[i] > d:
                f += done[i] - d
        for i, w in ew:
            f += w * done[i]
        return f, t
    if os.path.exists(path):
        o = json.load(open(path))
    else:
        rnd = random.Random(seed)
        o = [n.idx for n in order]
        pset = [set(n.preds) for n in nodes]
        sset = [set(n.succs) for n in nodes]
        cur, _ = sim(o)
        best, besto = cur, list(o)
        for itn in range(iters):
            T = 12.0 * (1 - itn / iters) ** 2 + 0.05
            a = rnd.randrange(N)
            x = o[a]
            span = rnd.choice((1, 2, 3, 5, 8, 15, 30, 60))
            if rnd.random() < 0.5:
                b = a
                while b > 0 and a - b < span and o[b - 1] not in pset[x]:
                    b -= 1
            else:
                b = a
                while b < N - 1 and b - a < span and o[b + 1] not in sset[x]:
                    b += 1
            if a == b:
                continue
            o.pop(a)
            o.insert(b, x)
            f, _ = sim(o)
            if f <= cur or rnd.random() < math.exp((cur - f) / T):
                cur = f
                if f < best:
                    best, besto = f, list(o)
            else:
                o.pop(b)
                o.insert(a, x)
        o = besto
        os.makedirs(os.path.dirname(path), exist_ok=True)
        json.dump(o, open(path, 'w'))
    f, t = sim(o)
    if verbose:
        for i in o:
            print('%6.0f %s' % (done[i], ' | '.join(nodes[i].ins)))
        print('model end', t, 'objective', f)
    return [nodes[i] for i in o], t
```

```python
from layout import *
import stamps
from stamps import marks
from chain import (S_WS, S_W, S_H, S_G, S_PURE, S_LAYER, S_S, S_C, GUARD, MF, MF16, DPPF, q4, q2)
from asmtool import schedule
from chain import pk, xl
from roles import a4, cvt, xlane, load_weights, h_dma_addr, h_dma, h_read, unpack8, row_block


def weave(mf_groups, side, per=2, start=0):
    out = []
    side = list(side)
    for i, g in enumerate(mf_groups):
        out += g
        if i >= start:
            out += side[:per]
            side = side[per:]
    return out + side


def gen_at(P, opt):
    L_Q = 32768
    L_OB = L_Q + 8192
    L_ROW = L_OB + 8192
    (V_L16, V_HD, V_F4, V_FA, V_T0, V_T1, V_OR, V_QW, V_QR, V_OW, V_KMA, V_PST, V_RLD, V_RW, V_RR) = range(1, 16)
    SEL, BIAS, Q, SX, KX, VX, XR, YR = 16, 20, 28, 44, 52, 84, 100, 104
    FLH, FLK, FLM, FLA = 108, 109, 110, 111
    MX, NM, SUM = 112, 113, 114
    V_R0, V_R1 = 252, 253
    KM, VM = 116, 132
    SM, PX, PM, O, OP = 140, 144, 148, 152, 168
    OB, AO, PK = 140, 172, 236
    RED, RD = 140, 172
    HB, AQ, QP = 176, 208, 224
    X, Y, N_, PKX, PH, TT = 176, 184, 192, 200, 204, 208
    P.label('at_role')
    P(f'''
    v_and_b32 v0, 63, v0
    v_lshlrev_b32 v{V_L16}, 4, v0
    v_and_b32 v{V_FA}, 31, v0
    v_lshlrev_b32 v{V_FA}, 7, v{V_FA}
    v_and_b32 v{V_F4}, 3, v0
    v_lshlrev_b32 v{V_F4}, 7, v{V_F4}
    s_bfe_u32 {S_LAYER}, {S_G}, 0x10001
    s_and_b32 {S_S}, {S_G}, 1
    s_and_b32 s33, {S_W}, 1
    s_lshr_b32 s34, {S_W}, 1
    ''')
    h_dma_addr(P, V_HD, V_R0, V_R1, V_T0)
    load_weights(P, (WIMG, WO2), V_L16)
    P(f'''
    s_lshl_b32 s22, {S_W}, 11
    s_add_u32 s22, s22, {L_Q}
    v_add_u32 v{V_QW}, s22, v{V_L16}
    s_lshl_b32 s22, s33, 10
    s_add_u32 s23, s22, {L_Q}
    v_add_u32 v{V_QR}, s23, v{V_L16}
    s_lshl_b32 s23, s34, 12
    s_add_u32 s22, s22, s23
    s_add_u32 s22, s22, {L_OB}
    v_add_u32 v{V_OW}, s22, v{V_L16}
    v_add_u32 v{V_OR}, {L_OB}, v{V_L16}
    v_and_b32 v{V_KMA}, 0x37, v0
    v_lshlrev_b32 v{V_KMA}, 4, v{V_KMA}
    v_and_b32 v{V_T1}, 15, v0
    v_lshlrev_b32 v{V_PST}, 4, v{V_T1}
    v_lshrrev_b32 v{V_T0}, 4, v0
    v_lshl_add_u32 v{V_PST}, v{V_T0}, 18, v{V_PST}
    s_lshl_b32 s22, {S_H}, 10
    s_lshl_b32 s23, {S_W}, 8
    s_add_u32 s22, s22, s23
    v_add_u32 v{V_PST}, s22, v{V_PST}
    v_and_b32 v{V_T1}, 15, v0
    v_lshlrev_b32 v{V_RLD}, 4, v{V_T1}
    v_lshl_add_u32 v{V_RLD}, v{V_T0}, 10, v{V_RLD}
    s_lshl_b32 s22, {S_H}, 15
    s_add_u32 s22, s22, s23
    v_add_u32 v{V_RLD}, s22, v{V_RLD}
    v_lshlrev_b32 v{V_RW}, 5, v{V_T1}
    v_lshl_add_u32 v{V_RW}, v{V_T0}, 4, v{V_RW}
    s_lshl_b32 s22, {S_W}, 9
    s_add_u32 s22, s22, {L_ROW}
    v_add_u32 v{V_RW}, s22, v{V_RW}
    v_lshlrev_b32 v{V_RR}, 5, v0
    v_add_u32 v{V_RR}, {L_ROW}, v{V_RR}
    ''')
    for i in range(4):
        P(f'''
        v_mov_b32 v{SEL + i}, 0
        v_mov_b32 v{MX}, 0x3f80
        v_cmp_eq_u32 vcc, {2 * i}, v{V_T1}
        v_cndmask_b32 v{SEL + i}, v{SEL + i}, v{MX}, vcc
        v_mov_b32 v{MX}, 0x3f800000
        v_cmp_eq_u32 vcc, {2 * i + 1}, v{V_T1}
        v_cndmask_b32 v{SEL + i}, v{SEL + i}, v{MX}, vcc
        ''')
    P(f'''
    v_bfe_u32 v{V_T1}, v0, 2, 2
    v_lshlrev_b32 v{V_T1}, 3, v{V_T1}
    v_and_b32 v{MX}, 3, v0
    v_add_u32 v{V_T1}, v{V_T1}, v{MX}
    s_lshl_b32 s22, s33, 2
    v_add_u32 v{V_T1}, s22, v{V_T1}
    v_lshlrev_b32 v{V_T0}, 3, v{V_T0}
    v_sub_u32 v{V_T1}, v{V_T1}, v{V_T0}
    v_mov_b32 v{MX}, 0xf149f2ca
    ''')
    for i in range(8):
        P(f'v_cmp_gt_i32 vcc, {i}, v{V_T1}\nv_cndmask_b32 v{BIAS + i}, 0, v{MX}, vcc')
    for i in range(4):
        P(f'v_mov_b32 v{XR + i}, 0\nv_mov_b32 v{YR + i}, 0')
    P(f'''
    s_lshl_b32 s20, {S_LAYER}, 21
    s_add_u32 s20, s20, {H1}
    s_lshl_b32 s23, {S_W}, 8
    s_add_u32 s20, s20, s23
    s_lshl_b32 s23, {S_S}, 15
    s_add_u32 s20, s20, s23
    s_lshl_b32 s39, {S_H}, 10
    s_add_u32 s39, s39, s23
    s_sub_u32 s39, s39, 65536
    s_lshl_b32 s21, {S_W}, 13
    s_lshl_b32 s24, {S_LAYER}, 13
    s_add_u32 s24, s24, {F_H}
    s_lshl_b32 s23, {S_S}, 12
    s_add_u32 s24, s24, s23
    s_lshl_b32 s25, {S_H}, 7
    s_add_u32 s25, s25, s23
    s_add_u32 s25, s25, {F_H + 8192}
    s_lshl_b32 s22, {S_LAYER}, 24
    s_lshl_b32 s23, {S_H}, 13
    s_add_u32 s22, s22, s23
    s_lshl_b32 s23, {S_S}, 18
    s_add_u32 s22, s22, s23
    s_add_u32 s30, s22, {KMVM}
    s_lshl_b32 s28, s22, 1
    s_add_u32 s28, s28, {KVIMG}
    s_lshl_b32 s23, s34, 13
    s_add_u32 s29, s28, s23
    s_lshl_b32 s22, {S_LAYER}, 14
    s_lshl_b32 s23, {S_H}, 9
    s_add_u32 s22, s22, s23
    s_add_u32 s31, s22, {F_KV}
    s_add_u32 s32, s22, {F_KM}
    s_and_b32 s22, {S_G}, 3
    s_lshl_b32 s35, s22, 21
    s_add_u32 s35, s35, {APART}
    s_lshl_b32 s36, s22, 14
    s_lshl_b32 s23, {S_W}, 12
    s_add_u32 s36, s36, s23
    s_add_u32 s36, s36, {F_AP}
    s_lshl_b32 s23, {S_H}, 7
    s_add_u32 s37, s36, s23
    s_mov_b32 s38, 0
    s_mov_b32 s49, {S_S}
    s_mov_b32 s48, 0
    s_mov_b32 s50, 0
    s_mov_b32 s51, 0
    s_mov_b32 s52, 0
    s_mov_b32 s53, 0
    v_mov_b32 v{FLM}, 0
    ''')
    opt['resolve_pure'](P, V_T0, V_T1)
    stamps.init(P, opt)

    an = opt.get('an2', 60000)
    flush = f'''v_mov_b32 v{V_T0}, s38
    buffer_store_dword v{V_T0}, off, {S_WS}, s25 sc1
    s_mov_b32 s53, 0'''
    kvl = []
    for i in range(4):
        kvl.append([f's_add_u32 s22, s28, {4096 * i}',
                    f'buffer_load_dwordx4 {q4(KX + 8 * i)}, v{V_L16}, {S_WS}, s22 offen sc1 ;lat:500'])
        kvl.append(f'buffer_load_dwordx4 {q4(KX + 8 * i + 4)}, v{V_L16}, {S_WS}, s22 offen offset:1024 sc1 ;lat:500')
    for i in range(2):
        kvl.append([f's_add_u32 s22, s29, {4096 * i}',
                    f'buffer_load_dwordx4 {q4(VX + 8 * i)}, v{V_L16}, {S_WS}, s22 offen offset:2048 sc1'])
        kvl.append(f'buffer_load_dwordx4 {q4(VX + 8 * i + 4)}, v{V_L16}, {S_WS}, s22 offen offset:3072 sc1')
    kml = ['s_add_u32 s22, s30, 4096', 's_lshl_b32 s23, s34, 12', 's_add_u32 s23, s23, s30']
    for kk in range(4):
        sreg = 's30' if kk < 2 else 's22'
        kml.append(f'buffer_load_dwordx4 {q4(KM + 4 * kk)}, v{V_L16}, {S_WS}, {sreg} offen offset:{2048 * (kk & 1)} sc1')
    for i in range(2):
        kml.append(f'buffer_load_dwordx4 {q4(VM + 4 * i)}, v{V_L16}, {S_WS}, s23 offen offset:{2048 * i + 1024} sc1')
    kml = '\n'.join(kml)
    hd = h_dma(V_HD, 's20', 's21')
    hgrp = [hd[3 * i:3 * i + 3] for i in range(8)]

    def emit(items, name):
        code, t = schedule(items, verbose=opt.get('verbose') == name, anneal=an)
        for c in code:
            P(c)

    def qproj(lo, hi_):
        it = []
        for kk in range(lo, hi_):
            b = HB + 8 * (kk & 3)
            for tt in range(2):
                it.append(h_read(b + 4 * tt, V_R0, V_R1, kk, tt))
            for te in range(2):
                for tt in range(2):
                    d = AQ + 8 * tt + 4 * te
                    it.append(f'{MF} {q4(d)}, {a4(4 * (16 * te + kk))}, {q4(b + 4 * tt)}, {q4(d) if kk else 0}')
        return it

    def qtail():
        it = []
        for tt in range(2):
            it += [cvt(QP + 4 * tt + i, AQ + 8 * tt + 2 * i) for i in range(4)]
            it.append(f'ds_write_b128 v{V_QW}, {q4(QP + 4 * tt)} offset:{1024 * tt} ;w:q')
        return it

    def sx_items():
        it = [f'ds_read_b128 {q4(Q + 4 * kk)}, v{V_QR} offset:{2048 * kk} ;r:q' for kk in range(4)]
        for kk in range(4):
            for t in range(2):
                c = q4(SX + 4 * t) if kk else q4(BIAS + 4 * t)
                it.append(f'{MF} {q4(SX + 4 * t)}, {q4(KX + 8 * kk + 4 * t)}, {q4(Q + 4 * kk)}, {c}')
        return it

    P(f'''
    at_kv0:
    buffer_load_dword v{FLK}, v{V_F4}, {S_WS}, s31 offen sc1
    s_waitcnt vmcnt(0)
    v_cmp_ge_u32 vcc, s49, v{FLK}
    s_cbranch_vccz at_kv0go
    {GUARD}
    s_sleep 4
    s_branch at_kv0
    at_kv0go:
    ''')
    for i in hd:
        P(i)
    P('s_waitcnt vmcnt(0)\ns_barrier')
    emit(kvl + qproj(0, 16) + qtail() + ['@bar q'] + sx_items(), 10)

    P(f'''
    at_loop:
    s_cmp_eq_u32 s52, 1
    s_cbranch_scc1 at_kmdone
    at_kmpoll:
    buffer_load_dword v{FLM}, v{V_F4}, {S_WS}, s32 offen sc1
    s_waitcnt vmcnt(0)
    s_cmp_eq_u32 s53, 0
    s_cbranch_scc1 at_kmpoll2
    {flush}
    at_kmpoll2:
    v_cmp_ge_u32 vcc, s49, v{FLM}
    s_cbranch_vccz at_kmgo
    {GUARD}
    s_sleep 2
    s_branch at_kmpoll
    at_kmgo:
    {kml}
    s_waitcnt vmcnt(0)
    at_kmdone:
    {marks(opt, 0)}
    s_add_u32 s49, s49, 2
    s_cmp_lt_u32 s49, {NS}
    s_cselect_b32 s22, 0x10000, 0
    s_add_u32 s20, s20, s22
    s_lshl_b32 s22, s22, 4
    s_add_u32 s28, s28, s22
    s_add_u32 s29, s29, s22
    s_add_u32 s39, s39, 65536
    s_add_u32 s30, s30, 0x80000
    s_mov_b32 s52, 0
    s_lshl_b32 s26, {S_LAYER}, 21
    s_add_u32 s26, s26, s39
    s_add_u32 s26, s26, {X1}
    s_add_u32 s27, s39, {YTOT}
    s_lshl_b32 s24, {S_W}, 12
    s_add_u32 s24, s24, s28
    s_cmp_eq_u32 {S_PURE}, 0
    s_cbranch_scc1 at_b_slow
    ''')

    def b_items(XS):
        it = []
        A = it.append
        A(f'buffer_load_dword v{FLK}, v{V_FA}, {S_WS}, s24 offen sc1')
        for g in hgrp:
            A(g[:2] + [g[2] + ' ;dl:900'])
        A(f'buffer_load_dwordx4 {q4(XR)}, v{V_L16}, {S_WS}, s26 offen sc1 ;dl:900')
        A(f'buffer_load_dwordx4 {q4(YR)}, v{V_L16}, {S_WS}, s27 offen ;dl:900')
        for kk in range(4):
            A(f'{MF} {q4(SM)}, {q4(KM + 4 * kk)}, {q4(Q + 4 * kk)}, {q4(SM) if kk else 0}')
        it += [f'v_max3_f32 v{MX}, v{SX}, v{SX + 1}, v{SX + 2}', f'v_max3_f32 v{NM}, v{SX + 3}, v{SX + 4}, v{SX + 5}',
               f'v_max3_f32 v{MX}, v{MX}, v{SX + 6}, v{SX + 7}', f'v_max3_f32 v{NM}, v{NM}, v{SM}, v{SM + 1}',
               f'v_max3_f32 v{MX}, v{MX}, v{SM + 2}, v{SM + 3}', f'v_max_f32 v{MX}, v{MX}, v{NM}']
        it += xlane('v_max_f32', MX, NM)
        A(f'v_mul_f32 v{MX}, {S_C}, v{MX}')
        prs = [SX + 2 * i for i in range(4)] + [SM, SM + 2]
        for x in prs:
            A(f'v_pk_fma_f32 {q2(x)}, {q2(x)}, s[18:19], {q2(MX)} op_sel_hi:[1,0,0] neg_lo:[0,0,1] neg_hi:[0,0,1]')
        for x in prs:
            A(f'v_exp_f32 v{x}, v{x}')
            A(f'v_exp_f32 v{x + 1}, v{x + 1}')
        it += [cvt(PX + i, SX + 2 * i) for i in range(4)] + [cvt(PM + i, SM + 2 * i) for i in range(2)]
        for tau in range(4):
            A(f'{MF} {q4(O + 4 * tau)}, {q4(VX + 4 * tau)}, {q4(PX)}, 0')
        for tau in range(4):
            A(f'{MF16} {q4(O + 4 * tau)}, {q2(VM + 2 * tau)}, {q2(PM)}, {q4(O + 4 * tau)}')
        it += [pk('add', SM, SM, SM + 2), pk('add', SX, SX, SX + 2), pk('add', SX + 4, SX + 4, SX + 6),
               pk('add', SX, SX, SX + 4), f'v_pk_fma_f32 {q2(SX)}, {q2(SM)}, 0.5, {q2(SX)} op_sel_hi:[1,0,1]',
               f'v_add_f32 v{SUM}, v{SX}, v{SX + 1}']
        it += xlane('v_add_f32', SUM, NM)
        A(f'v_rcp_f32 v{SUM}, v{SUM}')
        for hf in range(2):
            for i in range(0, 8, 2):
                A(f'v_pk_mul_f32 {q2(O + 8 * hf + i)}, {q2(O + 8 * hf + i)}, {q2(SUM)} op_sel_hi:[1,0]')
            it += [cvt(OP + 4 * hf + i, O + 8 * hf + 2 * i) for i in range(4)]
            A(f'ds_write_b128 v{V_OW}, {q4(OP + 4 * hf)} offset:{2048 * hf} ;w:o')
        A('@bar o')
        for i in (0, 2, 4, 6, 1, 3, 5, 7):
            A(f'ds_read_b128 {q4(OB + 4 * i)}, v{V_OR} offset:{1024 * i} ;r:o')
        for qt in range(2):
            for kk in range(4):
                for T_ in range(8):
                    d = AO + 32 * qt + 4 * T_
                    A(f'{MF} {q4(d)}, {q4(OB + 8 * kk + 4 * qt)}, {a4(128 + 4 * (4 * T_ + kk))}, {q4(d) if kk else 0}')
            for r in range(4):
                p_ = PK + 4 * r
                b_ = AO + 32 * qt + r
                it += [f'v_cvt_pk_bf16_f32 v{p_ + i}, v{b_ + 8 * i}, v{b_ + 8 * i + 4}' for i in range(4)]
                A([f's_add_u32 s23, s35, {(4 * qt + r) * 32768}',
                   f'buffer_store_dwordx4 {q4(p_)}, v{V_PST}, {S_WS}, s23 offen{XS} ;free'])
        return it

    for mode in ('fast', 'slow'):
        XS = '' if mode == 'fast' else ' sc1'
        if mode == 'slow':
            P.label('at_b_slow')
        emit(b_items(XS), 11 if mode == 'fast' else -1)
        P(f'''
        {marks(opt, 1)}
        s_add_u32 s22, s38, 1
        v_mov_b32 v{V_T1}, s22
        s_waitcnt vmcnt(0)
        buffer_store_dword v{V_T1}, off, {S_WS}, s37{XS}
        ''')
        if mode == 'fast':
            P('s_branch at_r')
    P(f'''
    at_r:
    s_cmp_eq_u32 s53, 0
    s_cbranch_scc1 at_nofl
    {flush}
    at_nofl:
    s_add_u32 s38, s38, 1
    s_barrier
    {marks(opt, 2)}
    ''')
    n1 = opt.get('n1', 8)
    emit(kvl[:8] + qproj(0, n1) + [f'buffer_load_dword v{FLA}, v{V_FA}, {S_WS}, s36 offen sc1 ;t:{n1 * 64 - 260}'], 12)
    P(f'''
    {marks(opt, 3)}
    v_cmp_gt_u32 vcc, s38, v{FLA}
    s_cbranch_vccz at_apgo
    at_appoll:
    {GUARD}
    buffer_load_dword v{FLA}, v{V_FA}, {S_WS}, s36 offen sc1
    s_waitcnt vmcnt(0)
    v_cmp_gt_u32 vcc, s38, v{FLA}
    s_cbranch_vccnz at_appoll
    at_apgo:
    {marks(opt, 4)}
    ''')
    it = []
    for i in range(8):
        it.append([f's_add_u32 s23, s35, {4096 * i}',
                   f'buffer_load_dwordx4 {q4(RED + 4 * i)}, v{V_RLD}, {S_WS}, s23 offen sc1 ;lat:{350 + 30 * i}'])
    it += kvl[8:]
    it.append(f'buffer_load_dword v{FLM}, v{V_F4}, {S_WS}, s32 offen sc1')
    it += qproj(n1, 16) + qtail()
    for i in range(8):
        it.append(f'{MF} {q4(RD)}, {q4(SEL)}, {q4(RED + 4 * i)}, {q4(RD) if i else 0}')
    it.append(['s_mov_b32 exec_hi, 0', f'ds_write_b128 v{V_RW}, {q4(RD)} ;w:q', 's_mov_b64 exec, -1'])
    it.append('s_xor_b32 s35, s35, 0x100000')
    it.append('@bar q')
    it.append(f'ds_read_b128 {q4(N_)}, v{V_RR} ;r:q')
    it.append(f'ds_read_b128 {q4(N_ + 4)}, v{V_RR} offset:16 ;r:q')
    it += unpack8(X, XR) + [pk('add', X + i, X + i, N_ + i) for i in range(0, 8, 2)]
    it += [cvt(PKX + i, X + 2 * i) for i in range(4)]
    it += sx_items()
    emit(it, 13)
    P(f'''
    {marks(opt, 5)}
    v_cmp_ge_u32 vcc, s49, v{FLM}
    s_cbranch_vccnz at_nokm
    {kml}
    s_mov_b32 s52, 1
    at_nokm:
    s_cmp_lg_u32 {S_W}, 0
    s_cbranch_scc1 at_rowdone
    s_cmp_eq_u32 {S_LAYER}, 0
    s_cbranch_scc1 at_row1
    s_waitcnt vmcnt(0)
    buffer_store_dwordx4 {q4(PKX)}, v{V_L16}, s[56:59], s39 offen
    s_branch at_next
    at_row1:
    ''')
    emit(unpack8(X, PKX) + unpack8(Y, YR) + row_block(X, Y, N_, PKX, PH, TT), 14)
    P(f'''
    s_add_u32 s22, s39, {X3}
    s_add_u32 s23, s39, {H2}
    s_waitcnt vmcnt(0)
    buffer_store_dwordx4 {q4(PH)}, v{V_L16}, {S_WS}, s23 offen sc1
    buffer_store_dwordx4 {q4(PKX)}, v{V_L16}, {S_WS}, s22 offen sc1
    s_mov_b32 s53, 1
    s_branch at_next
    at_rowdone:
    s_waitcnt vmcnt(0)
    at_next:
    {marks(opt, 6)}
    s_cmp_lt_u32 s49, {NS}
    s_cbranch_scc1 at_loop
    s_waitcnt vmcnt(0)
    s_cmp_eq_u32 s53, 0
    s_cbranch_scc1 at_done
    {flush}
    at_done:
    ''')
    stamps.dump(P, opt)
    P('s_waitcnt vmcnt(0)\ns_endpgm')
```

```python
from layout import *
import stamps
from asmtool import schedule

SENT = 0xFF81FF81

S_WS = 's[8:11]'
S_W = 's12'
S_H = 's13'
S_G = 's14'
S_PURE = 's15'
S_LAYER = 's16'
S_S = 's17'
S_C = 's18'
S_SENT = 's19'

NLDSQ = 34
L_MEM = 0
L_O = 8192
L_SC = 16384
L_WT = 24576
DPPF = 'row_mask:0xf bank_mask:0xf'
MF = 'v_mfma_f32_16x16x32_bf16'
MF16 = 'v_mfma_f32_16x16x16_bf16'
SMF = 'v_smfmac_f32_16x16x64_bf16'
RS = 2048
GUARD = 's_sub_u32 s3, s3, 1\ns_cbranch_scc1 main_timeout'


def q4(b):
    return 'v[%d:%d]' % (b, b + 3)


def q2(b):
    return 'v[%d:%d]' % (b, b + 1)


def q8(b):
    return 'v[%d:%d]' % (b, b + 7)


V_FL = 0
V_L16, V_WL, V_X0, V_X1, V_X2, V_X3, V_T2, V_PST, V_MST, V_T0, V_T1 = range(1, 12)
V_MW = V_X0
V_SEL = 12
MEM = 16
V_IDX, V_PF, V_SELT = 48, 49, 50
AQ, AK, AV, KX, VX = 52, 60, 68, 76, 84
WB = 92
T1, T2, T3, T4, T5 = 116, 120, 124, 128, 132
WV0 = 136


def streams():
    st = []
    for p in range(2):
        st += [(X, t, p) for X in 'qkv' for t in range(2)]
    for X in 'qkv':
        for p in range(2, 8):
            st += [(X, 0, p), (X, 1, p)]
    ost = [('o', T_, 0) for T_ in range(8)]
    for half in range(2):
        for pp in range(1, 4):
            for T_ in range(4 * half, 4 * half + 4):
                ost.append(('o', T_, pp))
    lds_o = [1, 5, 9, 14, 18, 22, 27, 31, 36, 40, 44]
    lds_q = [1, 3, 5, 8, 10, 13, 16, 19, 22, 25, 27, 30]
    home = {}
    octs = [('a', 8 * i) for i in range(32)] + [('v', WV0 + 8 * i) for i in range(5)]
    quads = [('v', WV0 + 40 + 4 * i) for i in range(20)]
    for i, it in enumerate(st):
        home[it] = ('lds', lds_o.index(i)) if i in lds_o else octs.pop(0)
    for i, it in enumerate(ost):
        home[it] = ('lds', lds_q.index(i)) if i in lds_q else quads.pop(0)
    assert not octs and not quads and 2 * len(lds_o) + len(lds_q) == NLDSQ
    return st, ost, home, len(lds_o), len(lds_q)


def gen_chain(P, opt):
    stream, ostream, home, NO, NQ = streams()
    P.label('chain_role')
    P(f'''
    v_and_b32 v0, 63, v0
    v_lshlrev_b32 v{V_L16}, 4, v0
    s_mul_i32 s20, {S_W}, {NLDSQ * 1024}
    s_add_u32 s20, s20, {L_WT}
    s_lshl_b32 s40, {S_H}, 17
    s_lshl_b32 s41, {S_W}, 15
    s_add_u32 s40, s40, s41
    s_lshl_b32 s41, {S_W}, 12
    s_lshl_b32 s42, {S_W}, 10
    ''')
    XI = {'q': 0, 'k': 1, 'v': 2}
    for it in stream + ostream:
        kind, where = home[it]
        if it[0] == 'o':
            _, T_, pp = it
            P(f's_xor_b32 s43, s42, {pp * 1024}')
            P(f's_add_u32 s43, s43, {WIMG + 3 * 4 * MB + T_ * 4096}')
            n = 1
            lq = 2 * NO + where
        else:
            X, t, p = it
            P(f's_xor_b32 s43, s41, {2 * p * 1024}')
            P(f's_add_u32 s43, s43, {WIMG + XI[X] * 4 * MB + t * 16384}')
            n = 2
            lq = 2 * where
        P('s_add_u32 s43, s43, s40')
        if kind == 'lds':
            P(f's_add_u32 m0, s20, {lq * 1024}')
        for i in range(n):
            if kind == 'lds':
                P(f'buffer_load_dwordx4 v{V_L16}, {S_WS}, s43 offen offset:{1024 * i} lds')
            else:
                P(f'buffer_load_dwordx4 {kind}[{where + 4 * i}:{where + 4 * i + 3}], v{V_L16}, {S_WS}, s43 offen offset:{1024 * i}')
    P(f'''
    v_add_u32 v{V_WL}, s20, v{V_L16}
    s_lshl_b32 s21, {S_W}, 11
    v_add_u32 v{V_MW}, s21, v{V_L16}
    v_xor_b32 v{V_X1}, 2048, v{V_X0}
    v_xor_b32 v{V_X2}, 4096, v{V_X0}
    v_xor_b32 v{V_X3}, 6144, v{V_X0}
    v_bfe_u32 v{V_T1}, v0, 3, 1
    v_mul_u32_u24 v{V_IDX}, 0xaaaa, v{V_T1}
    v_add_u32 v{V_IDX}, 0x4444, v{V_IDX}
    v_and_b32 v{V_PF}, 31, v0
    v_lshlrev_b32 v{V_PF}, 7, v{V_PF}
    v_lshrrev_b32 v{V_T0}, 2, v0
    s_lshl_b32 s22, {S_W}, 5
    v_add_u32 v{V_T0}, s22, v{V_T0}
    v_lshlrev_b32 v{V_T0}, 11, v{V_T0}
    v_and_b32 v{V_T1}, 3, v0
    v_lshlrev_b32 v{V_T1}, 4, v{V_T1}
    s_lshl_b32 s22, {S_H}, 6
    v_add3_u32 v{V_PST}, v{V_T0}, v{V_T1}, s22
    v_lshrrev_b32 v{V_T0}, 4, v0
    v_lshlrev_b32 v{V_T0}, 3, v{V_T0}
    s_lshl_b32 s22, {S_H}, 2
    s_add_u32 s24, s22, {S_W}
    s_lshl_b32 s22, s24, 6
    v_add3_u32 v{V_MST}, v{V_T0}, v{V_T1}, s22
    v_and_b32 v{V_T0}, 15, v0
    ''')

    def onehot(dst, n, src):
        for i in range(n):
            P(f'''
            v_mov_b32 v{dst + i}, 0
            v_mov_b32 v{V_T1}, 0x3f80
            v_cmp_eq_u32 vcc, {2 * i}, v{src}
            v_cndmask_b32 v{dst + i}, v{dst + i}, v{V_T1}, vcc
            v_mov_b32 v{V_T1}, 0x3f800000
            v_cmp_eq_u32 vcc, {2 * i + 1}, v{src}
            v_cndmask_b32 v{dst + i}, v{dst + i}, v{V_T1}, vcc
            ''')
    onehot(V_SEL, 4, V_T0)
    P(f'''
    v_and_b32 v{V_T0}, 7, v0
    v_bfe_u32 v{V_T1}, v0, 4, 1
    v_lshlrev_b32 v{V_T1}, 2, v{V_T1}
    v_sub_u32 v{V_T0}, v{V_T0}, v{V_T1}
    ''')
    onehot(V_SELT, 2, V_T0)
    P(f'''
    s_lshl_b32 s50, {S_LAYER}, 20
    s_add_u32 s50, s50, {CPART}
    s_add_u32 s53, s50, {16 * RS}
    s_lshl_b32 s22, s24, 11
    s_add_u32 s51, s50, s22
    s_xor_b32 s49, s51, 0x80000
    s_lshl_b32 s26, {S_LAYER}, 14
    s_add_u32 s26, s26, {CMEM}
    s_add_u32 s48, s26, 8192
    s_add_u32 s52, s48, s21
    s_lshl_b32 s22, {S_LAYER}, 25
    s_lshl_b32 s23, s24, 12
    s_add_u32 s28, s22, s23
    s_add_u32 s28, s28, {KVIMG}
    s_lshl_b32 s22, {S_LAYER}, 24
    s_lshl_b32 s23, s24, 11
    s_add_u32 s30, s22, s23
    s_add_u32 s30, s30, {KMVM}
    s_lshl_b32 s22, {S_LAYER}, 14
    s_lshl_b32 s23, s24, 7
    s_add_u32 s22, s22, s23
    s_add_u32 s31, s22, {F_KV}
    s_add_u32 s32, s22, {F_KM}
    s_mov_b32 s34, 0x00ff00ff
    s_mov_b32 s35, 0x00ff00ff
    s_mov_b32 s36, 0xff00ff00
    s_mov_b32 s37, 0xff00ff00
    ''')
    P(f'''
    v_and_b32 v{V_T0}, 7, v0
    v_lshlrev_b32 v{V_T0}, 10, v{V_T0}
    v_bfe_u32 v{V_T1}, v0, 3, 1
    v_lshl_add_u32 v{V_T0}, v{V_T1}, 2, v{V_T0}
    v_lshrrev_b32 v{V_T1}, 4, v0
    v_lshl_add_u32 v{V_T0}, v{V_T1}, 5, v{V_T0}
    s_lshl_b32 s22, {S_W}, 8
    ''')
    for p in range(2):
        for qq in range(4):
            P(f'buffer_load_dword v{MEM + 4 * p + qq}, v{V_T0}, s[44:47], s22 offen offset:{128 * p + 8 * qq}')
    opt['resolve_pure'](P, V_T0, V_T1)
    lw = P.uid('ch_kv0')
    P(f'''
    {lw}:
    {GUARD}
    buffer_load_dword v{V_FL}, off, {S_WS}, s31 sc1
    s_waitcnt vmcnt(0)
    v_cmp_gt_u32 vcc, 2, v{V_FL}
    s_cbranch_vccnz {lw}
    ''')
    for i in range(8):
        P(f'v_mov_b32 v{T2 + i}, 0')
    for i in range(24):
        P(f'v_mov_b32 v{AQ + i}, 0')
    P('s_waitcnt vmcnt(0)\ns_barrier')
    for i in range(6):
        P(f'ds_read_b128 {q4(WB + 4 * i)}, v{V_WL} offset:{i * 1024}')
    P(f'''
    s_mov_b32 {S_S}, 0
    s_add_u32 s29, s28, 0x80000
    s_mov_b32 s27, 0
    v_mov_b32 v{V_T0}, 0
    v_mov_b32 v{T4}, {S_SENT}
    v_mov_b32 v{T4 + 1}, {S_SENT}
    v_mov_b32 v{T4 + 2}, {S_SENT}
    v_mov_b32 v{T4 + 3}, {S_SENT}
    ds_write_b128 v{V_MW}, {q4(MEM)}
    ds_write_b128 v{V_MW}, {q4(MEM + 4)} offset:1024
    ''')
    stamps.init(P, opt)
    P(f's_cmp_eq_u32 {S_PURE}, 0\ns_cbranch_scc1 chain_slow_step')
    chain_loop(P, opt, 'fast')
    chain_loop(P, opt, 'slow')
    P.label('chain_last')
    code, t = schedule(step_items(opt, ' sc1', True))
    for i in code:
        P(i)
    P(f'''
    v_mov_b32 v{V_T1}, {NS}
    s_waitcnt vmcnt(0)
    buffer_store_dword v{V_T1}, off, {S_WS}, s32 sc1
    ''')
    stamps.dump(P, opt)
    P('s_waitcnt vmcnt(0)\ns_endpgm')


def dppadd(d, a, b, ror=8):
    return f'v_add_f32_dpp v{d}, v{a}, v{b} row_ror:{ror} {DPPF}'


def cvt(d, a):
    return f'v_cvt_pk_bf16_f32 v{d}, v{a}, v{a + 1}'


def xl(op, n, x, t):
    return [f'v_mov_b32 v{t}, v{x}', f'v_permlane{n}_swap_b32 v{x}, v{t}', f'{op} v{x}, v{x}, v{t}']


def pk(op, d, a, b):
    return f'v_pk_{op}_f32 {q2(d)}, {q2(a)}, {q2(b)}'


def step_items(opt, XS, last):
    stream, ostream, home, NO, NQ = streams()
    QOP, KOP, VOP = T1, T2, T3
    XE, ME = AQ, AK
    PX, PM = T4, AK + 2
    MX, NM, SUM, TN = T5, T5 + 1, T5 + 2, T5 + 3
    OX, OOP = KX, T1
    OIN = [AV, AV + 4, T4]
    AO = MEM
    it = []
    A = it.append
    A('s_nop 0 ;w:mem ;t:%d' % opt.get('tb', 70))
    A('@bar mem')
    for pr in range(1, 4):
        A(f'ds_read_b128 {q4(MEM + 8 * pr)}, v{V_X0 + pr} ;r:mem')
        A(f'ds_read_b128 {q4(MEM + 8 * pr + 4)}, v{V_X0 + pr} offset:1024 ;r:mem')
    if not last:
        for i in range(4):
            A(f'buffer_load_dwordx4 {q4(KX + 4 * i)}, v{V_L16}, {S_WS}, s28 offen offset:{1024 * i} sc1 ;lat:400')
    A(f'buffer_store_dword v{V_T0}, off, {S_WS}, s32 sc1')
    A(f'buffer_store_dwordx4 {q4(KOP)}, v{V_L16}, {S_WS}, s30 offen sc1')
    A(f'buffer_store_dwordx4 {q4(VOP)}, v{V_L16}, {S_WS}, s30 offen offset:1024 sc1')
    if not last:
        A(f'buffer_load_dword v{V_FL}, v{V_PF}, {S_WS}, s29 offen sc1')
        A(f'buffer_store_dwordx4 {q4(T4)}, v{V_L16}, {S_WS}, s49 offen{XS} ;dl:400')
        A(f'buffer_store_dwordx4 {q4(T4)}, v{V_L16}, {S_WS}, s49 offen offset:1024{XS} ;dl:400')
        A(f'buffer_load_dword v{V_FL}, off, {S_WS}, s31 sc1')
    else:
        A('s_add_u32 s30, s30, 0x40000')

    for e in stream:
        X, t, p = e
        kind, where = home[e]
        if kind == 'lds':
            slot = WB + 8 * (where % 3)
            if where >= 3:
                A(f'ds_read_b128 {q4(slot)}, v{V_WL} offset:{2048 * where}')
                A(f'ds_read_b128 {q4(slot + 4)}, v{V_WL} offset:{2048 * where + 1024}')
            w = q8(slot)
        else:
            w = f'{kind}[{where}:{where + 7}]'
        if last and X == 'q':
            continue
        a = {'q': AQ, 'k': AK, 'v': AV}[X] + 4 * t
        A(f'{SMF} {q4(a)}, {q4(MEM + 4 * p)}, {w}, v{V_IDX}')

    def transpose(acc, op):
        for t in range(2):
            A(cvt(op + 2 * t, acc + 4 * t))
            A(cvt(op + 2 * t + 1, acc + 4 * t + 2))
        for t in range(2):
            A(f'{MF16} {q4(acc + 4 * t)}, {q2(op + 2 * t)}, {q2(V_SELT)}, 0')
        for i in range(4):
            A(cvt(op + i, acc + 2 * i))

    kmst = f'buffer_store_dwordx4 {q4(KOP)}, v{V_L16}, {S_WS}, s30 offen sc1'
    vmst = f'buffer_store_dwordx4 {q4(VOP)}, v{V_L16}, {S_WS}, s30 offen offset:1024 sc1'
    if last:
        transpose(AK, KOP)
        A(kmst)
        for i in range(4):
            A(cvt(VOP + i, AV + 2 * i))
        A(vmst)
        return it
    hi = 'quad_perm:[0,1,2,3] row_mask:0xf bank_mask:0xc'
    transpose(AQ, QOP)
    for t in range(2):
        A(f'{MF} {q4(AQ + 4 * t)}, {q4(KX + 4 * t)}, {q4(QOP)}, 0')
    for r in range(4):
        A(f'v_mov_b32_dpp v{XE + r}, v{AQ + 4 + r} {hi}')
    A(f'ds_write_b128 v{V_X0}, {q4(XE)} offset:{L_SC}')
    transpose(AK, KOP)
    A(f'{MF} {q4(AK)}, {q4(KOP)}, {q4(QOP)}, 0')
    for r in range(2):
        A(f'v_mov_b32_dpp v{ME + r}, v{AK + 2 + r} {hi}')
    A(f'ds_write_b64 v{V_X0}, {q2(ME)} offset:{L_SC + 1024} ;w:sc')
    A('@bar sc')
    RX = [AQ + 4, KX, KX + 4]
    for u in range(3):
        A(f'ds_read_b128 {q4(RX[u])}, v{V_X0 + 1 + u} offset:{L_SC} ;r:sc')
        A(f'ds_read_b64 {q2(ME + 2 + 2 * u)}, v{V_X0 + 1 + u} offset:{L_SC + 1024} ;r:sc')
    for u in range(3):
        for i in (0, 2):
            A(pk('add', XE + i, XE + i, RX[u] + i))
        A(pk('add', ME, ME, ME + 2 + 2 * u))
    A(f'v_max3_f32 v{MX}, v{XE}, v{XE + 1}, v{XE + 2}')
    A(f'v_max3_f32 v{NM}, v{XE + 3}, v{ME}, v{ME + 1}')
    A(f'v_max_f32 v{MX}, v{MX}, v{NM}')
    A(f'v_max_f32_dpp v{MX}, v{MX}, v{MX} row_ror:8 {DPPF}')
    for x in xl('v_max_f32', 16, MX, NM) + xl('v_max_f32', 32, MX, NM):
        A(x)
    A(f'v_mul_f32 v{MX}, {S_C}, v{MX}')
    for x in (XE, XE + 2, ME):
        A(f'v_pk_fma_f32 {q2(x)}, {q2(x)}, s[18:19], {q2(MX)} op_sel_hi:[1,0,0] neg_lo:[0,0,1] neg_hi:[0,0,1]')
    for x in (XE, XE + 1, XE + 2, XE + 3, ME, ME + 1):
        A(f'v_exp_f32 v{x}, v{x}')
    A(cvt(PX, XE))
    A(cvt(PX + 1, XE + 2))
    A(cvt(PM, ME))
    for d in (PX + 2, PX + 3):
        A(f'v_mov_b32_dpp v{d}, v{d - 2} row_ror:8 {DPPF}')
    A(f'v_mov_b32_dpp v{PM + 1}, v{PM} row_ror:8 {DPPF}')
    for i in range(4):
        A(cvt(VOP + i, AV + 2 * i))
    for t in range(2):
        A(f'{MF} {q4(OX + 4 * t)}, {q4(VX + 4 * t)}, {q4(PX)}, 0')
    for t in range(2):
        A(f'{MF16} {q4(OX + 4 * t)}, {q2(VOP + 2 * t)}, {q2(PM)}, {q4(OX + 4 * t)}')
    A(pk('add', XE, XE, XE + 2))
    if opt.get('nopk'):
        for i in range(2):
            A(f'v_fma_f32 v{XE + i}, v{ME + i}, 0.5, v{XE + i}')
    else:
        A(f'v_pk_fma_f32 {q2(XE)}, {q2(ME)}, 0.5, {q2(XE)} op_sel_hi:[1,0,1]')
    A(f'v_add_f32 v{SUM}, v{XE}, v{XE + 1}')
    A(dppadd(SUM, SUM, SUM))
    for x in xl('v_add_f32', 16, SUM, TN) + xl('v_add_f32', 32, SUM, TN):
        A(x)
    A(f'v_rcp_f32 v{SUM}, v{SUM}')
    for i in range(0, 8, 2):
        A(f'v_pk_mul_f32 {q2(OX + i)}, {q2(OX + i)}, {q2(SUM)} op_sel_hi:[1,0]')
    for i in range(4):
        A(cvt(OOP + i, OX + 2 * i))
    A(f'ds_write_b128 v{V_X0}, {q4(OOP)} offset:{L_O} ;w:o')
    A('@bar o')
    for pp in range(1, 4):
        A(f'ds_read_b128 {q4(OIN[pp - 1])}, v{V_X0 + pp} offset:{L_O} ;r:o')
    PKA, PKB = [AQ, AK], [AQ + 4, AK + 4]

    def pack(u):
        for i in range(4):
            A(cvt(PKB[u] + i, AO + 16 * u + 8 + 2 * i))
        for i in range(4):
            A(cvt(PKA[u] + i, AO + 16 * u + 2 * i))
        for i in range(4):
            A(f'v_mov_b32_dpp v{PKA[u] + i}, v{PKB[u] + i} row_ror:8 row_mask:0xf bank_mask:0xc')
        A(f'buffer_store_dwordx4 {q4(PKA[u])}, v{V_PST}, {S_WS}, {"s53" if u else "s50"} offen{XS} ;free' + ('' if u else ' ;dl:150'))
    for k, e in enumerate(ostream):
        _, T_, pp = e
        kind, where = home[e]
        if kind == 'lds':
            slot = WB + 4 * (where % 6)
            A(f'ds_read_b128 {q4(slot)}, v{V_WL} offset:{1024 * (2 * NO + where)}')
            w = q4(slot)
        else:
            w = q4(where)
        b = q4(OOP) if pp == 0 else q4(OIN[pp - 1])
        c = '0' if pp == 0 else q4(AO + 4 * T_)
        A(f'{MF} {q4(AO + 4 * T_)}, {w}, {b}, {c}' + (' ;p:150' if (pp and T_ < 4) else ''))
        if k == 19:
            pack(0)
    pack(1)
    return it


def chain_loop(P, opt, mode):
    XS = '' if mode == 'fast' else ' sc1'
    tag = 'chain_' + mode
    mk = lambda i: stamps.marks(opt, i)
    RED = MEM + 8
    RDD = T5
    P.label(tag + '_step')
    items = step_items(opt, XS, False)
    code, t = schedule(items, verbose=opt.get('verbose') == 1 and mode == 'fast', anneal=opt.get('an', 400000), seed=opt.get('seed', 0))
    k = code.index('s_barrier')
    nds = sum(c.startswith('ds_') for c in code[:k])
    code.insert(k, f's_waitcnt lgkmcnt({nds})')
    code.remove('s_nop 0')
    k = code.index('s_barrier', k + 2)
    code.insert(k, 's_waitcnt vmcnt(%d)' % sum(c.startswith('buffer_') for c in code[:k]))
    if opt.get('stamp') == 5:
        c2 = ['s_memtime s[64:65] ;nodep']
        n = 0
        for j, c in enumerate(code):
            if 'lo' in opt:
                c2.append(c)
                if j >= opt['lo'] and (j - opt['lo']) % opt['st'] == 0 and n < 8:
                    c2.append(f's_memtime s[{82 + 2 * n}:{83 + 2 * n}] ;nodep')
                    if mode == 'fast':
                        print('stamp', n, 'after', j, c)
                    n += 1
            elif c == 's_barrier':
                jj = len(c2)
                while c2[jj - 1].startswith('s_waitcnt'):
                    jj -= 1
                c2.insert(jj, f's_memtime s[{82 + 2 * n}:{83 + 2 * n}] ;nodep')
                c2 += [c, f's_memtime s[{84 + 2 * n}:{85 + 2 * n}] ;nodep']
                n += 2
            else:
                c2.append(c)
        c2 += ['s_memtime s[66:67] ;nodep', 's_waitcnt lgkmcnt(0)', 's_sub_u32 s69, s64, s68', 's_add_u32 s79, s79, s69', 's_mov_b32 s68, s66']
        prev = 's64'
        for j in range(9):
            cur = f's{82 + 2 * j}' if j < 8 else 's66'
            c2 += [f's_sub_u32 s69, {cur}, {prev}', f's_add_u32 s{70 + j}, s{70 + j}, s69']
            prev = cur
        code = c2
    for i in code:
        P(i)
    rl = f'''buffer_load_dwordx4 {q4(RED)}, v{V_L16}, {S_WS}, s51 offen sc1 ;nodep
    buffer_load_dwordx4 {q4(RED + 4)}, v{V_L16}, {S_WS}, s51 offen offset:1024 sc1 ;nodep'''
    gl = f'''buffer_load_dwordx4 {q4(MEM)}, v{V_L16}, {S_WS}, s52 offen sc1 ;nodep
    buffer_load_dwordx4 {q4(MEM + 4)}, v{V_L16}, {S_WS}, s52 offen offset:1024 sc1 ;nodep'''

    def chk(b, dst):
        return f'''v_max3_u32 v{V_T2}, v{b}, v{b + 1}, v{b + 2}
        v_max3_u32 v{V_T1}, v{b + 3}, v{b + 4}, v{b + 5}
        v_max3_u32 v{V_T2}, v{V_T2}, v{b + 6}, v{b + 7}
        v_max_u32 v{V_T2}, v{V_T2}, v{V_T1}
        v_cmp_eq_u32 {dst}, {S_SENT}, v{V_T2}'''
    red = f'''{MF} {q4(RDD)}, {q4(V_SEL)}, {q4(RED)}, 0
    {MF} {q4(RDD)}, {q4(V_SEL)}, {q4(RED + 4)}, {q4(RDD)}'''
    fin = '\n'.join([dppadd(RDD + r, RDD + r, RDD + r, ror) for ror in (4, 8) for r in range(4)] +
                    [cvt(RDD, RDD), cvt(RDD + 1, RDD + 2)])
    P(mk(0))
    z = [f'v_mov_b32 v{AQ + i}, 0' for i in range(24)]
    wbr = [f'ds_read_b128 {q4(WB + 4 * i)}, v{V_WL} offset:{i * 1024}' for i in range(6)]
    def pause(c):
        return f's_sleep {c}' if c else ''
    P(f'''
    s_xor_b32 s47, s48, 8192
    v_mov_b32 v{V_T0}, {S_S}
    s_add_u32 {S_S}, {S_S}, 1
    s_add_u32 s33, {S_S}, 1
    s_mov_b32 s28, s29
    s_add_u32 s29, s29, 0x80000
    s_add_u32 s30, s30, s27
    s_mov_b32 s27, 0x40000
    v_mov_b32 v{T4}, {S_SENT}
    v_mov_b32 v{T4 + 1}, {S_SENT}
    v_mov_b32 v{T4 + 2}, {S_SENT}
    v_mov_b32 v{T4 + 3}, {S_SENT}
    {chr(10).join(wbr)}
    {pause(opt.get('a1', 2))}
    {rl}
    {pause(opt.get('a2', 2))}
    {tag}_rpoll:
    {rl}
    s_waitcnt vmcnt(2)
    {red}
    {chk(RED, 's[54:55]')}
    v_cmp_u_f32 vcc, v{RDD}, v{RDD}
    {fin}
    s_cbranch_vccnz {tag}_rretry
    {tag}_rok:
    s_mov_b64 exec, 0x000f000f
    buffer_store_dwordx2 {q2(RDD)}, v{V_MST}, {S_WS}, s48 offen{XS}
    buffer_store_dwordx2 {q2(T4)}, v{V_MST}, {S_WS}, s47 offen{XS}
    s_mov_b64 exec, -1
    {mk(1)}
    v_cmp_ge_u32 vcc, s33, v{V_FL}
    s_xor_b32 s50, s50, 0x80000
    s_xor_b32 s53, s53, 0x80000
    s_xor_b32 s51, s51, 0x80000
    s_xor_b32 s49, s49, 0x80000
    s_xor_b32 s48, s48, 8192
    {chr(10).join(z)}
    s_cbranch_vccnz {tag}_special
    {pause(opt.get('b1', 2))}
    {gl}
    {pause(opt.get('b2', 2))}
    {tag}_gpoll:
    {gl}
    s_waitcnt vmcnt(2)
    {chk(MEM, 'vcc')}
    ds_write_b128 v{V_MW}, {q4(MEM)}
    ds_write_b128 v{V_MW}, {q4(MEM + 4)} offset:1024
    s_cbranch_vccnz {tag}_gretry
    {mk(2)}
    s_xor_b32 s52, s52, 8192
    s_branch {tag}_step
    {tag}_gretry:
    {stamps.count(opt, 7)}
    {GUARD}
    s_branch {tag}_gpoll
    {tag}_rretry:
    {stamps.count(opt, 6)}
    {GUARD}
    s_cmp_lg_u64 s[54:55], 0
    s_cbranch_scc1 {tag}_rpoll
    {red}
    {fin}
    s_branch {tag}_rok
    ; next K/V tile not yet announced, or the last step follows
    {tag}_special:
    {gl}
    buffer_load_dword v{V_FL}, off, {S_WS}, s31 sc1
    s_waitcnt vmcnt(0)
    {GUARD}
    {chk(MEM, 'vcc')}
    s_cbranch_vccnz {tag}_special
    s_cmp_eq_u32 {S_S}, {NS - 1}
    s_cbranch_scc1 {tag}_sp2
    v_cmp_ge_u32 vcc, s33, v{V_FL}
    s_cbranch_vccnz {tag}_special
    {tag}_sp2:
    ds_write_b128 v{V_MW}, {q4(MEM)}
    ds_write_b128 v{V_MW}, {q4(MEM + 4)} offset:1024
    {mk(3)}
    s_xor_b32 s52, s52, 8192
    s_cmp_eq_u32 {S_S}, {NS - 1}
    s_cbranch_scc0 {tag}_step
    s_waitcnt lgkmcnt(0)
    s_branch chain_last
    ''')
```

```python
MB = 1 << 20
KB = 1 << 10
S, D, H, E, M, L, NS = 2048, 512, 32, 128, 8, 32, 64

WIMG = 0
KVIMG = 16 * MB
KMVM = 80 * MB
APART = 112 * MB
KVT = 120 * MB
YT = 122 * MB
YTOT = 124 * MB
X1 = 126 * MB
X3 = 128 * MB
H1 = 130 * MB
H2 = 132 * MB
CPART = 134 * MB
CMEM = 136 * MB
FLAGS = 137 * MB
F_KV = FLAGS
F_KM = FLAGS + 32 * KB
F_H = FLAGS + 64 * KB
F_AP = FLAGS + 80 * KB
F_P = FLAGS + 144 * KB
F_R = FLAGS + 160 * KB
F_Q = FLAGS + 168 * KB
FLAGS_BYTES = 172 * KB
WO2 = 140 * MB
STAMP = 138 * MB
WS_BYTES = 256 * MB


def perm16(t, r):
    return 8 * (r >> 2) + 4 * t + (r & 3)
```

```python
from layout import *
from chain import SENT, q4, q2, DPPF
from roles import cvt, unpack8, row_block

WSRD = 's[8:11]'


def srd(P, base, karg, nbytes):
    P(f's_load_dwordx2 s[{base}:{base + 1}], s[0:1], {karg}')
    P(f's_mov_b32 s{base + 2}, {nbytes}')
    P(f's_mov_b32 s{base + 3}, 0x00020000')


def gen_prep(P, opt):
    P('prep_kernel:')
    P('s_cmp_ge_u32 s2, 256\ns_cbranch_scc1 prep_exit')
    srd(P, 8, 120, WS_BYTES)
    srd(P, 12, 8, S * D * 2)
    srd(P, 16, 16, S * D * 2)
    srd(P, 20, 24, D * 4 * 2)
    P('s_load_dwordx8 s[36:43], s[0:1], 64')
    P(f'''
    v_lshrrev_b32 v1, 6, v0
    v_and_b32 v2, 63, v0
    v_readfirstlane_b32 s4, v1
    s_lshr_b32 s5, s2, 6
    s_bfe_u32 s6, s2, 0x50001
    s_and_b32 s7, s2, 1
    s_mov_b32 s26, {4 * MB}
    s_mov_b32 s27, 0x00020000
    s_waitcnt lgkmcnt(0)
    s_mov_b64 s[24:25], s[36:37]
    s_cmp_eq_u32 s5, 1
    s_cselect_b64 s[24:25], s[38:39], s[24:25]
    s_cmp_eq_u32 s5, 2
    s_cselect_b64 s[24:25], s[40:41], s[24:25]
    s_cmp_eq_u32 s5, 3
    s_cselect_b64 s[24:25], s[42:43], s[24:25]
    ''')
    KR, VR, SH = 64, 76, 84
    P(f'''
    s_and_b32 s28, s2, 7
    s_lshl_b32 s28, s28, 6
    s_and_b32 s29, s4, 1
    s_lshl_b32 s29, s29, 5
    s_add_u32 s28, s28, s29
    s_lshr_b32 s29, s2, 3
    s_lshl_b32 s29, s29, 6
    s_lshr_b32 s30, s4, 1
    s_lshl_b32 s30, s30, 5
    s_add_u32 s29, s29, s30
    v_and_b32 v3, 15, v2
    v_lshl_add_u32 v3, v3, 1, s28
    v_lshrrev_b32 v4, 4, v2
    v_lshl_add_u32 v4, v4, 3, s29
    v_lshlrev_b32 v5, 10, v4
    v_lshl_add_u32 v5, v3, 1, v5
    v_subrev_u32 v6, 3072, v5
    v_lshlrev_b32 v7, 3, v3
    buffer_load_dwordx4 {q4(SH)}, v7, s[20:23], 0 offen
    s_movk_i32 s31, 4096
    s_movk_i32 s32, 8192
    ''')
    for i in range(11):
        so, off = ('0', 1024 * i) if i < 4 else (('s31', 1024 * (i - 4)) if i < 8 else ('s32', 1024 * (i - 8)))
        if i < 3:
            P(f'v_add_u32 v8, {1024 * i}, v6')
            P(f'buffer_load_dword v{KR + i}, v8, s[12:15], 0 offen')
        else:
            j = i - 3
            so, off = ('0', 1024 * j) if j < 4 else ('s31', 1024 * (j - 4))
            P(f'buffer_load_dword v{KR + i}, v5, s[12:15], {so} offen offset:{off}')
    for j in range(8):
        so, off = ('0', 1024 * j) if j < 4 else ('s31', 1024 * (j - 4))
        P(f'buffer_load_dword v{VR + j}, v5, s[16:19], {so} offen offset:{off}')
    IN, OUT = 96, 160
    P(f'''
    v_and_b32 v9, 15, v2
    v_lshrrev_b32 v10, 4, v2
    s_cmp_eq_u32 s5, 3
    s_cbranch_scc1 prep_wo
    v_lshlrev_b32 v11, 16, v10
    v_lshl_add_u32 v11, v9, 4, v11
    s_lshl_b32 s33, s7, 21
    s_lshl_b32 s34, s4, 19
    s_add_u32 s33, s33, s34
    s_lshl_b32 s34, s6, 8
    s_add_u32 s33, s33, s34
    s_mov_b32 s34, 8192
    s_mov_b32 s35, 0x40000
    v_lshrrev_b32 v12, 2, v9
    v_lshlrev_b32 v12, 15, v12
    s_lshl_b32 s44, s7, 13
    s_lshl_b32 s45, s4, 11
    s_add_u32 s44, s44, s45
    s_mov_b32 s45, 1024
    s_mov_b32 s46, 16384
    s_branch prep_wgo
    prep_wo:
    v_lshlrev_b32 v11, 13, v10
    v_lshl_add_u32 v11, v9, 4, v11
    s_lshl_b32 s33, s6, 17
    s_lshl_b32 s34, s4, 15
    s_add_u32 s33, s33, s34
    s_lshl_b32 s34, s7, 9
    s_add_u32 s33, s33, s34
    s_mov_b32 s34, 1024
    s_mov_b32 s35, 256
    v_lshrrev_b32 v12, 3, v9
    v_lshlrev_b32 v12, 14, v12
    v_and_b32 v13, 1, v9
    v_lshl_add_u32 v12, v13, 12, v12
    v_lshrrev_b32 v9, 1, v9
    s_lshl_b32 s44, s7, 16
    s_lshl_b32 s45, s4, 10
    s_add_u32 s44, s44, s45
    s_mov_b32 s45, 32768
    s_mov_b32 s46, 8192
    prep_wgo:
    v_lshl_add_u32 v12, v10, 8, v12
    v_and_b32 v13, 3, v9
    v_lshl_add_u32 v12, v13, 6, v12
    s_lshl_b32 s47, s5, 22
    s_add_u32 s44, s44, s47
    s_lshl_b32 s47, s6, 17
    s_add_u32 s44, s44, s47
    s_add_u32 s44, s44, {WIMG}
    ''')
    for rnd in range(2):
        P('s_mov_b32 s47, s33' if rnd == 0 else 's_add_u32 s47, s33, s35')
        for j in range(8):
            P(f'buffer_load_dwordx4 {q4(IN + 32 * rnd + 4 * j)}, v11, s[24:27], s47 offen')
            if j < 7:
                P('s_add_u32 s47, s47, s34')
    P(f'''
    s_lshl_b32 s48, s2, 11
    v_lshlrev_b32 v14, 3, v0
    v_mov_b32 v16, {SENT}
    v_mov_b32 v17, {SENT}
    s_lshr_b32 s49, s2, 7
    s_mul_i32 s49, s49, {MB - 256 * KB}
    s_add_u32 s49, s49, s48
    s_add_u32 s49, s49, {CPART}
    buffer_store_dwordx2 v[16:17], v14, {WSRD}, s49 offen
    s_and_b32 s49, s48, 0x7fff
    s_add_u32 s49, s49, {CMEM}
    buffer_store_dwordx2 v[16:17], v14, {WSRD}, s49 offen
    s_cmp_ge_u32 s2, {FLAGS_BYTES // 2048}
    s_cbranch_scc1 prep_noflag
    s_sub_u32 s49, s2, {(F_H - FLAGS) // 2048}
    s_cmp_lt_u32 s49, 4
    s_cselect_b32 s49, {0 if opt.get('rows_in_main') else 64}, 0
    v_mov_b32 v18, s49
    v_mov_b32 v19, s49
    s_add_u32 s48, s48, {FLAGS}
    buffer_store_dwordx2 v[18:19], v14, {WSRD}, s48 offen
    prep_noflag:
    ''')
    C = 20
    KF = 28
    AC = 40
    PKV = 48
    for ch in range(2):
        for i in range(2):
            P(f'v_lshlrev_b32 v{C + 4 * ch + 2 * i}, 16, v{SH + 2 * ch + i}')
            P(f'v_and_b32 v{C + 4 * ch + 2 * i + 1}, 0xffff0000, v{SH + 2 * ch + i}')
    P(f'''
    v_sub_u32 v15, {S - 8}, v4
    v_lshlrev_b32 v15, 1, v15
    v_lshl_add_u32 v15, v3, 12, v15
    s_mov_b32 s48, {KVT}
    s_mov_b32 s49, {KVT + 4096}
    ''')
    for ch in range(2):
        for i in range(11):
            P(f'v_lshlrev_b32 v{KF + i}, 16, v{KR + i}' if ch == 0 else f'v_and_b32 v{KF + i}, 0xffff0000, v{KR + i}')
        for j in range(8):
            P(f'v_mul_f32 v{AC + j}, v{KF + j + 3}, v{C + 4 * ch}')
        for tap in range(1, 4):
            for j in range(8):
                P(f'v_fmac_f32 v{AC + j}, v{KF + j + 3 - tap}, v{C + 4 * ch + tap}')
        for j in range(8):
            P(f'v_lshlrev_b32 v{KF + j}, 16, v{VR + j}' if ch == 0 else f'v_and_b32 v{KF + j}, 0xffff0000, v{VR + j}')
        for j in range(8):
            P(f'v_mul_f32 v{AC + j}, v{AC + j}, v{KF + j}')
        for i in range(4):
            P(f'v_cvt_pk_bf16_f32 v{PKV + 4 * ch + i}, v{AC + 7 - 2 * i}, v{AC + 6 - 2 * i}')
        P(f'buffer_store_dwordx4 {q4(PKV + 4 * ch)}, v15, {WSRD}, s{48 + ch} offen')
    P('s_mov_b32 s50, 0x05040100\ns_mov_b32 s51, 0x07060302')
    P('s_cmp_eq_u32 s5, 3\ns_cbranch_scc1 prep_two')
    for wo in range(2):
        if wo:
            P('s_branch prep_fin\nprep_two:')
        for rnd in range(2):
            b = IN + 32 * rnd
            o = OUT + 32 * rnd
            if rnd:
                P('s_add_u32 s44, s44, s45')
            P('s_add_u32 s47, s44, s46')
            for i in range(8):
                for rr in range(4):
                    P(f'v_perm_b32 v{o + 4 * i + rr}, v{b + 4 * (2 * rr + 1) + (i >> 1)}, v{b + 4 * (2 * rr) + (i >> 1)}, s{50 + (i & 1)}')
                hi, off = (i >> 2, 16 * (i & 3)) if not wo else ((i >> 1) & 1, 32 * (i >> 2) + 16 * (i & 1))
                P(f'buffer_store_dwordx4 {q4(o + 4 * i)}, v12, {WSRD}, {"s47" if hi else "s44"} offen offset:{off}')
    P(f'''
    v_lshlrev_b32 v12, 4, v2
    s_add_u32 s44, s44, {WO2 - WIMG - 12 * MB - 32768}
    ''')
    for rnd in range(2):
        for i in range(8):
            P(f's_add_u32 s47, s44, {32768 * rnd + 4096 * i}')
            P(f'buffer_store_dwordx4 {q4(OUT + 32 * rnd + 4 * i)}, v12, {WSRD}, s47 offen')
    P('prep_fin:\ns_waitcnt vmcnt(0)\nprep_exit:\ns_endpgm')


CA_STRIDE = 4160
CH_A = 8 * CA_STRIDE
CH_B = 96 * 80
CH_BYTES = CH_A + CH_B
LDS_CONV = 2 * CH_BYTES


def gen_conv(P, opt):
    MF32 = 'v_mfma_f32_32x32x16_bf16'
    P('conv_kernel:')
    P('s_cmp_ge_u32 s2, 256\ns_cbranch_scc1 conv_exit')
    srd(P, 8, 120, WS_BYTES)
    srd(P, 12, 32, D * S * 2)
    srd(P, 16, 40, D * 2)
    P(f'''
    v_lshrrev_b32 v1, 6, v0
    v_and_b32 v2, 63, v0
    v_readfirstlane_b32 s4, v1
    v_and_b32 v3, 127, v0
    s_lshr_b32 s5, s4, 1
    s_and_b32 s6, s4, 1
    s_lshl_b32 s7, s2, 1
    s_add_u32 s7, s7, s5
    s_mul_i32 s20, s5, {CH_BYTES}
    s_lshl_b32 s21, s7, 12
    s_add_u32 s22, s21, {KVT}
    s_lshl_b32 s23, s7, 1
    v_lshlrev_b32 v4, 4, v3
    v_subrev_u32 v5, 16, v4
    v_cmp_eq_u32 vcc, 0, v3
    v_mov_b32 v6, 0x7ffffff0
    v_cndmask_b32 v5, v5, v6, vcc
    s_waitcnt lgkmcnt(0)
    buffer_load_dwordx4 v[16:19], v5, s[12:15], s21 offen
    buffer_load_dwordx4 v[20:23], v4, s[12:15], s21 offen
    buffer_load_dwordx4 v[24:27], v4, s[12:15], s21 offen offset:2032
    buffer_load_dwordx4 v[28:31], v4, s[12:15], s21 offen offset:2048
    buffer_load_ushort v7, off, s[16:19], s23
    buffer_load_dwordx4 v[32:35], v4, {WSRD}, s22 offen
    buffer_load_dwordx4 v[36:39], v4, {WSRD}, s22 offen offset:2048
    v_mov_b32 v40, 0
    v_mov_b32 v41, 0
    v_mov_b32 v42, 0
    v_mov_b32 v43, 0
    v_add_u32 v8, {CH_A + 64 * 80}, v4
    v_add_u32 v8, s20, v8
    ds_write_b128 v8, v[40:43]
    v_and_b32 v9, 31, v3
    v_lshlrev_b32 v9, 4, v9
    v_add_u32 v9, {CH_A + 64 * 80 + 2048}, v9
    v_add_u32 v9, s20, v9
    ds_write_b128 v9, v[40:43]
    v_and_b32 v9, 7, v3
    v_mul_u32_u24 v9, {CA_STRIDE}, v9
    v_add_u32 v9, s20, v9
    ds_write_b128 v9, v[40:43]
    ds_write_b128 v9, v[40:43] offset:16
    ds_write_b128 v9, v[40:43] offset:32
    v_lshrrev_b32 v10, 2, v3
    v_mul_u32_u24 v10, 80, v10
    v_and_b32 v11, 3, v3
    v_lshl_add_u32 v10, v11, 4, v10
    v_add_u32 v10, s20, v10
    ds_write_b128 v10, v[32:35] offset:{CH_A}
    ds_write_b128 v10, v[36:39] offset:{CH_A + 32 * 80}
    v_lshlrev_b32 v7, 16, v7
    v_lshlrev_b32 v12, 16, v20
    v_add_f32 v12, v12, v7
    v_cvt_pk_bf16_f32 v12, v12, v12
    v_mov_b32 v13, 0xffff
    v_bfi_b32 v12, v13, v12, v20
    v_cmp_eq_u32 vcc, 0, v3
    v_cndmask_b32 v20, v20, v12, vcc
    v_add_u32 v14, s20, v4
    ''')
    for half in range(2):
        b = 16 + 8 * half
        for c in range(8):
            sh = 1 + c
            o = 44 + 4 * (c & 1)
            if sh == 8:
                src = q4(b + 4)
            else:
                for i in range(4):
                    lo = b + (sh >> 1) + i
                    if sh & 1:
                        P(f'v_alignbit_b32 v{o + i}, v{lo + 1}, v{lo}, 16')
                    else:
                        P(f'v_mov_b32 v{o + i}, v{lo}')
                src = q4(o)
            P(f'ds_write_b128 v14, {src} offset:{c * CA_STRIDE + 48 + 2048 * half}')
    P(f'''
    v_and_b32 v3, 31, v2
    v_lshrrev_b32 v4, 5, v2
    v_and_b32 v5, 7, v3
    v_mul_u32_u24 v5, {CA_STRIDE}, v5
    v_lshrrev_b32 v6, 3, v3
    v_add_u32 v6, v6, v4
    v_lshl_add_u32 v5, v6, 4, v5
    s_lshl_b32 s24, s6, 10
    s_add_u32 s24, s24, s20
    v_add_u32 v5, s24, v5
    v_sub_u32 v6, 31, v3
    v_mul_u32_u24 v6, 80, v6
    v_lshl_add_u32 v6, v4, 4, v6
    s_mul_i32 s24, s6, {16 * 80}
    s_add_u32 s24, s24, s20
    s_add_u32 s24, s24, {CH_A}
    v_add_u32 v6, s24, v6
    s_waitcnt lgkmcnt(0)
    s_barrier
    ''')
    Y0, Y1, OPS = 64, 80, 16
    NB = 3

    def reads(st):
        m, be = st >> 1, st & 1
        b = OPS + 16 * (st % NB)
        return [f'ds_read_b128 {q4(b)}, v5 offset:{64 * m + 32 * be}',
                f'ds_read_b128 {q4(b + 4)}, v6 offset:{80 * (32 + m) + 32 * be}',
                f'ds_read_b128 {q4(b + 8)}, v6 offset:{80 * m + 32 * be}',
                f'ds_read_b128 {q4(b + 12)}, v5 offset:{2048 + 64 * m + 32 * be}']
    for st in range(NB - 1):
        for i in reads(st):
            P(i)
    y0, y1 = f'v[{Y0}:{Y0 + 15}]', f'v[{Y1}:{Y1 + 15}]'
    for st in range(32):
        b = OPS + 16 * (st % NB)
        r = reads(st + NB - 1) if st + NB - 1 < 32 else []
        P(f'{MF32} {y0}, {q4(b)}, {q4(b + 4)}, {y0 if st else 0}')
        for i in r[:2]:
            P(i)
        P(f'{MF32} {y1}, {q4(b)}, {q4(b + 8)}, {y1 if st else 0}')
        for i in r[2:]:
            P(i)
        P(f'{MF32} {y1}, {q4(b + 12)}, {q4(b + 4)}, {y1}')
    P(f'''
    s_barrier
    s_lshl_b32 s24, s4, 12
    v_lshl_add_u32 v7, v2, 4, s24
    v_xor_b32 v8, 4096, v7
    s_cmp_eq_u32 s6, 0
    s_cbranch_scc1 conv_p0
    ''')
    for i in range(4):
        P(f'ds_write_b128 v7, {q4(Y0 + 4 * i)} offset:{1024 * i}')
    for i in range(16):
        P(f'v_mov_b32 v{Y0 + i}, v{Y1 + i}')
    P('s_branch conv_x\nconv_p0:')
    for i in range(4):
        P(f'ds_write_b128 v7, {q4(Y1 + 4 * i)} offset:{1024 * i}')
    P('conv_x:\ns_waitcnt lgkmcnt(0)\ns_barrier')
    for i in range(4):
        P(f'ds_read_b128 {q4(OPS + 4 * i)}, v8 offset:{1024 * i}')
    P(f'''
    v_lshlrev_b32 v9, 6, v3
    v_lshl_add_u32 v9, v4, 3, v9
    s_lshl_b32 s24, s6, 11
    s_add_u32 s24, s24, s21
    s_add_u32 s24, s24, {YT}
    ''')
    for i in range(16):
        P(f'v_add_f32 v{Y0 + i}, v{Y0 + i}, v{OPS + i}')
    for i in range(4):
        P(cvt(40 + 2 * i, Y0 + 4 * i))
        P(cvt(41 + 2 * i, Y0 + 4 * i + 2))
        P(f'buffer_store_dwordx2 {q2(40 + 2 * i)}, v9, {WSRD}, s24 offen offset:{16 * i}')
    P('s_waitcnt vmcnt(0)\nconv_exit:\ns_endpgm')


def gen_rows(P, opt):
    P('rows_kernel:')
    P('s_cmp_ge_u32 s2, 256\ns_cbranch_scc1 rows_exit')
    srd(P, 8, 120, WS_BYTES)
    srd(P, 12, 0, S * D * 2)
    P(f'''
    v_lshrrev_b32 v1, 6, v0
    v_and_b32 v2, 63, v0
    v_readfirstlane_b32 s4, v1
    v_lshlrev_b32 v3, 13, v0
    s_lshl_b32 s5, s2, 4
    s_add_u32 s5, s5, {YT}
    s_add_u32 s6, s5, 4096
    s_lshl_b32 s7, s2, 13
    s_lshl_b32 s20, s4, 11
    s_add_u32 s7, s7, s20
    v_lshlrev_b32 v4, 4, v2
    s_waitcnt lgkmcnt(0)
    buffer_load_dwordx4 v[8:11], v3, {WSRD}, s5 offen
    buffer_load_dwordx4 v[12:15], v3, {WSRD}, s6 offen
    buffer_load_dwordx4 v[16:19], v4, s[12:15], s7 offen
    buffer_load_dwordx4 v[20:23], v4, s[12:15], s7 offen offset:1024
    s_mov_b32 s22, 0x05040100
    s_mov_b32 s23, 0x07060302
    v_lshlrev_b32 v5, 2, v0
    ''')
    for t in range(8):
        P(f'v_perm_b32 v6, v{12 + (t >> 1)}, v{8 + (t >> 1)}, s{22 + (t & 1)}')
        P(f'ds_write_b32 v5, v6 offset:{1024 * t}')
    P(f'''
    v_add_u32 v5, s20, v4
    s_waitcnt lgkmcnt(0)
    s_barrier
    ds_read_b128 v[24:27], v5
    ds_read_b128 v[28:31], v5 offset:1024
    s_add_u32 s24, s7, {YTOT}
    s_add_u32 s25, s7, {X1}
    s_add_u32 s26, s7, {H1}
    buffer_store_dwordx4 v[24:27], v4, {WSRD}, s24 offen
    buffer_store_dwordx4 v[28:31], v4, {WSRD}, s24 offen offset:1024
    ''')
    seqs = []
    for rr in range(2):
        b = 32 + 40 * rr
        X, Y, N_, PKX, PH, TT = b, b + 8, b + 16, b + 24, b + 28, b + 32
        sq = unpack8(X, 16 + 4 * rr) + unpack8(Y, 24 + 4 * rr) + row_block(X, Y, N_, PKX, PH, TT)
        sq += [f'buffer_store_dwordx4 {q4(PKX)}, v4, {WSRD}, s25 offen offset:{1024 * rr}',
               f'buffer_store_dwordx4 {q4(PH)}, v4, {WSRD}, s26 offen offset:{1024 * rr}']
        seqs.append(sq)
    for a, b in zip(*seqs):
        P(a)
        P(b)
    P('s_waitcnt vmcnt(0)\nrows_exit:\ns_endpgm')
```

```python
from layout import *
import stamps
from stamps import marks
from chain import (S_WS, S_W, S_H, S_G, S_PURE, S_LAYER, S_S, S_C, GUARD, MF, MF16, DPPF, q4, q2)


def a4(b):
    return 'a[%d:%d]' % (b, b + 3)


def cvt(d, a):
    return f'v_cvt_pk_bf16_f32 v{d}, v{a}, v{a + 1}'


def xlane(op, x, t):
    return [f'v_mov_b32 v{t}, v{x}', f'v_permlane16_swap_b32 v{x}, v{t}', f'{op} v{x}, v{x}, v{t}',
            f'v_mov_b32 v{t}, v{x}', f'v_permlane32_swap_b32 v{x}, v{t}', f'{op} v{x}, v{x}, v{t}']


def wave_sum(x, t):
    o = [f'v_add_f32_dpp v{x}, v{x}, v{x} row_ror:{r} {DPPF}' for r in (1, 2, 4, 8)]
    return o + xlane('v_add_f32', x, t)


def load_weights(P, mats, vl16):
    P(f'''
    s_lshl_b32 s40, {S_H}, 17
    s_lshl_b32 s41, {S_W}, 15
    s_add_u32 s40, s40, s41
    ''')
    for mi, X in enumerate(mats):
        for blk in range(8):
            P(f's_add_u32 s43, s40, {X + blk * 4096}')
            for i in range(4):
                P(f'buffer_load_dwordx4 {a4(128 * mi + 16 * blk + 4 * i)}, v{vl16}, {S_WS}, s43 offen offset:{1024 * i}')


def h_dma_addr(P, vd, r0, r1, t0):
    P(f'''
    v_lshrrev_b32 v{t0}, 5, v0
    v_lshlrev_b32 v{vd}, 13, v{t0}
    v_bfe_u32 v{t0}, v0, 3, 2
    v_lshl_add_u32 v{vd}, v{t0}, 10, v{vd}
    v_lshrrev_b32 v{t0}, 3, v0
    v_and_b32 v{t0}, 6, v{t0}
    v_xor_b32 v{t0}, v{t0}, v0
    v_and_b32 v{t0}, 7, v{t0}
    v_lshl_add_u32 v{vd}, v{t0}, 4, v{vd}
    v_and_b32 v{r0}, 15, v0
    v_lshlrev_b32 v{r0}, 7, v{r0}
    v_lshrrev_b32 v{t0}, 4, v0
    v_and_b32 v{r1}, 6, v0
    v_xor_b32 v{t0}, v{t0}, v{r1}
    v_lshl_add_u32 v{r0}, v{t0}, 4, v{r0}
    v_xor_b32 v{r1}, 64, v{r0}
    ''')


def h_dma(vd, s_src, s_lds):
    o = []
    for i in range(2):
        for t in range(2):
            for jh in range(2):
                o += [f's_add_u32 m0, {s_lds}, {(4 * i + 2 * t + jh) * 1024}',
                      f's_add_u32 s43, {s_src}, {i * 128 + t * 4096 + jh * 16384}',
                      f'buffer_load_dwordx4 v{vd}, {S_WS}, s43 offen sc1 lds']
    return o


def h_read(dst, r0, r1, kk, t):
    return f'ds_read_b128 {q4(dst)}, v{r1 if kk & 1 else r0} offset:{(kk >> 1) * 4096 + t * 2048}'


def gen_kv(P, opt):
    V_L16, V_HD, V_F, V_FA, V_T0, V_R0, V_R1 = 1, 2, 3, 4, 5, 6, 7
    HB = 16
    AK = 32
    AV = 48
    PK = 64
    P.label('kv_role')
    P(f'''
    v_and_b32 v0, 63, v0
    v_lshlrev_b32 v{V_L16}, 4, v0
    v_and_b32 v{V_FA}, 31, v0
    v_lshlrev_b32 v{V_FA}, 7, v{V_FA}
    ''')
    h_dma_addr(P, V_HD, V_R0, V_R1, V_T0)
    load_weights(P, (WIMG + 4 * MB, WIMG + 8 * MB), V_L16)
    flush = f'''v_mov_b32 v{V_T0}, {S_S}
    buffer_store_dword v{V_T0}, off, {S_WS}, s31 sc1
    s_mov_b32 s27, 0'''
    P(f'''
    s_lshl_b32 s20, {S_LAYER}, 21
    s_add_u32 s20, s20, {H1}
    s_lshl_b32 s23, {S_W}, 8
    s_add_u32 s20, s20, s23
    s_lshl_b32 s21, {S_W}, 13
    s_lshl_b32 s24, {S_LAYER}, 13
    s_add_u32 s24, s24, {F_H}
    s_lshl_b32 s25, {S_H}, 2
    s_add_u32 s25, s25, {S_W}
    s_lshl_b32 s22, {S_LAYER}, 25
    s_lshl_b32 s23, s25, 12
    s_add_u32 s22, s22, s23
    s_add_u32 s28, s22, {KVIMG}
    s_lshl_b32 s22, {S_LAYER}, 14
    s_lshl_b32 s23, s25, 7
    s_add_u32 s22, s22, s23
    s_add_u32 s31, s22, {F_KV}
    s_mov_b32 {S_S}, 0
    s_mov_b32 s25, 0
    s_mov_b32 s26, 0
    s_mov_b32 s27, 0
    ''')
    stamps.init(P, opt)
    P(f'''
    kv_loop:
    s_cmp_eq_u32 s26, 0
    s_cbranch_scc1 kv_poll
    s_waitcnt vmcnt(4)
    s_branch kv_have
    kv_poll:
    buffer_load_dword v{V_F}, v{V_FA}, {S_WS}, s24 offen sc1
    s_waitcnt vmcnt(0)
    s_cmp_eq_u32 s27, 0
    s_cbranch_scc1 kv_poll2
    {flush}
    kv_poll2:
    v_cmp_ge_u32 vcc, s25, v{V_F}
    s_cbranch_vccz kv_go
    {GUARD}
    s_sleep 2
    s_branch kv_poll
    kv_go:
    {marks(opt, 0)}
    ''')
    for i in h_dma(V_HD, 's20', 's21'):
        P(i)
    P(f'''
    s_waitcnt vmcnt(0)
    kv_have:
    s_barrier
    {marks(opt, 1)}
    {h_read(HB, V_R0, V_R1, 0, 0)}
    {h_read(HB + 4, V_R0, V_R1, 0, 1)}
    s_xor_b32 s24, s24, 4096
    s_add_u32 s25, {S_S}, 1
    s_lshr_b32 s25, s25, 1
    s_add_u32 s20, s20, 32768
    s_xor_b32 s21, s21, 32768
    s_mov_b32 s26, 0
    buffer_load_dword v{V_F}, v{V_FA}, {S_WS}, s24 offen sc1
    ''')
    for kk in range(16):
        b = HB + 8 * (kk & 1)
        nb = HB + 8 * ((kk + 1) & 1)
        ms = []
        for te in range(2):
            for tt in range(2):
                d = AK + 8 * tt + 4 * te
                ms.append(f'{MF} {q4(d)}, {a4(4 * (16 * te + kk))}, {q4(b + 4 * tt)}, {q4(d) if kk else 0}')
        for te in range(2):
            for tt in range(2):
                d = AV + 8 * te + 4 * tt
                ms.append(f'{MF} {q4(d)}, {q4(b + 4 * tt)}, {a4(128 + 4 * (16 * te + kk))}, {q4(d) if kk else 0}')
        P(ms[0])
        if kk < 15:
            P(h_read(nb, V_R0, V_R1, kk + 1, 0))
        P(ms[1])
        if kk < 15:
            P(h_read(nb + 4, V_R0, V_R1, kk + 1, 1))
        for m in ms[2:]:
            P(m)
        if kk == opt.get('kvpf', 8):
            P(f'''
            s_waitcnt vmcnt(0)
            s_cmp_eq_u32 s27, 0
            s_cbranch_scc1 kv_mid
            {flush}
            kv_mid:
            s_cmp_eq_u32 {S_S}, {NS - 1}
            s_cbranch_scc1 kv_nopf
            v_cmp_ge_u32 vcc, s25, v{V_F}
            s_cbranch_vccnz kv_nopf
            ''')
            for i in h_dma(V_HD, 's20', 's21'):
                P(i)
            P('s_mov_b32 s26, 1\nkv_nopf:')
    P(f'v_xor_b32 v{V_R0}, 32768, v{V_R0}\nv_xor_b32 v{V_R1}, 32768, v{V_R1}')
    for qd in range(4):
        src = AK + 8 * qd
        for i in range(4):
            P(cvt(PK + 4 * qd + i, src + 2 * i))
        P(f'buffer_store_dwordx4 {q4(PK + 4 * qd)}, v{V_L16}, {S_WS}, s28 offen offset:{1024 * qd} sc1')
    P(f'''
    s_add_u32 s28, s28, 0x80000
    s_mov_b32 s27, 1
    {marks(opt, 2)}
    s_add_u32 {S_S}, {S_S}, 1
    s_cmp_lt_u32 {S_S}, {NS}
    s_cbranch_scc1 kv_loop
    s_waitcnt vmcnt(0)
    {flush}
    ''')
    stamps.dump(P, opt)
    P('s_waitcnt vmcnt(0)\ns_endpgm')


def unpack8(dst, src):
    o = []
    for i in range(4):
        o += [f'v_and_b32 v{dst + 2 * i + 1}, 0xffff0000, v{src + i}', f'v_lshlrev_b32 v{dst + 2 * i}, 16, v{src + i}']
    return o


def ln8(x, n, t):
    a, b = t, t + 1
    o = [f'v_pk_add_f32 {q2(t)}, {q2(x)}, {q2(x + 2)}', f'v_pk_add_f32 {q2(t + 2)}, {q2(x + 4)}, {q2(x + 6)}',
         f'v_pk_add_f32 {q2(t)}, {q2(t)}, {q2(t + 2)}', f'v_add_f32 v{a}, v{a}, v{b}']
    o += wave_sum(a, b)
    o += [f'v_mul_f32 v{a}, 0x3b000000, v{a}']
    o += [f'v_pk_add_f32 {q2(n + i)}, {q2(x + i)}, {q2(t)} op_sel_hi:[1,0] neg_lo:[0,1] neg_hi:[0,1]' for i in range(0, 8, 2)]
    o += [f'v_pk_mul_f32 {q2(t)}, {q2(n)}, {q2(n)}', f'v_pk_mul_f32 {q2(t + 2)}, {q2(n + 2)}, {q2(n + 2)}',
          f'v_pk_fma_f32 {q2(t)}, {q2(n + 4)}, {q2(n + 4)}, {q2(t)}',
          f'v_pk_fma_f32 {q2(t + 2)}, {q2(n + 6)}, {q2(n + 6)}, {q2(t + 2)}',
          f'v_pk_add_f32 {q2(t)}, {q2(t)}, {q2(t + 2)}', f'v_add_f32 v{a}, v{a}, v{b}']
    o += wave_sum(a, b)
    o += [f'v_mov_b32 v{b}, 0x3727c5ac', f'v_fmac_f32 v{b}, 0x3b000000, v{a}', f'v_rsq_f32 v{a}, v{b}']
    o += [f'v_pk_mul_f32 {q2(n + i)}, {q2(n + i)}, {q2(t)} op_sel_hi:[1,0]' for i in range(0, 8, 2)]
    return o


def row_block(x, y, n, pk, ph, t):
    o = ln8(x, n, t)
    o += [f'v_pk_fma_f32 {q2(x + i)}, {q2(n + i)}, {q2(y + i)}, {q2(x + i)}' for i in range(0, 8, 2)]
    o += [cvt(pk + i, x + 2 * i) for i in range(4)]
    o += unpack8(x, pk)
    o += ln8(x, n, t)
    o += [cvt(ph + i, n + 2 * i) for i in range(4)]
    return o
```

```python
from layout import STAMP
NPH = 12


def init(P, opt):
    if not opt.get('stamp'):
        return
    P('s_memtime s[60:61]\ns_memrealtime s[62:63]\ns_waitcnt lgkmcnt(0)')
    for i in range(NPH):
        P(f's_mov_b32 s{70 + i}, 0')
    P('s_mov_b32 s68, s60')


def mark(opt, i, lvl=2):
    if opt.get('stamp', 0) == lvl:
        return ['s_memtime s[64:65]', 's_waitcnt lgkmcnt(0)', 's_sub_u32 s69, s64, s68',
                f's_add_u32 s{70 + i}, s{70 + i}, s69', 's_mov_b32 s68, s64']
    return []


def marks(opt, i, lvl=2):
    return '\n'.join(mark(opt, i, lvl))


def count(opt, i):
    return f's_add_u32 s{70 + i}, s{70 + i}, 1' if opt.get('stamp') in (1, 2) else ''


def dump(P, opt):
    if not opt.get('stamp'):
        return
    P(f'''
    s_memtime s[64:65]
    s_memrealtime s[66:67]
    s_waitcnt lgkmcnt(0)
    s_sub_u32 s64, s64, s60
    s_lshl_b32 s22, s14, 5
    s_add_u32 s22, s22, s13
    s_lshl_b32 s22, s22, 2
    s_add_u32 s22, s22, s12
    s_lshl_b32 s22, s22, 7
    s_add_u32 s22, s22, {STAMP}
    v_mov_b32 v16, s64
    v_mov_b32 v17, s66
    v_mov_b32 v18, s98
    v_mov_b32 v19, s62
    buffer_store_dwordx4 v[16:19], off, s[8:11], s22
    ''')
    for j in range(NPH // 4):
        for i in range(4):
            P(f'v_mov_b32 v{20 + 4 * j + i}, s{70 + 4 * j + i}')
        P(f'buffer_store_dwordx4 v[{20 + 4 * j}:{23 + 4 * j}], off, s[8:11], s22 offset:{16 + 16 * j}')
```

```python
import sys
import math
import struct
from asmtool import Prog
from layout import *
import chain
import roles
import at
import pre
from chain import S_WS, S_W, S_H, S_G, S_PURE, S_LAYER, S_S, S_C, S_SENT, SENT, GUARD

NAME = 'interleave_layers__ssm_conv_h3__memory_aug_recurrent_mem_tr__prompt'
LDS_MAIN = 160 * 1024
HEADER = ''


def f32bits(x):
    return struct.unpack('<I', struct.pack('<f', x))[0]


def kd(name, vgpr, accum, sgpr=102):
    return f'''.amdhsa_kernel {name}
  .amdhsa_next_free_vgpr {vgpr}
  .amdhsa_next_free_sgpr {sgpr}
  .amdhsa_accum_offset {accum}
  .amdhsa_group_segment_fixed_size 0
  .amdhsa_kernarg_size 128
  .amdhsa_user_sgpr_count 2
  .amdhsa_user_sgpr_kernarg_segment_ptr 1
  .amdhsa_system_sgpr_workgroup_id_x 1
.end_amdhsa_kernel
'''


def resolve_pure(P, t0, t1):
    a, b, c = P.uid('rp'), P.uid('rp'), P.uid('rp')
    P(f'''
    s_cmp_eq_u32 {S_PURE}, 2
    s_cbranch_scc0 {c}
    s_lshl_b32 s22, {S_G}, 2
    {a}:
    buffer_load_dword v{t1}, off, s[4:7], 0 offset:32 sc1
    s_waitcnt vmcnt(0)
    buffer_load_dword v{t0}, off, s[4:7], s22 sc1
    s_waitcnt vmcnt(0)
    v_readfirstlane_b32 s23, v{t0}
    v_readfirstlane_b32 s33, v{t1}
    s_mov_b32 {S_PURE}, 1
    s_cmp_ge_u32 s23, 32
    s_cbranch_scc1 {c}
    s_mov_b32 {S_PURE}, 0
    s_cmp_ge_u32 s33, 256
    s_cbranch_scc1 {c}
    {GUARD}
    s_sleep 2
    s_branch {a}
    {c}:
    ''')


def gen_main(P, opt):
    P(f'''
    main_kernel:
    s_cmp_ge_u32 s2, 256
    s_cbranch_scc1 main_exit
    s_load_dwordx2 s[4:5], s[0:1], 112
    s_load_dwordx2 s[8:9], s[0:1], 120
    s_load_dwordx2 s[44:45], s[0:1], 56
    s_load_dwordx2 s[56:57], s[0:1], 104
    s_mov_b32 s3, 1000000
    s_mov_b32 s6, 256
    s_mov_b32 s7, 0x00020000
    s_mov_b32 s10, {WS_BYTES}
    s_mov_b32 s11, 0x00020000
    s_mov_b32 s46, 8192
    s_mov_b32 s47, 0x00020000
    s_mov_b32 s58, {S * D * 2}
    s_mov_b32 s59, 0x00020000
    v_lshrrev_b32 v1, 6, v0
    s_nop 0
    v_readfirstlane_b32 {S_W}, v1
    s_mov_b32 {S_C}, {f32bits(E ** -0.5 * math.log2(math.e))}
    s_mov_b32 {S_SENT}, {SENT}
    s_getreg_b32 s20, hwreg(HW_REG_XCC_ID, 0, 4)
    {'s_memrealtime s[98:99]' if opt.get('stamp') else ''}
    s_waitcnt lgkmcnt(0)
    ''')
    if opt.get('scramble'):
        P('s_mov_b32 s20, 15')
    P(f'''
    s_cmp_lg_u32 {S_W}, 0
    s_cbranch_scc1 main_ticket_wait
    s_mov_b64 exec, 1
    v_mov_b32 v2, 1
    s_mov_b32 s21, 64
    s_cmp_ge_u32 s20, 8
    s_cbranch_scc1 main_ticket_total
    s_lshl_b32 s22, s20, 2
    buffer_atomic_add v2, off, s[4:7], s22 sc0
    s_waitcnt vmcnt(0)
    v_readfirstlane_b32 s21, v2
    main_ticket_total:
    v_mov_b32 v2, 1
    buffer_atomic_add v2, off, s[4:7], 0 offset:32
    s_mov_b32 s23, 2
    s_cmp_lt_u32 s21, 32
    s_cbranch_scc1 main_ticket_done
    v_mov_b32 v2, 1
    buffer_atomic_add v2, off, s[4:7], 0 offset:36 sc0
    s_waitcnt vmcnt(0)
    v_readfirstlane_b32 s24, v2
    main_ovf_wait:
    buffer_load_dword v2, off, s[4:7], 0 offset:32 sc1
    s_waitcnt vmcnt(0)
    v_readfirstlane_b32 s22, v2
    s_cmp_ge_u32 s22, 256
    s_cbranch_scc1 main_ovf_go
    {GUARD}
    s_sleep 2
    s_branch main_ovf_wait
    main_ovf_go:
    s_mov_b32 s20, 0
    main_ovf_scan:
    s_lshl_b32 s22, s20, 2
    buffer_load_dword v2, off, s[4:7], s22 sc1
    s_waitcnt vmcnt(0)
    v_readfirstlane_b32 s21, v2
    s_min_u32 s21, s21, 32
    s_sub_u32 s22, 32, s21
    s_cmp_lt_u32 s24, s22
    s_cbranch_scc1 main_ovf_found
    s_sub_u32 s24, s24, s22
    s_add_u32 s20, s20, 1
    s_cmp_lt_u32 s20, 7
    s_cbranch_scc1 main_ovf_scan
    buffer_load_dword v2, off, s[4:7], 0 offset:28 sc1
    s_waitcnt vmcnt(0)
    v_readfirstlane_b32 s21, v2
    main_ovf_found:
    s_add_u32 s21, s21, s24
    s_mov_b32 s23, 0
    main_ticket_done:
    v_mov_b32 v2, s20
    v_mov_b32 v3, s21
    v_mov_b32 v4, s23
    v_mov_b32 v5, 0
    ds_write_b96 v5, v[2:4]
    s_waitcnt lgkmcnt(0)
    s_mov_b64 exec, -1
    main_ticket_wait:
    s_barrier
    v_mov_b32 v5, 0
    ds_read_b96 v[2:4], v5
    s_waitcnt lgkmcnt(0)
    s_barrier
    v_readfirstlane_b32 {S_G}, v2
    v_readfirstlane_b32 {S_H}, v3
    v_readfirstlane_b32 {S_PURE}, v4
    s_and_b32 {S_G}, {S_G}, 7
    s_and_b32 {S_H}, {S_H}, 31
    s_and_b32 {S_LAYER}, {S_G}, 1
    s_cmp_lt_u32 {S_G}, 2
    s_cbranch_scc1 chain_role
    {'s_endpgm' if opt.get('chainonly') else ''}
    s_cmp_lt_u32 {S_G}, 4
    s_cbranch_scc1 kv_role
    s_branch at_role
    main_exit:
    s_endpgm
    main_timeout:
    s_mov_b64 exec, 1
    v_mov_b32 v2, 1
    buffer_atomic_add v2, off, s[4:7], 0 offset:40
    s_waitcnt vmcnt(0)
    s_endpgm
    ''')
    opt['resolve_pure'] = resolve_pure
    chain.gen_chain(P, opt)
    roles.gen_kv(P, opt)
    at.gen_at(P, opt)


def build(opt):
    ks = []
    if not opt.get('mainonly'):
        ks += [('prep_kernel', pre.gen_prep, 0, 224, 224), ('conv_kernel', pre.gen_conv, pre.LDS_CONV, 96, 96),
               ('rows_kernel', pre.gen_rows, 8192, 112, 112)]
    ks.append(('main_kernel', gen_main, LDS_MAIN, 512, 256))
    head = HEADER
    for name, _, lds, _, _ in ks:
        head += f'; @launch kernel={name} grid=(256,1,1) block=(256,1,1) lds={lds}\n'
    head += '.amdgcn_target "amdgcn-amd-amdhsa--gfx950"\n.text\n'
    body = ''
    tail = '.section .rodata,"a"\n'
    for name, fn, lds, vg, acc in ks:
        P = Prog()
        fn(P, opt)
        body += f'.globl {name}\n.p2align 8\n.type {name},@function\n' + P.finish()
        tail += '.p2align 6\n' + kd(name, vg, acc)
    return head + body + tail


if __name__ == '__main__':
    opt = {}
    for a in sys.argv[2:]:
        k, v = a.split('=')
        opt[k] = int(v)
    open(sys.argv[1], 'w').write(build(opt))
```

```python
from layout import *
import stamps
import prework
from stamps import marks
from chain import (S_WS, S_W, S_H, S_G, S_PURE, S_LAYER, S_S, S_C, GUARD, MF, MF16, DPPF, q4, q2)
from asmtool import schedule
from chain import pk, xl
from roles import a4, cvt, xlane, load_weights, h_dma_addr, h_dma, h_read, unpack8, row_block


def weave(mf_groups, side, per=2, start=0):
    out = []
    side = list(side)
    for i, g in enumerate(mf_groups):
        out += g
        if i >= start:
            out += side[:per]
            side = side[per:]
    return out + side


def gen_at(P, opt):
    L_Q = 32768
    L_OB = L_Q + 8192
    L_ROW = L_OB + 8192
    (V_L16, V_HD, V_F4, V_FA, V_T0, V_T1, V_OR, V_QW, V_QR, V_OW, V_KMA, V_PST, V_RLD, V_RW, V_RR) = range(1, 16)
    SEL, BIAS, Q, SX, KX, VX, XR, YR = 16, 20, 28, 44, 52, 84, 100, 104
    FLH, FLK, FLM, FLA = 108, 109, 110, 111
    MX, NM, SUM = 112, 113, 114
    V_R0, V_R1 = 252, 253
    KM, VM = 116, 132
    SM, PX, PM, O, OP = 140, 144, 148, 152, 168
    OB, AO, PK = 140, 172, 236
    RED, RD = 140, 172
    HB, AQ, QP = 176, 208, 224
    X, Y, N_, PKX, PH, TT = 176, 184, 192, 200, 204, 208
    P.label('at_role')
    P(f'''
    s_and_b32 s22, {S_G}, 3
    s_lshl_b32 s54, s22, 5
    s_add_u32 s54, s54, {S_H}
    s_lshl_b32 s55, s54, 7
    s_add_u32 s55, s55, {F_P}
    s_lshl_b32 s16, s22, 14
    s_lshl_b32 s23, {S_W}, 12
    s_add_u32 s16, s16, s23
    s_lshl_b32 s23, {S_H}, 7
    s_add_u32 s16, s16, s23
    s_add_u32 s16, s16, {F_AP}
    s_lshl_b32 s85, s54, 7
    s_add_u32 s85, s85, {F_H + 8192}
    s_mov_b32 s17, 0
    s_cmp_lt_u32 s54, 64
    s_cbranch_scc1 at_l0
    s_bfe_u32 s22, s54, 0x40002
    s_lshl_b32 s22, s22, 8
    s_and_b32 s23, s54, 1
    s_lshl_b32 s23, s23, 7
    s_add_u32 s85, s22, s23
    s_and_b32 s23, s54, 2
    s_lshl_b32 s23, s23, 11
    s_add_u32 s85, s85, s23
    s_add_u32 s85, s85, {F_H}
    s_mov_b32 s17, 16
    at_l0:
    ''')
    prework.gen_prework(P, opt, f'''
    v_mov_b32 v1, 0
    v_mov_b32 v18, s17
    buffer_store_dword v1, off, {S_WS}, s16 sc1
    buffer_store_dword v18, off, {S_WS}, s85 sc1
    buffer_store_dword v1, off, {S_WS}, s55 sc1
    ''')
    P('v_and_b32 v0, 63, v0')
    load_weights(P, 'qo', 16)
    P(stamps.tl(opt, 5))
    P(f'''
    v_lshlrev_b32 v{V_L16}, 4, v0
    v_and_b32 v{V_FA}, 31, v0
    v_lshlrev_b32 v{V_FA}, 7, v{V_FA}
    v_and_b32 v{V_F4}, 3, v0
    v_lshlrev_b32 v{V_F4}, 7, v{V_F4}
    s_bfe_u32 {S_LAYER}, {S_G}, 0x10001
    s_and_b32 {S_S}, {S_G}, 1
    s_and_b32 s33, {S_W}, 1
    s_lshr_b32 s34, {S_W}, 1
    ''')
    h_dma_addr(P, V_HD, V_R0, V_R1, V_T0)
    P(f'''
    s_lshl_b32 s22, {S_W}, 11
    s_add_u32 s22, s22, {L_Q}
    v_add_u32 v{V_QW}, s22, v{V_L16}
    s_lshl_b32 s22, s33, 10
    s_add_u32 s23, s22, {L_Q}
    v_add_u32 v{V_QR}, s23, v{V_L16}
    s_lshl_b32 s23, s34, 12
    s_add_u32 s22, s22, s23
    s_add_u32 s22, s22, {L_OB}
    v_add_u32 v{V_OW}, s22, v{V_L16}
    v_add_u32 v{V_OR}, {L_OB}, v{V_L16}
    v_and_b32 v{V_KMA}, 0x37, v0
    v_lshlrev_b32 v{V_KMA}, 4, v{V_KMA}
    v_and_b32 v{V_T1}, 15, v0
    v_lshlrev_b32 v{V_PST}, 4, v{V_T1}
    v_lshrrev_b32 v{V_T0}, 4, v0
    v_lshl_add_u32 v{V_PST}, v{V_T0}, 18, v{V_PST}
    s_lshl_b32 s22, {S_H}, 10
    s_lshl_b32 s23, {S_W}, 8
    s_add_u32 s22, s22, s23
    v_add_u32 v{V_PST}, s22, v{V_PST}
    v_and_b32 v{V_T1}, 15, v0
    v_lshlrev_b32 v{V_RLD}, 4, v{V_T1}
    v_lshl_add_u32 v{V_RLD}, v{V_T0}, 10, v{V_RLD}
    s_lshl_b32 s22, {S_H}, 15
    s_add_u32 s22, s22, s23
    v_add_u32 v{V_RLD}, s22, v{V_RLD}
    v_bfe_u32 v{V_RW}, v0, 2, 2
    v_lshlrev_b32 v{V_RW}, 5, v{V_RW}
    v_lshl_add_u32 v{V_RW}, v{V_T0}, 8, v{V_RW}
    v_and_b32 v{V_RR}, 3, v0
    v_lshl_add_u32 v{V_RW}, v{V_RR}, 2, v{V_RW}
    s_lshl_b32 s22, {S_W}, 9
    s_add_u32 s22, s22, {L_ROW}
    v_add_u32 v{V_RW}, s22, v{V_RW}
    v_lshlrev_b32 v{V_RR}, 5, v0
    v_add_u32 v{V_RR}, {L_ROW}, v{V_RR}
    ''')
    for i in range(4):
        P(f'''
        v_mov_b32 v{SEL + i}, 0
        v_mov_b32 v{MX}, 0x3f80
        v_cmp_eq_u32 vcc, {2 * i}, v{V_T1}
        v_cndmask_b32 v{SEL + i}, v{SEL + i}, v{MX}, vcc
        v_mov_b32 v{MX}, 0x3f800000
        v_cmp_eq_u32 vcc, {2 * i + 1}, v{V_T1}
        v_cndmask_b32 v{SEL + i}, v{SEL + i}, v{MX}, vcc
        ''')
    P(f'''
    v_bfe_u32 v{V_T1}, v0, 2, 2
    v_lshlrev_b32 v{V_T1}, 3, v{V_T1}
    v_and_b32 v{MX}, 3, v0
    v_add_u32 v{V_T1}, v{V_T1}, v{MX}
    s_lshl_b32 s22, s33, 2
    v_add_u32 v{V_T1}, s22, v{V_T1}
    v_lshlrev_b32 v{V_T0}, 3, v{V_T0}
    v_sub_u32 v{V_T1}, v{V_T1}, v{V_T0}
    v_mov_b32 v{MX}, 0xf149f2ca
    ''')
    for i in range(8):
        P(f'v_cmp_gt_i32 vcc, {i}, v{V_T1}\nv_cndmask_b32 v{BIAS + i}, 0, v{MX}, vcc')
    for i in range(4):
        P(f'v_mov_b32 v{XR + i}, 0\nv_mov_b32 v{YR + i}, 0')
    P(f'''
    s_lshl_b32 s20, {S_LAYER}, 21
    s_add_u32 s20, s20, {H1}
    s_lshl_b32 s23, {S_W}, 8
    s_add_u32 s20, s20, s23
    s_lshl_b32 s23, {S_S}, 15
    s_add_u32 s20, s20, s23
    s_lshl_b32 s39, {S_H}, 10
    s_add_u32 s39, s39, s23
    s_sub_u32 s39, s39, 65536
    s_lshl_b32 s21, {S_W}, 13
    s_lshl_b32 s24, {S_LAYER}, 13
    s_add_u32 s24, s24, {F_H}
    s_lshl_b32 s23, {S_S}, 12
    s_add_u32 s24, s24, s23
    s_lshl_b32 s25, {S_H}, 7
    s_add_u32 s25, s25, s23
    s_add_u32 s25, s25, {F_H + 8192}
    s_lshl_b32 s22, {S_LAYER}, 24
    s_lshl_b32 s23, {S_H}, 13
    s_add_u32 s22, s22, s23
    s_lshl_b32 s23, {S_S}, 18
    s_add_u32 s22, s22, s23
    s_add_u32 s30, s22, {KMVM}
    s_lshl_b32 s28, s22, 1
    s_add_u32 s28, s28, {KVIMG}
    s_lshl_b32 s23, s34, 13
    s_add_u32 s29, s28, s23
    s_lshl_b32 s22, {S_LAYER}, 14
    s_lshl_b32 s23, {S_H}, 9
    s_add_u32 s22, s22, s23
    s_add_u32 s31, s22, {F_KV}
    s_add_u32 s32, s22, {F_KM}
    s_and_b32 s22, {S_G}, 3
    s_lshl_b32 s35, s22, 21
    s_add_u32 s35, s35, {APART}
    s_lshl_b32 s36, s22, 14
    s_lshl_b32 s23, {S_W}, 12
    s_add_u32 s36, s36, s23
    s_add_u32 s36, s36, {F_AP}
    s_lshl_b32 s23, {S_H}, 7
    s_add_u32 s37, s36, s23
    s_mov_b32 s38, 0
    s_mov_b32 s49, {S_S}
    s_mov_b32 s48, 0
    s_mov_b32 s50, 0
    s_mov_b32 s51, 0
    s_mov_b32 s52, 0
    s_mov_b32 s53, 0
    v_mov_b32 v{FLM}, 0
    ''')
    stamps.init(P, opt)

    an = opt.get('an2', 60000)
    flush = f'''v_mov_b32 v{V_T0}, s38
    buffer_store_dword v{V_T0}, off, {S_WS}, s25 sc1
    s_mov_b32 s53, 0'''
    kvl = []
    for i in range(4):
        kvl.append([f's_add_u32 s22, s28, {4096 * i}',
                    f'buffer_load_dwordx4 {q4(KX + 8 * i)}, v{V_L16}, {S_WS}, s22 offen sc1 ;lat:500'])
        kvl.append(f'buffer_load_dwordx4 {q4(KX + 8 * i + 4)}, v{V_L16}, {S_WS}, s22 offen offset:1024 sc1 ;lat:500')
    for i in range(2):
        kvl.append([f's_add_u32 s22, s29, {4096 * i}',
                    f'buffer_load_dwordx4 {q4(VX + 8 * i)}, v{V_L16}, {S_WS}, s22 offen offset:2048 sc1'])
        kvl.append(f'buffer_load_dwordx4 {q4(VX + 8 * i + 4)}, v{V_L16}, {S_WS}, s22 offen offset:3072 sc1')
    kml = ['s_add_u32 s22, s30, 4096', 's_lshl_b32 s23, s34, 12', 's_add_u32 s23, s23, s30']
    for kk in range(4):
        sreg = 's30' if kk < 2 else 's22'
        kml.append(f'buffer_load_dwordx4 {q4(KM + 4 * kk)}, v{V_L16}, {S_WS}, {sreg} offen offset:{2048 * (kk & 1)} sc1')
    for i in range(2):
        kml.append(f'buffer_load_dwordx4 {q4(VM + 4 * i)}, v{V_L16}, {S_WS}, s23 offen offset:{2048 * i + 1024} sc1')
    kml = '\n'.join(kml)
    hd = h_dma(V_HD, 's20', 's21')
    hgrp = [hd[3 * i:3 * i + 3] for i in range(8)]

    def emit(items, name):
        code, t = schedule(items, verbose=opt.get('verbose') == name, anneal=an)
        for c in code:
            P(c)

    def qproj(lo, hi_):
        it = []
        for kk in range(lo, hi_):
            b = HB + 8 * (kk & 3)
            for tt in range(2):
                it.append(h_read(b + 4 * tt, V_R0, V_R1, kk, tt))
            for te in range(2):
                for tt in range(2):
                    d = AQ + 8 * tt + 4 * te
                    it.append(f'{MF} {q4(d)}, {a4(4 * (16 * te + kk))}, {q4(b + 4 * tt)}, {q4(d) if kk else 0}')
        return it

    def qtail():
        it = []
        for tt in range(2):
            it += [cvt(QP + 4 * tt + i, AQ + 8 * tt + 2 * i) for i in range(4)]
            it.append(f'ds_write_b128 v{V_QW}, {q4(QP + 4 * tt)} offset:{1024 * tt} ;w:q')
        return it

    def sx_items():
        it = [f'ds_read_b128 {q4(Q + 4 * kk)}, v{V_QR} offset:{2048 * kk} ;r:q' for kk in range(4)]
        for kk in range(4):
            for t in range(2):
                c = q4(SX + 4 * t) if kk else q4(BIAS + 4 * t)
                it.append(f'{MF} {q4(SX + 4 * t)}, {q4(KX + 8 * kk + 4 * t)}, {q4(Q + 4 * kk)}, {c}')
        return it

    P(f'''
    at_kv0:
    buffer_load_dword v{FLK}, v{V_F4}, {S_WS}, s31 offen sc1
    s_waitcnt vmcnt(0)
    v_cmp_ge_u32 vcc, s49, v{FLK}
    s_cbranch_vccz at_kv0go
    {GUARD}
    s_sleep 4
    s_branch at_kv0
    at_kv0go:
    ''')
    for i in hd:
        P(i)
    P('s_waitcnt vmcnt(0)\ns_barrier')
    emit(kvl + qproj(0, 16) + qtail() + ['@bar q'] + sx_items(), 10)

    P(f'''
    at_loop:
    s_cmp_eq_u32 s52, 1
    s_cbranch_scc1 at_kmdone
    at_kmpoll:
    buffer_load_dword v{FLM}, v{V_F4}, {S_WS}, s32 offen sc1
    s_waitcnt vmcnt(0)
    s_cmp_eq_u32 s53, 0
    s_cbranch_scc1 at_kmpoll2
    {flush}
    at_kmpoll2:
    v_cmp_ge_u32 vcc, s49, v{FLM}
    s_cbranch_vccz at_kmgo
    {GUARD}
    s_sleep 2
    s_branch at_kmpoll
    at_kmgo:
    {kml}
    s_waitcnt vmcnt(0)
    at_kmdone:
    {marks(opt, 0)}
    s_add_u32 s49, s49, 2
    s_cmp_lt_u32 s49, {NS}
    s_cselect_b32 s22, 0x10000, 0
    s_add_u32 s20, s20, s22
    s_lshl_b32 s22, s22, 4
    s_add_u32 s28, s28, s22
    s_add_u32 s29, s29, s22
    s_add_u32 s39, s39, 65536
    s_add_u32 s30, s30, 0x80000
    s_mov_b32 s52, 0
    s_lshl_b32 s26, {S_LAYER}, 21
    s_add_u32 s26, s26, s39
    s_add_u32 s26, s26, {X1}
    s_add_u32 s27, s39, {YTOT}
    s_lshl_b32 s24, {S_W}, 12
    s_add_u32 s24, s24, s28
    s_cmp_eq_u32 {S_PURE}, 0
    s_cbranch_scc1 at_b_slow
    ''')

    def b_items(XS):
        it = []
        A = it.append
        A(f'buffer_load_dword v{FLK}, v{V_FA}, {S_WS}, s24 offen sc1')
        for g in hgrp:
            A(g[:2] + [g[2] + ' ;dl:900'])
        A(f'buffer_load_dwordx4 {q4(XR)}, v{V_L16}, {S_WS}, s26 offen sc1 ;dl:900')
        A(f'buffer_load_dwordx4 {q4(YR)}, v{V_L16}, {S_WS}, s27 offen sc1 ;dl:900')
        for kk in range(4):
            A(f'{MF} {q4(SM)}, {q4(KM + 4 * kk)}, {q4(Q + 4 * kk)}, {q4(SM) if kk else 0}')
        it += [f'v_max3_f32 v{MX}, v{SX}, v{SX + 1}, v{SX + 2}', f'v_max3_f32 v{NM}, v{SX + 3}, v{SX + 4}, v{SX + 5}',
               f'v_max3_f32 v{MX}, v{MX}, v{SX + 6}, v{SX + 7}', f'v_max3_f32 v{NM}, v{NM}, v{SM}, v{SM + 1}',
               f'v_max3_f32 v{MX}, v{MX}, v{SM + 2}, v{SM + 3}', f'v_max_f32 v{MX}, v{MX}, v{NM}']
        it += xlane('v_max_f32', MX, NM)
        A(f'v_mul_f32 v{MX}, {S_C}, v{MX}')
        prs = [SX + 2 * i for i in range(4)] + [SM, SM + 2]
        for x in prs:
            A(f'v_pk_fma_f32 {q2(x)}, {q2(x)}, s[18:19], {q2(MX)} op_sel_hi:[1,0,0] neg_lo:[0,0,1] neg_hi:[0,0,1]')
        for x in prs:
            A(f'v_exp_f32 v{x}, v{x}')
            A(f'v_exp_f32 v{x + 1}, v{x + 1}')
        it += [cvt(PX + i, SX + 2 * i) for i in range(4)] + [cvt(PM + i, SM + 2 * i) for i in range(2)]
        for tau in range(4):
            A(f'{MF} {q4(O + 4 * tau)}, {q4(VX + 4 * tau)}, {q4(PX)}, 0')
        for tau in range(4):
            A(f'{MF16} {q4(O + 4 * tau)}, {q2(VM + 2 * tau)}, {q2(PM)}, {q4(O + 4 * tau)}')
        it += [pk('add', SM, SM, SM + 2), pk('add', SX, SX, SX + 2), pk('add', SX + 4, SX + 4, SX + 6),
               pk('add', SX, SX, SX + 4), f'v_pk_fma_f32 {q2(SX)}, {q2(SM)}, 0.5, {q2(SX)} op_sel_hi:[1,0,1]',
               f'v_add_f32 v{SUM}, v{SX}, v{SX + 1}']
        it += xlane('v_add_f32', SUM, NM)
        A(f'v_rcp_f32 v{SUM}, v{SUM}')
        for hf in range(2):
            for i in range(0, 8, 2):
                A(f'v_pk_mul_f32 {q2(O + 8 * hf + i)}, {q2(O + 8 * hf + i)}, {q2(SUM)} op_sel_hi:[1,0]')
            it += [cvt(OP + 4 * hf + i, O + 8 * hf + 2 * i) for i in range(4)]
            A(f'ds_write_b128 v{V_OW}, {q4(OP + 4 * hf)} offset:{2048 * hf} ;w:o')
        A('@bar o')
        for i in (0, 2, 4, 6, 1, 3, 5, 7):
            A(f'ds_read_b128 {q4(OB + 4 * i)}, v{V_OR} offset:{1024 * i} ;r:o')
        for qt in range(2):
            for kk in range(4):
                for T_ in range(8):
                    d = AO + 32 * qt + 4 * T_
                    A(f'{MF} {q4(d)}, {q4(OB + 8 * kk + 4 * qt)}, {a4(128 + 4 * (4 * T_ + kk))}, {q4(d) if kk else 0}')
            for r in range(4):
                p_ = PK + 4 * r
                b_ = AO + 32 * qt + r
                it += [f'v_cvt_pk_bf16_f32 v{p_ + i}, v{b_ + 8 * i}, v{b_ + 8 * i + 4}' for i in range(4)]
                A([f's_add_u32 s23, s35, {(4 * qt + r) * 32768}',
                   f'buffer_store_dwordx4 {q4(p_)}, v{V_PST}, {S_WS}, s23 offen{XS} ;free'])
        return it

    for mode in ('fast', 'slow'):
        XS = '' if mode == 'fast' else ' sc1'
        if mode == 'slow':
            P.label('at_b_slow')
        emit(b_items(XS), 11 if mode == 'fast' else -1)
        P(f'''
        {marks(opt, 1)}
        s_add_u32 s22, s38, 1
        v_mov_b32 v{V_T1}, s22
        s_waitcnt vmcnt(0)
        buffer_store_dword v{V_T1}, off, {S_WS}, s37{XS}
        ''')
        if mode == 'fast':
            P('s_branch at_r')
    P(f'''
    at_r:
    s_cmp_eq_u32 s53, 0
    s_cbranch_scc1 at_nofl
    {flush}
    at_nofl:
    s_add_u32 s38, s38, 1
    s_barrier
    {marks(opt, 2)}
    ''')
    n1 = opt.get('n1', 8)
    emit(kvl[:8] + qproj(0, n1) + [f'buffer_load_dword v{FLA}, v{V_FA}, {S_WS}, s36 offen sc1 ;t:{n1 * 64 - 260}'], 12)
    P(f'''
    {marks(opt, 3)}
    v_cmp_gt_u32 vcc, s38, v{FLA}
    s_cbranch_vccz at_apgo
    at_appoll:
    {GUARD}
    buffer_load_dword v{FLA}, v{V_FA}, {S_WS}, s36 offen sc1
    s_waitcnt vmcnt(0)
    v_cmp_gt_u32 vcc, s38, v{FLA}
    s_cbranch_vccnz at_appoll
    at_apgo:
    {marks(opt, 4)}
    ''')
    it = []
    for i in range(8):
        it.append([f's_add_u32 s23, s35, {4096 * i}',
                   f'buffer_load_dwordx4 {q4(RED + 4 * i)}, v{V_RLD}, {S_WS}, s23 offen sc1 ;lat:{350 + 30 * i}'])
    it += kvl[8:]
    it.append(f'buffer_load_dword v{FLM}, v{V_F4}, {S_WS}, s32 offen sc1')
    it += qproj(n1, 16) + qtail()
    for i in range(8):
        it.append(f'{MF} {q4(RD)}, {q4(SEL)}, {q4(RED + 4 * i)}, {q4(RD) if i else 0}')
    it.append(['s_mov_b32 exec_hi, 0', f'ds_write2_b32 v{V_RW}, v{RD}, v{RD + 1} offset0:0 offset1:4 ;w:q',
               f'ds_write2_b32 v{V_RW}, v{RD + 2}, v{RD + 3} offset0:32 offset1:36', 's_mov_b64 exec, -1'])
    it.append('s_xor_b32 s35, s35, 0x100000')
    it.append('@bar q')
    it.append(f'ds_read_b128 {q4(N_)}, v{V_RR} ;r:q')
    it.append(f'ds_read_b128 {q4(N_ + 4)}, v{V_RR} offset:16 ;r:q')
    it += unpack8(X, XR) + [pk('add', X + i, X + i, N_ + i) for i in range(0, 8, 2)]
    it += [cvt(PKX + i, X + 2 * i) for i in range(4)]
    it += sx_items()
    emit(it, 13)
    P(f'''
    {marks(opt, 5)}
    v_cmp_ge_u32 vcc, s49, v{FLM}
    s_cbranch_vccnz at_nokm
    {kml}
    s_mov_b32 s52, 1
    at_nokm:
    s_cmp_lg_u32 {S_W}, 0
    s_cbranch_scc1 at_rowdone
    s_cmp_eq_u32 {S_LAYER}, 0
    s_cbranch_scc1 at_row1
    s_waitcnt vmcnt(0)
    buffer_store_dwordx4 {q4(PKX)}, v{V_L16}, s[56:59], s39 offen
    s_branch at_next
    at_row1:
    ''')
    emit(unpack8(X, PKX) + unpack8(Y, YR) + row_block(X, Y, N_, PKX, PH, TT), 14)
    P(f'''
    s_add_u32 s22, s39, {X3}
    s_add_u32 s23, s39, {H2}
    s_waitcnt vmcnt(0)
    buffer_store_dwordx4 {q4(PH)}, v{V_L16}, {S_WS}, s23 offen sc1
    buffer_store_dwordx4 {q4(PKX)}, v{V_L16}, {S_WS}, s22 offen sc1
    s_mov_b32 s53, 1
    s_branch at_next
    at_rowdone:
    s_waitcnt vmcnt(0)
    at_next:
    {marks(opt, 6)}
    s_cmp_lt_u32 s49, {NS}
    s_cbranch_scc1 at_loop
    s_waitcnt vmcnt(0)
    s_cmp_eq_u32 s53, 0
    s_cbranch_scc1 at_done
    {flush}
    at_done:
    ''')
    stamps.dump(P, opt)
    P('s_waitcnt vmcnt(0)\ns_endpgm')
```

```python
from layout import *
import stamps
from asmtool import schedule
import loader

SENT = 0xFF81FF81

S_WS = 's[8:11]'
S_W = 's12'
S_H = 's13'
S_G = 's14'
S_PURE = 's15'
S_LAYER = 's16'
S_S = 's17'
S_C = 's18'
S_SENT = 's19'

NLDSQ = 34
L_MEM = 0
L_O = 8192
L_SC = 16384
L_WT = 24576
DPPF = 'row_mask:0xf bank_mask:0xf'
MF = 'v_mfma_f32_16x16x32_bf16'
MF16 = 'v_mfma_f32_16x16x16_bf16'
SMF = 'v_smfmac_f32_16x16x64_bf16'
RS = 2048
GUARD = 's_sub_u32 s3, s3, 1\ns_cbranch_scc1 main_timeout'


def q4(b):
    return 'v[%d:%d]' % (b, b + 3)


def q2(b):
    return 'v[%d:%d]' % (b, b + 1)


def q8(b):
    return 'v[%d:%d]' % (b, b + 7)


V_FL = 0
V_L16, V_WL, V_X0, V_X1, V_X2, V_X3, V_WH, V_PST, V_MST, V_T0, V_T1 = range(1, 12)
V_MW = V_X0
V_T2 = 116
V_SEL = 12
MEM = 16
V_IDX, V_PF, V_SELT = 48, 49, 50
AQ, AK, AV, KX, VX = 52, 60, 68, 76, 84
WB = 92
T1, T2, T3, T4, T5 = 116, 120, 124, 128, 132
WV0 = 136


def streams():
    st = []
    for p in range(2):
        st += [(X, t, p) for X in 'qkv' for t in range(2)]
    for X in 'qkv':
        for p in range(2, 8):
            st += [(X, 0, p), (X, 1, p)]
    ost = [('o', T_, 0) for T_ in range(8)]
    for half in range(2):
        for pp in range(1, 4):
            for T_ in range(4 * half, 4 * half + 4):
                ost.append(('o', T_, pp))
    LX, LP = LDS_CLASS
    groups = [(X, par, u) for X in 'qkv' for par in range(2) if (X, par) != (LX, LP) for u in range(2)]
    groups += [('o', pp, 0) for pp in range(4) if pp not in LDS_WO]
    groups += [(LX, LP, 0), (LX, LP, 1)] + [('o', pp, 0) for pp in LDS_WO]
    home = {}
    octs = [('a', 8 * i) for i in range(32)] + [('v', WV0 + 8 * i) for i in range(8)]
    quads = [('v', WV0 + 64 + 4 * i) for i in range(14)]
    n = 0
    for X, t, p in st:
        if (X, p & 1) == (LX, LP):
            home[(X, t, p)] = ('lds', n, [32768 * u + 1024 * (2 * (p >> 1) + t) for u in range(2)])
            n += 1
        else:
            home[(X, t, p)] = octs.pop(0)
    n = 0
    for _, T_, pp in ost:
        if pp in LDS_WO:
            home[('o', T_, pp)] = ('lds', n, [(1 << 16) + 32768 * LDS_WO.index(pp) + 1024 * T_])
            n += 1
        elif (T_, pp) in LDS_EXTRA:
            home[('o', T_, pp)] = ('lds', n, [(2 << 16) + L_WT + 1024 * LDS_EXTRA.index((T_, pp))])
            n += 1
        else:
            home[('o', T_, pp)] = quads.pop(0)
    assert not octs and not quads
    return st, ost, home, groups


LDS_CLASS = ('q', 1)
LDS_WO = [0, 2]
LDS_EXTRA = [(1, 3), (5, 3)]


def wrd(dst, off):
    return f'ds_read_b128 {q4(dst)}, v{(V_WL, V_WH, V_X0)[off >> 16]} offset:{off & 0xffff}'


def preload():
    st, ost, home, units = streams()
    o = []
    for e in st:
        if home[e][0] == 'lds' and home[e][1] < 3:
            for u in range(2):
                o.append(wrd(WB + 8 * home[e][1] + 4 * u, home[e][2][u]))
    return o


def gen_chain(P, opt):
    stream, ostream, home, units = streams()
    P.label('chain_role')
    P('v_and_b32 v0, 63, v0')
    LR = AQ
    loader.setup(P, LR, True)
    P0 = P
    setup_code = []
    P = setup_code.append
    P(f'''
    v_lshlrev_b32 v{V_L16}, 4, v0
    v_add_u32 v{V_WL}, s42, v{V_L16}
    v_add_u32 v{V_WH}, 65536, v{V_WL}
    s_lshl_b32 s21, {S_W}, 11
    v_add_u32 v{V_MW}, s21, v{V_L16}
    v_xor_b32 v{V_X1}, 2048, v{V_X0}
    v_xor_b32 v{V_X2}, 4096, v{V_X0}
    v_xor_b32 v{V_X3}, 6144, v{V_X0}
    v_bfe_u32 v{V_T1}, v0, 3, 1
    v_mul_u32_u24 v{V_IDX}, 0xaaaa, v{V_T1}
    v_add_u32 v{V_IDX}, 0x4444, v{V_IDX}
    v_and_b32 v{V_PF}, 31, v0
    v_lshlrev_b32 v{V_PF}, 7, v{V_PF}
    v_lshrrev_b32 v{V_T0}, 2, v0
    s_lshl_b32 s22, {S_W}, 5
    v_add_u32 v{V_T0}, s22, v{V_T0}
    v_lshlrev_b32 v{V_T0}, 11, v{V_T0}
    v_and_b32 v{V_T1}, 3, v0
    v_lshlrev_b32 v{V_T1}, 4, v{V_T1}
    s_lshl_b32 s22, {S_H}, 6
    v_add3_u32 v{V_PST}, v{V_T0}, v{V_T1}, s22
    v_lshrrev_b32 v{V_T0}, 4, v0
    v_lshlrev_b32 v{V_T0}, 3, v{V_T0}
    s_lshl_b32 s22, {S_H}, 2
    s_add_u32 s24, s22, {S_W}
    s_lshl_b32 s22, s24, 6
    v_add3_u32 v{V_MST}, v{V_T0}, v{V_T1}, s22
    v_and_b32 v{V_T0}, 15, v0
    ''')

    def onehot(dst, n, src):
        for i in range(n):
            P(f'''
            v_mov_b32 v{dst + i}, 0
            v_mov_b32 v{V_T1}, 0x3f80
            v_cmp_eq_u32 vcc, {2 * i}, v{src}
            v_cndmask_b32 v{dst + i}, v{dst + i}, v{V_T1}, vcc
            v_mov_b32 v{V_T1}, 0x3f800000
            v_cmp_eq_u32 vcc, {2 * i + 1}, v{src}
            v_cndmask_b32 v{dst + i}, v{dst + i}, v{V_T1}, vcc
            ''')
    onehot(V_SEL, 4, V_T0)
    P(f'''
    v_and_b32 v{V_T0}, 7, v0
    v_bfe_u32 v{V_T1}, v0, 4, 1
    v_lshlrev_b32 v{V_T1}, 2, v{V_T1}
    v_sub_u32 v{V_T0}, v{V_T0}, v{V_T1}
    ''')
    onehot(V_SELT, 2, V_T0)
    P(f'''
    s_lshl_b32 s50, {S_LAYER}, 20
    s_add_u32 s50, s50, {CPART}
    s_add_u32 s53, s50, {16 * RS}
    s_lshl_b32 s22, s24, 11
    s_add_u32 s51, s50, s22
    s_xor_b32 s49, s51, 0x80000
    s_lshl_b32 s26, {S_LAYER}, 14
    s_add_u32 s26, s26, {CMEM}
    s_add_u32 s48, s26, 8192
    s_add_u32 s52, s48, s21
    s_lshl_b32 s22, {S_LAYER}, 25
    s_lshl_b32 s23, s24, 12
    s_add_u32 s28, s22, s23
    s_add_u32 s28, s28, {KVIMG}
    s_lshl_b32 s22, {S_LAYER}, 24
    s_lshl_b32 s23, s24, 11
    s_add_u32 s30, s22, s23
    s_add_u32 s30, s30, {KMVM}
    s_lshl_b32 s22, {S_LAYER}, 14
    s_lshl_b32 s23, s24, 7
    s_add_u32 s22, s22, s23
    s_add_u32 s31, s22, {F_KV}
    s_add_u32 s32, s22, {F_KM}
    s_mov_b32 s34, 0x00ff00ff
    s_mov_b32 s35, 0x00ff00ff
    s_mov_b32 s36, 0xff00ff00
    s_mov_b32 s37, 0xff00ff00
    ''')
    init = f'''
    v_mov_b32 v{T4}, {S_SENT}
    v_mov_b32 v{T4 + 1}, {S_SENT}
    v_mov_b32 v{T4 + 2}, {S_SENT}
    v_mov_b32 v{T4 + 3}, {S_SENT}
    v_mov_b32 v{V_T0}, 0
    buffer_store_dword v{V_T0}, off, {S_WS}, s32 sc1
    buffer_store_dwordx4 {q4(T4)}, v{V_L16}, {S_WS}, s51 offen sc1
    buffer_store_dwordx4 {q4(T4)}, v{V_L16}, {S_WS}, s51 offen offset:1024 sc1
    s_mov_b64 exec, 0x000f000f
    buffer_store_dwordx2 {q2(T4)}, v{V_MST}, {S_WS}, s48 offen sc1
    s_mov_b64 exec, -1
    '''
    P = P0

    def confirm(newer):
        P(stamps.tl(opt, 0, 1))
        opt['ready'](P, newer, '\n'.join(setup_code) + init)
        P(stamps.tl(opt, 1, 1))

    def count(newer):
        opt['count_ready'](P, newer, V_T0)
        P(stamps.tl(opt, 2, 1))
        if opt.get('warmon'):
            P(f's_cmp_eq_u32 {S_LAYER}, 0\ns_cbranch_scc1 chain_nowarm')
            opt['warm'](P, 0)
            P('chain_nowarm:')
        P(stamps.tl(opt, 3, 1))
    gr = []
    for X, a_, u in units:
        if X == 'o':
            code = f's_xor_b32 s43, s39, {a_ * 32768}\ns_add_u32 s43, s43, s41'
            ds = [[home[('o', 2 * Pp + t, a_)] for t in range(2)] for Pp in range(4)]
        else:
            code = f's_add_u32 s43, s40, {a_ * 64 * 8192 + u * 16 * 8192}'
            ds = [[home[(X, t, 2 * pp + a_)] for t in range(2)] for pp in range(4)]
        ds = [[('lds', d[2][u]) if d[0] == 'lds' else (d[0], d[1] + 4 * u) for d in row] for row in ds]
        gr.append((X, code, ds))
    loader.run(P, gr, LR, True, KX, (V_WL, V_WH, V_X0), (confirm, count))
    P(stamps.tl(opt, 0))
    P(f'''
    v_and_b32 v{V_T0}, 7, v0
    v_lshlrev_b32 v{V_T0}, 10, v{V_T0}
    v_bfe_u32 v{V_T1}, v0, 3, 1
    v_lshl_add_u32 v{V_T0}, v{V_T1}, 6, v{V_T0}
    v_lshrrev_b32 v{V_T1}, 4, v0
    v_lshl_add_u32 v{V_T0}, v{V_T1}, 4, v{V_T0}
    s_lshl_b32 s22, {S_W}, 8
    buffer_load_dwordx4 {q4(MEM)}, v{V_T0}, s[44:47], s22 offen
    buffer_load_dwordx4 {q4(MEM + 4)}, v{V_T0}, s[44:47], s22 offen offset:128
    ''')
    opt['wait_ready'](P, V_T0)
    lw = P.uid('ch_kv0')
    P(f'''
    {lw}:
    {GUARD}
    buffer_load_dword v{V_FL}, off, {S_WS}, s31 sc1
    s_waitcnt vmcnt(0)
    v_cmp_gt_u32 vcc, 1, v{V_FL}
    s_cbranch_vccnz {lw}
    ''')
    for i in range(8):
        P(f'v_mov_b32 v{T2 + i}, 0')
    for i in range(24):
        P(f'v_mov_b32 v{AQ + i}, 0')
    P('s_waitcnt lgkmcnt(0)')
    for i in preload():
        P(i)
    P(f'''
    s_mov_b32 {S_S}, 0
    s_mov_b32 s29, s28
    s_mov_b32 s27, 0
    v_mov_b32 v{V_T0}, 0
    v_mov_b32 v{T4}, {S_SENT}
    v_mov_b32 v{T4 + 1}, {S_SENT}
    v_mov_b32 v{T4 + 2}, {S_SENT}
    v_mov_b32 v{T4 + 3}, {S_SENT}
    ds_write_b128 v{V_MW}, {q4(MEM)}
    ds_write_b128 v{V_MW}, {q4(MEM + 4)} offset:1024
    ''')
    stamps.init(P, opt)
    P(f's_cmp_eq_u32 {S_PURE}, 0\ns_cbranch_scc1 chain_slow_step')
    chain_loop(P, opt, 'fast')
    chain_loop(P, opt, 'slow')
    P.label('chain_last')
    code, t = schedule(step_items(opt, ' sc1', True))
    for i in code:
        P(i)
    P(f'''
    v_mov_b32 v{V_T1}, {NS}
    s_waitcnt vmcnt(0)
    buffer_store_dword v{V_T1}, off, {S_WS}, s32 sc1
    ''')
    stamps.dump(P, opt)
    P('s_waitcnt vmcnt(0)\ns_endpgm')


def dppadd(d, a, b, ror=8):
    return f'v_add_f32_dpp v{d}, v{a}, v{b} row_ror:{ror} {DPPF}'


def cvt(d, a):
    return f'v_cvt_pk_bf16_f32 v{d}, v{a}, v{a + 1}'


def xl(op, n, x, t):
    return [f'v_mov_b32 v{t}, v{x}', f'v_permlane{n}_swap_b32 v{x}, v{t}', f'{op} v{x}, v{x}, v{t}']


def pk(op, d, a, b):
    return f'v_pk_{op}_f32 {q2(d)}, {q2(a)}, {q2(b)}'


def step_items(opt, XS, last):
    stream, ostream, home, units = streams()
    QOP, KOP, VOP = T1, T2, T3
    XE, ME = AQ, AK
    PX, PM = T4, AK + 2
    MX, NM, SUM, TN = T5, T5 + 1, T5 + 2, T5 + 3
    OX, OOP = KX, T1
    OIN = [AV, AV + 4, T4]
    AO = MEM
    it = []
    A = it.append
    A('s_nop 0 ;w:mem ;t:%d' % opt.get('tb', 70))
    A('@bar mem')
    for pr in range(1, 4):
        A(f'ds_read_b128 {q4(MEM + 8 * pr)}, v{V_X0 + pr} ;r:mem')
        A(f'ds_read_b128 {q4(MEM + 8 * pr + 4)}, v{V_X0 + pr} offset:1024 ;r:mem')
    if not last:
        for i in range(4):
            A(f'buffer_load_dwordx4 {q4(KX + 4 * i)}, v{V_L16}, {S_WS}, s28 offen offset:{1024 * i} sc1 ;lat:400')
    A(f'buffer_store_dword v{V_T0}, off, {S_WS}, s32 sc1')
    A(f'buffer_store_dwordx4 {q4(KOP)}, v{V_L16}, {S_WS}, s30 offen sc1')
    A(f'buffer_store_dwordx4 {q4(VOP)}, v{V_L16}, {S_WS}, s30 offen offset:1024 sc1')
    if not last:
        A(f'buffer_load_dword v{V_FL}, v{V_PF}, {S_WS}, s29 offen sc1')
        A(f'buffer_store_dwordx4 {q4(T4)}, v{V_L16}, {S_WS}, s49 offen{XS} ;dl:400')
        A(f'buffer_store_dwordx4 {q4(T4)}, v{V_L16}, {S_WS}, s49 offen offset:1024{XS} ;dl:400')
        A(f'buffer_load_dword v{V_FL}, off, {S_WS}, s31 sc1')
    else:
        A('s_add_u32 s30, s30, 0x40000')

    for e in stream:
        X, t, p = e
        kind, where = home[e][:2]
        if kind == 'lds':
            slot = WB + 8 * (where % 3)
            if where >= 3:
                A(wrd(slot, home[e][2][0]))
                A(wrd(slot + 4, home[e][2][1]))
            w = q8(slot)
        else:
            w = f'{kind}[{where}:{where + 7}]'
        if last and X == 'q':
            continue
        a = {'q': AQ, 'k': AK, 'v': AV}[X] + 4 * t
        A(f'{SMF} {q4(a)}, {q4(MEM + 4 * p)}, {w}, v{V_IDX}')

    def transpose(acc, op):
        for t in range(2):
            A(cvt(op + 2 * t, acc + 4 * t))
            A(cvt(op + 2 * t + 1, acc + 4 * t + 2))
        for t in range(2):
            A(f'{MF16} {q4(acc + 4 * t)}, {q2(op + 2 * t)}, {q2(V_SELT)}, 0')
        for i in range(4):
            A(cvt(op + i, acc + 2 * i))

    kmst = f'buffer_store_dwordx4 {q4(KOP)}, v{V_L16}, {S_WS}, s30 offen sc1'
    vmst = f'buffer_store_dwordx4 {q4(VOP)}, v{V_L16}, {S_WS}, s30 offen offset:1024 sc1'
    if last:
        transpose(AK, KOP)
        A(kmst)
        for i in range(4):
            A(cvt(VOP + i, AV + 2 * i))
        A(vmst)
        return it
    hi = 'quad_perm:[0,1,2,3] row_mask:0xf bank_mask:0xc'
    transpose(AQ, QOP)
    for t in range(2):
        A(f'{MF} {q4(AQ + 4 * t)}, {q4(KX + 4 * t)}, {q4(QOP)}, 0')
    for r in range(4):
        A(f'v_mov_b32_dpp v{XE + r}, v{AQ + 4 + r} {hi}')
    A(f'ds_write_b128 v{V_X0}, {q4(XE)} offset:{L_SC}')
    transpose(AK, KOP)
    A(f'{MF} {q4(AK)}, {q4(KOP)}, {q4(QOP)}, 0')
    for r in range(2):
        A(f'v_mov_b32_dpp v{ME + r}, v{AK + 2 + r} {hi}')
    A(f'ds_write_b64 v{V_X0}, {q2(ME)} offset:{L_SC + 1024} ;w:sc')
    A('@bar sc')
    RX = [AQ + 4, KX, KX + 4]
    for u in range(3):
        A(f'ds_read_b128 {q4(RX[u])}, v{V_X0 + 1 + u} offset:{L_SC} ;r:sc')
        A(f'ds_read_b64 {q2(ME + 2 + 2 * u)}, v{V_X0 + 1 + u} offset:{L_SC + 1024} ;r:sc')
    for u in range(3):
        for i in (0, 2):
            A(pk('add', XE + i, XE + i, RX[u] + i))
        A(pk('add', ME, ME, ME + 2 + 2 * u))
    A(f'v_max3_f32 v{MX}, v{XE}, v{XE + 1}, v{XE + 2}')
    A(f'v_max3_f32 v{NM}, v{XE + 3}, v{ME}, v{ME + 1}')
    A(f'v_max_f32 v{MX}, v{MX}, v{NM}')
    A(f'v_max_f32_dpp v{MX}, v{MX}, v{MX} row_ror:8 {DPPF}')
    for x in xl('v_max_f32', 16, MX, NM) + xl('v_max_f32', 32, MX, NM):
        A(x)
    A(f'v_mul_f32 v{MX}, {S_C}, v{MX}')
    for x in (XE, XE + 2, ME):
        A(f'v_pk_fma_f32 {q2(x)}, {q2(x)}, s[18:19], {q2(MX)} op_sel_hi:[1,0,0] neg_lo:[0,0,1] neg_hi:[0,0,1]')
    for x in (XE, XE + 1, XE + 2, XE + 3, ME, ME + 1):
        A(f'v_exp_f32 v{x}, v{x}')
    A(cvt(PX, XE))
    A(cvt(PX + 1, XE + 2))
    A(cvt(PM, ME))
    for d in (PX + 2, PX + 3):
        A(f'v_mov_b32_dpp v{d}, v{d - 2} row_ror:8 {DPPF}')
    A(f'v_mov_b32_dpp v{PM + 1}, v{PM} row_ror:8 {DPPF}')
    for i in range(4):
        A(cvt(VOP + i, AV + 2 * i))
    for t in range(2):
        A(f'{MF} {q4(OX + 4 * t)}, {q4(VX + 4 * t)}, {q4(PX)}, 0')
    for t in range(2):
        A(f'{MF16} {q4(OX + 4 * t)}, {q2(VOP + 2 * t)}, {q2(PM)}, {q4(OX + 4 * t)}')
    A(pk('add', XE, XE, XE + 2))
    if opt.get('nopk'):
        for i in range(2):
            A(f'v_fma_f32 v{XE + i}, v{ME + i}, 0.5, v{XE + i}')
    else:
        A(f'v_pk_fma_f32 {q2(XE)}, {q2(ME)}, 0.5, {q2(XE)} op_sel_hi:[1,0,1]')
    A(f'v_add_f32 v{SUM}, v{XE}, v{XE + 1}')
    A(dppadd(SUM, SUM, SUM))
    for x in xl('v_add_f32', 16, SUM, TN) + xl('v_add_f32', 32, SUM, TN):
        A(x)
    A(f'v_rcp_f32 v{SUM}, v{SUM}')
    for i in range(0, 8, 2):
        A(f'v_pk_mul_f32 {q2(OX + i)}, {q2(OX + i)}, {q2(SUM)} op_sel_hi:[1,0]')
    for i in range(4):
        A(cvt(OOP + i, OX + 2 * i))
    A(f'ds_write_b128 v{V_X0}, {q4(OOP)} offset:{L_O} ;w:o')
    A('@bar o')
    for pp in range(1, 4):
        A(f'ds_read_b128 {q4(OIN[pp - 1])}, v{V_X0 + pp} offset:{L_O} ;r:o')
    PKA, PKB = [AQ, AK], [AQ + 4, AK + 4]

    def pack(u):
        for i in range(4):
            A(cvt(PKB[u] + i, AO + 16 * u + 8 + 2 * i))
        for i in range(4):
            A(cvt(PKA[u] + i, AO + 16 * u + 2 * i))
        for i in range(4):
            A(f'v_mov_b32_dpp v{PKA[u] + i}, v{PKB[u] + i} row_ror:8 row_mask:0xf bank_mask:0xc')
        A(f'buffer_store_dwordx4 {q4(PKA[u])}, v{V_PST}, {S_WS}, {"s53" if u else "s50"} offen{XS} ;free' + ('' if u else ' ;dl:150'))
    for k, e in enumerate(ostream):
        _, T_, pp = e
        kind, where = home[e][:2]
        if kind == 'lds':
            slot = WB + 4 * (where % 6)
            A(wrd(slot, home[e][2][0]))
            w = q4(slot)
        else:
            w = q4(where)
        b = q4(OOP) if pp == 0 else q4(OIN[pp - 1])
        c = '0' if pp == 0 else q4(AO + 4 * T_)
        A(f'{MF} {q4(AO + 4 * T_)}, {w}, {b}, {c}' + (' ;p:150' if (pp and T_ < 4) else ''))
        if k == 19:
            pack(0)
    pack(1)
    return it


def chain_loop(P, opt, mode):
    XS = '' if mode == 'fast' else ' sc1'
    tag = 'chain_' + mode
    mk = lambda i: stamps.marks(opt, i)
    RED = MEM + 8
    RDD = T5
    P.label(tag + '_step')
    items = step_items(opt, XS, False)
    code, t = schedule(items, verbose=opt.get('verbose') == 1 and mode == 'fast', anneal=opt.get('an', 400000), seed=opt.get('seed', 0))
    k = code.index('s_barrier')
    nds = sum(c.startswith('ds_') for c in code[:k])
    code.insert(k, f's_waitcnt lgkmcnt({nds})')
    code.remove('s_nop 0')
    k = code.index('s_barrier', k + 2)
    code.insert(k, 's_waitcnt vmcnt(%d)' % sum(c.startswith('buffer_') for c in code[:k]))
    if opt.get('stamp') == 5:
        c2 = ['s_memtime s[64:65] ;nodep']
        n = 0
        for j, c in enumerate(code):
            if 'lo' in opt:
                c2.append(c)
                if j >= opt['lo'] and (j - opt['lo']) % opt['st'] == 0 and n < 8:
                    c2.append(f's_memtime s[{82 + 2 * n}:{83 + 2 * n}] ;nodep')
                    if mode == 'fast':
                        print('stamp', n, 'after', j, c)
                    n += 1
            elif c == 's_barrier':
                jj = len(c2)
                while c2[jj - 1].startswith('s_waitcnt'):
                    jj -= 1
                c2.insert(jj, f's_memtime s[{82 + 2 * n}:{83 + 2 * n}] ;nodep')
                c2 += [c, f's_memtime s[{84 + 2 * n}:{85 + 2 * n}] ;nodep']
                n += 2
            else:
                c2.append(c)
        c2 += ['s_memtime s[66:67] ;nodep', 's_waitcnt lgkmcnt(0)', 's_sub_u32 s69, s64, s68', 's_add_u32 s79, s79, s69', 's_mov_b32 s68, s66']
        prev = 's64'
        for j in range(9):
            cur = f's{82 + 2 * j}' if j < 8 else 's66'
            c2 += [f's_sub_u32 s69, {cur}, {prev}', f's_add_u32 s{70 + j}, s{70 + j}, s69']
            prev = cur
        code = c2
    for i in code:
        P(i)
    rl = f'''buffer_load_dwordx4 {q4(RED)}, v{V_L16}, {S_WS}, s51 offen sc1 ;nodep
    buffer_load_dwordx4 {q4(RED + 4)}, v{V_L16}, {S_WS}, s51 offen offset:1024 sc1 ;nodep'''
    gl = f'''buffer_load_dwordx4 {q4(MEM)}, v{V_L16}, {S_WS}, s52 offen sc1 ;nodep
    buffer_load_dwordx4 {q4(MEM + 4)}, v{V_L16}, {S_WS}, s52 offen offset:1024 sc1 ;nodep'''

    def chk(b, dst):
        return f'''v_max3_u32 v{V_T2}, v{b}, v{b + 1}, v{b + 2}
        v_max3_u32 v{V_T1}, v{b + 3}, v{b + 4}, v{b + 5}
        v_max3_u32 v{V_T2}, v{V_T2}, v{b + 6}, v{b + 7}
        v_max_u32 v{V_T2}, v{V_T2}, v{V_T1}
        v_cmp_eq_u32 {dst}, {S_SENT}, v{V_T2}'''
    red = f'''{MF} {q4(RDD)}, {q4(V_SEL)}, {q4(RED)}, 0
    {MF} {q4(RDD)}, {q4(V_SEL)}, {q4(RED + 4)}, {q4(RDD)}'''
    fin = '\n'.join([dppadd(RDD + r, RDD + r, RDD + r, ror) for ror in (4, 8) for r in range(4)] +
                    [cvt(RDD, RDD), cvt(RDD + 1, RDD + 2)])
    P(mk(0))
    z = [f'v_mov_b32 v{AQ + i}, 0' for i in range(24)]
    wbr = preload()
    def pause(c):
        return f's_sleep {c}' if c else ''
    P(f'''
    s_xor_b32 s47, s48, 8192
    v_mov_b32 v{V_T0}, {S_S}
    s_add_u32 {S_S}, {S_S}, 1
    s_add_u32 s33, {S_S}, 1
    s_add_u32 s28, s28, 0x80000
    s_add_u32 s29, s28, 0x80000
    s_add_u32 s30, s30, s27
    s_mov_b32 s27, 0x40000
    v_mov_b32 v{T4}, {S_SENT}
    v_mov_b32 v{T4 + 1}, {S_SENT}
    v_mov_b32 v{T4 + 2}, {S_SENT}
    v_mov_b32 v{T4 + 3}, {S_SENT}
    {chr(10).join(wbr)}
    {pause(opt.get('a1', 2))}
    {rl}
    {pause(opt.get('a2', 2))}
    {tag}_rpoll:
    {rl}
    s_waitcnt vmcnt(2)
    {red}
    {chk(RED, 's[54:55]')}
    v_cmp_u_f32 vcc, v{RDD}, v{RDD}
    {fin}
    s_cbranch_vccnz {tag}_rretry
    {tag}_rok:
    s_mov_b64 exec, 0x000f000f
    buffer_store_dwordx2 {q2(RDD)}, v{V_MST}, {S_WS}, s48 offen{XS}
    buffer_store_dwordx2 {q2(T4)}, v{V_MST}, {S_WS}, s47 offen{XS}
    s_mov_b64 exec, -1
    {mk(1)}
    v_cmp_ge_u32 vcc, s33, v{V_FL}
    s_xor_b32 s50, s50, 0x80000
    s_xor_b32 s53, s53, 0x80000
    s_xor_b32 s51, s51, 0x80000
    s_xor_b32 s49, s49, 0x80000
    s_xor_b32 s48, s48, 8192
    {chr(10).join(z)}
    s_cbranch_vccnz {tag}_special
    {pause(opt.get('b1', 2))}
    {gl}
    {pause(opt.get('b2', 2))}
    {tag}_gpoll:
    {gl}
    s_waitcnt vmcnt(2)
    {chk(MEM, 'vcc')}
    ds_write_b128 v{V_MW}, {q4(MEM)}
    ds_write_b128 v{V_MW}, {q4(MEM + 4)} offset:1024
    s_cbranch_vccnz {tag}_gretry
    {mk(2)}
    s_xor_b32 s52, s52, 8192
    s_branch {tag}_step
    {tag}_gretry:
    {stamps.count(opt, 7)}
    {GUARD}
    s_branch {tag}_gpoll
    {tag}_rretry:
    {stamps.count(opt, 6)}
    {GUARD}
    s_cmp_lg_u64 s[54:55], 0
    s_cbranch_scc1 {tag}_rpoll
    {red}
    {fin}
    s_branch {tag}_rok
    ; next K/V tile not yet announced, or the last step follows
    {tag}_special:
    {gl}
    buffer_load_dword v{V_FL}, off, {S_WS}, s31 sc1
    s_waitcnt vmcnt(0)
    {GUARD}
    {chk(MEM, 'vcc')}
    s_cbranch_vccnz {tag}_special
    s_cmp_eq_u32 {S_S}, {NS - 1}
    s_cbranch_scc1 {tag}_sp2
    v_cmp_ge_u32 vcc, s33, v{V_FL}
    s_cbranch_vccnz {tag}_special
    {tag}_sp2:
    ds_write_b128 v{V_MW}, {q4(MEM)}
    ds_write_b128 v{V_MW}, {q4(MEM + 4)} offset:1024
    {mk(3)}
    s_xor_b32 s52, s52, 8192
    s_cmp_eq_u32 {S_S}, {NS - 1}
    s_cbranch_scc0 {tag}_step
    s_waitcnt lgkmcnt(0)
    s_branch chain_last
    ''')
```

```python
from layout import *

S_WQ, S_WK, S_WV, S_WO = 's[68:71]', 's[72:75]', 's[76:79]', 's[80:83]'
SRD = {'q': S_WQ, 'k': S_WK, 'v': S_WV, 'o': S_WO}
RING = 32768


def setup(P, r, sparse):
    va, vo, rp, ro, t0 = r, r + 1, r + 2, r + 6, r + 10
    P(f'''
    v_lshrrev_b32 v{t0}, 4, v0
    v_lshlrev_b32 v{vo}, 2, v{t0}
    v_xor_b32 v{vo}, v{vo}, v0
    v_and_b32 v{vo}, 15, v{vo}
    v_lshlrev_b32 v{vo}, 4, v{vo}
    ''')
    if sparse:
        P(f'''
        v_bfe_u32 v{va}, v0, 4, 1
        v_lshl_add_u32 v{va}, v{va}, 13, v{vo}
        v_lshrrev_b32 v{rp}, 5, v0
        v_lshl_add_u32 v{va}, v{rp}, 18, v{va}
        ''')
    else:
        P(f'v_lshl_add_u32 v{va}, v{t0}, 13, v{vo}')
    P(f'''
    v_lshl_add_u32 v{vo}, v{t0}, 10, v{vo}
    s_lshl_b32 s40, s13, 8
    s_lshl_b32 s42, s12, {20 if sparse else 18}
    s_add_u32 s40, s40, s42
    s_lshl_b32 s41, s13, 17
    s_lshl_b32 s42, s12, 8
    s_add_u32 s41, s41, s42
    s_lshl_b32 s42, s12, 13
    s_add_u32 s42, s42, {RING}
    s_lshl_b32 s39, s12, 15
    ''')


def setup_reads(P, r, rotate):
    va, vo, rp, ro, t0 = r, r + 1, r + 2, r + 6, r + 10
    P(f'''
    v_lshrrev_b32 v{t0}, 4, v0
    v_lshlrev_b32 v{ro}, 11, v{t0}
    v_bfe_u32 v{t0}, v0, 2, 2
    v_mul_u32_u24 v{t0}, 320, v{t0}
    v_add_u32 v{ro}, v{ro}, v{t0}
    v_and_b32 v{t0}, 3, v0
    v_lshl_add_u32 v{ro}, v{t0}, 4, v{ro}
    s_lshl_b32 s43, s12, 6
    v_xor_b32 v{rp}, s43, v{ro}
    v_add_u32 v{rp}, {'s42' if rotate else RING}, v{rp}
    v_add_u32 v{ro}, s42, v{ro}
    ''')
    for i in range(1, 4):
        P(f'v_xor_b32 v{rp + i}, {8192 * i}, v{rp}\nv_xor_b32 v{ro + i}, {64 * i}, v{ro}')


def run(P, groups, r, sparse, tmp, vl, hooks=None, at=None):
    va, vo, rp, ro = r, r + 1, r + 2, r + 6

    def issue(i):
        X, code, _ = groups[i]
        P(code)
        for j in range(8):
            P(f's_add_u32 m0, s42, {32768 * (i % 4) + 1024 * j}')
            P(f'buffer_load_dwordx4 v{vo if X == "o" else va}, {SRD[X]}, s43 offen lds')
            if j < 7:
                step = 4096 if X == 'o' else (2 * 8192 if sparse else 4 * 8192)
                P(f's_add_u32 s43, s43, {step}')
    n = len(groups)
    issue(0)
    setup_reads(P, r, sparse)
    if hooks:
        hooks[0](8)
    issue(1)
    if hooks:
        hooks[1](8)
    issue(2)
    for i in range(n):
        X, _, dests = groups[i]
        P(f's_waitcnt vmcnt({8 * (min(n, i + 3) - i - 1)})\ns_barrier')
        if at and i in at:
            P(at[i])
        if i + 3 < n:
            issue(i + 3)
        if i and i % 2 == 0:
            for k in range(8):
                P(f'v_add_u32 v{rp + k}, {65536 if i % 4 else -65536 & 0xffffffff}, v{rp + k}')
        back = []
        for pp in range(4):
            for t in range(2):
                d = dests[pp][t]
                if d[0] == 'lds':
                    back.append((tmp + 4 * len(back), d[1]))
                    d = ('v', back[-1][0])
                for hf in range(2):
                    q = d[1] + 2 * hf
                    P(f'ds_read_b64_tr_b16 {d[0]}[{q}:{q + 1}], v{(ro if X == "o" else rp) + pp} offset:{32768 * (i % 2) + 1024 * hf + 8 * t}')
        P('s_waitcnt lgkmcnt(0)')
        if back:
            P('s_barrier')
            for b, off in back:
                P(f'ds_write_b128 v{vl[off >> 16]}, v[{b}:{b + 3}] offset:{off & 0xffff}')
```

```python
from layout import *
import stamps
from chain import q4, q2, GUARD, S_WS, S_W, S_H, S_G
from roles import cvt, unpack8, row_block

WAVE_LDS = 40960


def srd(P, base, karg, nbytes):
    P(f's_load_dwordx2 s[{base}:{base + 1}], s[0:1], {karg}')
    P(f's_mov_b32 s{base + 2}, {nbytes}')
    P(f's_mov_b32 s{base + 3}, 0x00020000')


def announce(P, stage):
    l = P.uid('ann')
    P(f'''
    s_waitcnt vmcnt(0)
    s_barrier
    s_cmp_lg_u32 {S_W}, 0
    s_cbranch_scc1 {l}
    v_mov_b32 v1, {stage}
    buffer_store_dword v1, off, {S_WS}, s55 sc1
    {l}:
    ''')


def wait_all(P, stage, va, v1, v2, upper=False):
    l, d = P.uid('wa'), P.uid('wa')
    P(f'''
    s_mov_b32 s22, {F_P + (8192 if upper else 0)}
    s_mov_b32 s23, {F_P + 8192}
    {l}:
    buffer_load_dword v{v1}, v{va}, {S_WS}, s22 offen sc1
    buffer_load_dword v{v2}, v{va}, {S_WS}, s23 offen sc1
    s_waitcnt vmcnt(0)
    v_min_u32 v{v1}, v{v1}, v{v2}
    v_cmp_gt_u32 vcc, {stage}, v{v1}
    s_cbranch_vccz {d}
    {GUARD}
    s_sleep 2
    s_branch {l}
    {d}:
    ''')


def gen_prework(P, opt, init):
    MF32 = 'v_mfma_f32_32x32x16_bf16'
    srd(P, 20, 8, S * D * 2)
    srd(P, 24, 16, S * D * 2)
    srd(P, 28, 24, D * 4 * 2)
    srd(P, 32, 32, D * S * 2)
    srd(P, 36, 40, D * 2)
    srd(P, 44, 0, S * D * 2)
    KR, VR, SH = 64, 88, 104
    P(f'''
    v_and_b32 v2, 63, v0
    s_and_b32 s48, s54, 7
    s_lshl_b32 s48, s48, 6
    s_and_b32 s49, {S_W}, 1
    s_lshl_b32 s49, s49, 5
    s_add_u32 s48, s48, s49
    s_lshr_b32 s49, s54, 3
    s_lshl_b32 s49, s49, 7
    s_lshr_b32 s50, {S_W}, 1
    s_lshl_b32 s50, s50, 6
    s_add_u32 s49, s49, s50
    v_and_b32 v3, 15, v2
    v_lshl_add_u32 v3, v3, 1, s48
    v_lshrrev_b32 v4, 4, v2
    v_lshl_add_u32 v4, v4, 4, s49
    v_lshlrev_b32 v5, 10, v4
    v_lshl_add_u32 v5, v3, 1, v5
    v_subrev_u32 v6, 3072, v5
    v_lshlrev_b32 v7, 3, v3
    s_waitcnt lgkmcnt(0)
    buffer_load_dwordx4 {q4(SH)}, v7, s[28:31], 0 offen
    ''')
    for i in range(3):
        P(f'v_add_u32 v8, {1024 * i}, v6')
        P(f'buffer_load_dword v{KR + i}, v8, s[20:23], 0 offen')
    for j in range(16):
        if j % 4 == 0:
            P(f's_movk_i32 s51, {1024 * j}')
        P(f'buffer_load_dword v{KR + 3 + j}, v5, s[20:23], s51 offen offset:{1024 * (j & 3)}')
        P(f'buffer_load_dword v{VR + j}, v5, s[24:27], s51 offen offset:{1024 * (j & 3)}')
    FK = 112
    P(f'''
    s_and_b32 s52, s54, 7
    s_lshl_b32 s52, s52, 6
    s_lshr_b32 s53, s54, 3
    s_lshl_b32 s53, s53, 2
    s_add_u32 s52, s52, s53
    s_add_u32 s52, s52, {S_W}
    v_lshlrev_b32 v10, 4, v2
    v_subrev_u32 v11, 16, v10
    v_cmp_eq_u32 vcc, 0, v2
    v_mov_b32 v12, 0x7ffffff0
    v_cndmask_b32 v9, v11, v12, vcc
    ''')

    def load_filter(n):
        P('s_lshl_b32 s53, s52, 12\ns_lshl_b32 s51, s52, 1')
        for j in range(n):
            prev = 'v9, s[32:35], s53 offen' if j == 0 else f'v10, s[32:35], s53 offen offset:{1024 * j - 16}'
            P(f'buffer_load_dwordx4 {q4(FK + 8 * j)}, {prev}')
            P(f'buffer_load_dwordx4 {q4(FK + 8 * j + 4)}, v10, s[32:35], s53 offen offset:{1024 * j}')
        P('buffer_load_ushort v108, off, s[36:39], s51')
    load_filter(2)
    P(stamps.tl(opt, 0, 1))
    P('v_mov_b32 v16, v2\nv_mov_b32 v17, v3')
    opt['ready'](P, 41, init)
    P(stamps.tl(opt, 1, 1))
    if opt.get('tlb') == 1:
        P('s_waitcnt vmcnt(0)')
    P(stamps.tl(opt, 2, 1))
    P('v_mov_b32 v2, v16\nv_mov_b32 v3, v17')
    C, KF, AC, PKV = 20, 28, 48, 144
    for ch in range(2):
        for i in range(2):
            P(f'v_lshlrev_b32 v{C + 4 * ch + 2 * i}, 16, v{SH + 2 * ch + i}')
            P(f'v_and_b32 v{C + 4 * ch + 2 * i + 1}, 0xffff0000, v{SH + 2 * ch + i}')
    P(f'''
    v_sub_u32 v15, {S - 16}, v4
    v_lshlrev_b32 v15, 1, v15
    v_lshl_add_u32 v15, v3, 12, v15
    s_mov_b32 s48, {KVT}
    s_mov_b32 s49, {KVT + 4096}
    ''')
    for ch in range(2):
        for i in range(19):
            P(f'v_lshlrev_b32 v{KF + i}, 16, v{KR + i}' if ch == 0 else f'v_and_b32 v{KF + i}, 0xffff0000, v{KR + i}')
        for j in range(16):
            P(f'v_mul_f32 v{AC + j}, v{KF + j + 3}, v{C + 4 * ch}')
        for tap in range(1, 4):
            for j in range(16):
                P(f'v_fmac_f32 v{AC + j}, v{KF + j + 3 - tap}, v{C + 4 * ch + tap}')
        for j in range(16):
            P(f'v_lshlrev_b32 v{KF + j}, 16, v{VR + j}' if ch == 0 else f'v_and_b32 v{KF + j}, 0xffff0000, v{VR + j}')
        for j in range(0, 16, 2):
            P(f'v_pk_mul_f32 {q2(AC + j)}, {q2(AC + j)}, {q2(KF + j)}')
        for i in range(8):
            P(f'v_cvt_pk_bf16_f32 v{PKV + 8 * ch + i}, v{AC + 15 - 2 * i}, v{AC + 14 - 2 * i}')
        P(f'buffer_store_dwordx4 {q4(PKV + 8 * ch)}, v15, {S_WS}, s{48 + ch} offen sc1')
        P(f'buffer_store_dwordx4 {q4(PKV + 8 * ch + 4)}, v15, {S_WS}, s{48 + ch} offen offset:16 sc1')
    P(stamps.tl(opt, 3, 1))
    Y, OPS, NB, KVR = 64, 16, 4, 144
    y = f'v[{Y}:{Y + 15}]'

    def geometry(half):
        nu = 2 << half
        stride = (64 * nu + 4) * 16
        return nu, stride, 8 * stride

    def prepare(half):
        nu, stride, boff = geometry(half)
        P(f'''
        s_mul_i32 s48, {S_W}, {WAVE_LDS}
        v_mov_b32 v40, 0
        v_mov_b32 v41, 0
        v_mov_b32 v42, 0
        v_mov_b32 v43, 0
        v_add_u32 v14, s48, v10
        ds_write_b128 v14, v[40:43] offset:{boff + 16 * nu * 80}
        ds_write_b128 v14, v[40:43] offset:{boff + 16 * nu * 80 + 1024}
        ds_write_b128 v14, v[40:43] offset:{boff + 16 * nu * 80 + 31 * 80 - 1024}
        v_and_b32 v12, 7, v2
        v_mul_u32_u24 v12, {stride}, v12
        v_add_u32 v12, s48, v12
        ds_write_b128 v12, v[40:43]
        ds_write_b128 v12, v[40:43] offset:16
        ds_write_b128 v12, v[40:43] offset:32
        v_lshrrev_b32 v13, 2, v2
        v_mul_u32_u24 v13, 80, v13
        v_and_b32 v11, 3, v2
        v_lshl_add_u32 v13, v11, 4, v13
        v_add_u32 v13, s48, v13
        v_and_b32 v3, 31, v2
        v_lshrrev_b32 v4, 5, v2
        v_lshrrev_b32 v6, 3, v3
        v_add_u32 v6, v6, v4
        v_lshl_add_u32 v5, v6, 4, v12
        v_sub_u32 v6, 31, v3
        v_mul_u32_u24 v6, 80, v6
        v_lshl_add_u32 v6, v4, 4, v6
        v_add_u32 v6, s48, v6
        v_lshlrev_b32 v3, 6, v3
        v_lshl_add_u32 v3, v4, 4, v3
        ''')
        assert boff + (16 * nu + 31) * 80 <= WAVE_LDS

    def build_a(half):
        nu, stride, boff = geometry(half)
        P(f'''
        v_lshlrev_b32 v11, 16, v108
        v_lshlrev_b32 v7, 16, v{FK + 4}
        v_add_f32 v7, v7, v11
        v_cvt_pk_bf16_f32 v7, v7, v7
        v_mov_b32 v11, 0xffff
        v_bfi_b32 v7, v11, v7, v{FK + 4}
        v_cmp_eq_u32 vcc, 0, v2
        v_cndmask_b32 v{FK + 4}, v{FK + 4}, v7, vcc
        ''')
        for j in range(nu):
            b = FK + 8 * j
            for c in range(8):
                sh = 1 + c
                o = 44 + 4 * (c & 1)
                if sh & 3:
                    for i in range(4):
                        lo = b + (sh >> 1) + i
                        P(f'v_alignbit_b32 v{o + i}, v{lo + 1}, v{lo}, 16' if sh & 1 else f'v_mov_b32 v{o + i}, v{lo}')
                    src = q4(o)
                else:
                    src = q4(b + (sh >> 1))
                P(f'ds_write_b128 v14, {src} offset:{c * stride + 48 + 1024 * j}')

    def load_kv(half):
        nu = 2 << half
        P(f's_add_u32 s51, s53, {KVT + (0 if half else 2048)}')
        for j in range(nu):
            P(f'buffer_load_dwordx4 {q4(KVR + 4 * j)}, v10, {S_WS}, s51 offen offset:{1024 * j} sc1')

    def convolve(half):
        nu, stride, boff = geometry(half)
        for j in range(nu):
            P(f'ds_write_b128 v13, {q4(KVR + 4 * j)} offset:{boff + 16 * 80 * j}')
        P('s_waitcnt lgkmcnt(0)')
        n = 32 * nu

        def reads(st):
            m, be = st >> 1, st & 1
            b = OPS + 8 * (st % NB)
            return [f'ds_read_b128 {q4(b)}, v5 offset:{64 * m + 32 * be}',
                    f'ds_read_b128 {q4(b + 4)}, v6 offset:{boff + 80 * m + 32 * be}']
        for st in range(NB - 1):
            for i in reads(st):
                P(i)
        for st in range(n):
            b = OPS + 8 * (st % NB)
            P(f'{MF32} {y}, {q4(b)}, {q4(b + 4)}, {y if st else 0}')
            if st + NB - 1 < n:
                for i in reads(st + NB - 1):
                    P(i)
        P(f's_add_u32 s51, s53, {YT + 2048 * half}')
        o = 96
        for i in range(8):
            P(cvt(o + i, Y + 2 * i))
        for pr in range(2):
            P(f'v_permlane32_swap_b32 v{o + 4 * pr}, v{o + 4 * pr + 2}')
            P(f'v_permlane32_swap_b32 v{o + 4 * pr + 1}, v{o + 4 * pr + 3}')
            P(f'buffer_store_dwordx4 {q4(o + 4 * pr)}, v3, {S_WS}, s51 offen offset:{32 * pr} sc1')

    def rows(nr, first_row_code, stage, upper):
        P(first_row_code)
        P(f'''
        s_lshl_b32 s48, s50, 10
        s_mul_i32 s49, {S_W}, {1024 * nr}
        s_add_u32 s48, s48, s49
        ''')
        for r in range(nr):
            P(f'buffer_load_dwordx4 {q4(112 + 4 * r)}, v10, s[44:47], s48 offen offset:{1024 * r}')
        announce(P, stage)
        P(stamps.tl(opt, 2) if not upper else '')
        P('v_lshlrev_b32 v11, 7, v2')
        wait_all(P, stage, 11, 12, 13, upper)
        P(f'''
        {stamps.tl(opt, 3) if not upper else ''}
        v_lshlrev_b32 v3, 13, v0
        s_lshl_b32 s50, s50, 1
        s_add_u32 s50, s50, {YT}
        s_add_u32 s51, s50, 4096
        s_mov_b32 s22, 0x05040100
        s_mov_b32 s23, 0x07060302
        v_lshlrev_b32 v5, 2, v0
        ''')
        for j in range(nr // 2):
            P(f'buffer_load_dwordx4 {q4(16 + 4 * j)}, v3, {S_WS}, s50 offen offset:{16 * j} sc1')
            P(f'buffer_load_dwordx4 {q4(24 + 4 * j)}, v3, {S_WS}, s51 offen offset:{16 * j} sc1')
        for t in range(4 * nr):
            P(f'v_perm_b32 v{6 + (t & 1)}, v{24 + (t >> 1)}, v{16 + (t >> 1)}, s{22 + (t & 1)}')
            P(f'ds_write_b32 v5, v{6 + (t & 1)} offset:{1024 * t}')
        P(f'''
        v_add_u32 v5, s49, v10
        s_add_u32 s50, s48, {YTOT}
        s_add_u32 s51, s48, {X1}
        s_add_u32 s49, s48, {H1}
        s_waitcnt lgkmcnt(0)
        s_barrier
        ''')
        for r in range(nr):
            P(f'ds_read_b128 {q4(128 + 4 * r)}, v5 offset:{1024 * r}')
        seqs = []
        for rr in range(nr):
            b = (16, 56, 144, 184)[rr]
            X, Yv, N_, PKX, PH, TT = b, b + 8, b + 16, b + 24, b + 28, b + 32
            sq = unpack8(X, 112 + 4 * rr) + unpack8(Yv, 128 + 4 * rr) + row_block(X, Yv, N_, PKX, PH, TT)
            sq += [f'buffer_store_dwordx4 {q4(PH)}, v10, {S_WS}, s49 offen offset:{1024 * rr} sc1',
                   f'buffer_store_dwordx4 {q4(PKX)}, v10, {S_WS}, s51 offen offset:{1024 * rr} sc1',
                   f'buffer_store_dwordx4 {q4(128 + 4 * rr)}, v10, {S_WS}, s50 offen offset:{1024 * rr} sc1']
            seqs.append(sq)
        for tup in zip(*seqs):
            for x in tup:
                P(x)

    prepare(0)
    build_a(0)
    P(f'''
    {stamps.tl(opt, 4, 1)}
    s_waitcnt vmcnt(0)
    s_barrier
    s_cmp_lg_u32 {S_W}, 0
    s_cbranch_scc1 pw_cnt
    s_and_b32 s51, s54, 7
    s_lshl_b32 s51, s51, 2
    s_mov_b64 exec, 1
    v_mov_b32 v1, 1
    s_cmp_ge_u32 s54, 64
    s_cbranch_scc1 pw_cnt2
    buffer_atomic_add v1, off, s[4:7], s51 offset:80
    pw_cnt2:
    buffer_atomic_add v1, off, s[4:7], 0 offset:128
    {stamps.tl(opt, 0)}
    pw_kv:
    buffer_load_dword v12, off, s[4:7], s51 offset:80 sc1
    s_waitcnt vmcnt(0)
    v_cmp_gt_u32 vcc, 8, v12
    s_cbranch_vccz pw_kvgo
    {GUARD}
    s_sleep 3
    s_branch pw_kv
    pw_kvgo:
    s_mov_b64 exec, -1
    pw_cnt:
    s_barrier
    ''')
    P(stamps.tl(opt, 1))
    load_kv(0)
    convolve(0)
    opt['wait_ready'](P, 16)
    rows(2, 's_lshl_b32 s50, s54, 3', 2, False)
    announce(P, 3)
    P(stamps.tl(opt, 4))
    P(f'''
    s_cmp_lt_u32 s54, 64
    s_cbranch_scc1 pw_done
    s_and_b32 s52, s54, 63
    s_lshl_b32 s52, s52, 3
    s_add_u32 s52, s52, {S_W}
    ''')
    prepare(1)
    P('pw_b:')
    load_filter(4)
    load_kv(1)
    build_a(1)
    convolve(1)
    P('s_add_u32 s52, s52, 4\ns_bitcmp1_b32 s52, 2\ns_cbranch_scc1 pw_b')
    rows(4, 's_lshl_b32 s50, s54, 4', 4, True)
    P(f'''
    s_waitcnt vmcnt(0)
    s_barrier
    v_mov_b32 v1, {NS}
    buffer_store_dword v1, off, {S_WS}, s85 sc1
    pw_done:
    ''')
```

```python
from layout import *
import stamps
import loader
from stamps import marks
from chain import (S_WS, S_W, S_H, S_G, S_PURE, S_LAYER, S_S, S_C, GUARD, MF, MF16, DPPF, q4, q2)


def a4(b):
    return 'a[%d:%d]' % (b, b + 3)


def cvt(d, a):
    return f'v_cvt_pk_bf16_f32 v{d}, v{a}, v{a + 1}'


def xlane(op, x, t):
    return [f'v_mov_b32 v{t}, v{x}', f'v_permlane16_swap_b32 v{x}, v{t}', f'{op} v{x}, v{x}, v{t}',
            f'v_mov_b32 v{t}, v{x}', f'v_permlane32_swap_b32 v{x}, v{t}', f'{op} v{x}, v{x}, v{t}']


def wave_sum(x, t):
    o = [f'v_add_f32_dpp v{x}, v{x}, v{x} row_ror:{r} {DPPF}' for r in (1, 2, 4, 8)]
    return o + xlane('v_add_f32', x, t)


def load_weights(P, mats, r, hooks=None):
    loader.setup(P, r, False)
    gr = []
    for mi, X in enumerate(mats):
        for G in range(4):
            if X == 'o':
                gr.append((X, f's_add_u32 s43, s41, {G * 32768}',
                           [[('a', 128 * mi + 4 * (4 * (2 * Pp + t) + G)) for t in range(2)] for Pp in range(4)]))
            else:
                gr.append((X, f's_add_u32 s43, s40, {G * 128 * 8192}',
                           [[('a', 128 * mi + 4 * (16 * t + 4 * G + pp)) for t in range(2)] for pp in range(4)]))
    loader.run(P, gr, r, False, None, None, hooks)
    P('s_barrier')


def h_dma_addr(P, vd, r0, r1, t0):
    P(f'''
    v_lshrrev_b32 v{t0}, 5, v0
    v_lshlrev_b32 v{vd}, 13, v{t0}
    v_bfe_u32 v{t0}, v0, 3, 2
    v_lshl_add_u32 v{vd}, v{t0}, 10, v{vd}
    v_lshrrev_b32 v{t0}, 3, v0
    v_and_b32 v{t0}, 6, v{t0}
    v_xor_b32 v{t0}, v{t0}, v0
    v_and_b32 v{t0}, 7, v{t0}
    v_lshl_add_u32 v{vd}, v{t0}, 4, v{vd}
    v_and_b32 v{r0}, 15, v0
    v_lshlrev_b32 v{r0}, 7, v{r0}
    v_lshrrev_b32 v{t0}, 4, v0
    v_and_b32 v{r1}, 6, v0
    v_xor_b32 v{t0}, v{t0}, v{r1}
    v_lshl_add_u32 v{r0}, v{t0}, 4, v{r0}
    v_xor_b32 v{r1}, 64, v{r0}
    ''')


def h_dma(vd, s_src, s_lds):
    o = []
    for i in range(2):
        for t in range(2):
            for jh in range(2):
                o += [f's_add_u32 m0, {s_lds}, {(4 * i + 2 * t + jh) * 1024}',
                      f's_add_u32 s43, {s_src}, {i * 128 + t * 4096 + jh * 16384}',
                      f'buffer_load_dwordx4 v{vd}, {S_WS}, s43 offen sc1 lds']
    return o


def h_read(dst, r0, r1, kk, t):
    return f'ds_read_b128 {q4(dst)}, v{r1 if kk & 1 else r0} offset:{(kk >> 1) * 4096 + t * 2048}'


def gen_kv(P, opt):
    V_L16, V_HD, V_F, V_FA, V_T0, V_R0, V_R1 = 1, 8, 3, 4, 5, 6, 7
    HB = 16
    AK = 32
    AV = 48
    PK = 64
    P.label('kv_role')
    P(f'''
    v_and_b32 v0, 63, v0
    v_lshlrev_b32 v{V_L16}, 4, v0
    v_and_b32 v{V_FA}, 31, v0
    v_lshlrev_b32 v{V_FA}, 7, v{V_FA}
    ''')
    h_dma_addr(P, V_HD, V_R0, V_R1, V_T0)
    flush = f'''v_mov_b32 v{V_T0}, {S_S}
    buffer_store_dword v{V_T0}, off, {S_WS}, s31 sc1
    s_mov_b32 s27, 0'''
    P(f'''
    s_lshl_b32 s20, {S_LAYER}, 21
    s_add_u32 s20, s20, {H1}
    s_lshl_b32 s23, {S_W}, 8
    s_add_u32 s20, s20, s23
    s_lshl_b32 s21, {S_W}, 13
    s_lshl_b32 s24, {S_LAYER}, 13
    s_add_u32 s24, s24, {F_H}
    s_lshl_b32 s25, {S_H}, 2
    s_add_u32 s25, s25, {S_W}
    s_lshl_b32 s22, {S_LAYER}, 25
    s_lshl_b32 s23, s25, 12
    s_add_u32 s22, s22, s23
    s_add_u32 s28, s22, {KVIMG}
    s_lshl_b32 s22, {S_LAYER}, 14
    s_lshl_b32 s23, s25, 7
    s_add_u32 s22, s22, s23
    s_add_u32 s31, s22, {F_KV}
    ''')
    init = f'v_mov_b32 v{V_T0}, 0\nbuffer_store_dword v{V_T0}, off, {S_WS}, s31 sc1'

    def count(newer):
        opt['count_ready'](P, newer, V_T0)
        if opt.get('warmon'):
            P(f's_cmp_eq_u32 {S_LAYER}, 0\ns_cbranch_scc1 kv_nowarm')
            opt['warm'](P, 1)
            P('kv_nowarm:')
    load_weights(P, 'kv', 16, (lambda n: opt['ready'](P, n, init), count))
    P(stamps.tl(opt, 0))
    opt['wait_ready'](P, 16)
    P(f's_cmp_lg_u32 {S_LAYER}, 0\ns_cbranch_scc1 kv_start\nv_lshlrev_b32 v16, 7, v0')
    opt['wait_all'](P, 3, 16, 17, 18)
    P(f'''
    kv_start:
    s_mov_b32 {S_S}, 0
    s_mov_b32 s25, 0
    s_mov_b32 s26, 0
    s_mov_b32 s27, 0
    ''')
    stamps.init(P, opt)
    P(f'''
    kv_loop:
    s_cmp_eq_u32 s26, 0
    s_cbranch_scc1 kv_poll
    s_waitcnt vmcnt(4)
    s_branch kv_have
    kv_poll:
    buffer_load_dword v{V_F}, v{V_FA}, {S_WS}, s24 offen sc1
    s_waitcnt vmcnt(0)
    s_cmp_eq_u32 s27, 0
    s_cbranch_scc1 kv_poll2
    {flush}
    kv_poll2:
    v_cmp_ge_u32 vcc, s25, v{V_F}
    s_cbranch_vccz kv_go
    {GUARD}
    s_sleep 2
    s_branch kv_poll
    kv_go:
    {marks(opt, 0)}
    ''')
    for i in h_dma(V_HD, 's20', 's21'):
        P(i)
    P(f'''
    s_waitcnt vmcnt(0)
    kv_have:
    s_barrier
    {marks(opt, 1)}
    {h_read(HB, V_R0, V_R1, 0, 0)}
    {h_read(HB + 4, V_R0, V_R1, 0, 1)}
    s_xor_b32 s24, s24, 4096
    s_add_u32 s25, {S_S}, 1
    s_lshr_b32 s25, s25, 1
    s_add_u32 s20, s20, 32768
    s_xor_b32 s21, s21, 32768
    s_mov_b32 s26, 0
    buffer_load_dword v{V_F}, v{V_FA}, {S_WS}, s24 offen sc1
    ''')
    for kk in range(16):
        b = HB + 8 * (kk & 1)
        nb = HB + 8 * ((kk + 1) & 1)
        ms = []
        for te in range(2):
            for tt in range(2):
                d = AK + 8 * tt + 4 * te
                ms.append(f'{MF} {q4(d)}, {a4(4 * (16 * te + kk))}, {q4(b + 4 * tt)}, {q4(d) if kk else 0}')
        for te in range(2):
            for tt in range(2):
                d = AV + 8 * te + 4 * tt
                ms.append(f'{MF} {q4(d)}, {q4(b + 4 * tt)}, {a4(128 + 4 * (16 * te + kk))}, {q4(d) if kk else 0}')
        P(ms[0])
        if kk < 15:
            P(h_read(nb, V_R0, V_R1, kk + 1, 0))
        P(ms[1])
        if kk < 15:
            P(h_read(nb + 4, V_R0, V_R1, kk + 1, 1))
        for m in ms[2:]:
            P(m)
        if kk == opt.get('kvpf', 8):
            P(f'''
            s_waitcnt vmcnt(0)
            s_cmp_eq_u32 s27, 0
            s_cbranch_scc1 kv_mid
            {flush}
            kv_mid:
            s_cmp_eq_u32 {S_S}, {NS - 1}
            s_cbranch_scc1 kv_nopf
            v_cmp_ge_u32 vcc, s25, v{V_F}
            s_cbranch_vccnz kv_nopf
            ''')
            for i in h_dma(V_HD, 's20', 's21'):
                P(i)
            P('s_mov_b32 s26, 1\nkv_nopf:')
    P(f'v_xor_b32 v{V_R0}, 32768, v{V_R0}\nv_xor_b32 v{V_R1}, 32768, v{V_R1}')
    for qd in range(4):
        src = AK + 8 * qd
        for i in range(4):
            P(cvt(PK + 4 * qd + i, src + 2 * i))
        P(f'buffer_store_dwordx4 {q4(PK + 4 * qd)}, v{V_L16}, {S_WS}, s28 offen offset:{1024 * qd} sc1')
    P(f'''
    s_add_u32 s28, s28, 0x80000
    s_mov_b32 s27, 1
    {marks(opt, 2)}
    s_add_u32 {S_S}, {S_S}, 1
    s_cmp_lt_u32 {S_S}, {NS}
    s_cbranch_scc1 kv_loop
    s_waitcnt vmcnt(0)
    {flush}
    ''')
    stamps.dump(P, opt)
    P('s_waitcnt vmcnt(0)\ns_endpgm')


def unpack8(dst, src):
    o = []
    for i in range(4):
        o += [f'v_and_b32 v{dst + 2 * i + 1}, 0xffff0000, v{src + i}', f'v_lshlrev_b32 v{dst + 2 * i}, 16, v{src + i}']
    return o


def ln8(x, n, t):
    a, b = t, t + 1
    o = [f'v_pk_add_f32 {q2(t)}, {q2(x)}, {q2(x + 2)}', f'v_pk_add_f32 {q2(t + 2)}, {q2(x + 4)}, {q2(x + 6)}',
         f'v_pk_add_f32 {q2(t)}, {q2(t)}, {q2(t + 2)}', f'v_add_f32 v{a}, v{a}, v{b}']
    o += wave_sum(a, b)
    o += [f'v_mul_f32 v{a}, 0x3b000000, v{a}']
    o += [f'v_pk_add_f32 {q2(n + i)}, {q2(x + i)}, {q2(t)} op_sel_hi:[1,0] neg_lo:[0,1] neg_hi:[0,1]' for i in range(0, 8, 2)]
    o += [f'v_pk_mul_f32 {q2(t)}, {q2(n)}, {q2(n)}', f'v_pk_mul_f32 {q2(t + 2)}, {q2(n + 2)}, {q2(n + 2)}',
          f'v_pk_fma_f32 {q2(t)}, {q2(n + 4)}, {q2(n + 4)}, {q2(t)}',
          f'v_pk_fma_f32 {q2(t + 2)}, {q2(n + 6)}, {q2(n + 6)}, {q2(t + 2)}',
          f'v_pk_add_f32 {q2(t)}, {q2(t)}, {q2(t + 2)}', f'v_add_f32 v{a}, v{a}, v{b}']
    o += wave_sum(a, b)
    o += [f'v_mov_b32 v{b}, 0x3727c5ac', f'v_fmac_f32 v{b}, 0x3b000000, v{a}', f'v_rsq_f32 v{a}, v{b}']
    o += [f'v_pk_mul_f32 {q2(n + i)}, {q2(n + i)}, {q2(t)} op_sel_hi:[1,0]' for i in range(0, 8, 2)]
    return o


def row_block(x, y, n, pk, ph, t):
    o = ln8(x, n, t)
    o += [f'v_pk_fma_f32 {q2(x + i)}, {q2(n + i)}, {q2(y + i)}, {q2(x + i)}' for i in range(0, 8, 2)]
    o += [cvt(pk + i, x + 2 * i) for i in range(4)]
    o += unpack8(x, pk)
    o += ln8(x, n, t)
    o += [cvt(ph + i, n + 2 * i) for i in range(4)]
    return o
```

```python
from layout import STAMP
NPH = 12


def init(P, opt):
    if not opt.get('stamp'):
        return
    P('s_memtime s[60:61]\ns_memrealtime s[62:63]\ns_waitcnt lgkmcnt(0)')
    for i in range(NPH):
        P(f's_mov_b32 s{70 + i}, 0')
    P('s_mov_b32 s68, s60')


def mark(opt, i, lvl=2):
    if opt.get('stamp', 0) == lvl:
        return ['s_memtime s[64:65]', 's_waitcnt lgkmcnt(0)', 's_sub_u32 s69, s64, s68',
                f's_add_u32 s{70 + i}, s{70 + i}, s69', 's_mov_b32 s68, s64']
    return []


def marks(opt, i, lvl=2):
    return '\n'.join(mark(opt, i, lvl))


def count(opt, i):
    return f's_add_u32 s{70 + i}, s{70 + i}, 1' if opt.get('stamp') in (1, 2) else ''


def tl(opt, i, bank=0):
    if opt.get('stamp') in (1, 2) and opt.get('tlb', 0) == bank:
        return f's_memrealtime s[{86 + 2 * i}:{87 + 2 * i}]\ns_waitcnt lgkmcnt(0)'
    return ''


def dump(P, opt):
    if not opt.get('stamp'):
        return
    P(f'''
    s_memtime s[64:65]
    s_memrealtime s[66:67]
    s_waitcnt lgkmcnt(0)
    s_sub_u32 s64, s64, s60
    s_lshl_b32 s22, s14, 5
    s_add_u32 s22, s22, s13
    s_lshl_b32 s22, s22, 2
    s_add_u32 s22, s22, s12
    s_lshl_b32 s22, s22, 7
    s_add_u32 s22, s22, {STAMP}
    v_mov_b32 v16, s64
    v_mov_b32 v17, s66
    v_mov_b32 v18, s98
    v_mov_b32 v19, s62
    buffer_store_dwordx4 v[16:19], off, s[8:11], s22
    ''')
    for j in range(NPH // 4):
        for i in range(4):
            P(f'v_mov_b32 v{20 + 4 * j + i}, s{70 + 4 * j + i}')
        P(f'buffer_store_dwordx4 v[{20 + 4 * j}:{23 + 4 * j}], off, s[8:11], s22 offset:{16 + 16 * j}')
    for i in range(6):
        P(f'v_mov_b32 v{40 + i}, s{86 + 2 * i}')
    P('buffer_store_dwordx4 v[40:43], off, s[8:11], s22 offset:64\nbuffer_store_dwordx2 v[44:45], off, s[8:11], s22 offset:80')
```

```python
import sys
import math
import struct
from asmtool import Prog
from layout import *
import chain
import roles
import at
import prework
import loader
from chain import S_WS, S_W, S_H, S_G, S_PURE, S_LAYER, S_S, S_C, S_SENT, SENT, GUARD

NAME = 'interleave_layers__ssm_conv_h3__memory_aug_recurrent_mem_tr__prompt'
KNAME = NAME + '_kernel'
LDS_MAIN = 160 * 1024
HEADER = ''


def f32bits(x):
    return struct.unpack('<I', struct.pack('<f', x))[0]


def kd(name, vgpr, accum, sgpr=102):
    return f'''.amdhsa_kernel {name}
  .amdhsa_next_free_vgpr {vgpr}
  .amdhsa_next_free_sgpr {sgpr}
  .amdhsa_accum_offset {accum}
  .amdhsa_group_segment_fixed_size 0
  .amdhsa_kernarg_size 128
  .amdhsa_user_sgpr_count 2
  .amdhsa_user_sgpr_kernarg_segment_ptr 1
  .amdhsa_system_sgpr_workgroup_id_x 1
.end_amdhsa_kernel
'''


V_CLAIM = 255


def ready(P, newer, init):
    m = P.uid('rdy')
    P(f'''
    s_waitcnt vmcnt({newer})
    v_mov_b32 v3, 0
    s_cmp_lg_u32 {S_W}, 0
    s_cbranch_scc1 {m}
    s_mov_b64 exec, 1
    ds_write_b32 v3, v{V_CLAIM}
    s_mov_b64 exec, -1
    s_waitcnt lgkmcnt(0)
    {m}:
    s_barrier
    ds_read_b32 v2, v3
    s_waitcnt lgkmcnt(0)
    v_readfirstlane_b32 s22, v2
    s_barrier
    s_bitcmp1_b32 s22, {S_H}
    s_cbranch_scc1 main_late
    {init}
    ''')


def count_ready(P, newer, t):
    l = P.uid('cnt')
    P(f'''
    s_waitcnt vmcnt({newer})
    s_barrier
    s_cmp_lg_u32 {S_W}, 0
    s_cbranch_scc1 {l}
    s_mov_b64 exec, 1
    v_mov_b32 v{t}, 1
    buffer_atomic_add v{t}, off, s[4:7], 0 offset:128
    s_mov_b64 exec, -1
    {l}:
    ''')


def warm(P, part):
    P(f'''
    s_lshl_b32 s22, {S_H}, 2
    s_add_u32 s22, s22, {S_W}
    s_lshl_b32 s22, s22, 13
    s_add_u32 s22, s22, {part * MB}
    v_lshlrev_b32 v250, 7, v0
    ''')
    for X in 'qkvo':
        for hf in range(2):
            P(f'buffer_load_dword v251, v250, {loader.SRD[X]}, s22 offen ;nodep')
            P(f's_xor_b32 s22, s22, {2 * MB}')
    P('s_waitcnt vmcnt(0)')


def wait_ready(P, t0):
    a, b = P.uid('wr'), P.uid('wr')
    P(f'''
    {a}:
    buffer_load_dwordx2 v[{t0}:{t0 + 1}], off, s[4:7], 0 offset:128 sc1
    s_waitcnt vmcnt(0)
    v_cmp_gt_u32 vcc, 0x100, v{t0}
    s_cbranch_vccz {b}
    {GUARD}
    s_sleep 4
    s_branch {a}
    {b}:
    buffer_load_dword v{t0 + 1}, off, s[4:7], 0 offset:132 sc1
    s_waitcnt vmcnt(0)
    v_readfirstlane_b32 s22, v{t0 + 1}
    s_bitcmp0_b32 s22, {S_G}
    s_cselect_b32 {S_PURE}, 1, 0
    ''')


def gen_main(P, opt):
    P(f'''
    {KNAME}:
    s_cmp_ge_u32 s2, 256
    s_cbranch_scc1 main_exit
    s_getpc_b64 s[20:21]
    main_pc:
    s_mov_b32 s22, main_end - main_pc
    s_mov_b32 s23, 0x00020000
    s_mov_b32 s24, 32768
    v_lshlrev_b32 v1, 7, v0
    buffer_load_dword v253, v1, s[20:23], 0 offen ;nodep
    buffer_load_dword v253, v1, s[20:23], s24 offen ;nodep
    s_load_dwordx2 s[4:5], s[0:1], 112
    s_load_dwordx2 s[8:9], s[0:1], 120
    s_load_dwordx2 s[44:45], s[0:1], 56
    s_load_dwordx2 s[56:57], s[0:1], 104
    s_load_dwordx2 s[68:69], s[0:1], 64
    s_load_dwordx2 s[72:73], s[0:1], 72
    s_load_dwordx2 s[76:77], s[0:1], 80
    s_load_dwordx2 s[80:81], s[0:1], 88
    s_mov_b32 s70, {4 * MB}
    s_mov_b32 s71, 0x00020000
    s_mov_b32 s74, {4 * MB}
    s_mov_b32 s75, 0x00020000
    s_mov_b32 s78, {4 * MB}
    s_mov_b32 s79, 0x00020000
    s_mov_b32 s82, {4 * MB}
    s_mov_b32 s83, 0x00020000
    s_mov_b32 s3, 1000000
    s_mov_b32 s6, 256
    s_mov_b32 s7, 0x00020000
    s_mov_b32 s10, {WS_BYTES}
    s_mov_b32 s11, 0x00020000
    s_mov_b32 s46, 8192
    s_mov_b32 s47, 0x00020000
    s_mov_b32 s58, {S * D * 2}
    s_mov_b32 s59, 0x00020000
    v_lshrrev_b32 v1, 6, v0
    s_nop 0
    v_readfirstlane_b32 {S_W}, v1
    s_mov_b32 {S_C}, {f32bits(E ** -0.5 * math.log2(math.e))}
    s_mov_b32 {S_SENT}, {SENT}
    s_getreg_b32 s84, hwreg(HW_REG_XCC_ID, 0, 4)
    {'s_memrealtime s[98:99]' if opt.get('stamp') else ''}
    s_waitcnt lgkmcnt(0)
    ''')
    P(f'''
    s_lshl_b32 s22, s84, 2
    s_lshr_b32 s22, {opt.get('map', 0x75126430)}, s22
    s_and_b32 s22, s22, 7
    s_cmp_lt_u32 s84, 8
    s_cselect_b32 s84, s22, s84
    ''')
    if opt.get('scramble') == 1:
        P('s_mov_b32 s84, 15')
    P(f'''
    v_mov_b32 v254, v0
    s_lshr_b32 {S_H}, s2, {4 if opt.get('scramble') == 2 else 3}
    s_and_b32 {S_G}, s84, 7
    v_mov_b32 v{V_CLAIM}, -1
    s_cmp_ge_u32 s84, 8
    s_cbranch_scc1 main_dispatch
    s_cmp_lg_u32 {S_W}, 0
    s_cbranch_scc1 main_dispatch
    s_lshl_b32 s21, 1, {S_H}
    v_mov_b32 v{V_CLAIM}, s21
    s_lshl_b32 s22, {S_G}, 2
    s_mov_b64 exec, 1
    buffer_atomic_or v{V_CLAIM}, off, s[4:7], s22 sc0 ;nodep
    s_mov_b64 exec, -1
    s_branch main_dispatch
    main_late:
    s_waitcnt vmcnt(0) lgkmcnt(0)
    s_cmp_lg_u32 {S_W}, 0
    s_cbranch_scc1 main_late_wait
    s_mov_b64 exec, 1
    s_mov_b32 s24, 64
    s_cmp_ge_u32 s84, 8
    s_cbranch_scc1 main_late_tot
    v_mov_b32 v2, 1
    s_lshl_b32 s22, s84, 2
    buffer_atomic_add v2, off, s[4:7], s22 offset:32 sc0
    s_waitcnt vmcnt(0)
    v_readfirstlane_b32 s24, v2
    main_late_tot:
    v_mov_b32 v2, 1
    buffer_atomic_add v2, off, s[4:7], 0 offset:64
    s_mov_b64 exec, 0x1ffff
    v_and_b32 v3, 63, v254
    v_lshlrev_b32 v3, 2, v3
    main_late_poll:
    {GUARD}
    buffer_load_dword v2, v3, s[4:7], 0 offen sc1
    s_waitcnt vmcnt(0)
    v_readlane_b32 s25, v2, 16
    ''')
    for i in range(8):
        P(f'v_readlane_b32 s{32 + i}, v2, {i}\ns_bcnt1_i32_b32 s22, s{32 + i}\ns_add_u32 s25, s25, s22')
    P(f'''
    s_cmp_lt_u32 s25, 256
    s_cbranch_scc1 main_late_poll
    buffer_load_dword v2, v3, s[4:7], 0 offen sc1
    s_waitcnt vmcnt(0)
    s_mov_b64 exec, 1
    s_and_b32 s26, s84, 7
    s_nop 3
    v_readlane_b32 s27, v2, s26
    s_bcnt0_i32_b32 s22, s27
    s_cmp_lt_u32 s24, s22
    s_cbranch_scc1 main_late_pick
    v_mov_b32 v4, 1
    buffer_atomic_add v4, off, s[4:7], 0 offset:68 sc0
    s_waitcnt vmcnt(0)
    v_readfirstlane_b32 s28, v4
    s_mov_b32 s26, 0
    main_late_scan:
    s_add_u32 s29, s26, 8
    s_nop 3
    v_readlane_b32 s27, v2, s26
    v_readlane_b32 s24, v2, s29
    s_bcnt0_i32_b32 s22, s27
    s_min_u32 s24, s24, s22
    s_sub_u32 s22, s22, s24
    s_cmp_lt_u32 s28, s22
    s_cbranch_scc1 main_late_found
    s_sub_u32 s28, s28, s22
    s_add_u32 s26, s26, 1
    s_cmp_lt_u32 s26, 8
    s_cbranch_scc1 main_late_scan
    s_branch main_timeout
    main_late_found:
    s_add_u32 s24, s24, s28
    s_lshl_b32 s22, 1, s26
    v_mov_b32 v4, s22
    buffer_atomic_or v4, off, s[4:7], 0 offset:132
    main_late_pick:
    s_ff0_i32_b32 s22, s27
    s_bitset1_b32 s27, s22
    s_sub_u32 s24, s24, 1
    s_cbranch_scc0 main_late_pick
    v_mov_b32 v2, s26
    v_mov_b32 v3, s22
    v_mov_b32 v4, 0
    ds_write_b64 v4, v[2:3]
    s_waitcnt vmcnt(0) lgkmcnt(0)
    s_mov_b64 exec, -1
    main_late_wait:
    s_barrier
    v_mov_b32 v4, 0
    ds_read_b64 v[2:3], v4
    s_waitcnt lgkmcnt(0)
    v_readfirstlane_b32 {S_G}, v2
    v_readfirstlane_b32 {S_H}, v3
    s_barrier
    s_and_b32 {S_G}, {S_G}, 7
    s_and_b32 {S_H}, {S_H}, 31
    v_mov_b32 v{V_CLAIM}, 0
    v_mov_b32 v0, v254
    s_load_dwordx2 s[44:45], s[0:1], 56
    s_mov_b32 s46, 8192
    s_mov_b32 s47, 0x00020000
    s_waitcnt lgkmcnt(0)
    main_dispatch:
    s_and_b32 {S_LAYER}, {S_G}, 1
    s_cmp_lt_u32 {S_G}, 2
    s_cbranch_scc1 chain_role
    {'s_endpgm' if opt.get('chainonly') else ''}
    s_cmp_lt_u32 {S_G}, 4
    s_cbranch_scc1 kv_role
    s_branch at_role
    main_exit:
    s_endpgm
    main_timeout:
    s_mov_b64 exec, 1
    v_mov_b32 v2, 1
    buffer_atomic_add v2, off, s[4:7], 0 offset:72
    s_waitcnt vmcnt(0)
    s_endpgm
    ''')
    opt['ready'] = ready
    opt['count_ready'] = count_ready
    opt['warm'] = warm
    opt['wait_all'] = prework.wait_all
    opt['wait_ready'] = wait_ready
    chain.gen_chain(P, opt)
    roles.gen_kv(P, opt)
    at.gen_at(P, opt)
    P.label('main_end')


def build(opt):
    P = Prog()
    gen_main(P, opt)
    head = HEADER
    if opt.get('list', 1):
        head += f'; @launch kernel={KNAME} grid=(256,1,1) block=(256,1,1) lds={LDS_MAIN}\n'
    else:
        head += f'; @launch grid=(256,1,1) block=(256,1,1) lds={LDS_MAIN}\n'
    head += '.amdgcn_target "amdgcn-amd-amdhsa--gfx950"\n.text\n'
    body = f'.globl {KNAME}\n.p2align 8\n.type {KNAME},@function\n' + P.finish()
    tail = '.section .rodata,"a"\n.p2align 6\n' + kd(KNAME, 512, 256)
    return head + body + tail


if __name__ == '__main__':
    opt = {}
    for a in sys.argv[2:]:
        k, v = a.split('=')
        opt[k] = int(v)
    open(sys.argv[1], 'w').write(build(opt))
```

```python
from layout import *
import stamps
from stamps import marks
from chain import (S_WS, S_W, S_H, S_G, S_PURE, S_LAYER, S_S, S_C, GUARD, MF, MF16, DPPF, q4, q2)
from asmtool import schedule
from chain import pk, xl
from roles import a4, cvt, xlane, load_weights, h_dma_addr, h_dma, h_wave_part, h_read, unpack8, row_block


def weave(mf_groups, side, per=2, start=0):
    out = []
    side = list(side)
    for i, g in enumerate(mf_groups):
        out += g
        if i >= start:
            out += side[:per]
            side = side[per:]
    return out + side


def gen_at(P, opt):
    L_Q = 32768
    L_OB = L_Q + 8192
    L_ROW = L_OB + 8192
    L_KV = 65536
    L_KM = L_KV + 16384
    (V_L16, V_HD, V_F4, V_FA, V_T0, V_T1, V_OR, V_QW, V_QR, V_OW, V_KMA, V_PST, V_RLD, V_RW, V_RR) = range(1, 16)
    SEL, BIAS, Q, SX, KX, VX, XR, YR = 16, 20, 28, 44, 52, 84, 100, 104
    FLH, FLK, FLM, FLA = 108, 109, 110, 111
    MX, NM, SUM = 112, 113, 114
    V_R0, V_R1, V_VMA = 252, 253, 254
    KM, VM = 116, 132
    SM, PX, PM, O, OP = 140, 144, 148, 152, 168
    OB, AO, PK = 140, 172, 236
    RED, RD = 140, 172
    HB, AQ, QP = 176, 208, 224
    X, Y, N_, PKX, PH, TT = 176, 184, 192, 200, 204, 208
    P.label('at_role')
    P(f'''
    v_and_b32 v0, 63, v0
    s_and_b32 s22, {S_G}, 3
    s_lshl_b32 s24, s22, 14
    s_lshl_b32 s23, {S_W}, 12
    s_add_u32 s24, s24, s23
    s_lshl_b32 s23, {S_H}, 7
    s_add_u32 s24, s24, s23
    s_add_u32 s24, s24, {F_AP}
    s_lshl_b32 s25, s22, 12
    s_add_u32 s25, s25, s23
    s_add_u32 s25, s25, {F_H + 8192}
    s_cmp_eq_u32 {S_LAYER}, 0
    s_cselect_b32 s25, s25, s24
    ''')
    init = f'''v_mov_b32 v1, 0
    buffer_store_dword v1, off, {S_WS}, s24 sc1
    buffer_store_dword v1, off, {S_WS}, s25 sc1'''
    load_weights(P, 'qo', 16, (lambda n: opt['ready'](P, n, init), lambda n: opt['count_ready'](P, n, 1, 4)))
    opt['wait_ready'](P, 16, False, 8)
    P(stamps.tl(opt, 5))
    P(f'''
    v_lshlrev_b32 v{V_L16}, 4, v0
    v_and_b32 v{V_FA}, 31, v0
    v_lshlrev_b32 v{V_FA}, 7, v{V_FA}
    s_and_b32 {S_S}, {S_G}, 1
    s_and_b32 s33, {S_W}, 1
    s_lshr_b32 s34, {S_W}, 1
    ''')
    h_dma_addr(P, V_HD, V_R0, V_R1, V_T0)
    P(f'''
    s_lshl_b32 s22, {S_W}, 11
    s_add_u32 s22, s22, {L_Q}
    v_add_u32 v{V_QW}, s22, v{V_L16}
    s_lshl_b32 s22, s33, 10
    s_add_u32 s23, s22, {L_Q}
    v_add_u32 v{V_QR}, s23, v{V_L16}
    s_lshl_b32 s23, s34, 12
    s_add_u32 s22, s22, s23
    s_add_u32 s22, s22, {L_OB}
    v_add_u32 v{V_OW}, s22, v{V_L16}
    v_add_u32 v{V_OR}, {L_OB}, v{V_L16}
    v_add_u32 v{V_KMA}, {L_KV}, v{V_L16}
    s_lshl_b32 s23, s34, 13
    v_add_u32 v{V_F4}, s23, v{V_KMA}
    s_lshl_b32 s23, s34, 12
    v_add_u32 v{V_VMA}, s23, v{V_KMA}
    v_and_b32 v{V_T1}, 15, v0
    v_lshlrev_b32 v{V_PST}, 4, v{V_T1}
    v_lshrrev_b32 v{V_T0}, 4, v0
    v_lshl_add_u32 v{V_PST}, v{V_T0}, 18, v{V_PST}
    s_lshl_b32 s22, {S_H}, 10
    s_lshl_b32 s23, {S_W}, 8
    s_add_u32 s22, s22, s23
    v_add_u32 v{V_PST}, s22, v{V_PST}
    v_and_b32 v{V_T1}, 15, v0
    v_lshlrev_b32 v{V_RLD}, 4, v{V_T1}
    v_lshl_add_u32 v{V_RLD}, v{V_T0}, 10, v{V_RLD}
    s_lshl_b32 s22, {S_H}, 15
    s_add_u32 s22, s22, s23
    v_add_u32 v{V_RLD}, s22, v{V_RLD}
    v_bfe_u32 v{V_RW}, v0, 2, 2
    v_lshlrev_b32 v{V_RW}, 5, v{V_RW}
    v_lshl_add_u32 v{V_RW}, v{V_T0}, 8, v{V_RW}
    v_and_b32 v{V_RR}, 3, v0
    v_lshl_add_u32 v{V_RW}, v{V_RR}, 2, v{V_RW}
    s_lshl_b32 s22, {S_W}, 9
    s_add_u32 s22, s22, {L_ROW}
    v_add_u32 v{V_RW}, s22, v{V_RW}
    v_lshlrev_b32 v{V_RR}, 5, v0
    v_add_u32 v{V_RR}, {L_ROW}, v{V_RR}
    ''')
    for i in range(4):
        P(f'''
        v_mov_b32 v{SEL + i}, 0
        v_mov_b32 v{MX}, 0x3f80
        v_cmp_eq_u32 vcc, {2 * i}, v{V_T1}
        v_cndmask_b32 v{SEL + i}, v{SEL + i}, v{MX}, vcc
        v_mov_b32 v{MX}, 0x3f800000
        v_cmp_eq_u32 vcc, {2 * i + 1}, v{V_T1}
        v_cndmask_b32 v{SEL + i}, v{SEL + i}, v{MX}, vcc
        ''')
    P(f'''
    v_bfe_u32 v{V_T1}, v0, 2, 2
    v_lshlrev_b32 v{V_T1}, 3, v{V_T1}
    v_and_b32 v{MX}, 3, v0
    v_add_u32 v{V_T1}, v{V_T1}, v{MX}
    s_lshl_b32 s22, s33, 2
    v_add_u32 v{V_T1}, s22, v{V_T1}
    v_lshlrev_b32 v{V_T0}, 3, v{V_T0}
    v_sub_u32 v{V_T1}, v{V_T1}, v{V_T0}
    v_mov_b32 v{MX}, 0xf149f2ca
    ''')
    for i in range(8):
        P(f'v_cmp_gt_i32 vcc, {i}, v{V_T1}\nv_cndmask_b32 v{BIAS + i}, 0, v{MX}, vcc')
    for i in range(4):
        P(f'v_mov_b32 v{XR + i}, 0\nv_mov_b32 v{YR + i}, 0')
    P(f'''
    s_lshl_b32 s20, {S_LAYER}, 21
    s_add_u32 s20, s20, {H1}
    {h_wave_part('s20', 's21')}
    s_lshl_b32 s23, {S_S}, 15
    s_add_u32 s20, s20, s23
    s_lshl_b32 s39, {S_H}, 10
    s_add_u32 s39, s39, s23
    s_sub_u32 s39, s39, 65536
    s_lshl_b32 s24, {S_LAYER}, 13
    s_add_u32 s24, s24, {F_H}
    s_lshl_b32 s23, {S_S}, 12
    s_add_u32 s24, s24, s23
    s_lshl_b32 s25, {S_H}, 7
    s_add_u32 s25, s25, s23
    s_add_u32 s25, s25, {F_H + 8192}
    s_lshl_b32 s22, {S_LAYER}, 24
    s_lshl_b32 s23, {S_H}, 13
    s_add_u32 s22, s22, s23
    s_lshl_b32 s23, {S_S}, 18
    s_add_u32 s22, s22, s23
    s_lshl_b32 s23, {S_W}, 11
    s_add_u32 s22, s22, s23
    s_add_u32 s33, s23, {L_KM}
    s_lshl_b32 s29, s23, 1
    s_add_u32 s29, s29, {L_KV}
    s_add_u32 s30, s22, {KMVM}
    s_lshl_b32 s28, s22, 1
    s_add_u32 s28, s28, {KVIMG}
    s_lshl_b32 s22, {S_LAYER}, 14
    s_lshl_b32 s23, {S_H}, 9
    s_add_u32 s22, s22, s23
    s_lshl_b32 s23, {S_W}, 7
    s_add_u32 s22, s22, s23
    s_add_u32 s31, s22, {F_KV}
    s_add_u32 s32, s22, {F_KM}
    s_and_b32 s22, {S_G}, 3
    s_lshl_b32 s35, s22, 21
    s_add_u32 s35, s35, {APART}
    s_lshl_b32 s36, s22, 14
    s_lshl_b32 s23, {S_W}, 12
    s_add_u32 s36, s36, s23
    s_add_u32 s36, s36, {F_AP}
    s_lshl_b32 s23, {S_H}, 7
    s_add_u32 s37, s36, s23
    s_mov_b32 s38, 0
    s_mov_b32 s49, {S_S}
    s_mov_b32 s48, 0
    s_mov_b32 s50, 0
    s_mov_b32 s51, 0
    s_mov_b32 s52, 0
    s_mov_b32 s53, 0
    v_mov_b32 v{FLM}, 0
    ''')
    stamps.init(P, opt)

    an = opt.get('an2', 60000)
    flush = f'''v_mov_b32 v{V_T0}, s38
    buffer_store_dword v{V_T0}, off, {S_WS}, s25 sc1
    s_mov_b32 s53, 0'''
    kvl = [['s_mov_b32 m0, s29', f'buffer_load_dwordx4 v{V_L16}, {S_WS}, s28 offen offset:{1024 * i} sc1 lds'] for i in range(4)]
    kvr = [f'ds_read_b128 {q4(KX + 4 * i)}, v{V_KMA} offset:{4096 * (i >> 1) + 1024 * (i & 1)}' for i in range(8)]
    kvr += [f'ds_read_b128 {q4(VX + 4 * i)}, v{V_F4} offset:{4096 * (i >> 1) + 2048 + 1024 * (i & 1)} ;before:row' for i in range(4)]

    def kmloads(base):
        return [['s_mov_b32 m0, s33', f'buffer_load_dwordx4 v{V_L16}, {S_WS}, {base} offen offset:{1024 * i} sc1 lds'] for i in range(2)]
    kml = '\n'.join('\n'.join(x) for x in kmloads('s30'))
    kmr = [f'ds_read_b128 {q4(KM + 4 * kk)}, v{V_KMA} offset:{L_KM - L_KV + 2048 * kk}' for kk in range(4)]
    kmr += [f'ds_read_b128 {q4(VM + 4 * i)}, v{V_VMA} offset:{L_KM - L_KV + 2048 * i + 1024}' for i in range(2)]
    both = f'''s_add_u32 s22, s49, 2
    s_min_u32 s22, s22, {NS - 1}
    v_cmp_ge_u32 s[50:51], s22, v{FLH}
    v_cmp_ge_u32 vcc, s49, v{FLM}
    s_or_b64 vcc, vcc, s[50:51]'''
    hd = h_dma(V_HD, 's20', 's21')
    hgrp = [hd[2 * i:2 * i + 2] for i in range(8)]

    def emit(items, name):
        code, t = schedule(items, verbose=opt.get('verbose') == name, anneal=an)
        code = stamps.profile(code, opt, name)
        for k, c in enumerate(code):
            if c == 's_waitcnt vmcnt(63)':
                c = 's_waitcnt vmcnt(%d)' % sum(x.startswith('buffer_') for x in code[:k])
            P(c)

    def qproj(lo, hi_):
        it = []
        for kk in range(lo, hi_):
            b = HB + 8 * (kk & 3)
            for tt in range(2):
                it.append(h_read(b + 4 * tt, V_R0, V_R1, kk, tt))
            for te in range(2):
                for tt in range(2):
                    d = AQ + 8 * tt + 4 * te
                    it.append(f'{MF} {q4(d)}, {a4(4 * (16 * te + kk))}, {q4(b + 4 * tt)}, {q4(d) if kk else 0}')
        return it

    def qtail():
        it = []
        for tt in range(2):
            it += [cvt(QP + 4 * tt + i, AQ + 8 * tt + 2 * i) for i in range(4)]
            it.append(f'ds_write_b128 v{V_QW}, {q4(QP + 4 * tt)} offset:{1024 * tt} ;w:q')
        return it

    def sx_items():
        it = [f'ds_read_b128 {q4(Q + 4 * kk)}, v{V_QR} offset:{2048 * kk} ;r:q' for kk in range(4)]
        for kk in range(4):
            for t in range(2):
                c = q4(SX + 4 * t) if kk else q4(BIAS + 4 * t)
                it.append(f'{MF} {q4(SX + 4 * t)}, {q4(KX + 8 * kk + 4 * t)}, {q4(Q + 4 * kk)}, {c}')
        return it

    P(f'''
    at_kv0:
    buffer_load_dword v{FLK}, off, {S_WS}, s31 sc1
    s_waitcnt vmcnt(0)
    v_cmp_ge_u32 vcc, s49, v{FLK}
    s_cbranch_vccz at_kv0go
    {GUARD}
    s_sleep 4
    s_branch at_kv0
    at_kv0go:
    ''')
    for i in hd + sum(kvl, []):
        P(i)
    P('s_waitcnt vmcnt(0)\ns_barrier')
    emit(kvr + qproj(0, 16) + qtail() + ['@bar q'] + sx_items(), 10)
    P('s_waitcnt lgkmcnt(0)')

    P(f'''
    at_loop:
    s_cmp_eq_u32 s52, 1
    s_cbranch_scc1 at_kmdone
    at_kmpoll:
    buffer_load_dword v{FLM}, off, {S_WS}, s32 sc1
    buffer_load_dword v{FLH}, off, {S_WS}, s31 sc1
    s_waitcnt vmcnt(0)
    s_cmp_eq_u32 s53, 0
    s_cbranch_scc1 at_kmpoll2
    {flush}
    {stamps.tlc(opt, 5, 's49', 42)}
    at_kmpoll2:
    {both}
    s_cbranch_vccz at_kmgo
    {GUARD}
    s_sleep 2
    s_branch at_kmpoll
    at_kmgo:
    {stamps.tlc(opt, 0, 's49', 40)}
    {kml}
    s_waitcnt vmcnt(0)
    at_kmdone:
    s_barrier
    {stamps.tlc(opt, 1, 's49', 40)}
    {marks(opt, 0)}
    s_add_u32 s49, s49, 2
    s_cmp_lt_u32 s49, {NS}
    s_cselect_b32 s22, 0x10000, 0
    s_add_u32 s20, s20, s22
    s_lshl_b32 s22, s22, 4
    s_add_u32 s28, s28, s22
    s_add_u32 s39, s39, 65536
    s_add_u32 s30, s30, 0x80000
    s_mov_b32 s52, 0
    s_lshl_b32 s26, {S_LAYER}, 21
    s_add_u32 s26, s26, s39
    s_add_u32 s26, s26, {X1}
    s_add_u32 s27, s39, {YTOT}
    s_cmp_eq_u32 {S_W}, 0
    s_cselect_b32 s26, s26, 0x7fff0000
    s_cbranch_scc0 at_noy
    s_cmp_eq_u32 {S_LAYER}, 0
    at_noy:
    s_cselect_b32 s27, s27, 0x7fff0000
    s_cmp_eq_u32 s53, 0
    s_cselect_b32 s48, 0x7fff0000, s25
    s_mov_b32 s53, 0
    v_mov_b32 v{V_T0}, s38
    s_cmp_eq_u32 {S_PURE}, 0
    s_cbranch_scc1 at_b_slow
    ''')

    def b_items(XS):
        it = []
        A = it.append
        it += kmr
        for g in kvl:
            A([g[0], g[1] + ' ;dl:900'])
        for g in hgrp:
            A([g[0], g[1] + ' ;dl:900'])
        A(f'buffer_load_dwordx4 {q4(XR)}, v{V_L16}, {S_WS}, s26 offen sc1 ;dl:900')
        A(f'buffer_load_dwordx4 {q4(YR)}, v{V_L16}, {S_WS}, s27 offen sc1 ;dl:900')
        for kk in range(4):
            A(f'{MF} {q4(SM)}, {q4(KM + 4 * kk)}, {q4(Q + 4 * kk)}, {q4(SM) if kk else 0}')
        it += [f'v_max3_f32 v{MX}, v{SX}, v{SX + 1}, v{SX + 2}', f'v_max3_f32 v{NM}, v{SX + 3}, v{SX + 4}, v{SX + 5}',
               f'v_max3_f32 v{MX}, v{MX}, v{SX + 6}, v{SX + 7}', f'v_max3_f32 v{NM}, v{NM}, v{SM}, v{SM + 1}',
               f'v_max3_f32 v{MX}, v{MX}, v{SM + 2}, v{SM + 3}', f'v_max_f32 v{MX}, v{MX}, v{NM}']
        it += xlane('v_max_f32', MX, NM)
        A(f'v_mul_f32 v{MX}, {S_C}, v{MX}')
        prs = [SX + 2 * i for i in range(4)] + [SM, SM + 2]
        for x in prs:
            A(f'v_pk_fma_f32 {q2(x)}, {q2(x)}, s[18:19], {q2(MX)} op_sel_hi:[1,0,0] neg_lo:[0,0,1] neg_hi:[0,0,1]')
        for x in prs:
            A(f'v_exp_f32 v{x}, v{x}')
            A(f'v_exp_f32 v{x + 1}, v{x + 1}')
        it += [cvt(PX + i, SX + 2 * i) for i in range(4)] + [cvt(PM + i, SM + 2 * i) for i in range(2)]
        for tau in range(4):
            A(f'{MF} {q4(O + 4 * tau)}, {q4(VX + 4 * tau)}, {q4(PX)}, 0')
        for tau in range(4):
            A(f'{MF16} {q4(O + 4 * tau)}, {q2(VM + 2 * tau)}, {q2(PM)}, {q4(O + 4 * tau)}')
        it += [pk('add', SM, SM, SM + 2), pk('add', SX, SX, SX + 2), pk('add', SX + 4, SX + 4, SX + 6),
               pk('add', SX, SX, SX + 4), f'v_pk_fma_f32 {q2(SX)}, {q2(SM)}, 0.5, {q2(SX)} op_sel_hi:[1,0,1]',
               f'v_add_f32 v{SUM}, v{SX}, v{SX + 1}']
        it += xlane('v_add_f32', SUM, NM)
        A(f'v_rcp_f32 v{SUM}, v{SUM}')
        for hf in range(2):
            for i in range(0, 8, 2):
                A(f'v_pk_mul_f32 {q2(O + 8 * hf + i)}, {q2(O + 8 * hf + i)}, {q2(SUM)} op_sel_hi:[1,0]')
            it += [cvt(OP + 4 * hf + i, O + 8 * hf + 2 * i) for i in range(4)]
            A(f'ds_write_b128 v{V_OW}, {q4(OP + 4 * hf)} offset:{2048 * hf} ;w:o')
        A(['s_waitcnt vmcnt(63)', f'buffer_store_dword v{V_T0}, off, {S_WS}, s48 sc1'])
        A('@bar o')
        for i in (0, 2, 4, 6, 1, 3, 5, 7):
            A(f'ds_read_b128 {q4(OB + 4 * i)}, v{V_OR} offset:{1024 * i} ;r:o')
        for qt in range(2):
            for kk in range(4):
                for T_ in range(8):
                    d = AO + 32 * qt + 4 * T_
                    A(f'{MF} {q4(d)}, {q4(OB + 8 * kk + 4 * qt)}, {a4(128 + 4 * (4 * T_ + kk))}, {q4(d) if kk else 0}')
            for r in range(4):
                p_ = PK + 4 * r
                b_ = AO + 32 * qt + r
                it += [f'v_cvt_pk_bf16_f32 v{p_ + i}, v{b_ + 8 * i}, v{b_ + 8 * i + 4}' for i in range(4)]
                A([f's_add_u32 s23, s35, {(4 * qt + r) * 32768}',
                   f'buffer_store_dwordx4 {q4(p_)}, v{V_PST}, {S_WS}, s23 offen{XS}'])
        return it

    n1 = opt.get('n1', 12)
    for mode in ('fast', 'slow'):
        XS = '' if mode == 'fast' else ' sc1'
        if mode == 'slow':
            P.label('at_b_slow')
        emit(b_items(XS), 11 if mode == 'fast' else -1)
        P(f'''
        {marks(opt, 1)}
        s_waitcnt vmcnt(8)
        s_add_u32 s38, s38, 1
        v_mov_b32 v{V_T1}, s38
        s_barrier
        {marks(opt, 2)}
        ''')
        it = [['s_waitcnt vmcnt(0)', f'buffer_store_dword v{V_T1}, off, {S_WS}, s37{XS}'],
              f'buffer_load_dword v{FLA}, v{V_FA}, {S_WS}, s36 offen sc1 ;t:{n1 * 64 - 40}']
        emit(it + qproj(0, n1), 12 if mode == 'fast' else -1)
        if mode == 'fast':
            P('s_branch at_r')
    P(f'''
    at_r:
    {stamps.tlc(opt, 2, 's49', 42)}
    {marks(opt, 3)}
    v_cmp_gt_u32 vcc, s38, v{FLA}
    s_cbranch_vccz at_apgo
    at_appoll:
    {GUARD}
    buffer_load_dword v{FLA}, v{V_FA}, {S_WS}, s36 offen sc1
    s_waitcnt vmcnt(0)
    v_cmp_gt_u32 vcc, s38, v{FLA}
    s_cbranch_vccnz at_appoll
    at_apgo:
    {stamps.tlc(opt, 3, 's49', 42)}
    {marks(opt, 4)}
    ''')
    it = []
    for i in range(8):
        it.append([f's_add_u32 s23, s35, {4096 * i}',
                   f'buffer_load_dwordx4 {q4(RED + 4 * i)}, v{V_RLD}, {S_WS}, s23 offen sc1 ;lat:350'])
    it.append(f'buffer_load_dword v{FLM}, off, {S_WS}, s32 sc1 ;dl:450')
    it.append(f'buffer_load_dword v{FLH}, off, {S_WS}, s31 sc1 ;dl:450')
    it += kvr + qproj(n1, 16) + qtail() + ['@bar q'] + sx_items()
    for i in range(8):
        it.append(f'{MF} {q4(RD)}, {q4(SEL)}, {q4(RED + 4 * i)}, {q4(RD) if i else 0}')
    it.append(['s_mov_b32 exec_hi, 0', f'ds_write2_b32 v{V_RW}, v{RD}, v{RD + 1} offset0:0 offset1:4 ;w:row',
               f'ds_write2_b32 v{V_RW}, v{RD + 2}, v{RD + 3} offset0:32 offset1:36', 's_mov_b64 exec, -1'])
    it.append('s_xor_b32 s35, s35, 0x100000')
    it.append('@bar row')
    it.append(f'ds_read_b128 {q4(N_)}, v{V_RR} ;r:row')
    it.append(f'ds_read_b128 {q4(N_ + 4)}, v{V_RR} offset:16 ;r:row')
    it += unpack8(X, XR) + [pk('add', X + i, X + i, N_ + i) for i in range(0, 8, 2)]
    it += [cvt(PKX + i, X + 2 * i) for i in range(4)]
    emit(it, 13)
    P('s_waitcnt lgkmcnt(0)')
    P(f'''
    {marks(opt, 5)}
    {both}
    s_cbranch_scc1 at_nokm
    {kml}
    s_mov_b32 s52, 1
    at_nokm:
    s_cmp_lg_u32 {S_W}, 0
    s_cbranch_scc1 at_rowdone
    s_cmp_eq_u32 {S_LAYER}, 0
    s_cbranch_scc1 at_row1
    s_waitcnt vmcnt(0)
    buffer_store_dwordx4 {q4(PKX)}, v{V_L16}, s[56:59], s39 offen
    s_branch at_next
    at_row1:
    ''')
    emit(unpack8(X, PKX) + unpack8(Y, YR) + row_block(X, Y, N_, PKX, PH, TT), 14)
    P(f'''
    s_add_u32 s22, s39, {X3}
    s_add_u32 s23, s39, {H2}
    s_waitcnt vmcnt(0)
    buffer_store_dwordx4 {q4(PH)}, v{V_L16}, {S_WS}, s23 offen sc1
    buffer_store_dwordx4 {q4(PKX)}, v{V_L16}, {S_WS}, s22 offen sc1
    s_mov_b32 s53, 1
    s_branch at_next
    at_rowdone:
    s_waitcnt vmcnt(0)
    at_next:
    {stamps.tlc(opt, 4, 's49', 42)}
    {marks(opt, 6)}
    s_cmp_lt_u32 s49, {NS}
    s_cbranch_scc1 at_loop
    s_waitcnt vmcnt(0)
    s_cmp_eq_u32 s53, 0
    s_cbranch_scc1 at_done
    {flush}
    at_done:
    ''')
    stamps.dump(P, opt)
    P('s_waitcnt vmcnt(0)\ns_endpgm')
```

```python
from layout import *
import stamps
from asmtool import schedule
import loader

SENT = 0xFF81FF81

S_WS = 's[8:11]'
S_W = 's12'
S_H = 's13'
S_G = 's14'
S_PURE = 's15'
S_LAYER = 's16'
S_S = 's17'
S_C = 's18'
S_SENT = 's19'

NLDSQ = 34
L_MEM = 0
L_O = 8192
L_SC = 16384
L_WT = 24576
DPPF = 'row_mask:0xf bank_mask:0xf'
MF = 'v_mfma_f32_16x16x32_bf16'
MF16 = 'v_mfma_f32_16x16x16_bf16'
SMF = 'v_smfmac_f32_16x16x64_bf16'
RS = 2048
GUARD = 's_sub_u32 s3, s3, 1\ns_cbranch_scc1 main_timeout'


def q4(b):
    return 'v[%d:%d]' % (b, b + 3)


def q2(b):
    return 'v[%d:%d]' % (b, b + 1)


def q8(b):
    return 'v[%d:%d]' % (b, b + 7)


V_FL = 0
V_L16, V_WL, V_X0, V_X1, V_X2, V_X3, V_WH, V_PST, V_MST, V_T0, V_T1 = range(1, 12)
V_MW = V_X0
V_T2 = 116
V_SEL = 12
MEM = 16
V_IDX, V_PF, V_SELT = 48, 49, 50
AQ, AK, AV, KX, VX = 52, 60, 68, 76, 84
WB = 92
T1, T2, T3, T4, T5 = 116, 120, 124, 128, 132
WV0 = 136


def streams():
    st = []
    for p in range(2):
        st += [(X, t, p) for X in 'qkv' for t in range(2)]
    for X in 'qkv':
        for p in range(2, 8):
            st += [(X, 0, p), (X, 1, p)]
    ost = [('o', T_, 0) for T_ in range(8)]
    for half in range(2):
        for pp in range(1, 4):
            for T_ in range(4 * half, 4 * half + 4):
                ost.append(('o', T_, pp))
    LX, LP = LDS_CLASS
    groups = [(X, par, u) for X in 'qkv' for par in range(2) if (X, par) != (LX, LP) for u in range(2)]
    groups += [('o', pp, 0) for pp in range(4) if pp not in LDS_WO]
    groups += [(LX, LP, 0), (LX, LP, 1)] + [('o', pp, 0) for pp in LDS_WO]
    home = {}
    octs = [('a', 8 * i) for i in range(32)] + [('v', WV0 + 8 * i) for i in range(8)]
    quads = [('v', WV0 + 64 + 4 * i) for i in range(14)]
    n = 0
    for X, t, p in st:
        if (X, p & 1) == (LX, LP):
            home[(X, t, p)] = ('lds', n, [32768 * u + 1024 * (2 * (p >> 1) + t) for u in range(2)])
            n += 1
        else:
            home[(X, t, p)] = octs.pop(0)
    n = 0
    for _, T_, pp in ost:
        if pp in LDS_WO:
            home[('o', T_, pp)] = ('lds', n, [(1 << 16) + 32768 * LDS_WO.index(pp) + 1024 * T_])
            n += 1
        elif (T_, pp) in LDS_EXTRA:
            home[('o', T_, pp)] = ('lds', n, [(2 << 16) + L_WT + 1024 * LDS_EXTRA.index((T_, pp))])
            n += 1
        else:
            home[('o', T_, pp)] = quads.pop(0)
    assert not octs and not quads
    return st, ost, home, groups


LDS_CLASS = ('q', 1)
LDS_WO = [0, 2]
LDS_EXTRA = [(1, 3), (5, 3)]


def wrd(dst, off):
    return f'ds_read_b128 {q4(dst)}, v{(V_WL, V_WH, V_X0)[off >> 16]} offset:{off & 0xffff}'


def preload():
    st, ost, home, units = streams()
    o = []
    for e in st:
        if home[e][0] == 'lds' and home[e][1] < 3:
            for u in range(2):
                o.append(wrd(WB + 8 * home[e][1] + 4 * u, home[e][2][u]))
    return o


def gen_chain(P, opt):
    stream, ostream, home, units = streams()
    P.label('chain_role')
    P('v_and_b32 v0, 63, v0')
    LR = AQ
    loader.setup(P, LR, True)
    P0 = P
    setup_code = []
    P = setup_code.append
    P(f'''
    v_lshlrev_b32 v{V_L16}, 4, v0
    v_add_u32 v{V_WL}, s42, v{V_L16}
    v_add_u32 v{V_WH}, 65536, v{V_WL}
    s_lshl_b32 s21, {S_W}, 11
    v_add_u32 v{V_MW}, s21, v{V_L16}
    v_xor_b32 v{V_X1}, 2048, v{V_X0}
    v_xor_b32 v{V_X2}, 4096, v{V_X0}
    v_xor_b32 v{V_X3}, 6144, v{V_X0}
    v_bfe_u32 v{V_T1}, v0, 3, 1
    v_mul_u32_u24 v{V_IDX}, 0xaaaa, v{V_T1}
    v_add_u32 v{V_IDX}, 0x4444, v{V_IDX}
    v_and_b32 v{V_PF}, {15 if opt.get('pmode', 0) else 31}, v0
    v_lshlrev_b32 v{V_PF}, 7, v{V_PF}
    v_add_u32 v{V_PF}, 0x80000, v{V_PF}
    v_lshrrev_b32 v{V_T0}, 2, v0
    s_lshl_b32 s22, {S_W}, 5
    v_add_u32 v{V_T0}, s22, v{V_T0}
    v_lshlrev_b32 v{V_T0}, 11, v{V_T0}
    v_and_b32 v{V_T1}, 3, v0
    v_lshlrev_b32 v{V_T1}, 4, v{V_T1}
    s_lshl_b32 s22, {S_H}, 6
    v_add3_u32 v{V_PST}, v{V_T0}, v{V_T1}, s22
    v_lshrrev_b32 v{V_T0}, 4, v0
    v_lshlrev_b32 v{V_T0}, 3, v{V_T0}
    s_lshl_b32 s22, {S_H}, 2
    s_add_u32 s24, s22, {S_W}
    s_lshl_b32 s22, s24, 6
    v_add3_u32 v{V_MST}, v{V_T0}, v{V_T1}, s22
    v_and_b32 v{V_T0}, 15, v0
    ''')

    def onehot(dst, n, src):
        for i in range(n):
            P(f'''
            v_mov_b32 v{dst + i}, 0
            v_mov_b32 v{V_T1}, 0x3f80
            v_cmp_eq_u32 vcc, {2 * i}, v{src}
            v_cndmask_b32 v{dst + i}, v{dst + i}, v{V_T1}, vcc
            v_mov_b32 v{V_T1}, 0x3f800000
            v_cmp_eq_u32 vcc, {2 * i + 1}, v{src}
            v_cndmask_b32 v{dst + i}, v{dst + i}, v{V_T1}, vcc
            ''')
    onehot(V_SEL, 4, V_T0)
    P(f'''
    v_and_b32 v{V_T0}, 7, v0
    v_bfe_u32 v{V_T1}, v0, 4, 1
    v_lshlrev_b32 v{V_T1}, 2, v{V_T1}
    v_sub_u32 v{V_T0}, v{V_T0}, v{V_T1}
    ''')
    onehot(V_SELT, 2, V_T0)
    P(f'''
    s_lshl_b32 s50, {S_LAYER}, 20
    s_add_u32 s50, s50, {CPART}
    s_add_u32 s53, s50, {16 * RS}
    s_lshl_b32 s22, s24, 11
    s_add_u32 s51, s50, s22
    s_xor_b32 s49, s51, 0x80000
    s_lshl_b32 s26, {S_LAYER}, 14
    s_add_u32 s26, s26, {CMEM}
    s_add_u32 s48, s26, 8192
    s_add_u32 s52, s48, s21
    s_lshl_b32 s22, {S_LAYER}, 25
    s_lshl_b32 s23, s24, 12
    s_add_u32 s28, s22, s23
    s_add_u32 s28, s28, {KVIMG}
    s_lshl_b32 s22, {S_LAYER}, 24
    s_lshl_b32 s23, s24, 11
    s_add_u32 s30, s22, s23
    s_add_u32 s30, s30, {KMVM}
    s_lshl_b32 s22, {S_LAYER}, 14
    s_lshl_b32 s23, s24, 7
    s_add_u32 s22, s22, s23
    s_add_u32 s31, s22, {F_KV}
    s_add_u32 s32, s22, {F_KM}
    s_mov_b32 s34, 0x00ff00ff
    s_mov_b32 s35, 0x00ff00ff
    s_mov_b32 s36, 0xff00ff00
    s_mov_b32 s37, 0xff00ff00
    ''')
    init = f'''
    v_mov_b32 v{T4}, {S_SENT}
    v_mov_b32 v{T4 + 1}, {S_SENT}
    v_mov_b32 v{T4 + 2}, {S_SENT}
    v_mov_b32 v{T4 + 3}, {S_SENT}
    v_mov_b32 v{V_T0}, 0
    buffer_store_dword v{V_T0}, off, {S_WS}, s32 sc1
    buffer_store_dwordx4 {q4(T4)}, v{V_L16}, {S_WS}, s51 offen sc1
    buffer_store_dwordx4 {q4(T4)}, v{V_L16}, {S_WS}, s51 offen offset:1024 sc1
    s_mov_b64 exec, 0x000f000f
    buffer_store_dwordx2 {q2(T4)}, v{V_MST}, {S_WS}, s48 offen sc1
    s_mov_b64 exec, -1
    '''
    P = P0

    def confirm(newer):
        P(stamps.tl(opt, 0, 1))
        opt['ready'](P, newer, '\n'.join(setup_code) + init)
        P(stamps.tl(opt, 1, 1))

    def count(newer):
        opt['count_ready'](P, newer, V_T0)
        P(stamps.tl(opt, 2, 1))
        if opt.get('warmon'):
            P(f's_cmp_eq_u32 {S_LAYER}, 0\ns_cbranch_scc1 chain_nowarm')
            opt['warm'](P, 0)
            P('chain_nowarm:')
        P(stamps.tl(opt, 3, 1))
    gr = []
    for X, a_, u in units:
        if X == 'o':
            code = f's_xor_b32 s43, s39, {a_ * 32768}\ns_add_u32 s43, s43, s41'
            ds = [[home[('o', 2 * Pp + t, a_)] for t in range(2)] for Pp in range(4)]
        else:
            code = f's_add_u32 s43, s40, {a_ * 64 * 8192 + u * 16 * 8192}'
            ds = [[home[(X, t, 2 * pp + a_)] for t in range(2)] for pp in range(4)]
        ds = [[('lds', d[2][u]) if d[0] == 'lds' else (d[0], d[1] + 4 * u) for d in row] for row in ds]
        gr.append((X, code, ds))
    loader.run(P, gr, LR, True, KX, (V_WL, V_WH, V_X0), (confirm, count))
    P(stamps.tl(opt, 5))
    P(f'''
    v_and_b32 v{V_T0}, 7, v0
    v_lshlrev_b32 v{V_T0}, 10, v{V_T0}
    v_bfe_u32 v{V_T1}, v0, 3, 1
    v_lshl_add_u32 v{V_T0}, v{V_T1}, 6, v{V_T0}
    v_lshrrev_b32 v{V_T1}, 4, v0
    v_lshl_add_u32 v{V_T0}, v{V_T1}, 4, v{V_T0}
    s_lshl_b32 s22, {S_W}, 8
    s_load_dwordx2 s[44:45], s[0:1], 56
    s_mov_b32 s46, 8192
    s_mov_b32 s47, 0x00020000
    s_waitcnt lgkmcnt(0)
    buffer_load_dwordx4 {q4(MEM)}, v{V_T0}, s[44:47], s22 offen
    buffer_load_dwordx4 {q4(MEM + 4)}, v{V_T0}, s[44:47], s22 offen offset:128
    ''')
    opt['wait_ready'](P, T1)
    lw = P.uid('ch_kv0')
    P(f'''
    {lw}:
    {GUARD}
    buffer_load_dword v{V_FL}, off, {S_WS}, s31 sc1
    s_waitcnt vmcnt(0)
    v_cmp_gt_u32 vcc, 1, v{V_FL}
    s_cbranch_vccnz {lw}
    ''')
    for i in range(24):
        P(f'v_mov_b32 v{AQ + i}, 0')
    P('s_waitcnt lgkmcnt(0)')
    for i in preload():
        P(i)
    P(f'''
    s_mov_b32 {S_S}, 0
    s_mov_b32 s33, 1
    s_mov_b32 s27, {STAMP + MB}
    v_mov_b32 v{V_T0}, 0
    v_mov_b32 v{T4}, {S_SENT}
    v_mov_b32 v{T4 + 1}, {S_SENT}
    v_mov_b32 v{T4 + 2}, {S_SENT}
    v_mov_b32 v{T4 + 3}, {S_SENT}
    ds_write_b128 v{V_MW}, {q4(MEM)}
    ds_write_b128 v{V_MW}, {q4(MEM + 4)} offset:1024
    ''')
    stamps.init(P, opt)
    P(f's_cmp_eq_u32 {S_PURE}, 0\ns_cbranch_scc1 chain_slow_step')
    chain_loop(P, opt, 'fast')
    chain_loop(P, opt, 'slow')
    P.label('chain_last')
    code, t = schedule(step_items(opt, ' sc1', True))
    for i in code:
        P(i)
    P(f'''
    v_mov_b32 v{V_T1}, {NS}
    s_waitcnt vmcnt(0)
    buffer_store_dword v{V_T1}, off, {S_WS}, s32 sc1
    ''')
    stamps.dump(P, opt)
    P('s_waitcnt vmcnt(0)\ns_endpgm')


def dppadd(d, a, b, ror=8):
    return f'v_add_f32_dpp v{d}, v{a}, v{b} row_ror:{ror} {DPPF}'


def cvt(d, a):
    return f'v_cvt_pk_bf16_f32 v{d}, v{a}, v{a + 1}'


def xl(op, n, x, t):
    return [f'v_mov_b32 v{t}, v{x}', f'v_permlane{n}_swap_b32 v{x}, v{t}', f'{op} v{x}, v{x}, v{t}']


def pk(op, d, a, b):
    return f'v_pk_{op}_f32 {q2(d)}, {q2(a)}, {q2(b)}'


def step_items(opt, XS, last):
    stream, ostream, home, units = streams()
    QOP, KOP, VOP = T1, T2, T3
    XE, ME = AQ, AK
    PX, PM = T4, AK + 2
    MX, NM, SUM, TN = T5, T5 + 1, T5 + 2, T5 + 3
    OX, OOP = KX, T1
    OIN = [AV, AV + 4, T4]
    AO = MEM
    it = []
    A = it.append
    A('s_nop 0 ;w:mem ;t:%d' % opt.get('tb', 70))
    A('@bar mem')
    for pr in range(1, 4):
        A(f'ds_read_b128 {q4(MEM + 8 * pr)}, v{V_X0 + pr} ;r:mem')
        A(f'ds_read_b128 {q4(MEM + 8 * pr + 4)}, v{V_X0 + pr} offset:1024 ;r:mem')
    if not last:
        for i in range(4):
            A(f'buffer_load_dwordx4 {q4(KX + 4 * i)}, v{V_L16}, {S_WS}, s28 offen offset:{1024 * i} sc1 ;lat:400')
    kmode = 1
    pf = [f'v_cmp_lt_u32 vcc, s33, v{V_FL}', f'v_cndmask_b32 v{V_T1}, v{V_L16}, v{V_PF}, vcc']
    if opt.get('pmode', 0) == 0:
        if not last:
            it += pf
            A(f'buffer_load_dword v{V_FL}, v{V_T1}, {S_WS}, s28 offen sc1')
        A(f'buffer_store_dword v{V_T0}, off, {S_WS}, s32 sc1 ;by:250')
        if not last:
            ft = opt.get('ft', 150)
            A(f'buffer_load_dword v{V_FL}, off, {S_WS}, s31 sc1')
    else:
        if not last:
            A(f'buffer_load_dword v{V_FL}, off, {S_WS}, s31 sc1')
        A(f'buffer_store_dword v{V_T0}, off, {S_WS}, s32 sc1 ;by:250')
        if not last:
            it += pf
            A(f'buffer_load_dword v{V_T0}, v{V_T1}, {S_WS}, s28 offen sc1')
    if not last:
        A(f'buffer_store_dwordx4 {q4(T4)}, v{V_L16}, {S_WS}, s49 offen{XS}')
        A(f'buffer_store_dwordx4 {q4(T4)}, v{V_L16}, {S_WS}, s49 offen offset:1024{XS}')

    for e in stream:
        X, t, p = e
        kind, where = home[e][:2]
        if kind == 'lds':
            slot = WB + 8 * (where % 3)
            if where >= 3:
                A(wrd(slot, home[e][2][0]))
                A(wrd(slot + 4, home[e][2][1]))
            w = q8(slot)
        else:
            w = f'{kind}[{where}:{where + 7}]'
        if last and X == 'q':
            continue
        a = {'q': AQ, 'k': AK, 'v': AV}[X] + 4 * t
        A(f'{SMF} {q4(a)}, {q4(MEM + 4 * p)}, {w}, v{V_IDX}')

    def transpose(acc, op):
        for t in range(2):
            A(cvt(op + 2 * t, acc + 4 * t))
            A(cvt(op + 2 * t + 1, acc + 4 * t + 2))
        for t in range(2):
            A(f'{MF16} {q4(acc + 4 * t)}, {q2(op + 2 * t)}, {q2(V_SELT)}, 0')
        for i in range(4):
            A(cvt(op + i, acc + 2 * i))

    kmst = f'buffer_store_dwordx4 {q4(KOP)}, v{V_L16}, {S_WS}, s30 offen sc1 ;free ;dl:%d' % opt.get('dk', 800)
    vmst = f'buffer_store_dwordx4 {q4(VOP)}, v{V_L16}, {S_WS}, s30 offen offset:1024 sc1 ;free ;dl:%d' % opt.get('dk', 800)
    if last:
        transpose(AK, KOP)
        A(kmst)
        for i in range(4):
            A(cvt(VOP + i, AV + 2 * i))
        A(vmst)
        return it
    hi = 'quad_perm:[0,1,2,3] row_mask:0xf bank_mask:0xc'
    transpose(AQ, QOP)
    for t in range(2):
        A(f'{MF} {q4(AQ + 4 * t)}, {q4(KX + 4 * t)}, {q4(QOP)}, 0')
    for r in range(4):
        A(f'v_mov_b32_dpp v{XE + r}, v{AQ + 4 + r} {hi}')
    A(f'ds_write_b128 v{V_X0}, {q4(XE)} offset:{L_SC}')
    transpose(AK, KOP)
    A(f'{MF} {q4(AK)}, {q4(KOP)}, {q4(QOP)}, 0')
    for r in range(2):
        A(f'v_mov_b32_dpp v{ME + r}, v{AK + 2 + r} {hi}')
    A(f'ds_write_b64 v{V_X0}, {q2(ME)} offset:{L_SC + 1024} ;w:sc')
    A('@bar sc')
    RX = [AQ + 4, KX, KX + 4]
    for u in range(3):
        A(f'ds_read_b128 {q4(RX[u])}, v{V_X0 + 1 + u} offset:{L_SC} ;r:sc')
        A(f'ds_read_b64 {q2(ME + 2 + 2 * u)}, v{V_X0 + 1 + u} offset:{L_SC + 1024} ;r:sc')
    for u in range(3):
        for i in (0, 2):
            A(pk('add', XE + i, XE + i, RX[u] + i))
        A(pk('add', ME, ME, ME + 2 + 2 * u))
    A(f'v_max3_f32 v{MX}, v{XE}, v{XE + 1}, v{XE + 2}')
    A(f'v_max3_f32 v{NM}, v{XE + 3}, v{ME}, v{ME + 1}')
    A(f'v_max_f32 v{MX}, v{MX}, v{NM}')
    A(f'v_max_f32_dpp v{MX}, v{MX}, v{MX} row_ror:8 {DPPF}')
    for x in xl('v_max_f32', 16, MX, NM) + xl('v_max_f32', 32, MX, NM):
        A(x)
    A(f'v_mul_f32 v{MX}, {S_C}, v{MX}')
    for x in (XE, XE + 2, ME):
        A(f'v_pk_fma_f32 {q2(x)}, {q2(x)}, s[18:19], {q2(MX)} op_sel_hi:[1,0,0] neg_lo:[0,0,1] neg_hi:[0,0,1]')
    for x in (XE, XE + 1, XE + 2, XE + 3, ME, ME + 1):
        A(f'v_exp_f32 v{x}, v{x}')
    A(cvt(PX, XE))
    A(cvt(PX + 1, XE + 2))
    A(cvt(PM, ME))
    for d in (PX + 2, PX + 3):
        A(f'v_mov_b32_dpp v{d}, v{d - 2} row_ror:8 {DPPF}')
    A(f'v_mov_b32_dpp v{PM + 1}, v{PM} row_ror:8 {DPPF}')
    for i in range(4):
        A(cvt(VOP + i, AV + 2 * i))
    for t in range(2):
        A(f'{MF} {q4(OX + 4 * t)}, {q4(VX + 4 * t)}, {q4(PX)}, 0')
    for t in range(2):
        A(f'{MF16} {q4(OX + 4 * t)}, {q2(VOP + 2 * t)}, {q2(PM)}, {q4(OX + 4 * t)}')
    A(pk('add', XE, XE, XE + 2))
    if opt.get('nopk'):
        for i in range(2):
            A(f'v_fma_f32 v{XE + i}, v{ME + i}, 0.5, v{XE + i}')
    else:
        A(f'v_pk_fma_f32 {q2(XE)}, {q2(ME)}, 0.5, {q2(XE)} op_sel_hi:[1,0,1]')
    A(f'v_add_f32 v{SUM}, v{XE}, v{XE + 1}')
    A(dppadd(SUM, SUM, SUM))
    for x in xl('v_add_f32', 16, SUM, TN) + xl('v_add_f32', 32, SUM, TN):
        A(x)
    A(f'v_rcp_f32 v{SUM}, v{SUM}')
    for i in range(0, 8, 2):
        A(f'v_pk_mul_f32 {q2(OX + i)}, {q2(OX + i)}, {q2(SUM)} op_sel_hi:[1,0]')
    for i in range(4):
        A(cvt(OOP + i, OX + 2 * i))
    A(f'ds_write_b128 v{V_X0}, {q4(OOP)} offset:{L_O} ;w:o')
    if kmode >= 1:
        A(kmst)
    if kmode == 1:
        A(vmst)
    A('@bar o')
    for pp in range(1, 4):
        A(f'ds_read_b128 {q4(OIN[pp - 1])}, v{V_X0 + pp} offset:{L_O} ;r:o')
    PKA, PKB = [AQ, AK], [AQ + 4, AK + 4]

    def pack(u):
        for i in range(4):
            A(cvt(PKB[u] + i, AO + 16 * u + 8 + 2 * i))
        for i in range(4):
            A(cvt(PKA[u] + i, AO + 16 * u + 2 * i))
        for i in range(4):
            A(f'v_mov_b32_dpp v{PKA[u] + i}, v{PKB[u] + i} row_ror:8 row_mask:0xf bank_mask:0xc')
        A(f'buffer_store_dwordx4 {q4(PKA[u])}, v{V_PST}, {S_WS}, {"s53" if u else "s50"} offen{XS} ;free' + ('' if u else ' ;dl:150'))
    for k, e in enumerate(ostream):
        _, T_, pp = e
        kind, where = home[e][:2]
        if kind == 'lds':
            slot = WB + 4 * (where % 6)
            A(wrd(slot, home[e][2][0]))
            w = q4(slot)
        else:
            w = q4(where)
        b = q4(OOP) if pp == 0 else q4(OIN[pp - 1])
        c = '0' if pp == 0 else q4(AO + 4 * T_)
        A(f'{MF} {q4(AO + 4 * T_)}, {w}, {b}, {c}' + (' ;p:150' if (pp and T_ < 4) else ''))
        if k == 19:
            pack(0)
    pack(1)
    return it


def chain_loop(P, opt, mode):
    XS = '' if mode == 'fast' else ' sc1'
    tag = 'chain_' + mode
    mk = lambda i: stamps.marks(opt, i)
    RED = MEM + 8
    RDD = T5
    P.label(tag + '_step')
    for i in range(4):
        P(stamps.tlc(opt, i, S_S, 39 + i))
    items = step_items(opt, XS, False)
    code, t = schedule(items, verbose=opt.get('verbose') == 1 and mode == 'fast', anneal=opt.get('an', 400000), seed=opt.get('seed', 0))
    k = code.index('s_barrier')
    nds = sum(c.startswith('ds_') for c in code[:k])
    code.insert(k, f's_waitcnt lgkmcnt({nds})')
    code.remove('s_nop 0')
    k = code.index('s_barrier', k + 2)
    code.insert(k, 's_waitcnt vmcnt(%d)' % sum(c.startswith('buffer_') for c in code[:k]))
    if opt.get('stamp') == 5:
        c2 = ['s_memtime s[64:65] ;nodep']
        n = 0
        for j, c in enumerate(code):
            if 'lo' in opt:
                c2.append(c)
                if j >= opt['lo'] and (j - opt['lo']) % opt['st'] == 0 and n < 8:
                    c2.append(f's_memtime s[{82 + 2 * n}:{83 + 2 * n}] ;nodep')
                    if mode == 'fast':
                        print('stamp', n, 'after', j, c)
                    n += 1
            elif c == 's_barrier':
                jj = len(c2)
                while c2[jj - 1].startswith('s_waitcnt'):
                    jj -= 1
                c2.insert(jj, f's_memtime s[{82 + 2 * n}:{83 + 2 * n}] ;nodep')
                c2 += [c, f's_memtime s[{84 + 2 * n}:{85 + 2 * n}] ;nodep']
                n += 2
            else:
                c2.append(c)
        c2 += ['s_memtime s[66:67] ;nodep', 's_waitcnt lgkmcnt(0)', 's_sub_u32 s69, s64, s68', 's_add_u32 s79, s79, s69', 's_mov_b32 s68, s66']
        prev = 's64'
        for j in range(9):
            cur = f's{82 + 2 * j}' if j < 8 else 's66'
            c2 += [f's_sub_u32 s69, {cur}, {prev}', f's_add_u32 s{70 + j}, s{70 + j}, s69']
            prev = cur
        code = c2
    for i in code:
        P(i)
    rl = f'''buffer_load_dwordx4 {q4(RED)}, v{V_L16}, {S_WS}, s51 offen sc1 ;nodep
    buffer_load_dwordx4 {q4(RED + 4)}, v{V_L16}, {S_WS}, s51 offen offset:1024 sc1 ;nodep'''
    gl = f'''buffer_load_dwordx4 {q4(MEM)}, v{V_L16}, {S_WS}, s52 offen sc1 ;nodep
    buffer_load_dwordx4 {q4(MEM + 4)}, v{V_L16}, {S_WS}, s52 offen offset:1024 sc1 ;nodep'''

    def chk(b, dst):
        return f'''v_max3_u32 v{V_T2}, v{b}, v{b + 1}, v{b + 2}
        v_max3_u32 v{V_T1}, v{b + 3}, v{b + 4}, v{b + 5}
        v_max3_u32 v{V_T2}, v{V_T2}, v{b + 6}, v{b + 7}
        v_max_u32 v{V_T2}, v{V_T2}, v{V_T1}
        v_cmp_eq_u32 {dst}, {S_SENT}, v{V_T2}'''
    red = f'''{MF} {q4(RDD)}, {q4(V_SEL)}, {q4(RED)}, 0
    {MF} {q4(RDD)}, {q4(V_SEL)}, {q4(RED + 4)}, {q4(RDD)}'''
    fin = '\n'.join([dppadd(RDD + r, RDD + r, RDD + r, ror) for ror in (4, 8) for r in range(4)] +
                    [cvt(RDD, RDD), cvt(RDD + 1, RDD + 2)])
    P(mk(0))
    z = [f'v_mov_b32 v{AQ + i}, 0' for i in range(24)]
    wbr = preload()
    def pause(c):
        return f's_sleep {c}' if c else ''
    P(f'''
    s_xor_b32 s47, s48, 8192
    s_add_u32 {S_S}, {S_S}, 1
    s_add_u32 s33, {S_S}, 1
    s_add_u32 s28, s28, 0x80000
    s_mov_b32 s27, s30
    s_add_u32 s30, s30, 0x40000
    s_sub_u32 s26, {S_S}, {0 if opt.get('kmode', 1) == 1 else 1}
    s_cmp_eq_u32 {S_S}, {NS - 1}
    s_cselect_b32 s29, {NS}, {S_S}
    v_mov_b32 v{T4}, {S_SENT}
    v_mov_b32 v{T4 + 1}, {S_SENT}
    v_mov_b32 v{T4 + 2}, {S_SENT}
    v_mov_b32 v{T4 + 3}, {S_SENT}
    {chr(10).join(wbr)}
    {pause(opt.get('a1', 3))}
    {rl}
    {pause(opt.get('a2', 2))}
    {tag}_rpoll:
    {rl}
    s_waitcnt vmcnt(2)
    {red}
    {chk(RED, 's[54:55]')}
    v_cmp_u_f32 vcc, v{RDD}, v{RDD}
    {fin}
    s_cbranch_vccnz {tag}_rretry
    {tag}_rok:
    s_mov_b64 exec, 0x000f000f
    buffer_store_dwordx2 {q2(RDD)}, v{V_MST}, {S_WS}, s48 offen{XS}
    buffer_store_dwordx2 {q2(T4)}, v{V_MST}, {S_WS}, s47 offen{XS}
    s_mov_b64 exec, -1
    {mk(1)}
    v_cmp_ge_u32 vcc, s29, v{V_FL}
    v_mov_b32 v{V_T0}, s26
    s_xor_b32 s50, s50, 0x80000
    s_xor_b32 s53, s53, 0x80000
    s_xor_b32 s51, s51, 0x80000
    s_xor_b32 s49, s49, 0x80000
    s_xor_b32 s48, s48, 8192
    {chr(10).join(z)}
    s_cbranch_vccnz {tag}_special
    {pause(opt.get('b1', 2))}
    {gl}
    {pause(opt.get('b2', 2))}
    {tag}_gpoll:
    {gl}
    s_waitcnt vmcnt(2)
    {chk(MEM, 'vcc')}
    ds_write_b128 v{V_MW}, {q4(MEM)}
    ds_write_b128 v{V_MW}, {q4(MEM + 4)} offset:1024
    s_cbranch_vccnz {tag}_gretry
    {mk(2)}
    s_xor_b32 s52, s52, 8192
    s_branch {tag}_step
    {tag}_gretry:
    {stamps.count(opt, 7)}
    {GUARD}
    s_branch {tag}_gpoll
    {tag}_rretry:
    {stamps.count(opt, 6)}
    {GUARD}
    s_cmp_lg_u64 s[54:55], 0
    s_cbranch_scc1 {tag}_rpoll
    {red}
    {fin}
    s_branch {tag}_rok
    ; next K/V tile not yet announced, or the last step follows
    {tag}_special:
    {gl}
    buffer_load_dword v{V_FL}, off, {S_WS}, s31 sc1
    s_waitcnt vmcnt(0)
    {GUARD}
    {chk(MEM, 'vcc')}
    s_cbranch_vccnz {tag}_special
    s_cmp_eq_u32 {S_S}, {NS - 1}
    s_cbranch_scc1 {tag}_sp2
    v_cmp_ge_u32 vcc, {S_S}, v{V_FL}
    s_cbranch_vccnz {tag}_special
    {tag}_sp2:
    ds_write_b128 v{V_MW}, {q4(MEM)}
    ds_write_b128 v{V_MW}, {q4(MEM + 4)} offset:1024
    {mk(3)}
    s_xor_b32 s52, s52, 8192
    s_cmp_eq_u32 {S_S}, {NS - 1}
    s_cbranch_scc0 {tag}_step
    s_waitcnt lgkmcnt(0)
    s_branch chain_last
    ''')
```

```python
from layout import *
import stamps
from chain import q4, q2, GUARD, S_WS, S_W, S_H, S_G
from roles import cvt, unpack8, row_block

WAVE_LDS = 40960


def srd(P, base, karg, nbytes):
    P(f's_load_dwordx2 s[{base}:{base + 1}], s[0:1], {karg}')
    P(f's_mov_b32 s{base + 2}, {nbytes}')
    P(f's_mov_b32 s{base + 3}, 0x00020000')


def announce(P, stage):
    l = P.uid('ann')
    P(f'''
    s_waitcnt vmcnt(0)
    s_barrier
    s_cmp_lg_u32 {S_W}, 0
    s_cbranch_scc1 {l}
    v_mov_b32 v1, {stage}
    buffer_store_dword v1, off, {S_WS}, s55 sc1
    {l}:
    ''')


def wait_all(P, stage, va, v1, v2, upper=False):
    l, d = P.uid('wa'), P.uid('wa')
    P(f'''
    s_mov_b32 s22, {F_P + (8192 if upper else 0)}
    s_mov_b32 s23, {F_P + 8192}
    {l}:
    buffer_load_dword v{v1}, v{va}, {S_WS}, s22 offen sc1
    buffer_load_dword v{v2}, v{va}, {S_WS}, s23 offen sc1
    s_waitcnt vmcnt(0)
    v_min_u32 v{v1}, v{v1}, v{v2}
    v_cmp_gt_u32 vcc, {stage}, v{v1}
    s_cbranch_vccz {d}
    {GUARD}
    s_sleep 2
    s_branch {l}
    {d}:
    ''')


def gen_pre_role(P, opt):
    P(f'''
    ; ================= preparation =================
    pre_role:
    s_lshr_b32 s22, {S_G}, 1
    s_cmp_eq_u32 {S_G}, 6
    s_cselect_b32 s22, 2, s22
    s_lshl_b32 s54, s22, 5
    s_add_u32 s54, s54, {S_H}
    s_lshl_b32 s55, s54, 7
    s_add_u32 s55, s55, {F_P}
    s_bfe_u32 s22, s54, 0x40002
    s_lshl_b32 s22, s22, 8
    s_and_b32 s23, s54, 1
    s_lshl_b32 s23, s23, 7
    s_add_u32 s85, s22, s23
    s_and_b32 s23, s54, 2
    s_lshl_b32 s23, s23, 11
    s_add_u32 s85, s85, s23
    s_add_u32 s85, s85, {F_H}
    ''')
    gen_prework(P, opt, f'''
    v_mov_b32 v1, 0
    v_mov_b32 v18, 16
    buffer_store_dword v18, off, {S_WS}, s85 sc1
    buffer_store_dword v1, off, {S_WS}, s55 sc1
    ''')
    P('v_mov_b32 v255, 0\ns_branch main_roles')


def gen_prework(P, opt, init):
    MF32 = 'v_mfma_f32_32x32x16_bf16'
    srd(P, 20, 8, S * D * 2)
    srd(P, 24, 16, S * D * 2)
    srd(P, 28, 24, D * 4 * 2)
    srd(P, 32, 32, D * S * 2)
    srd(P, 36, 40, D * 2)
    srd(P, 44, 0, S * D * 2)
    KR, VR, SH = 64, 88, 104
    P(f'''
    v_and_b32 v2, 63, v0
    s_and_b32 s48, s54, 7
    s_lshl_b32 s48, s48, 6
    s_and_b32 s49, {S_W}, 1
    s_lshl_b32 s49, s49, 5
    s_add_u32 s48, s48, s49
    s_lshr_b32 s49, s54, 3
    s_lshl_b32 s49, s49, 7
    s_lshr_b32 s50, {S_W}, 1
    s_lshl_b32 s50, s50, 6
    s_add_u32 s49, s49, s50
    v_and_b32 v3, 15, v2
    v_lshl_add_u32 v3, v3, 1, s48
    v_lshrrev_b32 v4, 4, v2
    v_lshl_add_u32 v4, v4, 4, s49
    v_lshlrev_b32 v5, 10, v4
    v_lshl_add_u32 v5, v3, 1, v5
    v_subrev_u32 v6, 3072, v5
    v_lshlrev_b32 v7, 3, v3
    s_waitcnt lgkmcnt(0)
    buffer_load_dwordx4 {q4(SH)}, v7, s[28:31], 0 offen
    ''')
    for i in range(3):
        P(f'v_add_u32 v8, {1024 * i}, v6')
        P(f'buffer_load_dword v{KR + i}, v8, s[20:23], 0 offen')
    for j in range(16):
        if j % 4 == 0:
            P(f's_movk_i32 s51, {1024 * j}')
        P(f'buffer_load_dword v{KR + 3 + j}, v5, s[20:23], s51 offen offset:{1024 * (j & 3)}')
        P(f'buffer_load_dword v{VR + j}, v5, s[24:27], s51 offen offset:{1024 * (j & 3)}')
    FK = 112
    P(f'''
    s_and_b32 s52, s54, 7
    s_lshl_b32 s52, s52, 6
    s_lshr_b32 s53, s54, 3
    s_lshl_b32 s53, s53, 2
    s_add_u32 s52, s52, s53
    s_add_u32 s52, s52, {S_W}
    v_lshlrev_b32 v10, 4, v2
    v_subrev_u32 v11, 16, v10
    v_cmp_eq_u32 vcc, 0, v2
    v_mov_b32 v12, 0x7ffffff0
    v_cndmask_b32 v9, v11, v12, vcc
    ''')

    def load_filter(n):
        P('s_lshl_b32 s53, s52, 12\ns_lshl_b32 s51, s52, 1')
        for j in range(n):
            prev = 'v9, s[32:35], s53 offen' if j == 0 else f'v10, s[32:35], s53 offen offset:{1024 * j - 16}'
            P(f'buffer_load_dwordx4 {q4(FK + 8 * j)}, {prev}')
            P(f'buffer_load_dwordx4 {q4(FK + 8 * j + 4)}, v10, s[32:35], s53 offen offset:{1024 * j}')
        P('buffer_load_ushort v108, off, s[36:39], s51')
    load_filter(2)
    P(stamps.tl(opt, 0, 1))
    P('v_mov_b32 v16, v2\nv_mov_b32 v17, v3')
    opt['ready'](P, 41, init)
    P(stamps.tl(opt, 1, 1))
    if opt.get('tlb') == 1:
        P('s_waitcnt vmcnt(0)')
    P(stamps.tl(opt, 2, 1))
    P('v_mov_b32 v2, v16\nv_mov_b32 v3, v17')
    C, KF, AC, PKV = 20, 28, 48, 144
    for ch in range(2):
        for i in range(2):
            P(f'v_lshlrev_b32 v{C + 4 * ch + 2 * i}, 16, v{SH + 2 * ch + i}')
            P(f'v_and_b32 v{C + 4 * ch + 2 * i + 1}, 0xffff0000, v{SH + 2 * ch + i}')
    P(f'''
    v_sub_u32 v15, {S - 16}, v4
    v_lshlrev_b32 v15, 1, v15
    v_lshl_add_u32 v15, v3, 12, v15
    s_mov_b32 s48, {KVT}
    s_mov_b32 s49, {KVT + 4096}
    ''')
    for ch in range(2):
        for i in range(19):
            P(f'v_lshlrev_b32 v{KF + i}, 16, v{KR + i}' if ch == 0 else f'v_and_b32 v{KF + i}, 0xffff0000, v{KR + i}')
        for j in range(16):
            P(f'v_mul_f32 v{AC + j}, v{KF + j + 3}, v{C + 4 * ch}')
        for tap in range(1, 4):
            for j in range(16):
                P(f'v_fmac_f32 v{AC + j}, v{KF + j + 3 - tap}, v{C + 4 * ch + tap}')
        for j in range(16):
            P(f'v_lshlrev_b32 v{KF + j}, 16, v{VR + j}' if ch == 0 else f'v_and_b32 v{KF + j}, 0xffff0000, v{VR + j}')
        for j in range(0, 16, 2):
            P(f'v_pk_mul_f32 {q2(AC + j)}, {q2(AC + j)}, {q2(KF + j)}')
        for i in range(8):
            P(f'v_cvt_pk_bf16_f32 v{PKV + 8 * ch + i}, v{AC + 15 - 2 * i}, v{AC + 14 - 2 * i}')
        P(f'buffer_store_dwordx4 {q4(PKV + 8 * ch)}, v15, {S_WS}, s{48 + ch} offen sc1')
        P(f'buffer_store_dwordx4 {q4(PKV + 8 * ch + 4)}, v15, {S_WS}, s{48 + ch} offen offset:16 sc1')
    P(stamps.tl(opt, 3, 1))
    Y, OPS, NB, KVR = 64, 16, 4, 144
    y = f'v[{Y}:{Y + 15}]'

    def geometry(half):
        nu = 2 << half
        stride = (64 * nu + 4) * 16
        return nu, stride, 8 * stride

    def prepare(half):
        nu, stride, boff = geometry(half)
        P(f'''
        s_mul_i32 s48, {S_W}, {WAVE_LDS}
        v_mov_b32 v40, 0
        v_mov_b32 v41, 0
        v_mov_b32 v42, 0
        v_mov_b32 v43, 0
        v_add_u32 v14, s48, v10
        ds_write_b128 v14, v[40:43] offset:{boff + 16 * nu * 80}
        ds_write_b128 v14, v[40:43] offset:{boff + 16 * nu * 80 + 1024}
        ds_write_b128 v14, v[40:43] offset:{boff + 16 * nu * 80 + 31 * 80 - 1024}
        v_and_b32 v12, 7, v2
        v_mul_u32_u24 v12, {stride}, v12
        v_add_u32 v12, s48, v12
        ds_write_b128 v12, v[40:43]
        ds_write_b128 v12, v[40:43] offset:16
        ds_write_b128 v12, v[40:43] offset:32
        v_lshrrev_b32 v13, 2, v2
        v_mul_u32_u24 v13, 80, v13
        v_and_b32 v11, 3, v2
        v_lshl_add_u32 v13, v11, 4, v13
        v_add_u32 v13, s48, v13
        v_and_b32 v3, 31, v2
        v_lshrrev_b32 v4, 5, v2
        v_lshrrev_b32 v6, 3, v3
        v_add_u32 v6, v6, v4
        v_lshl_add_u32 v5, v6, 4, v12
        v_sub_u32 v6, 31, v3
        v_mul_u32_u24 v6, 80, v6
        v_lshl_add_u32 v6, v4, 4, v6
        v_add_u32 v6, s48, v6
        v_lshlrev_b32 v3, 6, v3
        v_lshl_add_u32 v3, v4, 4, v3
        ''')
        assert boff + (16 * nu + 31) * 80 <= WAVE_LDS

    def build_a(half):
        nu, stride, boff = geometry(half)
        P(f'''
        v_lshlrev_b32 v11, 16, v108
        v_lshlrev_b32 v7, 16, v{FK + 4}
        v_add_f32 v7, v7, v11
        v_cvt_pk_bf16_f32 v7, v7, v7
        v_mov_b32 v11, 0xffff
        v_bfi_b32 v7, v11, v7, v{FK + 4}
        v_cmp_eq_u32 vcc, 0, v2
        v_cndmask_b32 v{FK + 4}, v{FK + 4}, v7, vcc
        ''')
        for j in range(nu):
            b = FK + 8 * j
            for c in range(8):
                sh = 1 + c
                o = 44 + 4 * (c & 1)
                if sh & 3:
                    for i in range(4):
                        lo = b + (sh >> 1) + i
                        P(f'v_alignbit_b32 v{o + i}, v{lo + 1}, v{lo}, 16' if sh & 1 else f'v_mov_b32 v{o + i}, v{lo}')
                    src = q4(o)
                else:
                    src = q4(b + (sh >> 1))
                P(f'ds_write_b128 v14, {src} offset:{c * stride + 48 + 1024 * j}')

    def load_kv(half):
        nu = 2 << half
        P(f's_add_u32 s51, s53, {KVT + (0 if half else 2048)}')
        for j in range(nu):
            P(f'buffer_load_dwordx4 {q4(KVR + 4 * j)}, v10, {S_WS}, s51 offen offset:{1024 * j} sc1')

    def convolve(half):
        nu, stride, boff = geometry(half)
        for j in range(nu):
            P(f'ds_write_b128 v13, {q4(KVR + 4 * j)} offset:{boff + 16 * 80 * j}')
        P('s_waitcnt lgkmcnt(0)')
        n = 32 * nu

        def reads(st):
            m, be = st >> 1, st & 1
            b = OPS + 8 * (st % NB)
            return [f'ds_read_b128 {q4(b)}, v5 offset:{64 * m + 32 * be}',
                    f'ds_read_b128 {q4(b + 4)}, v6 offset:{boff + 80 * m + 32 * be}']
        for st in range(NB - 1):
            for i in reads(st):
                P(i)
        for st in range(n):
            b = OPS + 8 * (st % NB)
            P(f'{MF32} {y}, {q4(b)}, {q4(b + 4)}, {y if st else 0}')
            if st + NB - 1 < n:
                for i in reads(st + NB - 1):
                    P(i)
        P(f's_add_u32 s51, s53, {YT + 2048 * half}')
        o = 96
        for i in range(8):
            P(cvt(o + i, Y + 2 * i))
        for pr in range(2):
            P(f'v_permlane32_swap_b32 v{o + 4 * pr}, v{o + 4 * pr + 2}')
            P(f'v_permlane32_swap_b32 v{o + 4 * pr + 1}, v{o + 4 * pr + 3}')
            P(f'buffer_store_dwordx4 {q4(o + 4 * pr)}, v3, {S_WS}, s51 offen offset:{32 * pr} sc1')

    def rows(nr, first_row_code, stage, upper):
        P(first_row_code)
        P(f'''
        s_lshl_b32 s48, s50, 10
        s_mul_i32 s49, {S_W}, {1024 * nr}
        s_add_u32 s48, s48, s49
        ''')
        for r in range(nr):
            P(f'buffer_load_dwordx4 {q4(112 + 4 * r)}, v10, s[44:47], s48 offen offset:{1024 * r}')
        announce(P, stage)
        P(stamps.tl(opt, 2) if not upper else '')
        P('v_lshlrev_b32 v11, 7, v2')
        wait_all(P, stage, 11, 12, 13, upper)
        P(f'''
        {stamps.tl(opt, 3) if not upper else ''}
        v_lshlrev_b32 v3, 13, v0
        s_lshl_b32 s50, s50, 1
        s_add_u32 s50, s50, {YT}
        s_add_u32 s51, s50, 4096
        s_mov_b32 s22, 0x05040100
        s_mov_b32 s23, 0x07060302
        v_lshlrev_b32 v5, 2, v0
        ''')
        for j in range(nr // 2):
            P(f'buffer_load_dwordx4 {q4(16 + 4 * j)}, v3, {S_WS}, s50 offen offset:{16 * j} sc1')
            P(f'buffer_load_dwordx4 {q4(24 + 4 * j)}, v3, {S_WS}, s51 offen offset:{16 * j} sc1')
        for t in range(4 * nr):
            P(f'v_perm_b32 v{6 + (t & 1)}, v{24 + (t >> 1)}, v{16 + (t >> 1)}, s{22 + (t & 1)}')
            P(f'ds_write_b32 v5, v{6 + (t & 1)} offset:{1024 * t}')
        P(f'''
        v_add_u32 v5, s49, v10
        s_add_u32 s50, s48, {YTOT}
        s_add_u32 s51, s48, {X1}
        s_add_u32 s49, s48, {H1}
        s_waitcnt lgkmcnt(0)
        s_barrier
        ''')
        for r in range(nr):
            P(f'ds_read_b128 {q4(128 + 4 * r)}, v5 offset:{1024 * r}')
        seqs = []
        for rr in range(nr):
            b = (16, 56, 144, 184)[rr]
            X, Yv, N_, PKX, PH, TT = b, b + 8, b + 16, b + 24, b + 28, b + 32
            sq = unpack8(X, 112 + 4 * rr) + unpack8(Yv, 128 + 4 * rr) + row_block(X, Yv, N_, PKX, PH, TT)
            sq += [f'buffer_store_dwordx4 {q4(PH)}, v10, {S_WS}, s49 offen offset:{1024 * rr} sc1',
                   f'buffer_store_dwordx4 {q4(PKX)}, v10, {S_WS}, s51 offen offset:{1024 * rr} sc1',
                   f'buffer_store_dwordx4 {q4(128 + 4 * rr)}, v10, {S_WS}, s50 offen offset:{1024 * rr} sc1']
            seqs.append(sq)
        for tup in zip(*seqs):
            for x in tup:
                P(x)

    prepare(0)
    build_a(0)
    P(f'''
    {stamps.tl(opt, 4, 1)}
    s_waitcnt vmcnt(0)
    s_barrier
    s_cmp_lg_u32 {S_W}, 0
    s_cbranch_scc1 pw_cnt
    s_and_b32 s51, s54, 7
    s_lshl_b32 s51, s51, 2
    s_mov_b64 exec, 1
    v_mov_b32 v1, 1
    s_cmp_ge_u32 s54, 64
    s_cbranch_scc1 pw_cnt2
    buffer_atomic_add v1, off, s[4:7], s51 offset:80
    pw_cnt2:
    buffer_atomic_add v1, off, s[4:7], 0 offset:140
    {stamps.tl(opt, 0)}
    pw_kv:
    buffer_load_dword v12, off, s[4:7], s51 offset:80 sc1
    s_waitcnt vmcnt(0)
    v_cmp_gt_u32 vcc, 8, v12
    s_cbranch_vccz pw_kvgo
    {GUARD}
    s_sleep 3
    s_branch pw_kv
    pw_kvgo:
    s_mov_b64 exec, -1
    pw_cnt:
    s_barrier
    ''')
    P(stamps.tl(opt, 1))
    load_kv(0)
    convolve(0)
    opt['wait_ready'](P, 16, True)
    rows(2, 's_lshl_b32 s50, s54, 3', 2, False)
    announce(P, 3)
    P(stamps.tl(opt, 4))
    P(f'''
    s_cmp_lt_u32 s54, 64
    s_cbranch_scc1 pw_done
    s_and_b32 s52, s54, 63
    s_lshl_b32 s52, s52, 3
    s_add_u32 s52, s52, {S_W}
    ''')
    prepare(1)
    P('pw_b:')
    load_filter(4)
    load_kv(1)
    build_a(1)
    convolve(1)
    P('s_add_u32 s52, s52, 4\ns_bitcmp1_b32 s52, 2\ns_cbranch_scc1 pw_b')
    rows(4, 's_lshl_b32 s50, s54, 4', 4, True)
    announce(P, 5)
    wait_all(P, 5, 11, 12, 13, True)
    P(f'''
    v_mov_b32 v1, {NS}
    buffer_store_dword v1, off, {S_WS}, s85 sc1
    pw_done:
    ''')
```

```python
from layout import *
import stamps
import loader
from asmtool import schedule
from stamps import marks
from chain import (S_WS, S_W, S_H, S_G, S_PURE, S_LAYER, S_S, S_C, GUARD, MF, MF16, DPPF, q4, q2)


def a4(b):
    return 'a[%d:%d]' % (b, b + 3)


def cvt(d, a):
    return f'v_cvt_pk_bf16_f32 v{d}, v{a}, v{a + 1}'


def xlane(op, x, t):
    return [f'v_mov_b32 v{t}, v{x}', f'v_permlane16_swap_b32 v{x}, v{t}', f'{op} v{x}, v{x}, v{t}',
            f'v_mov_b32 v{t}, v{x}', f'v_permlane32_swap_b32 v{x}, v{t}', f'{op} v{x}, v{x}, v{t}']


def wave_sum(x, t):
    o = [f'v_add_f32_dpp v{x}, v{x}, v{x} row_ror:{r} {DPPF}' for r in (1, 2, 4, 8)]
    return o + xlane('v_add_f32', x, t)


def load_weights(P, mats, r, hooks=None):
    loader.setup(P, r, False)
    gr = []
    for mi, X in enumerate(mats):
        for G in range(4):
            if X == 'o':
                gr.append((X, f's_add_u32 s43, s41, {G * 32768}',
                           [[('a', 128 * mi + 4 * (4 * (2 * Pp + t) + G)) for t in range(2)] for Pp in range(4)]))
            else:
                gr.append((X, f's_add_u32 s43, s40, {G * 128 * 8192}',
                           [[('a', 128 * mi + 4 * (16 * t + 4 * G + pp)) for t in range(2)] for pp in range(4)]))
    loader.run(P, gr, r, False, None, None, hooks)
    P('s_barrier')


def h_dma_addr(P, vd, r0, r1, t0):
    P(f'''
    v_lshrrev_b32 v{t0}, 5, v0
    v_lshlrev_b32 v{vd}, 13, v{t0}
    v_bfe_u32 v{t0}, v0, 3, 2
    v_lshl_add_u32 v{vd}, v{t0}, 10, v{vd}
    v_lshrrev_b32 v{t0}, 3, v0
    v_and_b32 v{t0}, 6, v{t0}
    v_xor_b32 v{t0}, v{t0}, v0
    v_and_b32 v{t0}, 7, v{t0}
    v_lshl_add_u32 v{vd}, v{t0}, 4, v{vd}
    v_and_b32 v{r0}, 15, v0
    v_lshlrev_b32 v{r0}, 7, v{r0}
    v_lshrrev_b32 v{t0}, 4, v0
    v_and_b32 v{r1}, 6, v0
    v_xor_b32 v{t0}, v{t0}, v{r1}
    v_lshl_add_u32 v{r0}, v{t0}, 4, v{r0}
    v_xor_b32 v{r1}, 64, v{r0}
    ''')


def h_dma(vd, s_src, s_lds):
    o = []
    for i in range(8):
        o += [f's_add_u32 m0, {s_lds}, {4096 * i - 128 * i}',
              f'buffer_load_dwordx4 v{vd}, {S_WS}, {s_src} offen offset:{128 * i} sc1 lds']
    return o


def h_wave_part(src, lds):
    return f'''s_lshr_b32 s23, {S_W}, 1
    s_lshl_b32 s23, s23, 12
    s_add_u32 {src}, {src}, s23
    s_and_b32 s23, {S_W}, 1
    s_lshl_b32 s23, s23, 14
    s_add_u32 {src}, {src}, s23
    s_lshl_b32 {lds}, {S_W}, 10'''


def h_read(dst, r0, r1, kk, t):
    return f'ds_read_b128 {q4(dst)}, v{r1 if kk & 1 else r0} offset:{(kk >> 1) * 4096 + t * 2048}'


def gen_kv(P, opt):
    V_L16, V_HD, V_F, V_FA, V_T0, V_R0, V_R1, V_TH = 1, 8, 3, 4, 5, 6, 7, 9
    HB = 80
    AK = 32
    AV = 48
    PK = 64
    P.label('kv_role')
    P(f'''
    v_and_b32 v0, 63, v0
    v_lshlrev_b32 v{V_L16}, 4, v0
    v_lshlrev_b32 v{V_FA}, 7, v0
    v_lshrrev_b32 v{V_TH}, 5, v0
    ''')
    h_dma_addr(P, V_HD, V_R0, V_R1, V_T0)
    flush = f'''v_mov_b32 v{V_T0}, {S_S}
    buffer_store_dword v{V_T0}, off, {S_WS}, s31 sc1
    s_mov_b32 s27, 0'''
    P(f'''
    s_lshl_b32 s20, {S_LAYER}, 21
    s_add_u32 s20, s20, {H1}
    {h_wave_part('s20', 's21')}
    s_lshl_b32 s24, {S_LAYER}, 13
    s_add_u32 s24, s24, {F_H}
    s_lshl_b32 s25, {S_H}, 2
    s_add_u32 s25, s25, {S_W}
    s_lshl_b32 s22, {S_LAYER}, 25
    s_lshl_b32 s23, s25, 12
    s_add_u32 s22, s22, s23
    s_add_u32 s28, s22, {KVIMG}
    s_lshl_b32 s22, {S_LAYER}, 14
    s_lshl_b32 s23, s25, 7
    s_add_u32 s22, s22, s23
    s_add_u32 s31, s22, {F_KV}
    ''')
    init = f'v_mov_b32 v{V_T0}, 0\nbuffer_store_dword v{V_T0}, off, {S_WS}, s31 sc1'
    load_weights(P, 'kv', 16, (lambda n: opt['ready'](P, n, init), lambda n: opt['count_ready'](P, n, V_T0)))
    P(stamps.tl(opt, 5))
    opt['wait_ready'](P, 16)
    P(f's_cmp_lg_u32 {S_LAYER}, 0\ns_cbranch_scc1 kv_start')
    opt['wait_all'](P, 3, V_FA, 17, 18)
    P(f'''
    kv_start:
    v_and_b32 v{V_FA}, 0x2b, v0
    v_lshlrev_b32 v{V_FA}, 7, v{V_FA}
    s_and_b32 s22, {S_W}, 1
    s_lshl_b32 s22, s22, 11
    s_add_u32 s24, s24, s22
    s_lshr_b32 s22, {S_W}, 1
    s_lshl_b32 s22, s22, 9
    s_add_u32 s24, s24, s22
    s_mov_b32 {S_S}, 0
    s_mov_b32 s26, 0
    s_mov_b32 s27, 0
    ''')
    stamps.init(P, opt)
    seg = f'v_lshl_add_u32 v{V_F}, v{V_F}, 1, v{V_TH}'
    P(f'''
    kv_loop:
    s_cmp_eq_u32 s26, 0
    s_cbranch_scc0 kv_have
    kv_poll:
    buffer_load_dword v{V_F}, v{V_FA}, {S_WS}, s24 offen sc1
    s_waitcnt vmcnt(0)
    s_cmp_eq_u32 s27, 0
    s_cbranch_scc1 kv_poll2
    {flush}
    {stamps.tlc(opt, 3, S_S, 41)}
    kv_poll2:
    {seg}
    v_cmp_ge_u32 vcc, {S_S}, v{V_F}
    s_cbranch_vccz kv_go
    {GUARD}
    s_sleep 1
    s_branch kv_poll
    kv_go:
    {stamps.tlc(opt, 0, S_S, 40)}
    {marks(opt, 0)}
    ''')
    for i in h_dma(V_HD, 's20', 's21'):
        P(i)
    for i in range(2):
        P(f'buffer_load_dword v{V_T0}, off, {S_WS}, s31 ;nodep')
    P(f'''
    kv_have:
    s_add_u32 s30, {S_S}, 1
    s_cmp_eq_u32 s30, {NS}
    s_cselect_b32 s30, 1000, s30
    v_cmp_ge_u32 vcc, s30, v{V_F}
    s_add_u32 s20, s20, 32768
    s_xor_b32 s21, s21, 32768
    s_cmp_eq_u32 s27, 0
    s_cselect_b32 s29, 0x7fff0000, s31
    v_mov_b32 v2, {S_S}
    s_waitcnt vmcnt(8)
    s_barrier
    {stamps.tlc(opt, 1, S_S, 40)}
    {marks(opt, 1)}
    s_cbranch_vccnz kv_late
    ''')
    for early in (1, 0):
        tf, tc = opt.get('kvf', 950), (2000 if early else opt.get('kvc', 1650))
        it = []
        for j in range(1, 4):
            it += [f's_waitcnt vmcnt({8 - 2 * j}) ;before:g{j} ;t:{130 + 110 * j}', f'@bar g{j}']
        hd = h_dma(V_HD, 's20' if early else 's23', 's21')
        dma = [[hd[2 * i], hd[2 * i + 1] + ' ;after:g3'] for i in range(8)]
        fl = [[f's_waitcnt vmcnt({8 if early else 0})',
               f'buffer_load_dword v{V_F}, v{V_FA}, {S_WS}, s24 offen sc1',
               f'buffer_store_dword v2, off, {S_WS}, s29 sc1']]
        chk = [seg + f' ;t:{tc}']
        if not early:
            chk += [f'v_cmp_ge_u32 vcc, s30, v{V_F} ;by:{tc + 40}',
                    ['s_nop 0', 's_cmp_eq_u64 vcc, 0', 's_cselect_b32 s26, 1, 0', 's_cselect_b32 s23, s20, 0x7fff0000']] + dma
        it += (dma + fl + ['s_mov_b32 s26, 1']) if early else fl
        for X in range(2):
            for kk in range(16):
                b = HB + 8 * (kk & 3)
                it += [h_read(b + 4 * tt, V_R0, V_R1, kk, tt) + (f' ;r:g{kk >> 2}' if kk >= 4 else '') for tt in range(2)]
                for te in range(2):
                    for tt in range(2):
                        if X == 0:
                            d = AK + 8 * tt + 4 * te
                            it.append(f'{MF} {q4(d)}, {a4(4 * (16 * te + kk))}, {q4(b + 4 * tt)}, {q4(d) if kk else 0}')
                        else:
                            d = AV + 8 * te + 4 * tt
                            it.append(f'{MF} {q4(d)}, {q4(b + 4 * tt)}, {a4(128 + 4 * (16 * te + kk))}, {q4(d) if kk else 0}')
            if X:
                it += chk
            for qd in range(2 * X, 2 * X + 2):
                it += [cvt(PK + 4 * qd + i, AK + 8 * qd + 2 * i) for i in range(4)]
                it.append(f'buffer_store_dwordx4 {q4(PK + 4 * qd)}, v{V_L16}, {S_WS}, s28 offen offset:{1024 * qd} sc1' + ('' if X else ' ;by:1400'))
        it += [f'v_xor_b32 v{V_R0}, 32768, v{V_R0}', f'v_xor_b32 v{V_R1}, 32768, v{V_R1}']
        code, t = schedule(it, verbose=opt.get('verbose') == 20 + early, anneal=opt.get('an2', 60000))
        for c in stamps.profile(code, opt, 20 + early):
            P(c)
        P('s_branch kv_next\nkv_late:' if early else 'kv_next:')
    P(f'''
    s_add_u32 s28, s28, 0x80000
    s_mov_b32 s27, 1
    {stamps.tlc(opt, 2, S_S, 40)}
    {marks(opt, 2)}
    s_add_u32 {S_S}, {S_S}, 1
    s_cmp_lt_u32 {S_S}, {NS}
    s_cbranch_scc1 kv_loop
    s_waitcnt vmcnt(0)
    {flush}
    ''')
    stamps.dump(P, opt)
    P('s_waitcnt vmcnt(0)\ns_endpgm')


def unpack8(dst, src):
    o = []
    for i in range(4):
        o += [f'v_and_b32 v{dst + 2 * i + 1}, 0xffff0000, v{src + i}', f'v_lshlrev_b32 v{dst + 2 * i}, 16, v{src + i}']
    return o


def ln8(x, n, t):
    a, b = t, t + 1
    o = [f'v_pk_add_f32 {q2(t)}, {q2(x)}, {q2(x + 2)}', f'v_pk_add_f32 {q2(t + 2)}, {q2(x + 4)}, {q2(x + 6)}',
         f'v_pk_add_f32 {q2(t)}, {q2(t)}, {q2(t + 2)}', f'v_add_f32 v{a}, v{a}, v{b}']
    o += wave_sum(a, b)
    o += [f'v_mul_f32 v{a}, 0x3b000000, v{a}']
    o += [f'v_pk_add_f32 {q2(n + i)}, {q2(x + i)}, {q2(t)} op_sel_hi:[1,0] neg_lo:[0,1] neg_hi:[0,1]' for i in range(0, 8, 2)]
    o += [f'v_pk_mul_f32 {q2(t)}, {q2(n)}, {q2(n)}', f'v_pk_mul_f32 {q2(t + 2)}, {q2(n + 2)}, {q2(n + 2)}',
          f'v_pk_fma_f32 {q2(t)}, {q2(n + 4)}, {q2(n + 4)}, {q2(t)}',
          f'v_pk_fma_f32 {q2(t + 2)}, {q2(n + 6)}, {q2(n + 6)}, {q2(t + 2)}',
          f'v_pk_add_f32 {q2(t)}, {q2(t)}, {q2(t + 2)}', f'v_add_f32 v{a}, v{a}, v{b}']
    o += wave_sum(a, b)
    o += [f'v_mov_b32 v{b}, 0x3727c5ac', f'v_fmac_f32 v{b}, 0x3b000000, v{a}', f'v_rsq_f32 v{a}, v{b}']
    o += [f'v_pk_mul_f32 {q2(n + i)}, {q2(n + i)}, {q2(t)} op_sel_hi:[1,0]' for i in range(0, 8, 2)]
    return o


def row_block(x, y, n, pk, ph, t):
    o = ln8(x, n, t)
    o += [f'v_pk_fma_f32 {q2(x + i)}, {q2(n + i)}, {q2(y + i)}, {q2(x + i)}' for i in range(0, 8, 2)]
    o += [cvt(pk + i, x + 2 * i) for i in range(4)]
    o += unpack8(x, pk)
    o += ln8(x, n, t)
    o += [cvt(ph + i, n + 2 * i) for i in range(4)]
    return o
```

```python
from layout import STAMP
NPH = 12


def init(P, opt):
    if not opt.get('stamp'):
        return
    P('s_memtime s[60:61]\ns_memrealtime s[62:63]\ns_waitcnt lgkmcnt(0)')
    for i in range(NPH):
        P(f's_mov_b32 s{70 + i}, 0')
    P('s_mov_b32 s68, s60')


def mark(opt, i, lvl=2):
    if opt.get('stamp', 0) == lvl:
        return ['s_memtime s[64:65]', 's_waitcnt lgkmcnt(0)', 's_sub_u32 s69, s64, s68',
                f's_add_u32 s{70 + i}, s{70 + i}, s69', 's_mov_b32 s68, s64']
    return []


def marks(opt, i, lvl=2):
    return '\n'.join(mark(opt, i, lvl))


def count(opt, i):
    return f's_add_u32 s{70 + i}, s{70 + i}, 1' if opt.get('stamp') in (1, 2) else ''


def tl(opt, i, bank=0):
    if opt.get('stamp') in (1, 2) and opt.get('tlb', 0) == bank:
        return f's_memrealtime s[{86 + 2 * i}:{87 + 2 * i}]\ns_waitcnt lgkmcnt(0)'
    return ''


_n = [0]


def tlc(opt, i, sreg, val):
    if opt.get('tlb') != 3:
        return ''
    _n[0] += 1
    return (f's_cmp_lg_u32 {sreg}, {val}\ns_cbranch_scc1 tlc_{_n[0]}\ns_memrealtime s[{86 + 2 * i}:{87 + 2 * i}]\n'
            f's_waitcnt lgkmcnt(0)\ntlc_{_n[0]}:')


def dump(P, opt):
    if not opt.get('stamp'):
        return
    P(f'''
    s_memtime s[64:65]
    s_memrealtime s[66:67]
    s_waitcnt lgkmcnt(0)
    s_sub_u32 s64, s64, s60
    s_lshl_b32 s22, s14, 5
    s_add_u32 s22, s22, s13
    s_lshl_b32 s22, s22, 2
    s_add_u32 s22, s22, s12
    s_lshl_b32 s22, s22, 7
    s_add_u32 s22, s22, {STAMP}
    v_mov_b32 v16, s64
    v_mov_b32 v17, s66
    v_mov_b32 v18, s98
    v_mov_b32 v19, s62
    buffer_store_dwordx4 v[16:19], off, s[8:11], s22
    ''')
    for j in range(NPH // 4):
        for i in range(4):
            P(f'v_mov_b32 v{20 + 4 * j + i}, s{70 + 4 * j + i}')
        P(f'buffer_store_dwordx4 v[{20 + 4 * j}:{23 + 4 * j}], off, s[8:11], s22 offset:{16 + 16 * j}')
    for i in range(6):
        P(f'v_mov_b32 v{40 + i}, s{86 + 2 * i}')
    P('buffer_store_dwordx4 v[40:43], off, s[8:11], s22 offset:64\nbuffer_store_dwordx2 v[44:45], off, s[8:11], s22 offset:80')


def profile(code, opt, name):
    if opt.get('stamp') != 6 or opt.get('prof') != name:
        return code
    st = opt.get('st', max(1, len(code) // 9))
    lo = opt.get('lo', st)
    c2 = ['s_memtime s[64:65] ;nodep']
    n = 0
    for j, c in enumerate(code):
        c2.append(c)
        if j >= lo and (j - lo) % st == 0 and n < 8 and not c.startswith('s_add_u32 m0') and not c.startswith('s_mov_b32 m0'):
            c2.append(f's_memtime s[{82 + 2 * n}:{83 + 2 * n}] ;nodep')
            print('stamp', n, 'after', j, c)
            n += 1
    c2 += ['s_memtime s[66:67] ;nodep', 's_waitcnt lgkmcnt(0)', 's_sub_u32 s69, s64, s68', 's_add_u32 s79, s79, s69', 's_mov_b32 s68, s66']
    prev = 's64'
    for j in range(n + 1):
        cur = f's{82 + 2 * j}' if j < n else 's66'
        c2 += [f's_sub_u32 s69, {cur}, {prev}', f's_add_u32 s{70 + j}, s{70 + j}, s69']
        prev = cur
    return c2
```

```python
import sys
import math
import struct
from asmtool import Prog
from layout import *
import chain
import roles
import at
import prework
import loader
from chain import S_WS, S_W, S_H, S_G, S_PURE, S_LAYER, S_S, S_C, S_SENT, SENT, GUARD

NAME = 'interleave_layers__ssm_conv_h3__memory_aug_recurrent_mem_tr__prompt'
KNAME = NAME + '_kernel'
LDS_MAIN = 160 * 1024
HEADER = ''


def f32bits(x):
    return struct.unpack('<I', struct.pack('<f', x))[0]


def kd(name, vgpr, accum, sgpr=102):
    return f'''.amdhsa_kernel {name}
  .amdhsa_next_free_vgpr {vgpr}
  .amdhsa_next_free_sgpr {sgpr}
  .amdhsa_accum_offset {accum}
  .amdhsa_group_segment_fixed_size 0
  .amdhsa_kernarg_size 128
  .amdhsa_user_sgpr_count 2
  .amdhsa_user_sgpr_kernarg_segment_ptr 1
  .amdhsa_system_sgpr_workgroup_id_x 1
.end_amdhsa_kernel
'''


V_CLAIM = 255


def ready(P, newer, init):
    m = P.uid('rdy')
    P(f'''
    s_waitcnt vmcnt({newer})
    v_mov_b32 v3, 0
    s_cmp_lg_u32 {S_W}, 0
    s_cbranch_scc1 {m}
    s_mov_b64 exec, 1
    ds_write_b32 v3, v{V_CLAIM}
    s_mov_b64 exec, -1
    s_waitcnt lgkmcnt(0)
    {m}:
    s_barrier
    ds_read_b32 v2, v3
    s_waitcnt lgkmcnt(0)
    v_readfirstlane_b32 s22, v2
    s_barrier
    s_bitcmp1_b32 s22, {S_H}
    s_cbranch_scc1 main_late
    {init}
    ''')


def count_ready(P, newer, t, shift=3):
    l = P.uid('cnt')
    P(f'''
    s_waitcnt vmcnt({newer})
    s_barrier
    s_cmp_lg_u32 {S_W}, 0
    s_cbranch_scc1 {l}
    s_mov_b64 exec, 1
    s_add_u32 s22, {S_LAYER}, 1
    v_mov_b32 v{t}, s22
    s_lshl_b32 s22, {S_LAYER}, {shift}
    buffer_atomic_add v{t}, off, s[4:7], s22 offset:128
    s_mov_b64 exec, -1
    {l}:
    ''')


def warm(P, part):
    P(f'''
    s_lshl_b32 s22, {S_H}, 2
    s_add_u32 s22, s22, {S_W}
    s_lshl_b32 s22, s22, 13
    s_add_u32 s22, s22, {part * MB}
    v_lshlrev_b32 v250, 7, v0
    ''')
    for X in 'qkvo':
        for hf in range(2):
            P(f'buffer_load_dword v251, v250, {loader.SRD[X]}, s22 offen ;nodep')
            P(f's_xor_b32 s22, s22, {2 * MB}')
    P('s_waitcnt vmcnt(0)')


def wait_ready(P, t0, pre=False, step=0):
    a, b = P.uid('wr'), P.uid('wr')
    sel = (f'v_min_u32 v{t0}, v{t0}, v{t0 + 3}' if pre == 2 else f'v_mov_b32 v{t0}, v{t0 + 3}') if pre else f'''s_cmp_eq_u32 {S_LAYER}, 0
    s_cselect_b64 vcc, -1, 0
    v_cndmask_b32 v{t0 + 2}, v{t0 + 2}, v{t0 + 3}, vcc
    v_min_u32 v{t0}, v{t0}, v{t0 + 2}'''
    P(f'''
    s_mul_i32 s23, {S_LAYER}, {step}
    {a}:
    buffer_load_dwordx4 v[{t0}:{t0 + 3}], off, s[4:7], s23 offset:128 sc1
    s_waitcnt vmcnt(0)
    {sel}
    v_cmp_gt_u32 vcc, 0x80, v{t0}
    s_cbranch_vccz {b}
    {GUARD}
    s_sleep 4
    s_branch {a}
    {b}:
    ''')
    if not pre:
        P(f'''
        buffer_load_dword v{t0 + 1}, off, s[4:7], 0 offset:132 sc1
        s_waitcnt vmcnt(0)
        v_readfirstlane_b32 s22, v{t0 + 1}
        s_bitcmp0_b32 s22, {S_G}
        s_cselect_b32 {S_PURE}, 1, 0
        ''')


def gen_main(P, opt):
    P(f'''
    {KNAME}:
    s_cmp_ge_u32 s2, 256
    s_cbranch_scc1 main_exit
    s_getpc_b64 s[20:21]
    main_pc:
    s_mov_b32 s22, main_end - main_pc
    s_mov_b32 s23, 0x00020000
    s_mov_b32 s24, 32768
    v_lshlrev_b32 v1, 7, v0
    buffer_load_dword v253, v1, s[20:23], 0 offen ;nodep
    buffer_load_dword v253, v1, s[20:23], s24 offen ;nodep
    s_load_dwordx2 s[4:5], s[0:1], 112
    s_load_dwordx2 s[8:9], s[0:1], 120
    s_load_dwordx2 s[56:57], s[0:1], 104
    s_load_dwordx2 s[68:69], s[0:1], 64
    s_load_dwordx2 s[72:73], s[0:1], 72
    s_load_dwordx2 s[76:77], s[0:1], 80
    s_load_dwordx2 s[80:81], s[0:1], 88
    s_mov_b32 s70, {4 * MB}
    s_mov_b32 s71, 0x00020000
    s_mov_b32 s74, {4 * MB}
    s_mov_b32 s75, 0x00020000
    s_mov_b32 s78, {4 * MB}
    s_mov_b32 s79, 0x00020000
    s_mov_b32 s82, {4 * MB}
    s_mov_b32 s83, 0x00020000
    s_mov_b32 s3, 1000000
    s_mov_b32 s6, 256
    s_mov_b32 s7, 0x00020000
    s_mov_b32 s10, {WS_BYTES}
    s_mov_b32 s11, 0x00020000
    s_mov_b32 s58, {S * D * 2}
    s_mov_b32 s59, 0x00020000
    v_lshrrev_b32 v1, 6, v0
    s_nop 0
    v_readfirstlane_b32 {S_W}, v1
    s_mov_b32 {S_C}, {f32bits(E ** -0.5 * math.log2(math.e))}
    s_mov_b32 {S_SENT}, {SENT}
    s_getreg_b32 s84, hwreg(HW_REG_XCC_ID, 0, 4)
    {'s_memrealtime s[98:99]' if opt.get('stamp') else ''}
    s_waitcnt lgkmcnt(0)
    ''')
    P(f'''
    s_lshl_b32 s22, s84, 2
    s_lshr_b32 s22, {opt.get('map', 0x71253640)}, s22
    s_and_b32 s22, s22, 7
    s_cmp_lt_u32 s84, 8
    s_cselect_b32 s84, s22, s84
    ''')
    if opt.get('scramble') == 1:
        P('s_mov_b32 s84, 15')
    P(f'''
    v_mov_b32 v254, v0
    s_lshr_b32 {S_H}, s2, {4 if opt.get('scramble') == 2 else 3}
    s_and_b32 {S_G}, s84, 7
    v_mov_b32 v{V_CLAIM}, -1
    s_cmp_ge_u32 s84, 8
    s_cbranch_scc1 main_dispatch
    s_cmp_lg_u32 {S_W}, 0
    s_cbranch_scc1 main_dispatch
    s_lshl_b32 s21, 1, {S_H}
    v_mov_b32 v{V_CLAIM}, s21
    s_lshl_b32 s22, {S_G}, 2
    s_mov_b64 exec, 1
    buffer_atomic_or v{V_CLAIM}, off, s[4:7], s22 sc0 ;nodep
    s_mov_b64 exec, -1
    s_branch main_dispatch
    main_late:
    {(chr(10).join(['s_sleep 127'] * 16)) if opt.get('latedelay') else ''}
    s_waitcnt vmcnt(0) lgkmcnt(0)
    s_cmp_lg_u32 {S_W}, 0
    s_cbranch_scc1 main_late_wait
    s_mov_b64 exec, 1
    s_mov_b32 s24, 64
    s_cmp_ge_u32 s84, 8
    s_cbranch_scc1 main_late_tot
    v_mov_b32 v2, 1
    s_lshl_b32 s22, s84, 2
    buffer_atomic_add v2, off, s[4:7], s22 offset:32 sc0
    s_waitcnt vmcnt(0)
    v_readfirstlane_b32 s24, v2
    main_late_tot:
    v_mov_b32 v2, 1
    buffer_atomic_add v2, off, s[4:7], 0 offset:64
    s_mov_b64 exec, 0x1ffff
    v_and_b32 v3, 63, v254
    v_lshlrev_b32 v3, 2, v3
    main_late_poll:
    {GUARD}
    buffer_load_dword v2, v3, s[4:7], 0 offen sc1
    s_waitcnt vmcnt(0)
    v_readlane_b32 s25, v2, 16
    ''')
    for i in range(8):
        P(f'v_readlane_b32 s{32 + i}, v2, {i}\ns_bcnt1_i32_b32 s22, s{32 + i}\ns_add_u32 s25, s25, s22')
    P(f'''
    s_cmp_lt_u32 s25, 256
    s_cbranch_scc1 main_late_poll
    buffer_load_dword v2, v3, s[4:7], 0 offen sc1
    s_waitcnt vmcnt(0)
    s_mov_b64 exec, 1
    s_and_b32 s26, s84, 7
    s_nop 3
    v_readlane_b32 s27, v2, s26
    s_bcnt0_i32_b32 s22, s27
    s_cmp_lt_u32 s24, s22
    s_cbranch_scc1 main_late_pick
    v_mov_b32 v4, 1
    buffer_atomic_add v4, off, s[4:7], 0 offset:68 sc0
    s_waitcnt vmcnt(0)
    v_readfirstlane_b32 s28, v4
    s_mov_b32 s26, 0
    main_late_scan:
    s_add_u32 s29, s26, 8
    s_nop 3
    v_readlane_b32 s27, v2, s26
    v_readlane_b32 s24, v2, s29
    s_bcnt0_i32_b32 s22, s27
    s_min_u32 s24, s24, s22
    s_sub_u32 s22, s22, s24
    s_cmp_lt_u32 s28, s22
    s_cbranch_scc1 main_late_found
    s_sub_u32 s28, s28, s22
    s_add_u32 s26, s26, 1
    s_cmp_lt_u32 s26, 8
    s_cbranch_scc1 main_late_scan
    s_branch main_timeout
    main_late_found:
    s_add_u32 s24, s24, s28
    s_lshl_b32 s22, 1, s26
    v_mov_b32 v4, s22
    buffer_atomic_or v4, off, s[4:7], 0 offset:132
    main_late_pick:
    s_ff0_i32_b32 s22, s27
    s_bitset1_b32 s27, s22
    s_sub_u32 s24, s24, 1
    s_cbranch_scc0 main_late_pick
    v_mov_b32 v2, s26
    v_mov_b32 v3, s22
    v_mov_b32 v4, 0
    ds_write_b64 v4, v[2:3]
    s_waitcnt vmcnt(0) lgkmcnt(0)
    s_mov_b64 exec, -1
    main_late_wait:
    s_barrier
    v_mov_b32 v4, 0
    ds_read_b64 v[2:3], v4
    s_waitcnt lgkmcnt(0)
    v_readfirstlane_b32 {S_G}, v2
    v_readfirstlane_b32 {S_H}, v3
    s_barrier
    s_and_b32 {S_G}, {S_G}, 7
    s_and_b32 {S_H}, {S_H}, 31
    v_mov_b32 v{V_CLAIM}, 0
    v_mov_b32 v0, v254
    main_dispatch:
    {'s_cmp_lg_u32 s14, 0' + chr(10) + 's_cbranch_scc1 main_exit' if opt.get('chainonly') else ''}
    s_lshr_b32 {S_LAYER}, 0xca, {S_G}
    s_and_b32 {S_LAYER}, {S_LAYER}, 1
    s_cbranch_scc1 pre_role
    main_roles:
    s_cmp_lt_u32 {S_G}, 2
    s_cbranch_scc1 chain_role
    {'s_endpgm' if opt.get('chainonly') else ''}
    s_cmp_lt_u32 {S_G}, 4
    s_cbranch_scc1 kv_role
    s_branch at_role
    main_exit:
    s_endpgm
    main_timeout:
    s_mov_b64 exec, 1
    v_mov_b32 v2, 1
    buffer_atomic_add v2, off, s[4:7], 0 offset:72
    s_waitcnt vmcnt(0)
    s_endpgm
    ''')
    opt['ready'] = ready
    opt['count_ready'] = count_ready
    opt['warm'] = warm
    opt['pre'] = prework
    opt['wait_ready'] = wait_ready
    chain.gen_chain(P, opt)
    roles.gen_kv(P, opt)
    at.gen_at(P, opt)
    prework.gen_pre_role(P, opt)
    P.label('main_end')


def build(opt):
    P = Prog()
    gen_main(P, opt)
    head = HEADER
    if opt.get('list', 1):
        head += f'; @launch kernel={KNAME} grid=(256,1,1) block=(256,1,1) lds={LDS_MAIN}\n'
    else:
        head += f'; @launch grid=(256,1,1) block=(256,1,1) lds={LDS_MAIN}\n'
    head += '.amdgcn_target "amdgcn-amd-amdhsa--gfx950"\n.text\n'
    body = f'.globl {KNAME}\n.p2align 8\n.type {KNAME},@function\n' + P.finish()
    tail = '.section .rodata,"a"\n.p2align 6\n' + kd(KNAME, 512, 256)
    return head + body + tail


if __name__ == '__main__':
    opt = {}
    for a in sys.argv[2:]:
        k, v = a.split('=')
        opt[k] = int(v)
    open(sys.argv[1], 'w').write(build(opt))
```

```python
from layout import *
import stamps
from stamps import marks
from chain import (S_WS, S_W, S_H, S_G, S_PURE, S_LAYER, S_S, S_C, GUARD, MF, MF16, DPPF, q4, q2)
from asmtool import schedule
from chain import pk, xl
from roles import a4, cvt, xlane, load_weights, h_dma_addr, h_dma, h_wave_part, h_read, unpack8, row_block


def weave(mf_groups, side, per=2, start=0):
    out = []
    side = list(side)
    for i, g in enumerate(mf_groups):
        out += g
        if i >= start:
            out += side[:per]
            side = side[per:]
    return out + side


def gen_at(P, opt):
    L_Q = 32768
    L_OB = L_Q + 8192
    L_ROW = L_OB + 8192
    L_KV = 65536
    L_KM = L_KV + 16384
    (V_L16, V_HD, V_F4, V_FA, V_T0, V_T1, V_OR, V_QW, V_QR, V_OW, V_KMA, V_PST, V_RLD, V_RW, V_RR) = range(1, 16)
    SEL, BIAS, Q, SX, KX, VX, XR, YR = 16, 20, 28, 44, 52, 84, 100, 104
    FLH, FLK, FLM, FLA = 108, 109, 110, 111
    MX, NM, SUM = 112, 113, 114
    V_R0, V_R1, V_VMA, V_TCH = 252, 253, 254, 255
    KM, VM = 116, 132
    SM, PX, PM, O, OP = 140, 144, 148, 152, 168
    OB, AO, PK = 140, 172, 236
    RED, RD = 140, 172
    HB, AQ, QP = 176, 208, 224
    X, Y, N_, PKX, PH, TT = 176, 184, 192, 200, 204, 208
    P.label('at_role')
    P(f'''
    v_and_b32 v0, 63, v0
    s_and_b32 s22, {S_G}, 3
    s_lshl_b32 s24, s22, 14
    s_lshl_b32 s23, {S_W}, 12
    s_add_u32 s24, s24, s23
    s_lshl_b32 s23, {S_H}, 7
    s_add_u32 s24, s24, s23
    s_add_u32 s24, s24, {F_AP}
    s_lshl_b32 s25, s22, 12
    s_add_u32 s25, s25, s23
    s_add_u32 s25, s25, {F_H + 8192}
    s_add_u32 s55, s25, {F_R - F_H - 8192}
    s_cmp_eq_u32 {S_LAYER}, 0
    s_cselect_b32 s25, s25, s24
    s_cselect_b32 s55, s55, s24
    ''')
    init = f'''v_mov_b32 v1, 0
    buffer_store_dword v1, off, {S_WS}, s24 sc1
    buffer_store_dword v1, off, {S_WS}, s25 sc1
    buffer_store_dword v1, off, {S_WS}, s55 sc1'''
    pre = opt['pre']
    P(f'''
    s_and_b32 s50, {S_G}, 1
    s_lshl_b32 s50, s50, 5
    s_add_u32 s50, s50, {S_H}
    s_lshl_b32 s50, s50, 4
    ''')
    pre.rows_load(P, 254)
    load_weights(P, 'qo', 16, (lambda n: opt['ready'](P, n + 4, init), lambda n: opt['count_ready'](P, n, 1, 4)))
    P(stamps.tl(opt, 5))
    P(f'''
    s_cmp_lg_u32 {S_LAYER}, 0
    s_cbranch_scc1 at_setup
    v_lshrrev_b32 v11, 1, v254
    v_lshlrev_b32 v11, 7, v11
    ''')

    def wait():
        P(stamps.tl(opt, 0))
        opt['wait_ready'](P, 16, True)
        pre.wait_lines(P, 1, F_P, 11, 12)
        P(stamps.tl(opt, 1))
    pre.rows(P, opt, wait, 254)
    pre.announce(P, 1)
    P(stamps.tl(opt, 2))
    P('at_setup:')
    opt['wait_ready'](P, 16, False, 8)
    P(f'''
    v_lshlrev_b32 v{V_L16}, 4, v0
    v_and_b32 v{V_FA}, 31, v0
    v_lshlrev_b32 v{V_FA}, 7, v{V_FA}
    s_and_b32 {S_S}, {S_G}, 1
    s_and_b32 s33, {S_W}, 1
    s_lshr_b32 s34, {S_W}, 1
    ''')
    h_dma_addr(P, V_HD, V_R0, V_R1, V_T0)
    P(f'''
    s_lshl_b32 s22, {S_W}, 11
    s_add_u32 s22, s22, {L_Q}
    v_add_u32 v{V_QW}, s22, v{V_L16}
    s_lshl_b32 s22, s33, 10
    s_add_u32 s23, s22, {L_Q}
    v_add_u32 v{V_QR}, s23, v{V_L16}
    s_lshl_b32 s23, s34, 12
    s_add_u32 s22, s22, s23
    s_add_u32 s22, s22, {L_OB}
    v_add_u32 v{V_OW}, s22, v{V_L16}
    v_add_u32 v{V_OR}, {L_OB}, v{V_L16}
    v_add_u32 v{V_KMA}, {L_KV}, v{V_L16}
    s_lshl_b32 s23, s34, 13
    v_add_u32 v{V_F4}, s23, v{V_KMA}
    s_lshl_b32 s23, s34, 12
    v_add_u32 v{V_VMA}, s23, v{V_KMA}
    v_and_b32 v{V_T1}, 15, v0
    v_lshlrev_b32 v{V_PST}, 4, v{V_T1}
    v_lshrrev_b32 v{V_T0}, 4, v0
    v_lshl_add_u32 v{V_PST}, v{V_T0}, 18, v{V_PST}
    s_lshl_b32 s22, {S_H}, 10
    s_lshl_b32 s23, {S_W}, 8
    s_add_u32 s22, s22, s23
    v_add_u32 v{V_PST}, s22, v{V_PST}
    v_and_b32 v{V_T1}, 15, v0
    v_lshlrev_b32 v{V_RLD}, 4, v{V_T1}
    v_lshl_add_u32 v{V_RLD}, v{V_T0}, 10, v{V_RLD}
    s_lshl_b32 s22, {S_H}, 15
    s_add_u32 s22, s22, s23
    v_add_u32 v{V_RLD}, s22, v{V_RLD}
    v_bfe_u32 v{V_RW}, v0, 2, 2
    v_lshlrev_b32 v{V_RW}, 5, v{V_RW}
    v_lshl_add_u32 v{V_RW}, v{V_T0}, 8, v{V_RW}
    v_and_b32 v{V_RR}, 3, v0
    v_lshl_add_u32 v{V_RW}, v{V_RR}, 2, v{V_RW}
    s_lshl_b32 s22, {S_W}, 9
    s_add_u32 s22, s22, {L_ROW}
    v_add_u32 v{V_RW}, s22, v{V_RW}
    v_lshlrev_b32 v{V_RR}, 5, v0
    v_add_u32 v{V_RR}, {L_ROW}, v{V_RR}
    ''')
    for i in range(4):
        P(f'''
        v_mov_b32 v{SEL + i}, 0
        v_mov_b32 v{MX}, 0x3f80
        v_cmp_eq_u32 vcc, {2 * i}, v{V_T1}
        v_cndmask_b32 v{SEL + i}, v{SEL + i}, v{MX}, vcc
        v_mov_b32 v{MX}, 0x3f800000
        v_cmp_eq_u32 vcc, {2 * i + 1}, v{V_T1}
        v_cndmask_b32 v{SEL + i}, v{SEL + i}, v{MX}, vcc
        ''')
    P(f'''
    v_bfe_u32 v{V_T1}, v0, 2, 2
    v_lshlrev_b32 v{V_T1}, 3, v{V_T1}
    v_and_b32 v{MX}, 3, v0
    v_add_u32 v{V_T1}, v{V_T1}, v{MX}
    s_lshl_b32 s22, s33, 2
    v_add_u32 v{V_T1}, s22, v{V_T1}
    v_lshlrev_b32 v{V_T0}, 3, v{V_T0}
    v_sub_u32 v{V_T1}, v{V_T1}, v{V_T0}
    v_mov_b32 v{MX}, 0xf149f2ca
    ''')
    for i in range(8):
        P(f'v_cmp_gt_i32 vcc, {i}, v{V_T1}\nv_cndmask_b32 v{BIAS + i}, 0, v{MX}, vcc')
    for i in range(4):
        P(f'v_mov_b32 v{XR + i}, 0\nv_mov_b32 v{YR + i}, 0')
    P(f'''
    s_lshl_b32 s20, {S_LAYER}, 21
    s_add_u32 s20, s20, {H1}
    {h_wave_part('s20', 's21')}
    s_lshl_b32 s23, {S_S}, 15
    s_add_u32 s20, s20, s23
    s_lshl_b32 s39, {S_H}, 10
    s_add_u32 s39, s39, s23
    s_sub_u32 s39, s39, 65536
    s_lshl_b32 s24, {S_LAYER}, 13
    s_add_u32 s24, s24, {F_H}
    s_lshl_b32 s23, {S_S}, 12
    s_add_u32 s24, s24, s23
    s_lshl_b32 s25, {S_H}, 7
    s_add_u32 s25, s25, s23
    s_add_u32 s25, s25, {F_H + 8192}
    s_lshl_b32 s22, {S_LAYER}, 24
    s_lshl_b32 s23, {S_H}, 13
    s_add_u32 s22, s22, s23
    s_lshl_b32 s23, {S_S}, 18
    s_add_u32 s22, s22, s23
    s_lshl_b32 s23, {S_W}, 11
    s_add_u32 s22, s22, s23
    s_add_u32 s33, s23, {L_KM}
    s_lshl_b32 s29, s23, 1
    s_add_u32 s29, s29, {L_KV}
    s_add_u32 s30, s22, {KMVM}
    s_lshl_b32 s28, s22, 1
    s_add_u32 s28, s28, {KVIMG}
    s_lshl_b32 s22, {S_LAYER}, 14
    s_lshl_b32 s23, {S_H}, 9
    s_add_u32 s22, s22, s23
    s_lshl_b32 s23, {S_W}, 7
    s_add_u32 s22, s22, s23
    s_add_u32 s31, s22, {F_KV}
    s_add_u32 s32, s22, {F_KM}
    s_and_b32 s22, {S_G}, 3
    s_lshl_b32 s35, s22, 21
    s_add_u32 s35, s35, {APART}
    s_lshl_b32 s36, s22, 14
    s_lshl_b32 s23, {S_W}, 12
    s_add_u32 s36, s36, s23
    s_add_u32 s36, s36, {F_AP}
    s_lshl_b32 s23, {S_H}, 7
    s_add_u32 s37, s36, s23
    s_mov_b32 s38, 0
    s_mov_b32 s49, {S_S}
    s_mov_b32 s48, 0
    s_mov_b32 s50, 0
    s_mov_b32 s51, 0
    s_mov_b32 s52, 0
    s_mov_b32 s53, 0
    v_mov_b32 v{FLM}, 0
    ''')
    stamps.init(P, opt)

    an = opt.get('an2', 60000)
    flush = f'''v_mov_b32 v{V_T0}, s38
    buffer_store_dword v{V_T0}, off, {S_WS}, s25 sc1
    s_mov_b32 s53, 0'''
    kvl = [['s_mov_b32 m0, s29', f'buffer_load_dwordx4 v{V_L16}, {S_WS}, s28 offen offset:{1024 * i} sc1 lds'] for i in range(4)]
    kvr = [f'ds_read_b128 {q4(KX + 4 * i)}, v{V_KMA} offset:{4096 * (i >> 1) + 1024 * (i & 1)}' for i in range(8)]
    kvr += [f'ds_read_b128 {q4(VX + 4 * i)}, v{V_F4} offset:{4096 * (i >> 1) + 2048 + 1024 * (i & 1)} ;before:row' for i in range(4)]

    KT = KM
    kml = [f'buffer_load_dwordx4 {q4(KT + 4 * i)}, v{V_L16}, {S_WS}, s30 offen offset:{1024 * i} sc1' for i in range(2)]
    kmw = '\n'.join(f'ds_write_b128 v{V_TCH}, {q4(KT + 4 * i)} offset:{1024 * i}' for i in range(2))
    P(f'v_add_u32 v{V_TCH}, s33, v{V_L16}')
    kmr = [f'ds_read_b128 {q4(KM + 4 * kk)}, v{V_KMA} offset:{L_KM - L_KV + 2048 * kk}' for kk in range(4)]
    kmr += [f'ds_read_b128 {q4(VM + 4 * i)}, v{V_VMA} offset:{L_KM - L_KV + 2048 * i + 1024}' for i in range(2)]
    both = f'''s_add_u32 s22, s49, 2
    s_min_u32 s22, s22, {NS - 1}
    v_cmp_ge_u32 s[50:51], s22, v{FLH}
    v_cmp_eq_u32 vcc, s19, v{FLM}
    s_or_b64 vcc, vcc, s[50:51]'''
    canary = f'buffer_load_dword v{FLM}, off, {S_WS}, s30 sc1'
    hd = h_dma(V_HD, 's20', 's21')
    hgrp = [hd[2 * i:2 * i + 2] for i in range(8)]

    def emit(items, name):
        code, t = schedule(items, verbose=opt.get('verbose') == name, anneal=an)
        code = stamps.profile(code, opt, name)
        for k, c in enumerate(code):
            if c == 's_waitcnt vmcnt(63)':
                c = 's_waitcnt vmcnt(%d)' % sum(x.startswith('buffer_') for x in code[:k])
            P(c)

    def qproj(lo, hi_):
        it = []
        for kk in range(lo, hi_):
            b = HB + 8 * (kk & 3)
            for tt in range(2):
                it.append(h_read(b + 4 * tt, V_R0, V_R1, kk, tt))
            for te in range(2):
                for tt in range(2):
                    d = AQ + 8 * tt + 4 * te
                    it.append(f'{MF} {q4(d)}, {a4(4 * (16 * te + kk))}, {q4(b + 4 * tt)}, {q4(d) if kk else 0}')
        return it

    def qtail():
        it = []
        for tt in range(2):
            it += [cvt(QP + 4 * tt + i, AQ + 8 * tt + 2 * i) for i in range(4)]
            it.append(f'ds_write_b128 v{V_QW}, {q4(QP + 4 * tt)} offset:{1024 * tt} ;w:q')
        return it

    def sx_items():
        it = [f'ds_read_b128 {q4(Q + 4 * kk)}, v{V_QR} offset:{2048 * kk} ;r:q' for kk in range(4)]
        for kk in range(4):
            for t in range(2):
                c = q4(SX + 4 * t) if kk else q4(BIAS + 4 * t)
                it.append(f'{MF} {q4(SX + 4 * t)}, {q4(KX + 8 * kk + 4 * t)}, {q4(Q + 4 * kk)}, {c}')
        return it

    P(f'''
    at_kv0:
    buffer_load_dword v{FLK}, off, {S_WS}, s31 sc1
    s_waitcnt vmcnt(0)
    v_cmp_ge_u32 vcc, s49, v{FLK}
    s_cbranch_vccz at_kv0go
    {GUARD}
    s_sleep 4
    s_branch at_kv0
    at_kv0go:
    ''')
    for i in hd + sum(kvl, []):
        P(i)
    P('s_waitcnt vmcnt(0)\ns_barrier')
    emit(kvr + qproj(0, 16) + qtail() + ['@bar q'] + sx_items(), 10)
    P('s_waitcnt lgkmcnt(0)')

    P(f'''
    at_loop:
    s_cmp_eq_u32 s52, 1
    s_cbranch_scc1 at_kmcheck
    at_kmpoll:
    {canary}
    buffer_load_dword v{FLH}, off, {S_WS}, s31 sc1
    s_waitcnt vmcnt(0)
    s_cmp_eq_u32 s53, 0
    s_cbranch_scc1 at_kmpoll2
    {flush}
    {stamps.tlc(opt, 5, 's49', 42)}
    at_kmpoll2:
    {both}
    s_cbranch_vccz at_kmgo
    {GUARD}
    s_sleep {opt.get('as', 2)}
    s_branch at_kmpoll
    at_kmgo:
    {stamps.tlc(opt, 0, 's49', 40)}
    {GUARD}
    {kml[0]}
    {kml[1]}
    s_waitcnt vmcnt(0)
    at_kmcheck:
    v_max3_u32 v{FLM}, v{KM}, v{KM + 1}, v{KM + 2}
    v_max3_u32 v{FLK}, v{KM + 3}, v{KM + 4}, v{KM + 5}
    v_max3_u32 v{FLM}, v{FLM}, v{KM + 6}, v{KM + 7}
    v_max_u32 v{FLM}, v{FLM}, v{FLK}
    v_cmp_eq_u32 vcc, s19, v{FLM}
    {kmw}
    s_cbranch_vccnz at_kmgo
    at_kmdone:
    s_waitcnt lgkmcnt(0)
    s_barrier
    {stamps.trace(opt, 1, 's49', V_T0)}
    {stamps.tlc(opt, 1, 's49', 40)}
    {marks(opt, 0)}
    s_add_u32 s49, s49, 2
    s_cmp_lt_u32 s49, {NS}
    s_cselect_b32 s22, 0x10000, 0
    s_add_u32 s20, s20, s22
    s_lshl_b32 s22, s22, 4
    s_add_u32 s28, s28, s22
    s_add_u32 s39, s39, 65536
    s_add_u32 s30, s30, 0x80000
    s_mov_b32 s52, 0
    s_lshl_b32 s26, {S_LAYER}, 21
    s_add_u32 s26, s26, s39
    s_add_u32 s26, s26, {X1}
    s_add_u32 s27, s39, {YTOT}
    s_cmp_eq_u32 {S_W}, 0
    s_cselect_b32 s26, s26, 0x7fff0000
    s_cbranch_scc0 at_noy
    s_cmp_eq_u32 {S_LAYER}, 0
    at_noy:
    s_cselect_b32 s27, s27, 0x7fff0000
    s_cmp_eq_u32 s53, 0
    s_cselect_b32 s48, 0x7fff0000, s25
    s_mov_b32 s53, 0
    v_mov_b32 v{V_T0}, s38
    s_cmp_eq_u32 {S_PURE}, 0
    s_cbranch_scc1 at_b_slow
    ''')

    def b_items(XS):
        it = []
        A = it.append
        it += kmr
        for g in kvl:
            A([g[0], g[1] + ' ;dl:900'])
        for g in hgrp:
            A([g[0], g[1] + ' ;dl:900'])
        A(f'buffer_load_dwordx4 {q4(XR)}, v{V_L16}, {S_WS}, s26 offen sc1 ;dl:900')
        A(f'buffer_load_dwordx4 {q4(YR)}, v{V_L16}, {S_WS}, s27 offen sc1 ;dl:900')
        for kk in range(4):
            A(f'{MF} {q4(SM)}, {q4(KM + 4 * kk)}, {q4(Q + 4 * kk)}, {q4(SM) if kk else 0}')
        it += [f'v_max3_f32 v{MX}, v{SX}, v{SX + 1}, v{SX + 2}', f'v_max3_f32 v{NM}, v{SX + 3}, v{SX + 4}, v{SX + 5}',
               f'v_max3_f32 v{MX}, v{MX}, v{SX + 6}, v{SX + 7}', f'v_max3_f32 v{NM}, v{NM}, v{SM}, v{SM + 1}',
               f'v_max3_f32 v{MX}, v{MX}, v{SM + 2}, v{SM + 3}', f'v_max_f32 v{MX}, v{MX}, v{NM}']
        it += xlane('v_max_f32', MX, NM)
        A(f'v_mul_f32 v{MX}, {S_C}, v{MX}')
        prs = [SX + 2 * i for i in range(4)] + [SM, SM + 2]
        for x in prs:
            A(f'v_pk_fma_f32 {q2(x)}, {q2(x)}, s[18:19], {q2(MX)} op_sel_hi:[1,0,0] neg_lo:[0,0,1] neg_hi:[0,0,1]')
        for x in prs:
            A(f'v_exp_f32 v{x}, v{x}')
            A(f'v_exp_f32 v{x + 1}, v{x + 1}')
        it += [cvt(PX + i, SX + 2 * i) for i in range(4)] + [cvt(PM + i, SM + 2 * i) for i in range(2)]
        for tau in range(4):
            A(f'{MF} {q4(O + 4 * tau)}, {q4(VX + 4 * tau)}, {q4(PX)}, 0')
        for tau in range(4):
            A(f'{MF16} {q4(O + 4 * tau)}, {q2(VM + 2 * tau)}, {q2(PM)}, {q4(O + 4 * tau)}')
        it += [pk('add', SM, SM, SM + 2), pk('add', SX, SX, SX + 2), pk('add', SX + 4, SX + 4, SX + 6),
               pk('add', SX, SX, SX + 4), f'v_pk_fma_f32 {q2(SX)}, {q2(SM)}, 0.5, {q2(SX)} op_sel_hi:[1,0,1]',
               f'v_add_f32 v{SUM}, v{SX}, v{SX + 1}']
        it += xlane('v_add_f32', SUM, NM)
        A(f'v_rcp_f32 v{SUM}, v{SUM}')
        for hf in range(2):
            for i in range(0, 8, 2):
                A(f'v_pk_mul_f32 {q2(O + 8 * hf + i)}, {q2(O + 8 * hf + i)}, {q2(SUM)} op_sel_hi:[1,0]')
            it += [cvt(OP + 4 * hf + i, O + 8 * hf + 2 * i) for i in range(4)]
            A(f'ds_write_b128 v{V_OW}, {q4(OP + 4 * hf)} offset:{2048 * hf} ;w:o')
        A(['s_waitcnt vmcnt(63)', f'buffer_store_dword v{V_T0}, off, {S_WS}, s48 sc1'])
        A('@bar o')
        for i in (0, 2, 4, 6, 1, 3, 5, 7):
            A(f'ds_read_b128 {q4(OB + 4 * i)}, v{V_OR} offset:{1024 * i} ;r:o')
        for qt in range(2):
            for kk in range(4):
                for T_ in range(8):
                    d = AO + 32 * qt + 4 * T_
                    A(f'{MF} {q4(d)}, {q4(OB + 8 * kk + 4 * qt)}, {a4(128 + 4 * (4 * T_ + kk))}, {q4(d) if kk else 0}')
            for r in range(4):
                p_ = PK + 4 * r
                b_ = AO + 32 * qt + r
                it += [f'v_cvt_pk_bf16_f32 v{p_ + i}, v{b_ + 8 * i}, v{b_ + 8 * i + 4}' for i in range(4)]
                A([f's_add_u32 s23, s35, {(4 * qt + r) * 32768}',
                   f'buffer_store_dwordx4 {q4(p_)}, v{V_PST}, {S_WS}, s23 offen{XS}'])
        return it

    n1 = opt.get('n1', 12)
    for mode in ('fast', 'slow'):
        XS = '' if mode == 'fast' else ' sc1'
        if mode == 'slow':
            P.label('at_b_slow')
        emit(b_items(XS), 11 if mode == 'fast' else -1)
        P(f'''
        {marks(opt, 1)}
        s_waitcnt vmcnt(8)
        s_add_u32 s38, s38, 1
        v_mov_b32 v{V_T1}, s38
        s_barrier
        {marks(opt, 2)}
        ''')
        it = [['s_waitcnt vmcnt(0)', f'buffer_store_dword v{V_T1}, off, {S_WS}, s37{XS}'],
              f'buffer_load_dword v{FLA}, v{V_FA}, {S_WS}, s36 offen sc1 ;t:{n1 * 64 - 40}']
        it = [canary + ' ;by:60', f'buffer_load_dword v{FLH}, off, {S_WS}, s31 sc1 ;by:80'] + it
        it[2][0] = 's_waitcnt vmcnt(2)'
        emit(it + qproj(0, n1), 12 if mode == 'fast' else -1)
        if mode == 'fast':
            P('s_branch at_r')
    P(f'''
    at_r:
    {stamps.tlc(opt, 2, 's49', 42)}
    {marks(opt, 3)}
    v_cmp_gt_u32 vcc, s38, v{FLA}
    s_cbranch_vccz at_apgo
    at_appoll:
    {GUARD}
    buffer_load_dword v{FLA}, v{V_FA}, {S_WS}, s36 offen sc1
    s_waitcnt vmcnt(0)
    v_cmp_gt_u32 vcc, s38, v{FLA}
    s_cbranch_vccnz at_appoll
    at_apgo:
    {stamps.tlc(opt, 3, 's49', 42)}
    {marks(opt, 4)}
    {both}
    s_cselect_b32 s52, 0, 1
    s_cselect_b32 s24, 0x7fff0000, s30
    ''')
    it = []
    for i in range(8):
        it.append([f's_add_u32 s23, s35, {4096 * i}',
                   f'buffer_load_dwordx4 {q4(RED + 4 * i)}, v{V_RLD}, {S_WS}, s23 offen sc1 ;lat:350'])
    it += [x.replace('s30', 's24') for x in kml]
    it.append(canary + ' ;dl:450')
    it.append(f'buffer_load_dword v{FLH}, off, {S_WS}, s31 sc1 ;dl:450')
    it += kvr + qproj(n1, 16) + qtail() + ['@bar q'] + sx_items()
    for i in range(8):
        it.append(f'{MF} {q4(RD)}, {q4(SEL)}, {q4(RED + 4 * i)}, {q4(RD) if i else 0}')
    it.append(['s_mov_b32 exec_hi, 0', f'ds_write2_b32 v{V_RW}, v{RD}, v{RD + 1} offset0:0 offset1:4 ;w:row',
               f'ds_write2_b32 v{V_RW}, v{RD + 2}, v{RD + 3} offset0:32 offset1:36', 's_mov_b64 exec, -1'])
    it.append('s_xor_b32 s35, s35, 0x100000')
    it.append('@bar row')
    it.append(f'ds_read_b128 {q4(N_)}, v{V_RR} ;r:row')
    it.append(f'ds_read_b128 {q4(N_ + 4)}, v{V_RR} offset:16 ;r:row')
    it += unpack8(X, XR) + [pk('add', X + i, X + i, N_ + i) for i in range(0, 8, 2)]
    it += [cvt(PKX + i, X + 2 * i) for i in range(4)]
    emit(it, 13)
    P('s_waitcnt lgkmcnt(0)')
    P(f'''
    {marks(opt, 5)}
    s_cmp_eq_u32 s52, 1
    s_cbranch_scc1 at_nokm
    {both}
    s_cbranch_scc1 at_nokm
    {kml[0]}
    {kml[1]}
    s_mov_b32 s52, 1
    at_nokm:
    s_cmp_lg_u32 {S_W}, 0
    s_cbranch_scc1 at_rowdone
    s_cmp_eq_u32 {S_LAYER}, 0
    s_cbranch_scc1 at_row1
    s_waitcnt vmcnt(0)
    buffer_store_dwordx4 {q4(PKX)}, v{V_L16}, s[56:59], s39 offen
    s_branch at_next
    at_row1:
    ''')
    emit(unpack8(X, PKX) + unpack8(Y, YR) + row_block(X, Y, N_, PKX, PH, TT), 14)
    P(f'''
    s_add_u32 s22, s39, {X3}
    s_add_u32 s23, s39, {H2}
    s_waitcnt vmcnt(0)
    buffer_store_dwordx4 {q4(PH)}, v{V_L16}, {S_WS}, s23 offen sc1
    buffer_store_dwordx4 {q4(PKX)}, v{V_L16}, {S_WS}, s22 offen sc1
    s_mov_b32 s53, 1
    s_branch at_next
    at_rowdone:
    s_waitcnt vmcnt(0)
    at_next:
    {stamps.trace(opt, 0, 's49', V_T0)}
    {stamps.tlc(opt, 4, 's49', 42)}
    {marks(opt, 6)}
    s_cmp_lt_u32 s49, {NS}
    s_cbranch_scc1 at_loop
    s_waitcnt vmcnt(0)
    s_cmp_eq_u32 s53, 0
    s_cbranch_scc1 at_done
    {flush}
    at_done:
    ''')
    stamps.dump(P, opt)
    P('s_waitcnt vmcnt(0)\ns_endpgm')
```

```python
from layout import *
import stamps
from asmtool import schedule
import loader

SENT = 0xFF81FF81

S_WS = 's[8:11]'
S_W = 's12'
S_H = 's13'
S_G = 's14'
S_PURE = 's15'
S_LAYER = 's16'
S_S = 's17'
S_C = 's18'
S_SENT = 's19'

NLDSQ = 34
L_MEM = 0
L_O = 8192
L_SC = 16384
L_WT = 24576
DPPF = 'row_mask:0xf bank_mask:0xf'
MF = 'v_mfma_f32_16x16x32_bf16'
MF16 = 'v_mfma_f32_16x16x16_bf16'
SMF = 'v_smfmac_f32_16x16x64_bf16'
RS = 2048
GUARD = 's_sub_u32 s3, s3, 1\ns_cbranch_scc1 main_timeout'


def q4(b):
    return 'v[%d:%d]' % (b, b + 3)


def q2(b):
    return 'v[%d:%d]' % (b, b + 1)


def q8(b):
    return 'v[%d:%d]' % (b, b + 7)


V_FL = 0
V_L16, V_WL, V_X0, V_X1, V_X2, V_X3, V_WH, V_PST, V_MST, V_T0, V_T1 = range(1, 12)
V_MW = V_X0
V_T2 = 116
V_SEL = 12
MEM = 16
V_IDX, V_PF, V_SELT = 48, 49, 50
AQ, AK, AV, KX, VX = 52, 60, 68, 76, 84
WB = 92
T1, T2, T3, T4, T5 = 116, 120, 124, 128, 132
WV0 = 136


def streams():
    st = []
    for p in range(2):
        st += [(X, t, p) for X in 'qkv' for t in range(2)]
    for X in 'qkv':
        for p in range(2, 8):
            st += [(X, 0, p), (X, 1, p)]
    ost = [('o', T_, 0) for T_ in range(8)]
    for half in range(2):
        for pp in range(1, 4):
            for T_ in range(4 * half, 4 * half + 4):
                ost.append(('o', T_, pp))
    LX, LP = LDS_CLASS
    groups = [(X, par, u) for X in 'qkv' for par in range(2) if (X, par) != (LX, LP) for u in range(2)]
    groups += [('o', pp, 0) for pp in range(4) if pp not in LDS_WO]
    groups += [(LX, LP, 0), (LX, LP, 1)] + [('o', pp, 0) for pp in LDS_WO]
    home = {}
    octs = [('a', 8 * i) for i in range(32)] + [('v', WV0 + 8 * i) for i in range(8)]
    quads = [('v', WV0 + 64 + 4 * i) for i in range(14)]
    n = 0
    for X, t, p in st:
        if (X, p & 1) == (LX, LP):
            home[(X, t, p)] = ('lds', n, [32768 * u + 1024 * (2 * (p >> 1) + t) for u in range(2)])
            n += 1
        else:
            home[(X, t, p)] = octs.pop(0)
    n = 0
    for _, T_, pp in ost:
        if pp in LDS_WO:
            home[('o', T_, pp)] = ('lds', n, [(1 << 16) + 32768 * LDS_WO.index(pp) + 1024 * T_])
            n += 1
        elif (T_, pp) in LDS_EXTRA:
            home[('o', T_, pp)] = ('lds', n, [(2 << 16) + L_WT + 1024 * LDS_EXTRA.index((T_, pp))])
            n += 1
        else:
            home[('o', T_, pp)] = quads.pop(0)
    assert not octs and not quads
    return st, ost, home, groups


LDS_CLASS = ('q', 1)
LDS_WO = [0, 2]
LDS_EXTRA = [(1, 3), (5, 3)]


def wrd(dst, off):
    return f'ds_read_b128 {q4(dst)}, v{(V_WL, V_WH, V_X0)[off >> 16]} offset:{off & 0xffff}'


def preload():
    st, ost, home, units = streams()
    o = []
    for e in st:
        if home[e][0] == 'lds' and home[e][1] < 3:
            for u in range(2):
                o.append(wrd(WB + 8 * home[e][1] + 4 * u, home[e][2][u]))
    return o


def gen_chain(P, opt):
    stream, ostream, home, units = streams()
    P.label('chain_role')
    P('v_and_b32 v0, 63, v0')
    LR = AQ
    loader.setup(P, LR, True)
    P0 = P
    setup_code = []
    P = setup_code.append
    P(f'''
    v_lshlrev_b32 v{V_L16}, 4, v0
    v_add_u32 v{V_WL}, s42, v{V_L16}
    v_add_u32 v{V_WH}, 65536, v{V_WL}
    s_lshl_b32 s21, {S_W}, 11
    v_add_u32 v{V_MW}, s21, v{V_L16}
    v_xor_b32 v{V_X1}, 2048, v{V_X0}
    v_xor_b32 v{V_X2}, 4096, v{V_X0}
    v_xor_b32 v{V_X3}, 6144, v{V_X0}
    v_bfe_u32 v{V_T1}, v0, 3, 1
    v_mul_u32_u24 v{V_IDX}, 0xaaaa, v{V_T1}
    v_add_u32 v{V_IDX}, 0x4444, v{V_IDX}
    v_and_b32 v{V_PF}, {15 if opt.get('pmode', 0) else 31}, v0
    v_lshlrev_b32 v{V_PF}, 7, v{V_PF}
    v_add_u32 v{V_PF}, 0x80000, v{V_PF}
    v_lshrrev_b32 v{V_T0}, 2, v0
    s_lshl_b32 s22, {S_W}, 5
    v_add_u32 v{V_T0}, s22, v{V_T0}
    v_lshlrev_b32 v{V_T0}, 11, v{V_T0}
    v_and_b32 v{V_T1}, 3, v0
    v_lshlrev_b32 v{V_T1}, 4, v{V_T1}
    s_lshl_b32 s22, {S_H}, 6
    v_add3_u32 v{V_PST}, v{V_T0}, v{V_T1}, s22
    v_lshrrev_b32 v{V_T0}, 4, v0
    v_lshlrev_b32 v{V_T0}, 3, v{V_T0}
    s_lshl_b32 s22, {S_H}, 2
    s_add_u32 s24, s22, {S_W}
    s_lshl_b32 s22, s24, 6
    v_add3_u32 v{V_MST}, v{V_T0}, v{V_T1}, s22
    v_and_b32 v{V_T0}, 15, v0
    ''')

    def onehot(dst, n, src):
        for i in range(n):
            P(f'''
            v_mov_b32 v{dst + i}, 0
            v_mov_b32 v{V_T1}, 0x3f80
            v_cmp_eq_u32 vcc, {2 * i}, v{src}
            v_cndmask_b32 v{dst + i}, v{dst + i}, v{V_T1}, vcc
            v_mov_b32 v{V_T1}, 0x3f800000
            v_cmp_eq_u32 vcc, {2 * i + 1}, v{src}
            v_cndmask_b32 v{dst + i}, v{dst + i}, v{V_T1}, vcc
            ''')
    onehot(V_SEL, 4, V_T0)
    P(f'''
    v_and_b32 v{V_T0}, 7, v0
    v_bfe_u32 v{V_T1}, v0, 4, 1
    v_lshlrev_b32 v{V_T1}, 2, v{V_T1}
    v_sub_u32 v{V_T0}, v{V_T0}, v{V_T1}
    ''')
    onehot(V_SELT, 2, V_T0)
    P(f'''
    s_lshl_b32 s50, {S_LAYER}, 20
    s_add_u32 s50, s50, {CPART}
    s_add_u32 s53, s50, {16 * RS}
    s_lshl_b32 s22, s24, 11
    s_add_u32 s51, s50, s22
    s_xor_b32 s49, s51, 0x80000
    s_lshl_b32 s26, {S_LAYER}, 14
    s_add_u32 s26, s26, {CMEM}
    s_add_u32 s48, s26, 8192
    s_add_u32 s52, s48, s21
    s_lshl_b32 s22, {S_LAYER}, 25
    s_lshl_b32 s23, s24, 12
    s_add_u32 s28, s22, s23
    s_add_u32 s28, s28, {KVIMG}
    s_lshl_b32 s22, {S_LAYER}, 24
    s_lshl_b32 s23, s24, 11
    s_add_u32 s30, s22, s23
    s_add_u32 s30, s30, {KMVM}
    s_lshl_b32 s22, {S_LAYER}, 14
    s_lshl_b32 s23, s24, 7
    s_add_u32 s22, s22, s23
    s_add_u32 s31, s22, {F_KV}
    s_add_u32 s32, s22, {F_KM}
    s_mov_b32 s34, 0x00ff00ff
    s_mov_b32 s35, 0x00ff00ff
    s_mov_b32 s36, 0xff00ff00
    s_mov_b32 s37, 0xff00ff00
    ''')
    init = f'''
    v_mov_b32 v{T4}, {S_SENT}
    v_mov_b32 v{T4 + 1}, {S_SENT}
    v_mov_b32 v{T4 + 2}, {S_SENT}
    v_mov_b32 v{T4 + 3}, {S_SENT}
    buffer_store_dwordx4 {q4(T4)}, v{V_L16}, {S_WS}, s51 offen sc1
    buffer_store_dwordx4 {q4(T4)}, v{V_L16}, {S_WS}, s51 offen offset:1024 sc1
    s_mov_b64 exec, 0x000f000f
    buffer_store_dwordx2 {q2(T4)}, v{V_MST}, {S_WS}, s48 offen sc1
    s_mov_b64 exec, -1
    '''
    P = P0

    def confirm(newer):
        P(stamps.tl(opt, 0, 1))
        opt['ready'](P, newer, '\n'.join(setup_code) + init)
        P(stamps.tl(opt, 1, 1))

    def count(newer):
        opt['count_ready'](P, newer, V_T0)
        P(stamps.tl(opt, 2, 1))
        if opt.get('warmon'):
            P(f's_cmp_eq_u32 {S_LAYER}, 0\ns_cbranch_scc1 chain_nowarm')
            opt['warm'](P, 0)
            P('chain_nowarm:')
        P(stamps.tl(opt, 3, 1))
    gr = []
    for X, a_, u in units:
        if X == 'o':
            code = f's_xor_b32 s43, s39, {a_ * 32768}\ns_add_u32 s43, s43, s41'
            ds = [[home[('o', 2 * Pp + t, a_)] for t in range(2)] for Pp in range(4)]
        else:
            code = f's_add_u32 s43, s40, {a_ * 64 * 8192 + u * 16 * 8192}'
            ds = [[home[(X, t, 2 * pp + a_)] for t in range(2)] for pp in range(4)]
        ds = [[('lds', d[2][u]) if d[0] == 'lds' else (d[0], d[1] + 4 * u) for d in row] for row in ds]
        gr.append((X, code, ds))
    loader.run(P, gr, LR, True, KX, (V_WL, V_WH, V_X0), (confirm, count))
    P(stamps.tl(opt, 5))
    P(f'''
    v_and_b32 v{V_T0}, 7, v0
    v_lshlrev_b32 v{V_T0}, 10, v{V_T0}
    v_bfe_u32 v{V_T1}, v0, 3, 1
    v_lshl_add_u32 v{V_T0}, v{V_T1}, 6, v{V_T0}
    v_lshrrev_b32 v{V_T1}, 4, v0
    v_lshl_add_u32 v{V_T0}, v{V_T1}, 4, v{V_T0}
    s_lshl_b32 s22, {S_W}, 8
    s_load_dwordx2 s[44:45], s[0:1], 56
    s_mov_b32 s46, 8192
    s_mov_b32 s47, 0x00020000
    s_waitcnt lgkmcnt(0)
    buffer_load_dwordx4 {q4(MEM)}, v{V_T0}, s[44:47], s22 offen
    buffer_load_dwordx4 {q4(MEM + 4)}, v{V_T0}, s[44:47], s22 offen offset:128
    ''')
    opt['wait_ready'](P, T1)
    lw = P.uid('ch_kv0')
    P(f'''
    {lw}:
    {GUARD}
    buffer_load_dword v{V_FL}, off, {S_WS}, s31 sc1
    s_waitcnt vmcnt(0)
    v_cmp_gt_u32 vcc, 1, v{V_FL}
    s_cbranch_vccnz {lw}
    ''')
    for i in range(24):
        P(f'v_mov_b32 v{AQ + i}, 0')
    P('s_waitcnt lgkmcnt(0)')
    for i in preload():
        P(i)
    P(f'''
    s_mov_b32 {S_S}, 0
    s_mov_b32 s33, 1
    s_mov_b32 s27, {STAMP + MB}
    v_mov_b32 v{V_T0}, 0
    v_mov_b32 v{T4}, {S_SENT}
    v_mov_b32 v{T4 + 1}, {S_SENT}
    v_mov_b32 v{T4 + 2}, {S_SENT}
    v_mov_b32 v{T4 + 3}, {S_SENT}
    ds_write_b128 v{V_MW}, {q4(MEM)}
    ds_write_b128 v{V_MW}, {q4(MEM + 4)} offset:1024
    ''')
    stamps.init(P, opt)
    P(f's_cmp_eq_u32 {S_PURE}, 0\ns_cbranch_scc1 chain_slow_step\ns_branch chain_fast_step')
    chain_loop(P, opt, 'fast')
    chain_loop(P, opt, 'slow')
    P.label('chain_last')
    code, t = schedule(step_items(opt, ' sc1', True))
    for i in code:
        P(i)
    stamps.dump(P, opt)
    P('s_waitcnt vmcnt(0)\ns_endpgm')


def dppadd(d, a, b, ror=8):
    return f'v_add_f32_dpp v{d}, v{a}, v{b} row_ror:{ror} {DPPF}'


def cvt(d, a):
    return f'v_cvt_pk_bf16_f32 v{d}, v{a}, v{a + 1}'


def xl(op, n, x, t):
    return [f'v_mov_b32 v{t}, v{x}', f'v_permlane{n}_swap_b32 v{x}, v{t}', f'{op} v{x}, v{x}, v{t}']


def pk(op, d, a, b):
    return f'v_pk_{op}_f32 {q2(d)}, {q2(a)}, {q2(b)}'


def step_items(opt, XS, last):
    stream, ostream, home, units = streams()
    QOP, KOP, VOP = T1, T2, T3
    XE, ME = AQ, AK
    PX, PM = T4, AK + 2
    MX, NM, SUM, TN = T5, T5 + 1, T5 + 2, T5 + 3
    OX, OOP = KX, T1
    OIN = [AV, AV + 4, T4]
    AO = MEM
    it = []
    A = it.append
    A('s_nop 0 ;w:mem ;t:%d' % opt.get('tb', 70))
    A('@bar mem')
    for pr in range(1, 4):
        A(f'ds_read_b128 {q4(MEM + 8 * pr)}, v{V_X0 + pr} ;r:mem')
        A(f'ds_read_b128 {q4(MEM + 8 * pr + 4)}, v{V_X0 + pr} offset:1024 ;r:mem')
    if not last:
        for i in range(4):
            A(f'buffer_load_dwordx4 {q4(KX + 4 * i)}, v{V_L16}, {S_WS}, s28 offen offset:{1024 * i} sc1 ;lat:400')
    kmode = 1
    pf = [f'v_cmp_lt_u32 vcc, s33, v{V_FL}', f'v_cndmask_b32 v{V_T1}, v{V_L16}, v{V_PF}, vcc']
    if opt.get('pmode', 0) == 0:
        if not last:
            if not opt.get('spec', 1):
                it += pf
            A(f'buffer_load_dword v{V_FL}, v{V_PF if opt.get("spec", 1) else V_T1}, {S_WS}, s28 offen sc1')
        if not last:
            ft = opt.get('ft', 150)
            A(f'buffer_load_dword v{V_FL}, off, {S_WS}, s31 sc1')
    else:
        if not last:
            A(f'buffer_load_dword v{V_FL}, off, {S_WS}, s31 sc1')
        A(f'buffer_store_dword v{V_T0}, off, {S_WS}, s32 sc1 ;by:250')
        if not last:
            it += pf
            A(f'buffer_load_dword v{V_T0}, v{V_T1}, {S_WS}, s28 offen sc1')
    if not last and not opt.get('ra'):
        A(f'buffer_store_dwordx4 {q4(T4)}, v{V_L16}, {S_WS}, s49 offen{XS}')
        A(f'buffer_store_dwordx4 {q4(T4)}, v{V_L16}, {S_WS}, s49 offen offset:1024{XS}')

    for e in stream:
        X, t, p = e
        kind, where = home[e][:2]
        if kind == 'lds':
            slot = WB + 8 * (where % 3)
            if where >= 3:
                A(wrd(slot, home[e][2][0]))
                A(wrd(slot + 4, home[e][2][1]))
            w = q8(slot)
        else:
            w = f'{kind}[{where}:{where + 7}]'
        if last and X == 'q':
            continue
        a = {'q': AQ, 'k': AK, 'v': AV}[X] + 4 * t
        A(f'{SMF} {q4(a)}, {q4(MEM + 4 * p)}, {w}, v{V_IDX}')

    def transpose(acc, op):
        for t in range(2):
            A(cvt(op + 2 * t, acc + 4 * t))
            A(cvt(op + 2 * t + 1, acc + 4 * t + 2))
        for t in range(2):
            A(f'{MF16} {q4(acc + 4 * t)}, {q2(op + 2 * t)}, {q2(V_SELT)}, 0')
        for i in range(4):
            A(cvt(op + i, acc + 2 * i))

    kmst = f'buffer_store_dwordx4 {q4(KOP)}, v{V_L16}, {S_WS}, s30 offen sc1 ;free ;dl:%d' % opt.get('dkk', 1000)
    vmst = f'buffer_store_dwordx4 {q4(VOP)}, v{V_L16}, {S_WS}, s30 offen offset:1024 sc1 ;free ;dl:%d' % opt.get('dk', 800)
    if last:
        transpose(AK, KOP)
        A(kmst)
        for i in range(4):
            A(cvt(VOP + i, AV + 2 * i))
        A(vmst)
        return it
    hi = 'quad_perm:[0,1,2,3] row_mask:0xf bank_mask:0xc'
    transpose(AQ, QOP)
    for t in range(2):
        A(f'{MF} {q4(AQ + 4 * t)}, {q4(KX + 4 * t)}, {q4(QOP)}, 0')
    for r in range(4):
        A(f'v_mov_b32_dpp v{XE + r}, v{AQ + 4 + r} {hi}')
    A(f'ds_write_b128 v{V_X0}, {q4(XE)} offset:{L_SC}')
    transpose(AK, KOP)
    A(f'{MF} {q4(AK)}, {q4(KOP)}, {q4(QOP)}, 0')
    for r in range(2):
        A(f'v_mov_b32_dpp v{ME + r}, v{AK + 2 + r} {hi}')
    A(f'ds_write_b64 v{V_X0}, {q2(ME)} offset:{L_SC + 1024} ;w:sc')
    A('@bar sc')
    RX = [AQ + 4, KX, KX + 4]
    for u in range(3):
        A(f'ds_read_b128 {q4(RX[u])}, v{V_X0 + 1 + u} offset:{L_SC} ;r:sc')
        A(f'ds_read_b64 {q2(ME + 2 + 2 * u)}, v{V_X0 + 1 + u} offset:{L_SC + 1024} ;r:sc')
    for u in range(3):
        for i in (0, 2):
            A(pk('add', XE + i, XE + i, RX[u] + i))
        A(pk('add', ME, ME, ME + 2 + 2 * u))
    A(f'v_max3_f32 v{MX}, v{XE}, v{XE + 1}, v{XE + 2}')
    A(f'v_max3_f32 v{NM}, v{XE + 3}, v{ME}, v{ME + 1}')
    A(f'v_max_f32 v{MX}, v{MX}, v{NM}')
    A(f'v_max_f32_dpp v{MX}, v{MX}, v{MX} row_ror:8 {DPPF}')
    for x in xl('v_max_f32', 16, MX, NM) + xl('v_max_f32', 32, MX, NM):
        A(x)
    A(f'v_mul_f32 v{MX}, {S_C}, v{MX}')
    for x in (XE, XE + 2, ME):
        A(f'v_pk_fma_f32 {q2(x)}, {q2(x)}, s[18:19], {q2(MX)} op_sel_hi:[1,0,0] neg_lo:[0,0,1] neg_hi:[0,0,1]')
    for x in (XE, XE + 1, XE + 2, XE + 3, ME, ME + 1):
        A(f'v_exp_f32 v{x}, v{x}')
    A(cvt(PX, XE))
    A(cvt(PX + 1, XE + 2))
    A(cvt(PM, ME))
    for d in (PX + 2, PX + 3):
        A(f'v_mov_b32_dpp v{d}, v{d - 2} row_ror:8 {DPPF}')
    A(f'v_mov_b32_dpp v{PM + 1}, v{PM} row_ror:8 {DPPF}')
    for i in range(4):
        A(cvt(VOP + i, AV + 2 * i))
    for t in range(2):
        A(f'{MF} {q4(OX + 4 * t)}, {q4(VX + 4 * t)}, {q4(PX)}, 0')
    for t in range(2):
        A(f'{MF16} {q4(OX + 4 * t)}, {q2(VOP + 2 * t)}, {q2(PM)}, {q4(OX + 4 * t)}')
    A(pk('add', XE, XE, XE + 2))
    if opt.get('nopk'):
        for i in range(2):
            A(f'v_fma_f32 v{XE + i}, v{ME + i}, 0.5, v{XE + i}')
    else:
        A(f'v_pk_fma_f32 {q2(XE)}, {q2(ME)}, 0.5, {q2(XE)} op_sel_hi:[1,0,1]')
    A(f'v_add_f32 v{SUM}, v{XE}, v{XE + 1}')
    A(dppadd(SUM, SUM, SUM))
    for x in xl('v_add_f32', 16, SUM, TN) + xl('v_add_f32', 32, SUM, TN):
        A(x)
    A(f'v_rcp_f32 v{SUM}, v{SUM}')
    if opt.get('zc', 1):
        A(f'v_cndmask_b32 v{SUM}, 0, v{SUM}, s[34:35]')
    for i in range(0, 8, 2):
        A(f'v_pk_mul_f32 {q2(OX + i)}, {q2(OX + i)}, {q2(SUM)} op_sel_hi:[1,0]')
    for i in range(4):
        A(cvt(OOP + i, OX + 2 * i))
    A(f'ds_write_b128 v{V_X0}, {q4(OOP)} offset:{L_O} ;w:o')
    if opt.get('kmh'):
        A(['s_mov_b64 exec, s[34:35]', kmst, 's_mov_b64 exec, -1'])
    elif kmode >= 1:
        A(kmst)
    if kmode == 1:
        A(vmst)
    A('@bar o')
    for pp in range(1, 4):
        A(f'ds_read_b128 {q4(OIN[pp - 1])}, v{V_X0 + pp} offset:{L_O} ;r:o')
    PKA, PKB = [AQ, AK], [AQ + 4, AK + 4]

    def pack(u):
        for i in range(4):
            A(cvt(PKB[u] + i, AO + 16 * u + 8 + 2 * i))
        for i in range(4):
            A(cvt(PKA[u] + i, AO + 16 * u + 2 * i))
        for i in range(4):
            A(f'v_mov_b32_dpp v{PKA[u] + i}, v{PKB[u] + i} row_ror:8 row_mask:0xf bank_mask:0xc')
        A(f'buffer_store_dwordx4 {q4(PKA[u])}, v{V_PST}, {S_WS}, {"s53" if u else "s50"} offen{XS} ;free' + ('' if u else ' ;dl:%d' % opt.get('gap', 240)))
    for k, e in enumerate(ostream):
        _, T_, pp = e
        kind, where = home[e][:2]
        if kind == 'lds':
            slot = WB + 4 * (where % 6)
            A(wrd(slot, home[e][2][0]))
            w = q4(slot)
        else:
            w = q4(where)
        b = q4(OOP) if pp == 0 else q4(OIN[pp - 1])
        c = '0' if pp == 0 else q4(AO + 4 * T_)
        A(f'{MF} {q4(AO + 4 * T_)}, {w}, {b}, {c}' + (' ;p:150' if (pp and T_ < 4) else ''))
        if k == 19:
            pack(0)
    pack(1)
    return it


def chain_loop(P, opt, mode):
    XS = '' if mode == 'fast' else ' sc1'
    tag = 'chain_' + mode
    mk = lambda i: stamps.marks(opt, i)
    RED = MEM + 8
    RDD = T5
    rl = f'''buffer_load_dwordx4 {q4(RED)}, v{V_L16}, {S_WS}, s51 offen sc1 ;nodep
    buffer_load_dwordx4 {q4(RED + 4)}, v{V_L16}, {S_WS}, s51 offen offset:1024 sc1 ;nodep'''
    gl = f'''buffer_load_dwordx4 {q4(MEM)}, v{V_L16}, {S_WS}, s52 offen sc1 ;nodep
    buffer_load_dwordx4 {q4(MEM + 4)}, v{V_L16}, {S_WS}, s52 offen offset:1024 sc1 ;nodep'''

    def chk(b, dst):
        return f'''v_max3_u32 v{V_T2}, v{b}, v{b + 1}, v{b + 2}
        v_max3_u32 v{V_T1}, v{b + 3}, v{b + 4}, v{b + 5}
        v_max3_u32 v{V_T2}, v{V_T2}, v{b + 6}, v{b + 7}
        v_max_u32 v{V_T2}, v{V_T2}, v{V_T1}
        v_cmp_eq_u32 {dst}, {S_SENT}, v{V_T2}'''
    red = f'''{MF} {q4(RDD)}, {q4(V_SEL)}, {q4(RED)}, 0
    {MF} {q4(RDD)}, {q4(V_SEL)}, {q4(RED + 4)}, {q4(RDD)}'''
    fin = '\n'.join([dppadd(RDD + r, RDD + r, RDD + r, ror) for ror in (4, 8) for r in range(4)] +
                    [cvt(RDD, RDD), cvt(RDD + 1, RDD + 2)])
    def pause(c):
        return f's_sleep {c}' if c else ''
    early = opt.get('ef', 0)
    flag = f'buffer_store_dword v{V_T0}, off, {S_WS}, s32 sc1' if early else ''
    wr = f'''ds_write_b128 v{V_MW}, {q4(MEM)}
    ds_write_b128 v{V_MW}, {q4(MEM + 4)} offset:1024'''
    P(f'''
    {tag}_gather:
    {pause(opt.get('b1', 2))}
    {gl}
    {pause(opt.get('b2', 3))}
    {gl}
    {flag}
    s_waitcnt vmcnt({2 + early})
    {chk(MEM, 'vcc')}
    {wr}
    s_cbranch_vccnz {tag}_gretry
    {mk(2)}
    ''')
    P.label(tag + '_step')
    for i in range(4):
        P(stamps.tlc(opt, i, S_S, 39 + i))
    items = step_items(opt, XS, False)
    code, t = schedule(items, verbose=opt.get('verbose') == 1 and mode == 'fast', anneal=opt.get('an', 400000), seed=opt.get('seed', 0))
    k = code.index('s_barrier')
    nds = sum(c.startswith('ds_') for c in code[:k])
    code.insert(k, f's_waitcnt lgkmcnt({nds})')
    code.remove('s_nop 0')
    k = code.index('s_barrier', k + 2)
    code.insert(k, 's_waitcnt vmcnt(%d)' % sum(c.startswith('buffer_') for c in code[:k]))
    if opt.get('stamp') == 5:
        c2 = ['s_memtime s[64:65] ;nodep']
        n = 0
        for j, c in enumerate(code):
            if 'lo' in opt:
                c2.append(c)
                if j >= opt['lo'] and (j - opt['lo']) % opt['st'] == 0 and n < 8:
                    c2.append(f's_memtime s[{82 + 2 * n}:{83 + 2 * n}] ;nodep')
                    if mode == 'fast':
                        print('stamp', n, 'after', j, c)
                    n += 1
            elif c == 's_barrier':
                jj = len(c2)
                while c2[jj - 1].startswith('s_waitcnt'):
                    jj -= 1
                c2.insert(jj, f's_memtime s[{82 + 2 * n}:{83 + 2 * n}] ;nodep')
                c2 += [c, f's_memtime s[{84 + 2 * n}:{85 + 2 * n}] ;nodep']
                n += 2
            else:
                c2.append(c)
        c2 += ['s_memtime s[66:67] ;nodep', 's_waitcnt lgkmcnt(0)', 's_sub_u32 s69, s64, s68', 's_add_u32 s79, s79, s69', 's_mov_b32 s68, s66']
        prev = 's64'
        for j in range(9):
            cur = f's{82 + 2 * j}' if j < 8 else 's66'
            c2 += [f's_sub_u32 s69, {cur}, {prev}', f's_add_u32 s{70 + j}, s{70 + j}, s69']
            prev = cur
        code = c2
    for i in code:
        P(i)
    P(mk(0))
    z = [f'v_mov_b32 v{AQ + i}, 0' for i in range(24)]
    wbr = preload()
    resets = f'''buffer_store_dwordx4 {q4(T4)}, v{V_L16}, {S_WS}, s49 offen{XS}
    buffer_store_dwordx4 {q4(T4)}, v{V_L16}, {S_WS}, s49 offen offset:1024{XS}'''

    P(f'''
    s_xor_b32 s47, s48, 8192
    s_add_u32 s52, s48, s21
    s_add_u32 {S_S}, {S_S}, 1
    s_add_u32 s33, {S_S}, 1
    s_add_u32 s28, s28, 0x80000
    s_add_u32 s30, s30, 0x40000
    s_cmp_eq_u32 {S_S}, {NS - 1}
    s_cselect_b32 s29, {NS}, {S_S}
    v_mov_b32 v{T4}, {S_SENT}
    v_mov_b32 v{T4 + 1}, {S_SENT}
    v_mov_b32 v{T4 + 2}, {S_SENT}
    v_mov_b32 v{T4 + 3}, {S_SENT}
    {stamps.trace(opt, 0, S_S, V_T1)}
    {chr(10).join(wbr)}
    {chr(10).join(z[24 - opt.get('za', 0):])}
    {resets if opt.get('ra') else ''}
    {pause(opt.get('a1', 2))}
    {rl}
    {pause(opt.get('a2', 3))}
    {tag}_rpoll:
    {rl}
    s_waitcnt vmcnt(2)
    {red}
    {chk(RED, 's[54:55]')}
    v_cmp_u_f32 vcc, v{RDD}, v{RDD}
    {fin}
    s_cbranch_vccnz {tag}_rretry
    {tag}_rok:
    s_mov_b64 exec, 0x000f000f
    buffer_store_dwordx2 {q2(RDD)}, v{V_MST}, {S_WS}, s48 offen{XS}
    buffer_store_dwordx2 {q2(T4)}, v{V_MST}, {S_WS}, s47 offen{XS}
    s_mov_b64 exec, -1
    {mk(1)}
    v_cmp_ge_u32 vcc, s29, v{V_FL}
    s_xor_b32 s50, s50, 0x80000
    s_xor_b32 s53, s53, 0x80000
    s_xor_b32 s51, s51, 0x80000
    s_xor_b32 s49, s49, 0x80000
    s_xor_b32 s48, s48, 8192
    {chr(10).join(z[:24 - opt.get('za', 0)])}
    s_cbranch_vccz {tag}_gather
    {flag}
    s_branch {tag}_special
    {tag}_gretry:
    {stamps.count(opt, 7)}
    {GUARD}
    {gl}
    s_waitcnt vmcnt({2 + early})
    {chk(MEM, 'vcc')}
    {wr}
    s_cbranch_vccnz {tag}_gretry
    {mk(2)}
    s_branch {tag}_step
    {tag}_rretry:
    {stamps.count(opt, 6)}
    {GUARD}
    s_cmp_lg_u64 s[54:55], 0
    s_cbranch_scc1 {tag}_rpoll
    {red}
    {fin}
    s_branch {tag}_rok
    ; next K/V tile not yet announced, or the last step follows
    {tag}_special:
    {gl}
    buffer_load_dword v{V_FL}, off, {S_WS}, s31 sc1
    s_waitcnt vmcnt(0)
    {GUARD}
    {chk(MEM, 'vcc')}
    s_cbranch_vccnz {tag}_special
    v_cmp_ge_u32 vcc, {S_S}, v{V_FL}
    s_cbranch_vccnz {tag}_special
    ds_write_b128 v{V_MW}, {q4(MEM)}
    ds_write_b128 v{V_MW}, {q4(MEM + 4)} offset:1024
    {mk(3)}
    s_cmp_eq_u32 {S_S}, {NS - 1}
    s_cbranch_scc0 {tag}_step
    s_waitcnt lgkmcnt(0)
    s_branch chain_last
    ''')
```

```python
from layout import *
import stamps
from chain import q4, q2, GUARD, S_WS, S_W, S_H, S_G
from roles import cvt, unpack8, ln8

WAVE_LDS = 40960


def srd(P, base, karg, nbytes):
    P(f's_load_dwordx2 s[{base}:{base + 1}], s[0:1], {karg}')
    P(f's_mov_b32 s{base + 2}, {nbytes}')
    P(f's_mov_b32 s{base + 3}, 0x00020000')


def announce(P, stage):
    l = P.uid('ann')
    P(f'''
    s_waitcnt vmcnt(0)
    s_barrier
    s_cmp_lg_u32 {S_W}, 0
    s_cbranch_scc1 {l}
    v_mov_b32 v1, {stage}
    buffer_store_dword v1, off, {S_WS}, s55 sc1
    {l}:
    ''')


def wait_lines(P, stage, base, va, v1):
    l, d = P.uid('wa'), P.uid('wa')
    P(f'''
    s_mov_b32 s22, {base}
    {l}:
    buffer_load_dword v{v1}, v{va}, {S_WS}, s22 offen sc1
    s_waitcnt vmcnt(0)
    v_cmp_gt_u32 vcc, {stage}, v{v1}
    s_cbranch_vccz {d}
    {GUARD}
    s_sleep 1
    s_branch {l}
    {d}:
    ''')


B = (32, 72, 144, 184)


def rows_load(P, tid):
    srd(P, 44, 0, S * D * 2)
    P(f'''
    v_and_b32 v10, 63, v{tid}
    v_lshlrev_b32 v10, 4, v10
    s_lshl_b32 s48, s50, 10
    s_lshl_b32 s49, {S_W}, 12
    s_add_u32 s48, s48, s49
    s_waitcnt lgkmcnt(0)
    ''')
    for r in range(4):
        P(f'buffer_load_dwordx4 {q4(112 + 4 * r)}, v10, s[44:47], s48 offen offset:{1024 * r}')


def rows(P, opt, wait, tid, lds=0):
    for tup in zip(*[unpack8(b, 112 + 4 * rr) + ln8(b, b + 16, b + 32) for rr, b in enumerate(B)]):
        for x in tup:
            P(x)
    wait()
    P(f'''
    v_lshlrev_b32 v3, 13, v{tid}
    s_lshl_b32 s50, s50, 1
    s_add_u32 s50, s50, {YT}
    s_add_u32 s51, s50, 4096
    s_mov_b32 s22, 0x05040100
    s_mov_b32 s23, 0x07060302
    v_lshlrev_b32 v5, 2, v{tid}
    v_add_u32 v5, {lds}, v5
    ''')
    for j in range(2):
        P(f'buffer_load_dwordx4 {q4(16 + 4 * j)}, v3, {S_WS}, s50 offen offset:{16 * j} sc1')
        P(f'buffer_load_dwordx4 {q4(24 + 4 * j)}, v3, {S_WS}, s51 offen offset:{16 * j} sc1')
    for t in range(16):
        P(f'v_perm_b32 v{6 + (t & 1)}, v{24 + (t >> 1)}, v{16 + (t >> 1)}, s{22 + (t & 1)}')
        P(f'ds_write_b32 v5, v{6 + (t & 1)} offset:{1024 * t}')
    P(f'''
    v_add_u32 v5, s49, v10
    v_add_u32 v5, {lds}, v5
    s_add_u32 s50, s48, {YTOT}
    s_add_u32 s51, s48, {X1}
    s_add_u32 s49, s48, {H1}
    s_waitcnt lgkmcnt(0)
    s_barrier
    ''')
    for r in range(4):
        P(f'ds_read_b128 {q4(128 + 4 * r)}, v5 offset:{1024 * r}')
    seqs = []
    for rr, b in enumerate(B):
        X, Yv, N_, PKX, PH, TT = b, b + 8, b + 16, b + 24, b + 28, b + 32
        sq = [f'buffer_store_dwordx4 {q4(128 + 4 * rr)}, v10, {S_WS}, s50 offen offset:{1024 * rr} sc1']
        sq += unpack8(Yv, 128 + 4 * rr)
        sq += [f'v_pk_fma_f32 {q2(X + i)}, {q2(N_ + i)}, {q2(Yv + i)}, {q2(X + i)}' for i in range(0, 8, 2)]
        sq += [cvt(PKX + i, X + 2 * i) for i in range(4)]
        sq += [f'buffer_store_dwordx4 {q4(PKX)}, v10, {S_WS}, s51 offen offset:{1024 * rr} sc1']
        sq += unpack8(X, PKX) + ln8(X, N_, TT) + [cvt(PH + i, N_ + 2 * i) for i in range(4)]
        sq += [f'buffer_store_dwordx4 {q4(PH)}, v10, {S_WS}, s49 offen offset:{1024 * rr} sc1']
        seqs.append(sq)
    for tup in zip(*seqs):
        for x in tup:
            P(x)


def gen_pre_role(P, opt):
    MF32 = 'v_mfma_f32_32x32x16_bf16'
    P('; ================= preparation =================\npre_role:')
    srd(P, 24, 8, S * D * 2)
    srd(P, 28, 16, S * D * 2)
    srd(P, 32, 32, D * S * 2)
    srd(P, 36, 40, D * 2)
    srd(P, 40, 24, D * 4 * 2)
    P(f'''
    s_lshr_b32 s22, {S_G}, 1
    s_cmp_eq_u32 {S_G}, 6
    s_cselect_b32 s22, 2, s22
    s_lshl_b32 s54, s22, 5
    s_add_u32 s54, s54, {S_H}
    s_lshl_b32 s55, s54, 7
    s_add_u32 s55, s55, {F_P}
    s_and_b32 s85, s54, 63
    s_lshl_b32 s85, s85, 7
    s_add_u32 s85, s85, {F_H}
    s_lshl_b32 s52, s54, 2
    v_and_b32 v15, 63, v0
    v_lshlrev_b32 v10, 4, v15
    v_subrev_u32 v11, 16, v10
    v_cmp_eq_u32 vcc, 0, v15
    v_mov_b32 v12, 0x7ffffff0
    v_cndmask_b32 v9, v11, v12, vcc
    s_waitcnt lgkmcnt(0)
    ''')
    FK, KR, VR, SH, DD = 112, 144, 188, 220, 108
    Y, OPS, NB = 64, 16, 4
    y = f'v[{Y}:{Y + 15}]'

    def geometry(half):
        nu = 2 << half
        stride = (64 * nu + 4) * 16
        return nu, stride, 8 * stride

    def loads(half):
        nu = 2 << half
        nt = 2 * nu

        def rg(b):
            return f'v[{b}:{b + nu - 1}]'
        P(f'''
        v_mul_u32_u24 v8, {1024 * nt}, v0
        s_lshl_b32 s51, s52, 1
        v_add_u32 v8, s51, v8
        s_lshl_b32 s50, s52, 3
        s_movk_i32 s51, 4096
        ''')
        for i in range(3):
            P(f'v_subrev_u32 v7, {1024 * (3 - i)}, v8')
            P(f'buffer_load_dwordx{nu} {rg(KR + nu * i)}, v7, s[24:27], 0 offen')
        for j in range(nt):
            so = 's51' if j >= 4 else '0'
            P(f'buffer_load_dwordx{nu} {rg(KR + nu * (3 + j))}, v8, s[24:27], {so} offen offset:{1024 * (j & 3)}')
            P(f'buffer_load_dwordx{nu} {rg(VR + nu * j)}, v8, s[28:31], {so} offen offset:{1024 * (j & 3)}')
        for i in range(nu):
            P(f'buffer_load_dwordx4 {q4(SH + 4 * i)}, off, s[40:43], s50 offset:{16 * i}')
        return 3 + 2 * nt + nu

    def filt(half):
        nu = 2 << half
        P(f's_add_u32 s53, s52, {S_W}\ns_lshl_b32 s49, s53, 1\ns_lshl_b32 s53, s53, 12')
        for j in range(nu):
            prev = 'v9, s[32:35], s53 offen' if j == 0 else f'v10, s[32:35], s53 offen offset:{1024 * j - 16}'
            P(f'buffer_load_dwordx4 {q4(FK + 8 * j)}, {prev}')
            P(f'buffer_load_dwordx4 {q4(FK + 8 * j + 4)}, v10, s[32:35], s53 offen offset:{1024 * j}')
        P(f'buffer_load_ushort v{DD}, off, s[36:39], s49')
        return 2 * nu + 1

    def prepare(half):
        nu, stride, boff = geometry(half)
        sh = 3 - half
        P(f'''
        s_mul_i32 s48, {S_W}, {WAVE_LDS}
        v_mov_b32 v40, 0
        v_mov_b32 v41, 0
        v_mov_b32 v42, 0
        v_mov_b32 v43, 0
        v_add_u32 v14, s48, v10
        ds_write_b128 v14, v[40:43] offset:{boff + 16 * nu * 80}
        ds_write_b128 v14, v[40:43] offset:{boff + 16 * nu * 80 + 1024}
        ds_write_b128 v14, v[40:43] offset:{boff + 16 * nu * 80 + 31 * 80 - 1024}
        v_and_b32 v12, 7, v15
        v_mul_u32_u24 v12, {stride}, v12
        v_add_u32 v12, s48, v12
        ds_write_b128 v12, v[40:43]
        ds_write_b128 v12, v[40:43] offset:16
        ds_write_b128 v12, v[40:43] offset:32
        v_sub_u32 v11, 255, v0
        v_lshrrev_b32 v13, {sh}, v11
        v_mul_u32_u24 v13, 80, v13
        v_and_b32 v11, {(1 << sh) - 1}, v11
        v_lshl_add_u32 v13, v11, {6 - sh}, v13
        v_add_u32 v13, {boff}, v13
        v_add_u32 v11, {2 * WAVE_LDS}, v13
        v_and_b32 v3, 31, v15
        v_lshrrev_b32 v4, 5, v15
        v_lshrrev_b32 v6, 3, v3
        v_add_u32 v6, v6, v4
        v_lshl_add_u32 v5, v6, 4, v12
        v_sub_u32 v6, 31, v3
        v_mul_u32_u24 v6, 80, v6
        v_lshl_add_u32 v6, v4, 4, v6
        v_add_u32 v6, s48, v6
        v_lshlrev_b32 v3, 6, v3
        v_lshl_add_u32 v3, v4, 4, v3
        ''')
        assert boff + (16 * nu + 31) * 80 <= WAVE_LDS

    def build(half):
        nu, stride, boff = geometry(half)
        nt = 2 * nu
        P(f'''
        v_lshlrev_b32 v8, 16, v{DD}
        v_lshlrev_b32 v7, 16, v{FK + 4}
        v_add_f32 v7, v7, v8
        v_cvt_pk_bf16_f32 v7, v7, v7
        v_mov_b32 v8, 0xffff
        v_bfi_b32 v7, v8, v7, v{FK + 4}
        v_cmp_eq_u32 vcc, 0, v15
        v_cndmask_b32 v{FK + 4}, v{FK + 4}, v7, vcc
        ''')
        for j in range(nu):
            b = FK + 8 * j
            for c in range(8):
                sh = 1 + c
                o = 48 + 4 * (c & 1)
                if sh & 3:
                    for i in range(4):
                        lo = b + (sh >> 1) + i
                        P(f'v_alignbit_b32 v{o + i}, v{lo + 1}, v{lo}, 16' if sh & 1 else f'v_mov_b32 v{o + i}, v{lo}')
                    src = q4(o)
                else:
                    src = q4(b + (sh >> 1))
                P(f'ds_write_b128 v14, {src} offset:{c * stride + 48 + 1024 * j}')
        C, KF, AC, PKV = 16, 20, 32, 40
        for ch in range(4):
            def un(d, src):
                return f'v_and_b32 v{d}, 0xffff0000, v{src}' if ch & 1 else f'v_lshlrev_b32 v{d}, 16, v{src}'
            for i in range(2):
                P(f'v_lshlrev_b32 v{C + 2 * i}, 16, v{SH + 2 * ch + i}')
                P(f'v_and_b32 v{C + 2 * i + 1}, 0xffff0000, v{SH + 2 * ch + i}')
            for i in range(nt + 3):
                P(un(KF + i, KR + nu * i + (ch >> 1)))
            for j in range(nt):
                P(f'v_mul_f32 v{AC + j}, v{KF + j + 3}, v{C}')
            for tap in range(1, 4):
                for j in range(nt):
                    P(f'v_fmac_f32 v{AC + j}, v{KF + j + 3 - tap}, v{C + tap}')
            for j in range(nt):
                P(un(KF + j, VR + nu * j + (ch >> 1)))
            for j in range(0, nt, 2):
                P(f'v_pk_mul_f32 {q2(AC + j)}, {q2(AC + j)}, {q2(KF + j)}')
            o = PKV + 4 * (ch & 1)
            for i in range(nu):
                P(f'v_cvt_pk_bf16_f32 v{o + i}, v{AC + nt - 1 - 2 * i}, v{AC + nt - 2 - 2 * i}')
            P(f'ds_write_b{32 * nu} v{11 if ch >> 1 else 13}, v[{o}:{o + nu - 1}] offset:{WAVE_LDS * (ch & 1)}')
        P(f's_add_u32 s21, s53, {YT + 2048 * half}\ns_waitcnt vmcnt(0) lgkmcnt(0)\ns_barrier')

    def convolve(half):
        nu, stride, boff = geometry(half)
        n = 32 * nu

        def reads(st):
            m, be = st >> 1, st & 1
            b = OPS + 8 * (st % NB)
            return [f'ds_read_b128 {q4(b)}, v5 offset:{64 * m + 32 * be}',
                    f'ds_read_b128 {q4(b + 4)}, v6 offset:{boff + 80 * m + 32 * be}']
        for st in range(NB - 1):
            for i in reads(st):
                P(i)
        for st in range(n):
            b = OPS + 8 * (st % NB)
            P(f'{MF32} {y}, {q4(b)}, {q4(b + 4)}, {y if st else 0}')
            if st + NB - 1 < n:
                for i in reads(st + NB - 1):
                    P(i)
        o = 96
        for i in range(8):
            P(cvt(o + i, Y + 2 * i))
        for pr in range(2):
            P(f'v_permlane32_swap_b32 v{o + 4 * pr}, v{o + 4 * pr + 2}')
            P(f'v_permlane32_swap_b32 v{o + 4 * pr + 1}, v{o + 4 * pr + 3}')
            P(f'buffer_store_dwordx4 {q4(o + 4 * pr)}, v3, {S_WS}, s21 offen offset:{32 * pr} sc1')

    n = filt(0) + loads(0)
    P(stamps.tl(opt, 0))
    opt['ready'](P, n, f'''
    v_mov_b32 v1, 0
    v_mov_b32 v2, 8
    buffer_store_dword v2, off, {S_WS}, s85 sc1
    buffer_store_dword v1, off, {S_WS}, s55 sc1
    ''')
    prepare(0)
    build(0)
    P(f'''
    s_cmp_lg_u32 {S_W}, 0
    s_cbranch_scc1 pw_cnt
    s_mov_b64 exec, 1
    v_mov_b32 v1, 1
    buffer_atomic_add v1, off, s[4:7], 0 offset:140
    s_mov_b64 exec, -1
    pw_cnt:
    {stamps.tl(opt, 2)}
    ''')
    convolve(0)
    announce(P, 1)
    P(stamps.tl(opt, 3))
    P(f'''
    s_cmp_lt_u32 s54, 64
    s_cbranch_scc1 pw_done
    s_and_b32 s52, s54, 63
    s_lshl_b32 s52, s52, 3
    ''')
    filt(1)
    loads(1)
    P(stamps.tl(opt, 0, 2))
    prepare(1)
    P('pw_b:')
    build(1)
    P(stamps.tl(opt, 2, 2))
    P('s_xor_b32 s52, s52, 4\ns_bitcmp0_b32 s52, 2\ns_cbranch_scc1 pw_b2')
    filt(1)
    for i in range(19):
        P(f'v_mov_b32 v{KR + 4 * i}, v{KR + 4 * i + 2}\nv_mov_b32 v{KR + 4 * i + 1}, v{KR + 4 * i + 3}')
    for i in range(8):
        P(f'v_mov_b32 v{SH + i}, v{SH + 8 + i}')
    opt['wait_ready'](P, 16, 2)
    P('v_lshlrev_b32 v16, 7, v15')
    wait_lines(P, 1, F_R, 16, 17)
    P(f'v_mov_b32 v1, 16\nbuffer_store_dword v1, off, {S_WS}, s85 sc1')
    P(stamps.tl(opt, 1, 2))
    P('pw_b2:')
    convolve(1)
    P('s_barrier\ns_bitcmp1_b32 s52, 2\ns_cbranch_scc1 pw_b')
    P(stamps.tl(opt, 3, 2))
    announce(P, 2)
    P(f'''
    {stamps.tl(opt, 4)}
    pw_done:
    v_mov_b32 v255, 0
    s_branch main_roles
    ''')
```

```python
from layout import *
import stamps
import loader
from asmtool import schedule
from stamps import marks
from chain import (S_WS, S_W, S_H, S_G, S_PURE, S_LAYER, S_S, S_C, S_SENT, GUARD, MF, MF16, DPPF, q4, q2)


def a4(b):
    return 'a[%d:%d]' % (b, b + 3)


def cvt(d, a):
    return f'v_cvt_pk_bf16_f32 v{d}, v{a}, v{a + 1}'


def xlane(op, x, t):
    return [f'v_mov_b32 v{t}, v{x}', f'v_permlane16_swap_b32 v{x}, v{t}', f'{op} v{x}, v{x}, v{t}',
            f'v_mov_b32 v{t}, v{x}', f'v_permlane32_swap_b32 v{x}, v{t}', f'{op} v{x}, v{x}, v{t}']


def wave_sum(x, t):
    o = [f'v_add_f32_dpp v{x}, v{x}, v{x} row_ror:{r} {DPPF}' for r in (1, 2, 4, 8)]
    return o + xlane('v_add_f32', x, t)


def load_weights(P, mats, r, hooks=None):
    loader.setup(P, r, False)
    gr = []
    for mi, X in enumerate(mats):
        for G in range(4):
            if X == 'o':
                gr.append((X, f's_add_u32 s43, s41, {G * 32768}',
                           [[('a', 128 * mi + 4 * (4 * (2 * Pp + t) + G)) for t in range(2)] for Pp in range(4)]))
            else:
                gr.append((X, f's_add_u32 s43, s40, {G * 128 * 8192}',
                           [[('a', 128 * mi + 4 * (16 * t + 4 * G + pp)) for t in range(2)] for pp in range(4)]))
    loader.run(P, gr, r, False, None, None, hooks)
    P('s_barrier')


def h_dma_addr(P, vd, r0, r1, t0):
    P(f'''
    v_lshrrev_b32 v{t0}, 5, v0
    v_lshlrev_b32 v{vd}, 13, v{t0}
    v_bfe_u32 v{t0}, v0, 3, 2
    v_lshl_add_u32 v{vd}, v{t0}, 10, v{vd}
    v_lshrrev_b32 v{t0}, 3, v0
    v_and_b32 v{t0}, 6, v{t0}
    v_xor_b32 v{t0}, v{t0}, v0
    v_and_b32 v{t0}, 7, v{t0}
    v_lshl_add_u32 v{vd}, v{t0}, 4, v{vd}
    v_and_b32 v{r0}, 15, v0
    v_lshlrev_b32 v{r0}, 7, v{r0}
    v_lshrrev_b32 v{t0}, 4, v0
    v_and_b32 v{r1}, 6, v0
    v_xor_b32 v{t0}, v{t0}, v{r1}
    v_lshl_add_u32 v{r0}, v{t0}, 4, v{r0}
    v_xor_b32 v{r1}, 64, v{r0}
    ''')


def h_dma(vd, s_src, s_lds):
    o = []
    for i in range(8):
        o += [f's_add_u32 m0, {s_lds}, {4096 * i - 128 * i}',
              f'buffer_load_dwordx4 v{vd}, {S_WS}, {s_src} offen offset:{128 * i} sc1 lds']
    return o


def h_wave_part(src, lds):
    return f'''s_lshr_b32 s23, {S_W}, 1
    s_lshl_b32 s23, s23, 12
    s_add_u32 {src}, {src}, s23
    s_and_b32 s23, {S_W}, 1
    s_lshl_b32 s23, s23, 14
    s_add_u32 {src}, {src}, s23
    s_lshl_b32 {lds}, {S_W}, 10'''


def h_read(dst, r0, r1, kk, t):
    return f'ds_read_b128 {q4(dst)}, v{r1 if kk & 1 else r0} offset:{(kk >> 1) * 4096 + t * 2048}'


def gen_kv(P, opt):
    V_L16, V_HD, V_F, V_FA, V_T0, V_R0, V_R1, V_TH = range(240, 248)
    HB = 80
    AK = 32
    AV = 48
    PK = 64
    P.label('kv_role')
    P(f'''
    v_and_b32 v0, 63, v0
    v_lshlrev_b32 v{V_L16}, 4, v0
    v_lshlrev_b32 v{V_FA}, 7, v0
    v_lshrrev_b32 v{V_TH}, 5, v0
    ''')
    h_dma_addr(P, V_HD, V_R0, V_R1, V_T0)
    flush = f'''v_mov_b32 v{V_T0}, s34
    buffer_store_dword v{V_T0}, off, {S_WS}, s31 sc1
    s_mov_b32 s27, 0'''
    P(f'''
    s_lshl_b32 s20, {S_LAYER}, 21
    s_add_u32 s20, s20, {H1}
    {h_wave_part('s20', 's21')}
    s_lshl_b32 s24, {S_LAYER}, 13
    s_add_u32 s24, s24, {F_H}
    s_lshl_b32 s25, {S_H}, 2
    s_add_u32 s25, s25, {S_W}
    s_lshl_b32 s22, {S_LAYER}, 25
    s_lshl_b32 s23, s25, 12
    s_add_u32 s22, s22, s23
    s_add_u32 s28, s22, {KVIMG}
    s_lshr_b32 s32, s22, 1
    s_add_u32 s32, s32, {KMVM}
    s_lshl_b32 s22, {S_LAYER}, 14
    s_lshl_b32 s23, s25, 7
    s_add_u32 s22, s22, s23
    s_add_u32 s31, s22, {F_KV}
    ''')
    P(f's_lshl_b32 s55, {S_H}, 7\ns_add_u32 s55, s55, {F_Q}\ns_cmp_eq_u32 {S_LAYER}, 0\ns_cselect_b32 s55, s55, s31\ns_cselect_b32 s54, 32, -1')
    init = f'v_mov_b32 v{V_T0}, 0\nbuffer_store_dword v{V_T0}, off, {S_WS}, s31 sc1\nbuffer_store_dword v{V_T0}, off, {S_WS}, s55 sc1'
    load_weights(P, 'kv', 16, (lambda n: opt['ready'](P, n, init), lambda n: opt['count_ready'](P, n, V_T0)))
    P(stamps.tl(opt, 5))
    opt['wait_ready'](P, 16)
    P(f'v_and_b32 v{V_FA}, 0xfff, v{V_FA}')
    opt['pre'].wait_lines(P, 1, F_R, V_FA, 17)
    P(f'''
    v_and_b32 v{V_FA}, 0x2b, v0
    v_lshlrev_b32 v{V_FA}, 7, v{V_FA}
    s_and_b32 s22, {S_W}, 1
    s_lshl_b32 s22, s22, 11
    s_add_u32 s24, s24, s22
    s_lshr_b32 s22, {S_W}, 1
    s_lshl_b32 s22, s22, 9
    s_add_u32 s24, s24, s22
    s_mov_b32 {S_S}, 0
    s_mov_b32 s26, 0
    s_mov_b32 s27, 0
    v_mov_b32 v{V_F}, 16
    v_mov_b32 v248, {S_SENT}
    v_mov_b32 v249, {S_SENT}
    v_mov_b32 v250, {S_SENT}
    v_mov_b32 v251, {S_SENT}
    ''')
    stamps.init(P, opt)
    D20, D28, D32 = 2 * MB - 65536, 32 * MB - 0x100000, 16 * MB - 0x80000
    P(f'''
    s_mov_b32 s33, {NS}
    s_mov_b32 s36, 1
    s_mov_b32 s35, 1
    s_mov_b32 s34, 0
    s_cmp_eq_u32 {S_LAYER}, 0
    s_cbranch_scc1 kv_go
    s_sub_u32 s20, s20, {D20}
    s_sub_u32 s28, s28, {D28}
    s_sub_u32 s32, s32, {D32}
    s_mov_b32 {S_S}, 2
    s_mov_b32 s33, 4
    s_mov_b32 s36, 0
    s_mov_b32 s35, -8
    s_branch kv_go
    ''')
    seg = f'v_lshl_add_u32 v{V_F}, v{V_F}, 1, v{V_TH}'
    P(f'''
    kv_loop:
    s_cmp_eq_u32 s26, 0
    s_cbranch_scc0 kv_have
    kv_poll:
    buffer_load_dword v{V_F}, v{V_FA}, {S_WS}, s24 offen sc1
    s_waitcnt vmcnt(0)
    s_cmp_eq_u32 s27, 0
    s_cbranch_scc1 kv_poll2
    {flush}
    {stamps.tlc(opt, 3, S_S, 41)}
    kv_poll2:
    {seg}
    v_cmp_ge_u32 vcc, {S_S}, v{V_F}
    s_cbranch_vccz kv_go
    {GUARD}
    s_sleep {opt.get('ks', 1)}
    s_branch kv_poll
    kv_go:
    {stamps.tlc(opt, 0, S_S, 40)}
    {marks(opt, 0)}
    ''')
    for i in h_dma(V_HD, 's20', 's21'):
        P(i)
    for i in range(2):
        P(f'buffer_load_dword v{V_T0}, off, {S_WS}, s31 ;nodep')
    P(f'''
    kv_have:
    s_add_u32 s30, {S_S}, 1
    s_cmp_eq_u32 s30, s33
    s_cselect_b32 s30, 1000, s30
    v_cmp_ge_u32 vcc, s30, v{V_F}
    s_cmp_eq_u32 {S_S}, s35
    s_cselect_b32 s37, 3, 1
    s_lshl_b32 s22, s37, 15
    s_add_u32 s20, s20, s22
    s_xor_b32 s21, s21, 32768
    s_cmp_eq_u32 s27, 0
    s_cselect_b32 s29, 0x7fff0000, s31
    v_mov_b32 v2, s34
    s_waitcnt vmcnt(8)
    s_barrier
    {stamps.tlc(opt, 1, S_S, 40)}
    {marks(opt, 1)}
    s_cbranch_vccnz kv_late
    ''')
    for early in (1, 0):
        tf, tc = opt.get('kvf', 950), (2000 if early else opt.get('kvc', 1650))
        it = []
        for j in range(1, 4):
            it += [f's_waitcnt vmcnt({8 - 2 * j}) ;before:g{j} ;t:{130 + 110 * j}', f'@bar g{j}']
        hd = h_dma(V_HD, 's20' if early else 's23', 's21')
        dma = [[hd[2 * i], hd[2 * i + 1] + ' ;after:g3'] for i in range(8)]
        fl = [[f's_waitcnt vmcnt({8 if early else 0})',
               f'buffer_load_dword v{V_F}, v{V_FA}, {S_WS}, s24 offen sc1',
               f'buffer_store_dword v2, off, {S_WS}, s29 sc1']]
        chk = [seg + f' ;t:{tc}']
        if not early:
            chk += [f'v_cmp_ge_u32 vcc, s30, v{V_F} ;by:{tc + 40}',
                    ['s_nop 0', 's_cmp_eq_u64 vcc, 0', 's_cselect_b32 s26, 1, 0', 's_cselect_b32 s23, s20, 0x7fff0000']] + dma
        it += (dma + fl + ['s_mov_b32 s26, 1']) if early else fl
        it += [f'buffer_store_dwordx4 v[248:251], v{V_L16}, {S_WS}, s32 offen offset:{1024 * i} sc1 ;by:1250' for i in range(2)]
        for X in range(2):
            for kk in range(16):
                b = HB + 8 * (kk & 3)
                it += [h_read(b + 4 * tt, V_R0, V_R1, kk, tt) + (f' ;r:g{kk >> 2}' if kk >= 4 else '') for tt in range(2)]
                for te in range(2):
                    for tt in range(2):
                        if X == 0:
                            d = AK + 8 * tt + 4 * te
                            it.append(f'{MF} {q4(d)}, {a4(4 * (16 * te + kk))}, {q4(b + 4 * tt)}, {q4(d) if kk else 0}')
                        else:
                            d = AV + 8 * te + 4 * tt
                            it.append(f'{MF} {q4(d)}, {q4(b + 4 * tt)}, {a4(128 + 4 * (16 * te + kk))}, {q4(d) if kk else 0}')
            if X:
                it += chk
            for qd in range(2 * X, 2 * X + 2):
                it += [cvt(PK + 4 * qd + i, AK + 8 * qd + 2 * i) for i in range(4)]
                it.append(f'buffer_store_dwordx4 {q4(PK + 4 * qd)}, v{V_L16}, {S_WS}, s28 offen offset:{1024 * qd} sc1' + ('' if X else ' ;by:1400'))
        it += [f'v_xor_b32 v{V_R0}, 32768, v{V_R0}', f'v_xor_b32 v{V_R1}, 32768, v{V_R1}']
        code, t = schedule(it, verbose=opt.get('verbose') == 20 + early, anneal=opt.get('an2', 60000))
        for c in stamps.profile(code, opt, 20 + early):
            P(c)
        P('s_branch kv_next\nkv_late:' if early else 'kv_next:')
    P(f'''
    s_lshl_b32 s22, s37, 19
    s_add_u32 s28, s28, s22
    s_lshl_b32 s22, s37, 18
    s_add_u32 s32, s32, s22
    s_mov_b32 s27, s36
    {stamps.trace(opt, 0, S_S, 2)}
    {stamps.tlc(opt, 2, S_S, 40)}
    {marks(opt, 2)}
    s_add_u32 s34, {S_S}, 1
    s_add_u32 {S_S}, {S_S}, s37
    s_cmp_lt_u32 s34, 6
    s_cbranch_scc1 kv_early
    s_sub_u32 s22, s54, {S_S}
    s_cmp_eq_u32 s22, 4
    s_cbranch_scc1 kv_open
    s_sub_u32 s22, s22, 7
    s_cmp_lt_u32 s22, 2
    s_cbranch_scc1 kv_rows
    s_cmp_lt_u32 {S_S}, {NS}
    s_cbranch_scc1 kv_loop
    s_waitcnt vmcnt(0)
    {flush}
    s_branch kv_end
    kv_early:
    s_cmp_eq_u32 {S_S}, s33
    s_cbranch_scc1 kv_helped
    s_add_u32 s22, s35, 4
    s_cmp_eq_u32 s34, s22
    s_cbranch_scc1 kv_join
    s_cmp_lg_u32 s34, 1
    s_cbranch_scc1 kv_loop
    s_waitcnt vmcnt(0)
    {flush}
    s_branch kv_loop
    kv_join:
    {GUARD}
    buffer_load_dword v{V_T0}, off, {S_WS}, s31 sc1
    s_waitcnt vmcnt(0)
    v_cmp_gt_u32 vcc, 4, v{V_T0}
    s_cbranch_vccnz kv_join
    {flush}
    s_branch kv_loop
    kv_helped:
    s_sub_u32 s22, s31, 16384
    kv_helped2:
    {GUARD}
    buffer_load_dword v{V_T0}, off, {S_WS}, s22 sc1
    s_waitcnt vmcnt(0)
    v_cmp_gt_u32 vcc, 2, v{V_T0}
    s_cbranch_vccnz kv_helped2
    v_mov_b32 v{V_T0}, 4
    buffer_store_dword v{V_T0}, off, {S_WS}, s22 sc1
    s_add_u32 s20, s20, {D20 - 65536}
    s_add_u32 s28, s28, {D28 - 0x100000}
    s_add_u32 s32, s32, {D32 - 0x80000}
    s_mov_b32 {S_S}, 0
    s_mov_b32 s33, {NS}
    s_mov_b32 s36, 1
    s_branch kv_loop
    kv_end:
    ''')
    stamps.dump(P, opt)
    P('s_waitcnt vmcnt(0)\ns_endpgm')
    pre = opt['pre']
    P(f'''
    kv_rows:
    s_lshl_b32 s50, {S_H}, 4
    s_lshl_b32 s53, s54, 5
    s_add_u32 s50, s50, s53
    s_bitcmp1_b32 {S_S}, 0
    s_cbranch_scc1 kv_rows_b
    ''')
    pre.rows_load(P, 254)
    P('''
    s_branch kv_loop
    kv_rows_b:
    v_lshlrev_b32 v10, 4, v0
    v_lshrrev_b32 v11, 2, v254
    v_lshlrev_b32 v11, 7, v11
    ''')
    pre.rows(P, opt, lambda: pre.wait_lines(P, 2, F_P + 8192, 11, 12), 254, 65536)
    pre.announce(P, 's54')
    P('''
    s_branch kv_loop
    kv_open:
    v_and_b32 v11, 31, v0
    v_lshlrev_b32 v11, 7, v11
    ''')
    pre.wait_lines(P, 's54', F_Q, 11, 12)
    P(f'''
    s_add_u32 s54, s54, 16
    s_lshl_b32 s22, {S_H}, 8
    s_add_u32 s22, s22, {F_H}
    s_lshr_b32 s23, s54, 1
    v_mov_b32 v1, s23
    buffer_store_dword v1, off, {S_WS}, s22 sc1
    buffer_store_dword v1, off, {S_WS}, s22 offset:128 sc1
    s_cmp_eq_u32 s54, {NS}
    s_cselect_b32 s54, -1, s54
    s_branch kv_loop
    ''')


def unpack8(dst, src):
    o = []
    for i in range(4):
        o += [f'v_and_b32 v{dst + 2 * i + 1}, 0xffff0000, v{src + i}', f'v_lshlrev_b32 v{dst + 2 * i}, 16, v{src + i}']
    return o


def ln8(x, n, t):
    a, b = t, t + 1
    o = [f'v_pk_add_f32 {q2(t)}, {q2(x)}, {q2(x + 2)}', f'v_pk_add_f32 {q2(t + 2)}, {q2(x + 4)}, {q2(x + 6)}',
         f'v_pk_add_f32 {q2(t)}, {q2(t)}, {q2(t + 2)}', f'v_add_f32 v{a}, v{a}, v{b}']
    o += wave_sum(a, b)
    o += [f'v_mul_f32 v{a}, 0x3b000000, v{a}']
    o += [f'v_pk_add_f32 {q2(n + i)}, {q2(x + i)}, {q2(t)} op_sel_hi:[1,0] neg_lo:[0,1] neg_hi:[0,1]' for i in range(0, 8, 2)]
    o += [f'v_pk_mul_f32 {q2(t)}, {q2(n)}, {q2(n)}', f'v_pk_mul_f32 {q2(t + 2)}, {q2(n + 2)}, {q2(n + 2)}',
          f'v_pk_fma_f32 {q2(t)}, {q2(n + 4)}, {q2(n + 4)}, {q2(t)}',
          f'v_pk_fma_f32 {q2(t + 2)}, {q2(n + 6)}, {q2(n + 6)}, {q2(t + 2)}',
          f'v_pk_add_f32 {q2(t)}, {q2(t)}, {q2(t + 2)}', f'v_add_f32 v{a}, v{a}, v{b}']
    o += wave_sum(a, b)
    o += [f'v_mov_b32 v{b}, 0x3727c5ac', f'v_fmac_f32 v{b}, 0x3b000000, v{a}', f'v_rsq_f32 v{a}, v{b}']
    o += [f'v_pk_mul_f32 {q2(n + i)}, {q2(n + i)}, {q2(t)} op_sel_hi:[1,0]' for i in range(0, 8, 2)]
    return o


def row_block(x, y, n, pk, ph, t):
    o = ln8(x, n, t)
    o += [f'v_pk_fma_f32 {q2(x + i)}, {q2(n + i)}, {q2(y + i)}, {q2(x + i)}' for i in range(0, 8, 2)]
    o += [cvt(pk + i, x + 2 * i) for i in range(4)]
    o += unpack8(x, pk)
    o += ln8(x, n, t)
    o += [cvt(ph + i, n + 2 * i) for i in range(4)]
    return o
```

```python
from layout import STAMP
NPH = 12


def init(P, opt):
    if not opt.get('stamp'):
        return
    P('s_memtime s[60:61]\ns_memrealtime s[62:63]\ns_waitcnt lgkmcnt(0)')
    for i in range(NPH):
        P(f's_mov_b32 s{70 + i}, 0')
    P('s_mov_b32 s68, s60')


def mark(opt, i, lvl=2):
    if opt.get('stamp', 0) == lvl:
        return ['s_memtime s[64:65]', 's_waitcnt lgkmcnt(0)', 's_sub_u32 s69, s64, s68',
                f's_add_u32 s{70 + i}, s{70 + i}, s69', 's_mov_b32 s68, s64']
    return []


def marks(opt, i, lvl=2):
    return '\n'.join(mark(opt, i, lvl))


def count(opt, i):
    return f's_add_u32 s{70 + i}, s{70 + i}, 1' if opt.get('stamp') in (1, 2) else ''


def tl(opt, i, bank=0):
    if opt.get('stamp') in (1, 2) and opt.get('tlb', 0) == bank:
        return f's_memrealtime s[{86 + 2 * i}:{87 + 2 * i}]\ns_waitcnt lgkmcnt(0)'
    return ''


_n = [0]


def tlc(opt, i, sreg, val):
    if opt.get('tlb') != 3:
        return ''
    _n[0] += 1
    return (f's_cmp_lg_u32 {sreg}, {val}\ns_cbranch_scc1 tlc_{_n[0]}\ns_memrealtime s[{86 + 2 * i}:{87 + 2 * i}]\n'
            f's_waitcnt lgkmcnt(0)\ntlc_{_n[0]}:')


def dump(P, opt):
    if not opt.get('stamp'):
        return
    P(f'''
    s_memtime s[64:65]
    s_memrealtime s[66:67]
    s_waitcnt lgkmcnt(0)
    s_sub_u32 s64, s64, s60
    s_lshl_b32 s22, s14, 5
    s_add_u32 s22, s22, s13
    s_lshl_b32 s22, s22, 2
    s_add_u32 s22, s22, s12
    s_lshl_b32 s22, s22, 7
    s_add_u32 s22, s22, {STAMP}
    v_mov_b32 v16, s64
    v_mov_b32 v17, s66
    v_mov_b32 v18, s98
    v_mov_b32 v19, s62
    buffer_store_dwordx4 v[16:19], off, s[8:11], s22
    ''')
    for j in range(NPH // 4):
        for i in range(4):
            P(f'v_mov_b32 v{20 + 4 * j + i}, s{70 + 4 * j + i}')
        P(f'buffer_store_dwordx4 v[{20 + 4 * j}:{23 + 4 * j}], off, s[8:11], s22 offset:{16 + 16 * j}')
    for i in range(6):
        P(f'v_mov_b32 v{40 + i}, s{86 + 2 * i}')
    P('buffer_store_dwordx4 v[40:43], off, s[8:11], s22 offset:64\nbuffer_store_dwordx2 v[44:45], off, s[8:11], s22 offset:80')


def profile(code, opt, name):
    if opt.get('stamp') != 6 or opt.get('prof') != name:
        return code
    st = opt.get('st', max(1, len(code) // 9))
    lo = opt.get('lo', st)
    c2 = ['s_memtime s[64:65] ;nodep']
    n = 0
    for j, c in enumerate(code):
        c2.append(c)
        if j >= lo and (j - lo) % st == 0 and n < 8 and not c.startswith('s_add_u32 m0') and not c.startswith('s_mov_b32 m0'):
            c2.append(f's_memtime s[{82 + 2 * n}:{83 + 2 * n}] ;nodep')
            print('stamp', n, 'after', j, c)
            n += 1
    c2 += ['s_memtime s[66:67] ;nodep', 's_waitcnt lgkmcnt(0)', 's_sub_u32 s69, s64, s68', 's_add_u32 s79, s79, s69', 's_mov_b32 s68, s66']
    prev = 's64'
    for j in range(n + 1):
        cur = f's{82 + 2 * j}' if j < n else 's66'
        c2 += [f's_sub_u32 s69, {cur}, {prev}', f's_add_u32 s{70 + j}, s{70 + j}, s69']
        prev = cur
    return c2


def trace(opt, plane, sreg, vt):
    if opt.get('tlb') != 4:
        return ''
    return f'''s_memrealtime s[86:87]
    s_lshl_b32 s88, s14, 5
    s_add_u32 s88, s88, s13
    s_lshl_b32 s88, s88, 2
    s_add_u32 s88, s88, s12
    s_lshl_b32 s88, s88, 7
    s_add_u32 s88, s88, {sreg}
    s_lshl_b32 s88, s88, 2
    s_add_u32 s88, s88, {STAMP + (1 << 20) + plane * (1 << 19)}
    s_waitcnt lgkmcnt(0)
    v_mov_b32 v{vt}, s86
    buffer_store_dword v{vt}, off, s[8:11], s88'''
```

```python
from asmtool import Prog
from gen import kd
P = Prog()
P('''
ub_kernel:
s_load_dwordx2 s[8:9], s[0:1], 120
s_mov_b32 s10, 0x10000000
s_mov_b32 s11, 0x00020000
s_getreg_b32 s14, hwreg(HW_REG_XCC_ID, 0, 4)
s_cmp_lg_u32 s14, 0
s_cbranch_scc1 done
v_lshlrev_b32 v1, 4, v0
s_lshr_b32 s13, s2, 3
s_cmp_ge_u32 s13, NCU
s_cbranch_scc1 done
s_lshl_b32 s15, s13, 16
s_add_u32 s15, s15, 0x100000
s_add_u32 s16, s15, 0x800000
v_mov_b32 v8, 1
v_mov_b32 v9, 1
v_mov_b32 v10, 1
v_mov_b32 v11, 1
s_waitcnt lgkmcnt(0)
buffer_store_dwordx4 v[8:11], v1, s[8:11], s16 offen
s_waitcnt vmcnt(0)
''')
cases = [(n, fl) for fl in ('', ' H', ' D', ' sc1') for n in (0, 2, 8)]
for k, (n, fl) in enumerate(cases):
    P(f's_mov_b32 s20, 0\ns_mov_b32 s30, 0\ns_mov_b32 s31, 0\nlp{k}:')
    P(f'''
    s_memrealtime s[22:23]
    s_waitcnt lgkmcnt(0)
    s_lshr_b32 s26, s22, 8
    al{k}:
    s_memrealtime s[22:23]
    s_waitcnt lgkmcnt(0)
    s_lshr_b32 s27, s22, 8
    s_cmp_eq_u32 s26, s27
    s_cbranch_scc1 al{k}
    v_mov_b32 v15, 0
    s_memtime s[22:23]
    s_waitcnt lgkmcnt(0)
    ''')
    for i in range(n):
        if fl == ' H':
            P(f's_add_u32 s17, s15, {4096 * i}\ns_mov_b32 exec_lo, 0x00ff00ff\ns_mov_b32 exec_hi, 0x00ff00ff\nbuffer_store_dwordx4 v[8:11], v1, s[8:11], s17 offen\ns_mov_b64 exec, -1')
        elif fl == ' D':
            P(f's_add_u32 s17, s15, {4096 * i}\nbuffer_store_dword v8, v1, s[8:11], s17 offen')
        else:
            P(f's_add_u32 s17, s15, {4096 * i}\nbuffer_store_dwordx4 v[8:11], v1, s[8:11], s17 offen{fl}')
    P(f'''
    buffer_load_dwordx4 v[12:15], v1, s[8:11], s16 offen sc1 ;nodep
    sp{k}:
    v_cmp_eq_u32 vcc, 0, v15
    s_cbranch_vccnz sp{k}
    s_memtime s[24:25]
    s_waitcnt vmcnt(0)
    s_memtime s[26:27]
    s_waitcnt lgkmcnt(0)
    s_sub_u32 s24, s24, s22
    s_sub_u32 s26, s26, s22
    s_add_u32 s30, s30, s24
    s_add_u32 s31, s31, s26
    s_add_u32 s20, s20, 1
    s_cmp_lt_u32 s20, 16
    s_cbranch_scc1 lp{k}
    v_mov_b32 v4, s30
    v_mov_b32 v5, s31
    v_lshrrev_b32 v6, 6, v0
    v_lshlrev_b32 v6, 3, v6
    s_lshl_b32 s17, s13, 5
    s_add_u32 s17, s17, {1024 * k}
    buffer_store_dwordx2 v[4:5], v6, s[8:11], s17 offen
    s_waitcnt vmcnt(0)
    ''')
P('done:\ns_endpgm')
head = '; @launch kernel=ub_kernel grid=(256,1,1) block=(256,1,1) lds=140000\n.amdgcn_target "amdgcn-amd-amdhsa--gfx950"\n.text\n.globl ub_kernel\n.p2align 8\n.type ub_kernel,@function\n'
txt = (head + P.finish() + '.section .rodata,"a"\n.p2align 6\n' + kd('ub_kernel', 64, 64))
open('ub_names.txt', 'w').write('\n'.join(f'{n} stores{fl}' for n, fl in cases))
open('ub.s', 'w').write(txt.replace('NCU', '32'))
open('ubb.s', 'w').write(txt.replace('NCU', '4'))
```

```python
from layout import *
import stamps
from stamps import marks
from chain import (S_WS, S_W, S_H, S_G, S_PURE, S_LAYER, S_S, S_C, GUARD, MF, MF16, DPPF, q4, q2)
from asmtool import schedule
from chain import pk, xl
from roles import a4, cvt, xlane, load_weights, h_dma_addr, h_dma, h_wave_part, h_read, unpack8, row_block


def weave(mf_groups, side, per=2, start=0):
    out = []
    side = list(side)
    for i, g in enumerate(mf_groups):
        out += g
        if i >= start:
            out += side[:per]
            side = side[per:]
    return out + side


def gen_at(P, opt):
    L_Q = 32768
    L_OB = L_Q + 8192
    L_ROW = L_OB + 8192
    L_KV = 65536
    L_KM = L_KV + 16384
    (V_L16, V_HD, V_F4, V_FA, V_T0, V_T1, V_OR, V_QW, V_QR, V_OW, V_KMA, V_PST, V_RLD, V_RW, V_RR) = range(1, 16)
    SEL, BIAS, Q, SX, KX, VX, XR, YR = 16, 20, 28, 44, 52, 84, 100, 104
    FLH, FLK, FLM, FLA = 108, 109, 110, 111
    MX, NM, SUM = 112, 113, 114
    V_R0, V_R1, V_VMA, V_TCH = 252, 253, 254, 255
    KM, VM = 116, 132
    SM, PX, PM, O, OP = 140, 68, 148, 52, 168
    M2, AL = 150, 151
    OB, AO, PK = 140, 172, 236
    RED, RD = 140, 172
    HB, AQ, QP = 176, 208, 224
    X, Y, N_, PKX, PH, TT = 176, 184, 192, 200, 204, 208
    P.label('at_role')
    P(f'''
    v_and_b32 v0, 63, v0
    s_and_b32 s22, {S_G}, 3
    s_lshl_b32 s24, s22, 14
    s_lshl_b32 s23, {S_W}, 12
    s_add_u32 s24, s24, s23
    s_lshl_b32 s23, {S_H}, 7
    s_add_u32 s24, s24, s23
    s_add_u32 s24, s24, {F_AP}
    s_lshl_b32 s55, s22, 12
    s_add_u32 s55, s55, s23
    s_add_u32 s55, s55, {F_R}
    s_cmp_eq_u32 {S_LAYER}, 0
    s_cselect_b32 s55, s55, s24
    ''')
    init = f'''v_mov_b32 v1, 0
    buffer_store_dword v1, off, {S_WS}, s24 sc1
    buffer_store_dword v1, off, {S_WS}, s55 sc1'''
    pre = opt['pre']
    P(f'''
    s_and_b32 s50, {S_G}, 1
    s_lshl_b32 s50, s50, 5
    s_add_u32 s50, s50, {S_H}
    s_lshl_b32 s50, s50, 4
    ''')
    pre.rows_load(P, 254)
    load_weights(P, 'qo', 16, (lambda n: opt['ready'](P, n + 4, init), lambda n: opt['count_ready'](P, n, 1, 4)))
    P(stamps.tl(opt, 5))
    P(f'''
    s_cmp_lg_u32 {S_LAYER}, 0
    s_cbranch_scc1 at_setup
    v_lshrrev_b32 v11, 1, v254
    v_lshlrev_b32 v11, 7, v11
    ''')

    def wait():
        P(stamps.tl(opt, 0))
        opt['wait_ready'](P, 16, True)
        pre.wait_lines(P, 1, F_P, 11, 12)
        P(stamps.tl(opt, 1))
    pre.rows(P, opt, wait, 254)
    pre.announce(P, 1)
    P(f'''
    s_and_b32 s22, {S_G}, 1
    s_lshl_b32 s22, s22, 15
    s_lshl_b32 s23, {S_H}, 10
    s_add_u32 s22, s22, s23
    s_lshl_b32 s23, {S_W}, 19
    s_add_u32 s22, s22, s23
    v_mov_b32 v16, s19
    v_mov_b32 v17, s19
    v_mov_b32 v18, s19
    v_mov_b32 v19, s19
    ''')
    for k in range(8):
        for base in (H2, X3):
            P(f's_add_u32 s23, s22, {base + 65536 * k}\nbuffer_store_dwordx4 v[16:19], v10, {S_WS}, s23 offen sc1')
    pre.announce(P, 2)
    P(stamps.tl(opt, 2))
    P('at_setup:')
    opt['wait_ready'](P, 16, False, 8)
    P(f'''
    v_lshlrev_b32 v{V_L16}, 4, v0
    v_and_b32 v{V_FA}, 31, v0
    v_lshlrev_b32 v{V_FA}, 7, v{V_FA}
    s_and_b32 {S_S}, {S_G}, 1
    s_and_b32 s33, {S_W}, 1
    s_lshr_b32 s34, {S_W}, 1
    ''')
    h_dma_addr(P, V_HD, V_R0, V_R1, V_T0)
    P(f'''
    s_lshl_b32 s22, {S_W}, 11
    s_add_u32 s22, s22, {L_Q}
    v_add_u32 v{V_QW}, s22, v{V_L16}
    s_lshl_b32 s22, s33, 10
    s_add_u32 s23, s22, {L_Q}
    v_add_u32 v{V_QR}, s23, v{V_L16}
    s_lshl_b32 s23, s34, 12
    s_add_u32 s22, s22, s23
    s_add_u32 s22, s22, {L_OB}
    v_add_u32 v{V_OW}, s22, v{V_L16}
    v_add_u32 v{V_OR}, {L_OB}, v{V_L16}
    v_add_u32 v{V_KMA}, {L_KV}, v{V_L16}
    s_lshl_b32 s23, s34, 13
    v_add_u32 v{V_F4}, s23, v{V_KMA}
    s_lshl_b32 s23, s34, 12
    v_add_u32 v{V_VMA}, s23, v{V_KMA}
    v_and_b32 v{V_T1}, 15, v0
    v_lshlrev_b32 v{V_PST}, 4, v{V_T1}
    v_lshrrev_b32 v{V_T0}, 4, v0
    v_lshl_add_u32 v{V_PST}, v{V_T0}, 18, v{V_PST}
    s_lshl_b32 s22, {S_H}, 10
    s_lshl_b32 s23, {S_W}, 8
    s_add_u32 s22, s22, s23
    v_add_u32 v{V_PST}, s22, v{V_PST}
    v_and_b32 v{V_T1}, 15, v0
    v_lshlrev_b32 v{V_RLD}, 4, v{V_T1}
    v_lshl_add_u32 v{V_RLD}, v{V_T0}, 10, v{V_RLD}
    s_lshl_b32 s22, {S_H}, 15
    s_add_u32 s22, s22, s23
    v_add_u32 v{V_RLD}, s22, v{V_RLD}
    v_bfe_u32 v{V_RW}, v0, 2, 2
    v_lshlrev_b32 v{V_RW}, 5, v{V_RW}
    v_lshl_add_u32 v{V_RW}, v{V_T0}, 8, v{V_RW}
    v_and_b32 v{V_RR}, 3, v0
    v_lshl_add_u32 v{V_RW}, v{V_RR}, 2, v{V_RW}
    s_lshl_b32 s22, {S_W}, 9
    s_add_u32 s22, s22, {L_ROW}
    v_add_u32 v{V_RW}, s22, v{V_RW}
    v_lshlrev_b32 v{V_RR}, 5, v0
    v_add_u32 v{V_RR}, {L_ROW}, v{V_RR}
    ''')
    for i in range(4):
        P(f'''
        v_mov_b32 v{SEL + i}, 0
        v_mov_b32 v{MX}, 0x3f80
        v_cmp_eq_u32 vcc, {2 * i}, v{V_T1}
        v_cndmask_b32 v{SEL + i}, v{SEL + i}, v{MX}, vcc
        v_mov_b32 v{MX}, 0x3f800000
        v_cmp_eq_u32 vcc, {2 * i + 1}, v{V_T1}
        v_cndmask_b32 v{SEL + i}, v{SEL + i}, v{MX}, vcc
        ''')
    P(f'''
    v_bfe_u32 v{V_T1}, v0, 2, 2
    v_lshlrev_b32 v{V_T1}, 3, v{V_T1}
    v_and_b32 v{MX}, 3, v0
    v_add_u32 v{V_T1}, v{V_T1}, v{MX}
    s_lshl_b32 s22, s33, 2
    v_add_u32 v{V_T1}, s22, v{V_T1}
    v_lshlrev_b32 v{V_T0}, 3, v{V_T0}
    v_sub_u32 v{V_T1}, v{V_T1}, v{V_T0}
    v_mov_b32 v{MX}, 0xf149f2ca
    ''')
    for i in range(8):
        P(f'v_cmp_gt_i32 vcc, {i}, v{V_T1}\nv_cndmask_b32 v{BIAS + i}, 0, v{MX}, vcc')
    for i in range(4):
        P(f'v_mov_b32 v{XR + i}, 0\nv_mov_b32 v{YR + i}, 0')
    P(f'''
    s_lshl_b32 s20, {S_LAYER}, 21
    s_add_u32 s20, s20, {H1}
    {h_wave_part('s20', 's21')}
    s_lshl_b32 s23, {S_S}, 15
    s_add_u32 s20, s20, s23
    s_lshl_b32 s39, {S_H}, 10
    s_add_u32 s39, s39, s23
    s_sub_u32 s39, s39, 65536
    s_lshl_b32 s24, {S_LAYER}, 13
    s_add_u32 s24, s24, {F_H}
    s_lshl_b32 s23, {S_S}, 12
    s_add_u32 s24, s24, s23
    s_lshl_b32 s22, {S_LAYER}, 24
    s_lshl_b32 s23, {S_H}, 13
    s_add_u32 s22, s22, s23
    s_lshl_b32 s23, {S_S}, 18
    s_add_u32 s22, s22, s23
    s_lshl_b32 s23, {S_W}, 11
    s_add_u32 s22, s22, s23
    s_add_u32 s33, s23, {L_KM}
    s_lshl_b32 s29, s23, 1
    s_add_u32 s29, s29, {L_KV}
    s_add_u32 s30, s22, {KMVM}
    s_lshl_b32 s28, s22, 1
    s_add_u32 s28, s28, {KVIMG}
    s_lshl_b32 s22, {S_LAYER}, 14
    s_lshl_b32 s23, {S_H}, 9
    s_add_u32 s22, s22, s23
    s_lshl_b32 s23, {S_W}, 7
    s_add_u32 s22, s22, s23
    s_add_u32 s31, s22, {F_KV}
    s_add_u32 s32, s22, {F_KM}
    s_and_b32 s22, {S_G}, 3
    s_lshl_b32 s35, s22, 21
    s_add_u32 s35, s35, {APART}
    s_lshl_b32 s36, s22, 14
    s_lshl_b32 s23, {S_W}, 12
    s_add_u32 s36, s36, s23
    s_add_u32 s36, s36, {F_AP}
    s_lshl_b32 s23, {S_H}, 7
    s_add_u32 s37, s36, s23
    s_mov_b32 s38, 0
    s_mov_b32 s49, {S_S}
    s_mov_b32 s48, 0
    s_mov_b32 s50, 0
    s_mov_b32 s51, 0
    s_mov_b32 s52, 0
    s_mov_b32 s53, 0
    v_mov_b32 v{FLM}, 0
    ''')
    stamps.init(P, opt)

    an = opt.get('an2', 200000)
    P(f's_bfe_u32 s34, {S_H}, 0x10002\ns_xor_b32 s34, s34, {opt.get("hf", 1)}\ns_and_b32 s34, s34, {opt.get("hf", 1)}')
    kvl = [['s_mov_b32 m0, s29', f'buffer_load_dwordx4 v{V_L16}, {S_WS}, s28 offen offset:{1024 * i} sc1 lds'] for i in range(4)]
    kvr = [f'ds_read_b128 {q4(KX + 4 * i)}, v{V_KMA} offset:{4096 * (i >> 1) + 1024 * (i & 1)}' for i in range(8)]
    kvr += [f'ds_read_b128 {q4(VX + 4 * i)}, v{V_F4} offset:{4096 * (i >> 1) + 2048 + 1024 * (i & 1)} ;before:row' for i in range(4)]

    KT = KM
    kml = [f'buffer_load_dwordx4 {q4(KT + 4 * i)}, v{V_L16}, {S_WS}, s30 offen offset:{1024 * i} sc1' for i in range(2)]
    kmw = '\n'.join(f'ds_write_b128 v{V_TCH}, {q4(KT + 4 * i)} offset:{1024 * i}' for i in range(2))
    P(f'v_add_u32 v{V_TCH}, s33, v{V_L16}')
    kmr = [f'ds_read_b128 {q4(KM + 4 * kk)}, v{V_KMA} offset:{L_KM - L_KV + 2048 * kk}' for kk in range(4)]
    kmr += [f'ds_read_b128 {q4(VM + 4 * i)}, v{V_VMA} offset:{L_KM - L_KV + 2048 * i + 1024}' for i in range(2)]
    both = f'''s_add_u32 s22, s49, 2
    s_min_u32 s22, s22, {NS - 1}
    v_cmp_ge_u32 s[50:51], s22, v{FLH}
    v_cmp_eq_u32 vcc, s19, v{FLM}
    s_or_b64 vcc, vcc, s[50:51]'''
    canary = f'buffer_load_dword v{FLM}, off, {S_WS}, s30 sc1'
    hd = h_dma(V_HD, 's20', 's21')
    hgrp = [hd[2 * i:2 * i + 2] for i in range(8)]

    def emit(items, name):
        code, t = schedule(items, verbose=opt.get('verbose') == name, anneal=an)
        code = stamps.profile(code, opt, name)
        for k, c in enumerate(code):
            if c == 's_waitcnt vmcnt(63)':
                c = 's_waitcnt vmcnt(%d)' % sum(x.startswith('buffer_') for x in code[:k])
            P(c)

    def qproj(lo, hi_):
        it = []
        for kk in range(lo, hi_):
            b = HB + 8 * (kk & 3)
            for tt in range(2):
                it.append(h_read(b + 4 * tt, V_R0, V_R1, kk, tt))
            for te in range(2):
                for tt in range(2):
                    d = AQ + 8 * tt + 4 * te
                    it.append(f'{MF} {q4(d)}, {a4(4 * (16 * te + kk))}, {q4(b + 4 * tt)}, {q4(d) if kk else 0}')
        return it

    def qtail():
        it = []
        for tt in range(2):
            it += [cvt(QP + 4 * tt + i, AQ + 8 * tt + 2 * i) for i in range(4)]
            it.append(f'ds_write_b128 v{V_QW}, {q4(QP + 4 * tt)} offset:{1024 * tt} ;w:q')
        return it

    def sx_items():
        it = [f'ds_read_b128 {q4(Q + 4 * kk)}, v{V_QR} offset:{2048 * kk} ;r:q' for kk in range(4)]
        for kk in range(4):
            for t in range(2):
                c = q4(SX + 4 * t) if kk else q4(BIAS + 4 * t)
                it.append(f'{MF} {q4(SX + 4 * t)}, {q4(KX + 8 * kk + 4 * t)}, {q4(Q + 4 * kk)}, {c}')
        return it

    def sm_items():
        it = []
        it += [f'v_max3_f32 v{MX}, v{SX}, v{SX + 1}, v{SX + 2}', f'v_max3_f32 v{NM}, v{SX + 3}, v{SX + 4}, v{SX + 5}',
               f'v_max3_f32 v{MX}, v{MX}, v{SX + 6}, v{SX + 7}', f'v_max_f32 v{MX}, v{MX}, v{NM}']
        it += xlane('v_max_f32', MX, NM)
        it.append(f'v_mul_f32 v{MX}, {S_C}, v{MX}')
        for x in range(SX, SX + 8, 2):
            it.append(f'v_pk_fma_f32 {q2(x)}, {q2(x)}, s[18:19], {q2(MX)} op_sel_hi:[1,0,0] neg_lo:[0,0,1] neg_hi:[0,0,1]')
        it += [f'v_exp_f32 v{x}, v{x}' for x in range(SX, SX + 8)]
        it += [cvt(PX + i, SX + 2 * i) for i in range(4)]
        it += [f'{MF} {q4(O + 4 * tau)}, {q4(VX + 4 * tau)}, {q4(PX)}, 0' for tau in range(4)]
        it += [pk('add', SX, SX, SX + 2), pk('add', SX + 4, SX + 4, SX + 6), pk('add', SX, SX, SX + 4),
               f'v_add_f32 v{SUM}, v{SX}, v{SX + 1}']
        it += xlane('v_add_f32', SUM, NM)
        return it

    P(f'''
    at_kv0:
    buffer_load_dword v{FLK}, off, {S_WS}, s31 sc1
    s_waitcnt vmcnt(0)
    v_cmp_ge_u32 vcc, s49, v{FLK}
    s_cbranch_vccz at_kv0go
    {GUARD}
    s_sleep 4
    s_branch at_kv0
    at_kv0go:
    ''')
    for i in hd + sum(kvl, []):
        P(i)
    P('s_waitcnt vmcnt(0)\ns_barrier')
    emit(kvr + qproj(0, 16) + qtail() + ['@bar q'] + sx_items() + sm_items(), 10)
    P('s_waitcnt lgkmcnt(0)')

    P(f'''
    at_loop:
    s_cmp_eq_u32 s52, 1
    s_cbranch_scc1 at_kmcheck
    at_kmpoll:
    {canary}
    buffer_load_dword v{FLH}, off, {S_WS}, s31 sc1
    s_waitcnt vmcnt(0)
    {both}
    s_cbranch_vccz at_kmgo
    {GUARD}
    s_sleep {opt.get('as', 2)}
    s_branch at_kmpoll
    at_kmgo:
    {stamps.tlc(opt, 0, 's49', 40)}
    {GUARD}
    {kml[0]}
    {kml[1]}
    s_waitcnt vmcnt(0)
    at_kmcheck:
    v_max3_u32 v{FLM}, v{KM}, v{KM + 1}, v{KM + 2}
    v_max3_u32 v{FLK}, v{KM + 3}, v{KM + 4}, v{KM + 5}
    v_max3_u32 v{FLM}, v{FLM}, v{KM + 6}, v{KM + 7}
    v_max_u32 v{FLM}, v{FLM}, v{FLK}
    v_cmp_eq_u32 vcc, s19, v{FLM}
    {kmw}
    s_cbranch_vccnz at_kmgo
    at_kmdone:
    s_waitcnt lgkmcnt(0)
    s_barrier
    {stamps.trace(opt, 1, 's49', V_T0)}
    {stamps.tlc(opt, 1, 's49', 40)}
    {marks(opt, 0)}
    s_add_u32 s49, s49, 2
    s_cmp_lt_u32 s49, {NS}
    s_cselect_b32 s22, 0x10000, 0
    s_add_u32 s20, s20, s22
    s_lshl_b32 s22, s22, 4
    s_add_u32 s28, s28, s22
    s_add_u32 s39, s39, 65536
    s_add_u32 s30, s30, 0x80000
    s_mov_b32 s52, 0
    s_lshl_b32 s26, {S_LAYER}, 21
    s_add_u32 s26, s26, s39
    s_add_u32 s26, s26, {X1}
    s_add_u32 s27, s39, {YTOT}
    s_cmp_eq_u32 {S_W}, 0
    s_cselect_b32 s26, s26, 0x7fff0000
    s_cbranch_scc0 at_noy
    s_cmp_eq_u32 {S_LAYER}, 0
    at_noy:
    s_cselect_b32 s27, s27, 0x7fff0000
    s_cmp_eq_u32 {S_PURE}, 0
    s_cbranch_scc1 at_b_slow
    ''')

    def b_items(XS):
        it = []
        A = it.append
        it += kmr
        for g in kvl:
            A([g[0], g[1] + ' ;dl:900'])
        for g in hgrp:
            A([g[0], g[1] + ' ;dl:900'])
        A(f'buffer_load_dwordx4 {q4(XR)}, v{V_L16}, {S_WS}, s26 offen sc1 ;dl:900')
        A(f'buffer_load_dwordx4 {q4(YR)}, v{V_L16}, {S_WS}, s27 offen sc1 ;dl:900')
        for kk in range(4):
            A(f'{MF} {q4(SM)}, {q4(KM + 4 * kk)}, {q4(Q + 4 * kk)}, {q4(SM) if kk else 0}')
        it += [f'v_max3_f32 v{M2}, v{SM}, v{SM + 1}, v{SM + 2}', f'v_max_f32 v{M2}, v{M2}, v{SM + 3}']
        it += xl('v_max_f32', 16, M2, NM)
        it += [f'v_mul_f32 v{M2}, {S_C}, v{M2}', f'v_max_f32 v{M2}, v{M2}, v{MX}', f'v_sub_f32 v{MX}, v{MX}, v{M2}']
        for x in (SM, SM + 2):
            A(f'v_pk_fma_f32 {q2(x)}, {q2(x)}, s[18:19], {q2(M2)} op_sel_hi:[1,0,0] neg_lo:[0,0,1] neg_hi:[0,0,1]')
        A(f'v_exp_f32 v{MX}, v{MX}')
        it += [f'v_exp_f32 v{SM + i}, v{SM + i}' for i in range(4)]
        it += [pk('add', M2, SM, SM + 2), f'v_add_f32 v{M2}, v{M2}, v{AL}']
        it += xl('v_add_f32', 16, M2, NM)
        it += [f'v_fma_f32 v{SUM}, v{SUM}, v{MX}, v{M2}', f'v_rcp_f32 v{SUM}, v{SUM}', f'v_mul_f32 v{MX}, v{MX}, v{SUM}']
        for x in (SM, SM + 2):
            A(f'v_pk_mul_f32 {q2(x)}, {q2(x)}, {q2(SUM)} op_sel_hi:[1,0]')
        it += [cvt(PM + i, SM + 2 * i) for i in range(2)]
        for i in range(0, 16, 2):
            A(f'v_pk_mul_f32 {q2(O + i)}, {q2(O + i)}, {q2(MX)} op_sel_hi:[1,0]')
        for tau in range(4):
            A(f'{MF16} {q4(O + 4 * tau)}, {q2(VM + 2 * tau)}, {q2(PM)}, {q4(O + 4 * tau)}')
        for hf in range(2):
            it += [cvt(OP + 4 * hf + i, O + 8 * hf + 2 * i) for i in range(4)]
            A(f'ds_write_b128 v{V_OW}, {q4(OP + 4 * hf)} offset:{2048 * hf} ;w:o')
        A('@bar o')
        for i in (0, 2, 4, 6, 1, 3, 5, 7):
            A(f'ds_read_b128 {q4(OB + 4 * i)}, v{V_OR} offset:{1024 * i} ;r:o')
        for qt in range(2):
            for kk in range(4):
                for T_ in range(8):
                    d = AO + 32 * qt + 4 * T_
                    A(f'{MF} {q4(d)}, {q4(OB + 8 * kk + 4 * qt)}, {a4(128 + 4 * (4 * T_ + kk))}, {q4(d) if kk else 0}')
            for r in range(4):
                p_ = PK + 4 * r
                b_ = AO + 32 * qt + r
                it += [f'v_cvt_pk_bf16_f32 v{p_ + i}, v{b_ + 8 * i}, v{b_ + 8 * i + 4}' for i in range(4)]
                A([f's_add_u32 s23, s35, {(4 * qt + r) * 32768}',
                   f'buffer_store_dwordx4 {q4(p_)}, v{V_PST}, {S_WS}, s23 offen{XS}' + ('' if qt else f' ;dl:{opt.get("apd", 700) - 70 * r}')])
        return it

    n1 = opt.get('n1', 12)
    for mode in ('fast', 'slow'):
        XS = '' if mode == 'fast' else ' sc1'
        if mode == 'slow':
            P.label('at_b_slow')
        emit(b_items(XS), 11 if mode == 'fast' else -1)
        P(f'''
        {marks(opt, 1)}
        s_add_u32 s38, s38, 1
        s_lshl_b32 s22, s38, 1
        v_mov_b32 v{V_T1}, s22
        v_subrev_u32 v{V_T0}, 1, v{V_T1}
        s_sub_u32 s27, s22, s34
        s_waitcnt vmcnt(8)
        s_barrier
        {marks(opt, 2)}
        ''')
        it = [['s_waitcnt vmcnt(0)', f'buffer_store_dword v{V_T1}, off, {S_WS}, s37{XS}'],
              f'buffer_load_dword v{FLA}, v{V_FA}, {S_WS}, s36 offen sc1']
        it[0][0] = 's_waitcnt vmcnt(1)'
        it[1:1] = [canary + ' ;by:640', f'buffer_load_dword v{FLH}, off, {S_WS}, s31 sc1 ;by:660']
        it.insert(0, ['s_waitcnt vmcnt(4)', f'buffer_store_dword v{V_T0}, off, {S_WS}, s37{XS}'])
        emit(it + kvr + qproj(0, 16) + qtail() + ['@bar q'] + sx_items() + (sm_items() if opt.get('sm12') else []),
             12 if mode == 'fast' else -1)
        if mode == 'fast':
            P('s_branch at_r')
    P(f'''
    at_r:
    {stamps.tlc(opt, 2, 's49', 42)}
    {marks(opt, 3)}
    v_cmp_gt_u32 vcc, s27, v{FLA}
    s_cbranch_vccz at_apgo
    at_appoll:
    {GUARD}
    buffer_load_dword v{FLA}, v{V_FA}, {S_WS}, s36 offen sc1
    s_waitcnt vmcnt(0)
    v_cmp_gt_u32 vcc, s27, v{FLA}
    s_cbranch_vccnz at_appoll
    at_apgo:
    {stamps.tlc(opt, 3, 's49', 42)}
    {marks(opt, 4)}
    v_max3_u32 v{FLK}, v{XR}, v{XR + 1}, v{XR + 2}
    v_max_u32 v{FLK}, v{FLK}, v{XR + 3}
    v_cmp_eq_u32 s[40:41], s19, v{FLK}
    {both}
    s_cselect_b32 s52, 0, 1
    s_cselect_b32 s24, 0x7fff0000, s30
    s_cmp_lg_u64 s[40:41], 0
    s_cbranch_scc1 at_xretry
    ''')
    it = []
    for i in range(8):
        it.append([f's_add_u32 s23, s35, {4096 * i}',
                   f'buffer_load_dwordx4 {q4(RED + 4 * i)}, v{V_RLD}, {S_WS}, s23 offen sc1'])
    it += [x.replace('s30', 's24') for x in kml]
    it.append(canary + ' ;dl:450')
    it.append(f'buffer_load_dword v{FLH}, off, {S_WS}, s31 sc1 ;dl:450')
    it += [] if opt.get('sm12') else sm_items()
    for i in range(8):
        it.append(f'{MF} {q4(RD)}, {q4(SEL)}, {q4(RED + 4 * i)}, {q4(RD) if i else 0}')
    it.append(['s_mov_b32 exec_hi, 0', f'ds_write2_b32 v{V_RW}, v{RD}, v{RD + 1} offset0:0 offset1:4 ;w:row',
               f'ds_write2_b32 v{V_RW}, v{RD + 2}, v{RD + 3} offset0:32 offset1:36', 's_mov_b64 exec, -1'])
    it.append('s_xor_b32 s35, s35, 0x100000')
    it.append('@bar row')
    it.append(f'ds_read_b128 {q4(N_)}, v{V_RR} ;r:row')
    it.append(f'ds_read_b128 {q4(N_ + 4)}, v{V_RR} offset:16 ;r:row')
    it += unpack8(X, XR) + [pk('add', X + i, X + i, N_ + i) for i in range(0, 8, 2)]
    it += [cvt(PKX + i, X + 2 * i) for i in range(4)]
    emit(it, 13)
    P('s_waitcnt lgkmcnt(0)')
    P(f'''
    {marks(opt, 5)}
    s_cmp_eq_u32 s52, 1
    s_cbranch_scc1 at_nokm
    {both}
    s_cbranch_scc1 at_nokm
    {kml[0]}
    {kml[1]}
    s_mov_b32 s52, 1
    at_nokm:
    s_cmp_lg_u32 {S_W}, 0
    s_cbranch_scc1 at_rowdone
    s_cmp_eq_u32 {S_LAYER}, 0
    s_cbranch_scc1 at_row1
    buffer_store_dwordx4 {q4(PKX)}, v{V_L16}, s[56:59], s39 offen
    s_waitcnt vmcnt(1)
    s_branch at_next
    at_row1:
    ''')
    emit(unpack8(X, PKX) + unpack8(Y, YR) + row_block(X, Y, N_, PKX, PH, TT), 14)
    P(f'''
    s_add_u32 s22, s39, {X3}
    s_add_u32 s23, s39, {H2}
    buffer_store_dwordx4 {q4(PH)}, v{V_L16}, {S_WS}, s23 offen sc1
    buffer_store_dwordx4 {q4(PKX)}, v{V_L16}, {S_WS}, s22 offen sc1
    s_waitcnt vmcnt(2)
    s_branch at_next
    at_rowdone:
    s_waitcnt vmcnt(0)
    at_next:
    {stamps.trace(opt, 0, 's49', V_T0)}
    {stamps.tlc(opt, 4, 's49', 42)}
    {marks(opt, 6)}
    s_cmp_lt_u32 s49, {NS}
    s_cbranch_scc1 at_loop
    s_branch at_done
    at_xretry:
    {GUARD}
    buffer_load_dwordx4 {q4(XR)}, v{V_L16}, {S_WS}, s26 offen sc1
    s_waitcnt vmcnt(0)
    s_branch at_apgo
    at_done:
    ''')
    stamps.dump(P, opt)
    P('s_waitcnt vmcnt(0)\ns_endpgm')
```

```python
from layout import *
import stamps
from asmtool import schedule
import loader

SENT = 0xFF81FF81

S_WS = 's[8:11]'
S_W = 's12'
S_H = 's13'
S_G = 's14'
S_PURE = 's15'
S_LAYER = 's16'
S_S = 's17'
S_C = 's18'
S_SENT = 's19'

NLDSQ = 34
L_MEM = 0
L_O = 8192
L_SC = 16384
L_WT = 24576
DPPF = 'row_mask:0xf bank_mask:0xf'
MF = 'v_mfma_f32_16x16x32_bf16'
MF16 = 'v_mfma_f32_16x16x16_bf16'
SMF = 'v_smfmac_f32_16x16x64_bf16'
RS = 2048
GUARD = 's_sub_u32 s3, s3, 1\ns_cbranch_scc1 main_timeout'


def q4(b):
    return 'v[%d:%d]' % (b, b + 3)


def q2(b):
    return 'v[%d:%d]' % (b, b + 1)


def q8(b):
    return 'v[%d:%d]' % (b, b + 7)


V_FL = 0
V_L16, V_WL, V_X0, V_X1, V_X2, V_X3, V_WH, V_PST, V_MST, V_T0, V_T1 = range(1, 12)
V_MW = V_X0
V_T2 = 116
V_SEL = 12
MEM = 16
V_IDX, V_PF, V_SELT = 48, 49, 50
AQ, AK, AV, KX, VX = 52, 60, 68, 76, 84
WB = 92
T1, T2, T3, T4, T5 = 116, 120, 124, 128, 132
WV0 = 136


def streams():
    st = []
    for p in range(2):
        st += [(X, t, p) for X in 'qkv' for t in range(2)]
    for X in 'qkv':
        for p in range(2, 8):
            st += [(X, 0, p), (X, 1, p)]
    ost = [('o', T_, 0) for T_ in range(8)]
    for half in range(2):
        for pp in range(1, 4):
            for T_ in range(4 * half, 4 * half + 4):
                ost.append(('o', T_, pp))
    LX, LP = LDS_CLASS
    groups = [(X, par, u) for X in 'qkv' for par in range(2) if (X, par) != (LX, LP) for u in range(2)]
    groups += [('o', pp, 0) for pp in range(4) if pp not in LDS_WO]
    groups += [(LX, LP, 0), (LX, LP, 1)] + [('o', pp, 0) for pp in LDS_WO]
    home = {}
    octs = [('a', 8 * i) for i in range(32)] + [('v', WV0 + 8 * i) for i in range(8)]
    quads = [('v', WV0 + 64 + 4 * i) for i in range(14)]
    n = 0
    for X, t, p in st:
        if (X, p & 1) == (LX, LP):
            home[(X, t, p)] = ('lds', n, [32768 * u + 1024 * (2 * (p >> 1) + t) for u in range(2)])
            n += 1
        else:
            home[(X, t, p)] = octs.pop(0)
    n = 0
    for _, T_, pp in ost:
        if pp in LDS_WO:
            home[('o', T_, pp)] = ('lds', n, [(1 << 16) + 32768 * LDS_WO.index(pp) + 1024 * T_])
            n += 1
        elif (T_, pp) in LDS_EXTRA:
            home[('o', T_, pp)] = ('lds', n, [(2 << 16) + L_WT + 1024 * LDS_EXTRA.index((T_, pp))])
            n += 1
        else:
            home[('o', T_, pp)] = quads.pop(0)
    assert not octs and not quads
    return st, ost, home, groups


LDS_CLASS = ('q', 1)
LDS_WO = [0, 2]
LDS_EXTRA = [(1, 3), (5, 3)]


def wrd(dst, off):
    return f'ds_read_b128 {q4(dst)}, v{(V_WL, V_WH, V_X0)[off >> 16]} offset:{off & 0xffff}'


def preload():
    st, ost, home, units = streams()
    o = []
    for e in st:
        if home[e][0] == 'lds' and home[e][1] < 3:
            for u in range(2):
                o.append(wrd(WB + 8 * home[e][1] + 4 * u, home[e][2][u]))
    return o


def gen_chain(P, opt):
    stream, ostream, home, units = streams()
    P.label('chain_role')
    P('v_and_b32 v0, 63, v0')
    LR = AQ
    loader.setup(P, LR, True)
    P0 = P
    setup_code = []
    P = setup_code.append
    P(f'''
    v_lshlrev_b32 v{V_L16}, 4, v0
    v_add_u32 v{V_WL}, s42, v{V_L16}
    v_add_u32 v{V_WH}, 65536, v{V_WL}
    s_lshl_b32 s21, {S_W}, 11
    v_add_u32 v{V_MW}, s21, v{V_L16}
    v_xor_b32 v{V_X1}, 2048, v{V_X0}
    v_xor_b32 v{V_X2}, 4096, v{V_X0}
    v_xor_b32 v{V_X3}, 6144, v{V_X0}
    v_bfe_u32 v{V_T1}, v0, 3, 1
    v_mul_u32_u24 v{V_IDX}, 0xaaaa, v{V_T1}
    v_add_u32 v{V_IDX}, 0x4444, v{V_IDX}
    v_and_b32 v{V_PF}, {15 if opt.get('pmode', 0) else 31}, v0
    v_lshlrev_b32 v{V_PF}, 7, v{V_PF}
    v_add_u32 v{V_PF}, 0x80000, v{V_PF}
    v_lshrrev_b32 v{V_T0}, 2, v0
    s_lshl_b32 s22, {S_W}, 5
    v_add_u32 v{V_T0}, s22, v{V_T0}
    v_lshlrev_b32 v{V_T0}, 11, v{V_T0}
    v_and_b32 v{V_T1}, 3, v0
    v_lshlrev_b32 v{V_T1}, 4, v{V_T1}
    s_lshl_b32 s22, {S_H}, 6
    v_add3_u32 v{V_PST}, v{V_T0}, v{V_T1}, s22
    v_lshrrev_b32 v{V_T0}, 4, v0
    v_lshlrev_b32 v{V_T0}, 3, v{V_T0}
    s_lshl_b32 s22, {S_H}, 2
    s_add_u32 s24, s22, {S_W}
    s_lshl_b32 s22, s24, 6
    v_add3_u32 v{V_MST}, v{V_T0}, v{V_T1}, s22
    v_and_b32 v{V_T0}, 15, v0
    ''')

    def onehot(dst, n, src):
        for i in range(n):
            P(f'''
            v_mov_b32 v{dst + i}, 0
            v_mov_b32 v{V_T1}, 0x3f80
            v_cmp_eq_u32 vcc, {2 * i}, v{src}
            v_cndmask_b32 v{dst + i}, v{dst + i}, v{V_T1}, vcc
            v_mov_b32 v{V_T1}, 0x3f800000
            v_cmp_eq_u32 vcc, {2 * i + 1}, v{src}
            v_cndmask_b32 v{dst + i}, v{dst + i}, v{V_T1}, vcc
            ''')
    onehot(V_SEL, 4, V_T0)
    P(f'''
    v_and_b32 v{V_T0}, 7, v0
    v_bfe_u32 v{V_T1}, v0, 4, 1
    v_lshlrev_b32 v{V_T1}, 2, v{V_T1}
    v_sub_u32 v{V_T0}, v{V_T0}, v{V_T1}
    ''')
    onehot(V_SELT, 2, V_T0)
    P(f'''
    s_lshl_b32 s50, {S_LAYER}, 20
    s_add_u32 s50, s50, {CPART}
    s_add_u32 s53, s50, {16 * RS}
    s_lshl_b32 s22, s24, 11
    s_add_u32 s51, s50, s22
    s_xor_b32 s49, s51, 0x80000
    s_lshl_b32 s26, {S_LAYER}, 14
    s_add_u32 s26, s26, {CMEM}
    s_add_u32 s48, s26, 8192
    s_add_u32 s52, s48, s21
    s_lshl_b32 s22, {S_LAYER}, 25
    s_lshl_b32 s23, s24, 12
    s_add_u32 s28, s22, s23
    s_add_u32 s28, s28, {KVIMG}
    s_lshl_b32 s22, {S_LAYER}, 24
    s_lshl_b32 s23, s24, 11
    s_add_u32 s30, s22, s23
    s_add_u32 s30, s30, {KMVM}
    s_lshl_b32 s22, {S_LAYER}, 14
    s_lshl_b32 s23, s24, 7
    s_add_u32 s22, s22, s23
    s_add_u32 s31, s22, {F_KV}
    s_add_u32 s32, s22, {F_KM}
    s_mov_b32 s34, 0x00ff00ff
    s_mov_b32 s35, 0x00ff00ff
    s_mov_b32 s36, 0xff00ff00
    s_mov_b32 s37, 0xff00ff00
    ''')
    init = f'''
    v_mov_b32 v{T4}, {S_SENT}
    v_mov_b32 v{T4 + 1}, {S_SENT}
    v_mov_b32 v{T4 + 2}, {S_SENT}
    v_mov_b32 v{T4 + 3}, {S_SENT}
    buffer_store_dwordx4 {q4(T4)}, v{V_L16}, {S_WS}, s51 offen sc1
    buffer_store_dwordx4 {q4(T4)}, v{V_L16}, {S_WS}, s51 offen offset:1024 sc1
    s_mov_b64 exec, 0x000f000f
    buffer_store_dwordx2 {q2(T4)}, v{V_MST}, {S_WS}, s48 offen sc1
    s_mov_b64 exec, -1
    '''
    P = P0

    def confirm(newer):
        P(stamps.tl(opt, 0, 1))
        opt['ready'](P, newer, '\n'.join(setup_code) + init)
        P(stamps.tl(opt, 1, 1))

    def count(newer):
        opt['count_ready'](P, newer, V_T0)
        P(stamps.tl(opt, 2, 1))
        if opt.get('warmon'):
            P(f's_cmp_eq_u32 {S_LAYER}, 0\ns_cbranch_scc1 chain_nowarm')
            opt['warm'](P, 0)
            P('chain_nowarm:')
        P(stamps.tl(opt, 3, 1))
    gr = []
    for X, a_, u in units:
        if X == 'o':
            code = f's_xor_b32 s43, s39, {a_ * 32768}\ns_add_u32 s43, s43, s41'
            ds = [[home[('o', 2 * Pp + t, a_)] for t in range(2)] for Pp in range(4)]
        else:
            code = f's_add_u32 s43, s40, {a_ * 64 * 8192 + u * 16 * 8192}'
            ds = [[home[(X, t, 2 * pp + a_)] for t in range(2)] for pp in range(4)]
        ds = [[('lds', d[2][u]) if d[0] == 'lds' else (d[0], d[1] + 4 * u) for d in row] for row in ds]
        gr.append((X, code, ds))
    loader.run(P, gr, LR, True, KX, (V_WL, V_WH, V_X0), (confirm, count))
    P(stamps.tl(opt, 5))
    P(f'''
    v_and_b32 v{V_T0}, 7, v0
    v_lshlrev_b32 v{V_T0}, 10, v{V_T0}
    v_bfe_u32 v{V_T1}, v0, 3, 1
    v_lshl_add_u32 v{V_T0}, v{V_T1}, 6, v{V_T0}
    v_lshrrev_b32 v{V_T1}, 4, v0
    v_lshl_add_u32 v{V_T0}, v{V_T1}, 4, v{V_T0}
    s_lshl_b32 s22, {S_W}, 8
    s_load_dwordx2 s[44:45], s[0:1], 56
    s_mov_b32 s46, 8192
    s_mov_b32 s47, 0x00020000
    s_waitcnt lgkmcnt(0)
    buffer_load_dwordx4 {q4(MEM)}, v{V_T0}, s[44:47], s22 offen
    buffer_load_dwordx4 {q4(MEM + 4)}, v{V_T0}, s[44:47], s22 offen offset:128
    ''')
    opt['wait_ready'](P, T1)
    lw = P.uid('ch_kv0')
    P(f'''
    {lw}:
    {GUARD}
    buffer_load_dword v{V_FL}, off, {S_WS}, s31 sc1
    s_waitcnt vmcnt(0)
    v_cmp_gt_u32 vcc, 1, v{V_FL}
    s_cbranch_vccnz {lw}
    ''')
    for i in range(24):
        P(f'v_mov_b32 v{AQ + i}, 0')
    P('s_waitcnt lgkmcnt(0)')
    for i in preload():
        P(i)
    P(f'''
    s_mov_b32 {S_S}, 0
    s_mov_b32 s33, 1
    s_mov_b32 s27, {STAMP + MB}
    v_add_u32 v{V_T0}, {2 * RS}, v{V_PST}
    v_mov_b32 v{T4}, {S_SENT}
    v_mov_b32 v{T4 + 1}, {S_SENT}
    v_mov_b32 v{T4 + 2}, {S_SENT}
    v_mov_b32 v{T4 + 3}, {S_SENT}
    ds_write_b128 v{V_MW}, {q4(MEM)}
    ds_write_b128 v{V_MW}, {q4(MEM + 4)} offset:1024
    ''')
    stamps.init(P, opt)
    P(f's_cmp_eq_u32 {S_PURE}, 0\ns_cbranch_scc1 chain_slow_step\ns_branch chain_fast_step')
    chain_loop(P, opt, 'fast')
    chain_loop(P, opt, 'slow')
    P.label('chain_last')
    code, t = schedule(step_items(opt, ' sc1', True))
    for i in code:
        P(i)
    stamps.dump(P, opt)
    P('s_waitcnt vmcnt(0)\ns_endpgm')


def dppadd(d, a, b, ror=8):
    return f'v_add_f32_dpp v{d}, v{a}, v{b} row_ror:{ror} {DPPF}'


def cvt(d, a):
    return f'v_cvt_pk_bf16_f32 v{d}, v{a}, v{a + 1}'


def xl(op, n, x, t):
    return [f'v_mov_b32 v{t}, v{x}', f'v_permlane{n}_swap_b32 v{x}, v{t}', f'{op} v{x}, v{x}, v{t}']


def pk(op, d, a, b):
    return f'v_pk_{op}_f32 {q2(d)}, {q2(a)}, {q2(b)}'


def step_items(opt, XS, last):
    stream, ostream, home, units = streams()
    QOP, KOP, VOP = T1, T2, T3
    XE, ME = AQ, AK
    PX, PM = T4, AK + 2
    MX, NM, SUM, TN = T5, T5 + 1, T5 + 2, T5 + 3
    OX, OOP = KX, T1
    OIN = [AV, AV + 4, T4]
    AO = MEM
    it = []
    A = it.append
    A('s_nop 0 ;w:mem ;t:%d' % opt.get('tb', 70))
    A('@bar mem')
    for pr in range(1, 4):
        A(f'ds_read_b128 {q4(MEM + 8 * pr)}, v{V_X0 + pr} ;r:mem')
        A(f'ds_read_b128 {q4(MEM + 8 * pr + 4)}, v{V_X0 + pr} offset:1024 ;r:mem')
    if not last:
        for i in range(4):
            A(f'buffer_load_dwordx4 {q4(KX + 4 * i)}, v{V_L16}, {S_WS}, s28 offen offset:{1024 * i} sc1 ;lat:400')
    kmode = 1
    pf = [f'v_cmp_lt_u32 vcc, s33, v{V_FL}', f'v_cndmask_b32 v{V_T1}, v{V_L16}, v{V_PF}, vcc']
    if opt.get('pmode', 0) == 0:
        if not last:
            if not opt.get('spec', 1):
                it += pf
            A(f'buffer_load_dword v{V_FL}, v{V_PF if opt.get("spec", 1) else V_T1}, {S_WS}, s28 offen sc1')
        if not last:
            ft = opt.get('ft', 150)
            A(f'buffer_load_dword v{V_FL}, off, {S_WS}, s31 sc1')
    else:
        if not last:
            A(f'buffer_load_dword v{V_FL}, off, {S_WS}, s31 sc1')
        A(f'buffer_store_dword v{V_T0}, off, {S_WS}, s32 sc1 ;by:250')
        if not last:
            it += pf
            A(f'buffer_load_dword v{V_T0}, v{V_T1}, {S_WS}, s28 offen sc1')
    if not last and not opt.get('ra'):
        A(f'buffer_store_dwordx4 {q4(T4)}, v{V_L16}, {S_WS}, s49 offen{XS}')
        A(f'buffer_store_dwordx4 {q4(T4)}, v{V_L16}, {S_WS}, s49 offen offset:1024{XS}')

    for e in stream:
        X, t, p = e
        kind, where = home[e][:2]
        if kind == 'lds':
            slot = WB + 8 * (where % 3)
            if where >= 3:
                A(wrd(slot, home[e][2][0]))
                A(wrd(slot + 4, home[e][2][1]))
            w = q8(slot)
        else:
            w = f'{kind}[{where}:{where + 7}]'
        if last and X == 'q':
            continue
        a = {'q': AQ, 'k': AK, 'v': AV}[X] + 4 * t
        A(f'{SMF} {q4(a)}, {q4(MEM + 4 * p)}, {w}, v{V_IDX}')

    def transpose(acc, op):
        for t in range(2):
            A(cvt(op + 2 * t, acc + 4 * t))
            A(cvt(op + 2 * t + 1, acc + 4 * t + 2))
        for t in range(2):
            A(f'{MF16} {q4(acc + 4 * t)}, {q2(op + 2 * t)}, {q2(V_SELT)}, 0')
        for i in range(4):
            A(cvt(op + i, acc + 2 * i))

    kmst = f'buffer_store_dwordx4 {q4(KOP)}, v{V_L16}, {S_WS}, s30 offen sc1 ;free ;dl:%d' % opt.get('dkk', 1000)
    vmst = f'buffer_store_dwordx4 {q4(VOP)}, v{V_L16}, {S_WS}, s30 offen offset:1024 sc1 ;free ;dl:%d' % opt.get('dk', 800)
    if last:
        transpose(AK, KOP)
        A(kmst)
        for i in range(4):
            A(cvt(VOP + i, AV + 2 * i))
        A(vmst)
        return it
    hi = 'quad_perm:[0,1,2,3] row_mask:0xf bank_mask:0xc'
    transpose(AQ, QOP)
    for t in range(2):
        A(f'{MF} {q4(AQ + 4 * t)}, {q4(KX + 4 * t)}, {q4(QOP)}, 0')
    for r in range(4):
        A(f'v_mov_b32_dpp v{XE + r}, v{AQ + 4 + r} {hi}')
    A(f'ds_write_b128 v{V_X0}, {q4(XE)} offset:{L_SC}')
    transpose(AK, KOP)
    A(f'{MF} {q4(AK)}, {q4(KOP)}, {q4(QOP)}, 0')
    for r in range(2):
        A(f'v_mov_b32_dpp v{ME + r}, v{AK + 2 + r} {hi}')
    A(f'ds_write_b64 v{V_X0}, {q2(ME)} offset:{L_SC + 1024} ;w:sc')
    A('@bar sc')
    RX = [AQ + 4, KX, KX + 4]
    for u in range(3):
        A(f'ds_read_b128 {q4(RX[u])}, v{V_X0 + 1 + u} offset:{L_SC} ;r:sc')
        A(f'ds_read_b64 {q2(ME + 2 + 2 * u)}, v{V_X0 + 1 + u} offset:{L_SC + 1024} ;r:sc')
    for u in range(3):
        for i in (0, 2):
            A(pk('add', XE + i, XE + i, RX[u] + i))
        A(pk('add', ME, ME, ME + 2 + 2 * u))
    A(f'v_max3_f32 v{MX}, v{XE}, v{XE + 1}, v{XE + 2}')
    A(f'v_max3_f32 v{NM}, v{XE + 3}, v{ME}, v{ME + 1}')
    A(f'v_max_f32 v{MX}, v{MX}, v{NM}')
    A(f'v_max_f32_dpp v{MX}, v{MX}, v{MX} row_ror:8 {DPPF}')
    for x in xl('v_max_f32', 16, MX, NM) + xl('v_max_f32', 32, MX, NM):
        A(x)
    A(f'v_mul_f32 v{MX}, {S_C}, v{MX}')
    for x in (XE, XE + 2, ME):
        A(f'v_pk_fma_f32 {q2(x)}, {q2(x)}, s[18:19], {q2(MX)} op_sel_hi:[1,0,0] neg_lo:[0,0,1] neg_hi:[0,0,1]')
    for x in (XE, XE + 1, XE + 2, XE + 3, ME, ME + 1):
        A(f'v_exp_f32 v{x}, v{x}')
    A(cvt(PX, XE))
    A(cvt(PX + 1, XE + 2))
    A(cvt(PM, ME))
    for d in (PX + 2, PX + 3):
        A(f'v_mov_b32_dpp v{d}, v{d - 2} row_ror:8 {DPPF}')
    A(f'v_mov_b32_dpp v{PM + 1}, v{PM} row_ror:8 {DPPF}')
    for i in range(4):
        A(cvt(VOP + i, AV + 2 * i))
    for t in range(2):
        A(f'{MF} {q4(OX + 4 * t)}, {q4(VX + 4 * t)}, {q4(PX)}, 0')
    for t in range(2):
        A(f'{MF16} {q4(OX + 4 * t)}, {q2(VOP + 2 * t)}, {q2(PM)}, {q4(OX + 4 * t)}')
    A(pk('add', XE, XE, XE + 2))
    if opt.get('nopk'):
        for i in range(2):
            A(f'v_fma_f32 v{XE + i}, v{ME + i}, 0.5, v{XE + i}')
    else:
        A(f'v_pk_fma_f32 {q2(XE)}, {q2(ME)}, 0.5, {q2(XE)} op_sel_hi:[1,0,1]')
    A(f'v_add_f32 v{SUM}, v{XE}, v{XE + 1}')
    A(dppadd(SUM, SUM, SUM))
    for x in xl('v_add_f32', 16, SUM, TN) + xl('v_add_f32', 32, SUM, TN):
        A(x)
    A(f'v_rcp_f32 v{SUM}, v{SUM}')
    if opt.get('zc', 1):
        A(f'v_cndmask_b32 v{SUM}, 0, v{SUM}, s[34:35]')
    for i in range(0, 8, 2):
        A(f'v_pk_mul_f32 {q2(OX + i)}, {q2(OX + i)}, {q2(SUM)} op_sel_hi:[1,0]')
    for i in range(4):
        A(cvt(OOP + i, OX + 2 * i))
    A(f'ds_write_b128 v{V_X0}, {q4(OOP)} offset:{L_O} ;w:o')
    if opt.get('kmh'):
        A(['s_mov_b64 exec, s[34:35]', kmst, 's_mov_b64 exec, -1'])
    elif kmode >= 1:
        A(kmst)
    if kmode == 1:
        A(vmst)
    A('@bar o')
    for pp in range(1, 4):
        A(f'ds_read_b128 {q4(OIN[pp - 1])}, v{V_X0 + pp} offset:{L_O} ;r:o')
    PKA, PKB = [AQ, AK], [AQ + 4, AK + 4]

    hs = opt.get('hs', 0)

    def pack(u):
        for i in range(4):
            A(cvt(PKB[u] + i, AO + 16 * u + 8 + 2 * i))
        for i in range(4):
            A(cvt(PKA[u] + i, AO + 16 * u + 2 * i))
        sb = 's53' if u else 's50'
        if hs >= 2 - u:
            g = opt.get('hg', 100)
            for half, r in enumerate((PKA[u], PKB[u])):
                dl = 44 + g * (3 - 2 * u - half)
                A(['s_mov_b64 exec, s[34:35]',
                   f'buffer_store_dwordx4 {q4(r)}, v{V_T0 if half else V_PST}, {S_WS}, {sb} offen{XS}',
                   's_mov_b64 exec, -1'])
            return
        for i in range(4):
            A(f'v_mov_b32_dpp v{PKA[u] + i}, v{PKB[u] + i} row_ror:8 row_mask:0xf bank_mask:0xc')
        A(f'buffer_store_dwordx4 {q4(PKA[u])}, v{V_PST}, {S_WS}, {sb} offen{XS} ;free' + ('' if u else ' ;dl:%d' % opt.get('gap', 240)))
    for k, e in enumerate(ostream):
        _, T_, pp = e
        kind, where = home[e][:2]
        if kind == 'lds':
            slot = WB + 4 * (where % 6)
            A(wrd(slot, home[e][2][0]))
            w = q4(slot)
        else:
            w = q4(where)
        b = q4(OOP) if pp == 0 else q4(OIN[pp - 1])
        c = '0' if pp == 0 else q4(AO + 4 * T_)
        A(f'{MF} {q4(AO + 4 * T_)}, {w}, {b}, {c}' + (' ;p:150' if (pp and T_ < 4) else ''))
        if k == 19:
            pack(0)
    pack(1)
    return it


def chain_loop(P, opt, mode):
    XS = '' if mode == 'fast' else ' sc1'
    tag = 'chain_' + mode
    mk = lambda i: stamps.marks(opt, i)
    RED = MEM + 8
    RDD = T5
    rl = f'''buffer_load_dwordx4 {q4(RED)}, v{V_L16}, {S_WS}, s51 offen sc1 ;nodep
    buffer_load_dwordx4 {q4(RED + 4)}, v{V_L16}, {S_WS}, s51 offen offset:1024 sc1 ;nodep'''
    gl = f'''buffer_load_dwordx4 {q4(MEM)}, v{V_L16}, {S_WS}, s52 offen sc1 ;nodep
    buffer_load_dwordx4 {q4(MEM + 4)}, v{V_L16}, {S_WS}, s52 offen offset:1024 sc1 ;nodep'''

    def chk(b, dst):
        return f'''v_max3_u32 v{V_T2}, v{b}, v{b + 1}, v{b + 2}
        v_max3_u32 v{V_T1}, v{b + 3}, v{b + 4}, v{b + 5}
        v_max3_u32 v{V_T2}, v{V_T2}, v{b + 6}, v{b + 7}
        v_max_u32 v{V_T2}, v{V_T2}, v{V_T1}
        v_cmp_eq_u32 {dst}, {S_SENT}, v{V_T2}'''
    red = f'''{MF} {q4(RDD)}, {q4(V_SEL)}, {q4(RED)}, 0
    {MF} {q4(RDD)}, {q4(V_SEL)}, {q4(RED + 4)}, {q4(RDD)}'''
    fin = '\n'.join([dppadd(RDD + r, RDD + r, RDD + r, ror) for ror in (4, 8) for r in range(4)] +
                    [cvt(RDD, RDD), cvt(RDD + 1, RDD + 2)])
    def pause(c):
        return f's_sleep {c}' if c else ''
    early = opt.get('ef', 0)
    flag = f'buffer_store_dword v{V_T0}, off, {S_WS}, s32 sc1' if early else ''
    wr = f'''ds_write_b128 v{V_MW}, {q4(MEM)}
    ds_write_b128 v{V_MW}, {q4(MEM + 4)} offset:1024'''
    P(f'''
    {tag}_gather:
    {pause(opt.get('b1', 2))}
    {gl}
    {pause(opt.get('b2', 3))}
    {gl}
    {flag}
    s_waitcnt vmcnt({2 + early})
    {chk(MEM, 'vcc')}
    {wr}
    s_cbranch_vccnz {tag}_gretry
    {mk(2)}
    ''')
    P.label(tag + '_step')
    for i in range(4):
        P(stamps.tlc(opt, i, S_S, 39 + i))
    items = step_items(opt, XS, False)
    code, t = schedule(items, verbose=opt.get('verbose') == 1 and mode == 'fast', anneal=opt.get('an', 400000), seed=opt.get('seed', 0))
    k = code.index('s_barrier')
    nds = sum(c.startswith('ds_') for c in code[:k])
    code.insert(k, f's_waitcnt lgkmcnt({nds})')
    code.remove('s_nop 0')
    k = code.index('s_barrier', k + 2)
    code.insert(k, 's_waitcnt vmcnt(%d)' % sum(c.startswith('buffer_') for c in code[:k]))
    if opt.get('stamp') == 5:
        c2 = ['s_memtime s[64:65] ;nodep']
        n = 0
        for j, c in enumerate(code):
            if 'lo' in opt:
                c2.append(c)
                if j >= opt['lo'] and (j - opt['lo']) % opt['st'] == 0 and n < 8:
                    c2.append(f's_memtime s[{82 + 2 * n}:{83 + 2 * n}] ;nodep')
                    if mode == 'fast':
                        print('stamp', n, 'after', j, c)
                    n += 1
            elif c == 's_barrier':
                jj = len(c2)
                while c2[jj - 1].startswith('s_waitcnt'):
                    jj -= 1
                c2.insert(jj, f's_memtime s[{82 + 2 * n}:{83 + 2 * n}] ;nodep')
                c2 += [c, f's_memtime s[{84 + 2 * n}:{85 + 2 * n}] ;nodep']
                n += 2
            else:
                c2.append(c)
        c2 += ['s_memtime s[66:67] ;nodep', 's_waitcnt lgkmcnt(0)', 's_sub_u32 s69, s64, s68', 's_add_u32 s79, s79, s69', 's_mov_b32 s68, s66']
        prev = 's64'
        for j in range(9):
            cur = f's{82 + 2 * j}' if j < 8 else 's66'
            c2 += [f's_sub_u32 s69, {cur}, {prev}', f's_add_u32 s{70 + j}, s{70 + j}, s69']
            prev = cur
        code = c2
    for i in code:
        P(i)
    P(mk(0))
    z = [f'v_mov_b32 v{AQ + i}, 0' for i in range(24)]
    wbr = preload()
    resets = f'''buffer_store_dwordx4 {q4(T4)}, v{V_L16}, {S_WS}, s49 offen{XS}
    buffer_store_dwordx4 {q4(T4)}, v{V_L16}, {S_WS}, s49 offen offset:1024{XS}'''

    P(f'''
    s_xor_b32 s47, s48, 8192
    s_add_u32 s52, s48, s21
    s_add_u32 {S_S}, {S_S}, 1
    s_add_u32 s33, {S_S}, 1
    s_add_u32 s28, s28, 0x80000
    s_add_u32 s30, s30, 0x40000
    s_cmp_eq_u32 {S_S}, {NS - 1}
    s_cselect_b32 s29, {NS}, {S_S}
    v_mov_b32 v{T4}, {S_SENT}
    v_mov_b32 v{T4 + 1}, {S_SENT}
    v_mov_b32 v{T4 + 2}, {S_SENT}
    v_mov_b32 v{T4 + 3}, {S_SENT}
    {stamps.trace(opt, 0, S_S, V_T1)}
    {chr(10).join(wbr)}
    {chr(10).join(z[24 - opt.get('za', 0):])}
    {resets if opt.get('ra') else ''}
    {pause(opt.get('a1', 2))}
    {rl}
    {pause(opt.get('a2', 3))}
    {tag}_rpoll:
    {rl}
    s_waitcnt vmcnt(2)
    {red}
    {chk(RED, 's[54:55]')}
    v_cmp_u_f32 vcc, v{RDD}, v{RDD}
    {fin}
    s_cbranch_vccnz {tag}_rretry
    {tag}_rok:
    s_mov_b64 exec, 0x000f000f
    buffer_store_dwordx2 {q2(RDD)}, v{V_MST}, {S_WS}, s48 offen{XS}
    buffer_store_dwordx2 {q2(T4)}, v{V_MST}, {S_WS}, s47 offen{XS}
    s_mov_b64 exec, -1
    {mk(1)}
    v_cmp_ge_u32 vcc, s29, v{V_FL}
    s_xor_b32 s50, s50, 0x80000
    s_xor_b32 s53, s53, 0x80000
    s_xor_b32 s51, s51, 0x80000
    s_xor_b32 s49, s49, 0x80000
    s_xor_b32 s48, s48, 8192
    {chr(10).join(z[:24 - opt.get('za', 0)])}
    s_cbranch_vccz {tag}_gather
    {flag}
    s_branch {tag}_special
    {tag}_gretry:
    {stamps.count(opt, 7)}
    {GUARD}
    {gl}
    s_waitcnt vmcnt({2 + early})
    {chk(MEM, 'vcc')}
    {wr}
    s_cbranch_vccnz {tag}_gretry
    {mk(2)}
    s_branch {tag}_step
    {tag}_rretry:
    {stamps.count(opt, 6)}
    {GUARD}
    s_cmp_lg_u64 s[54:55], 0
    s_cbranch_scc1 {tag}_rpoll
    {red}
    {fin}
    s_branch {tag}_rok
    ; next K/V tile not yet announced, or the last step follows
    {tag}_special:
    {gl}
    buffer_load_dword v{V_FL}, off, {S_WS}, s31 sc1
    s_waitcnt vmcnt(0)
    {GUARD}
    {chk(MEM, 'vcc')}
    s_cbranch_vccnz {tag}_special
    v_cmp_ge_u32 vcc, {S_S}, v{V_FL}
    s_cbranch_vccnz {tag}_special
    ds_write_b128 v{V_MW}, {q4(MEM)}
    ds_write_b128 v{V_MW}, {q4(MEM + 4)} offset:1024
    {mk(3)}
    s_cmp_eq_u32 {S_S}, {NS - 1}
    s_cbranch_scc0 {tag}_step
    s_waitcnt lgkmcnt(0)
    s_branch chain_last
    ''')
```

```python
from layout import *
import stamps
import loader
from asmtool import schedule
from stamps import marks
from chain import (S_WS, S_W, S_H, S_G, S_PURE, S_LAYER, S_S, S_C, S_SENT, GUARD, MF, MF16, DPPF, q4, q2)


def a4(b):
    return 'a[%d:%d]' % (b, b + 3)


def cvt(d, a):
    return f'v_cvt_pk_bf16_f32 v{d}, v{a}, v{a + 1}'


def xlane(op, x, t):
    return [f'v_mov_b32 v{t}, v{x}', f'v_permlane16_swap_b32 v{x}, v{t}', f'{op} v{x}, v{x}, v{t}',
            f'v_mov_b32 v{t}, v{x}', f'v_permlane32_swap_b32 v{x}, v{t}', f'{op} v{x}, v{x}, v{t}']


def wave_sum(x, t):
    o = [f'v_add_f32_dpp v{x}, v{x}, v{x} row_ror:{r} {DPPF}' for r in (1, 2, 4, 8)]
    return o + xlane('v_add_f32', x, t)


def load_weights(P, mats, r, hooks=None):
    loader.setup(P, r, False)
    gr = []
    for mi, X in enumerate(mats):
        for G in range(4):
            if X == 'o':
                gr.append((X, f's_add_u32 s43, s41, {G * 32768}',
                           [[('a', 128 * mi + 4 * (4 * (2 * Pp + t) + G)) for t in range(2)] for Pp in range(4)]))
            else:
                gr.append((X, f's_add_u32 s43, s40, {G * 128 * 8192}',
                           [[('a', 128 * mi + 4 * (16 * t + 4 * G + pp)) for t in range(2)] for pp in range(4)]))
    loader.run(P, gr, r, False, None, None, hooks)
    P('s_barrier')


def h_dma_addr(P, vd, r0, r1, t0):
    P(f'''
    v_lshrrev_b32 v{t0}, 5, v0
    v_lshlrev_b32 v{vd}, 13, v{t0}
    v_bfe_u32 v{t0}, v0, 3, 2
    v_lshl_add_u32 v{vd}, v{t0}, 10, v{vd}
    v_lshrrev_b32 v{t0}, 3, v0
    v_and_b32 v{t0}, 6, v{t0}
    v_xor_b32 v{t0}, v{t0}, v0
    v_and_b32 v{t0}, 7, v{t0}
    v_lshl_add_u32 v{vd}, v{t0}, 4, v{vd}
    v_and_b32 v{r0}, 15, v0
    v_lshlrev_b32 v{r0}, 7, v{r0}
    v_lshrrev_b32 v{t0}, 4, v0
    v_and_b32 v{r1}, 6, v0
    v_xor_b32 v{t0}, v{t0}, v{r1}
    v_lshl_add_u32 v{r0}, v{t0}, 4, v{r0}
    v_xor_b32 v{r1}, 64, v{r0}
    ''')


def h_dma(vd, s_src, s_lds):
    o = []
    for i in range(8):
        o += [f's_add_u32 m0, {s_lds}, {4096 * i - 128 * i}',
              f'buffer_load_dwordx4 v{vd}, {S_WS}, {s_src} offen offset:{128 * i} sc1 lds']
    return o


def h_wave_part(src, lds):
    return f'''s_lshr_b32 s23, {S_W}, 1
    s_lshl_b32 s23, s23, 12
    s_add_u32 {src}, {src}, s23
    s_and_b32 s23, {S_W}, 1
    s_lshl_b32 s23, s23, 14
    s_add_u32 {src}, {src}, s23
    s_lshl_b32 {lds}, {S_W}, 10'''


def h_read(dst, r0, r1, kk, t):
    return f'ds_read_b128 {q4(dst)}, v{r1 if kk & 1 else r0} offset:{(kk >> 1) * 4096 + t * 2048}'


def gen_kv(P, opt):
    V_L16, V_HD, V_F, V_FA, V_T0, V_R0, V_R1, V_TH = range(240, 248)
    HB = 80
    AK = 32
    AV = 48
    PK = 64
    P.label('kv_role')
    P(f'''
    v_and_b32 v0, 63, v0
    v_lshlrev_b32 v{V_L16}, 4, v0
    v_lshlrev_b32 v{V_FA}, 7, v0
    v_lshrrev_b32 v{V_TH}, 5, v0
    ''')
    h_dma_addr(P, V_HD, V_R0, V_R1, V_T0)
    flush = f'''v_mov_b32 v{V_T0}, s34
    buffer_store_dword v{V_T0}, off, {S_WS}, s31 sc1
    s_mov_b32 s27, 0'''
    P(f'''
    s_lshl_b32 s20, {S_LAYER}, 21
    s_add_u32 s20, s20, {H1}
    {h_wave_part('s20', 's21')}
    s_mov_b32 s24, {F_H}
    s_lshl_b32 s25, {S_H}, 2
    s_add_u32 s25, s25, {S_W}
    s_lshl_b32 s22, {S_LAYER}, 25
    s_lshl_b32 s23, s25, 12
    s_add_u32 s22, s22, s23
    s_add_u32 s28, s22, {KVIMG}
    s_lshr_b32 s32, s22, 1
    s_add_u32 s32, s32, {KMVM}
    s_lshl_b32 s22, {S_LAYER}, 14
    s_lshl_b32 s23, s25, 7
    s_add_u32 s22, s22, s23
    s_add_u32 s31, s22, {F_KV}
    ''')
    P(f's_lshl_b32 s55, {S_H}, 7\ns_add_u32 s55, s55, {F_Q}\ns_cmp_eq_u32 {S_LAYER}, 0\ns_cselect_b32 s55, s55, s31\ns_cselect_b32 s54, 32, -1')
    init = f'v_mov_b32 v{V_T0}, 0\nbuffer_store_dword v{V_T0}, off, {S_WS}, s31 sc1\nbuffer_store_dword v{V_T0}, off, {S_WS}, s55 sc1'
    load_weights(P, 'kv', 16, (lambda n: opt['ready'](P, n, init), lambda n: opt['count_ready'](P, n, V_T0)))
    P(stamps.tl(opt, 5))
    opt['wait_ready'](P, 16)
    P(f'v_and_b32 v{V_FA}, 0xfff, v{V_FA}')
    opt['pre'].wait_lines(P, 1, F_R, V_FA, 17)
    P(f'''
    v_and_b32 v{V_FA}, 0x2b, v0
    v_lshlrev_b32 v{V_FA}, 7, v{V_FA}
    s_and_b32 s22, {S_W}, 1
    s_lshl_b32 s22, s22, 11
    s_add_u32 s24, s24, s22
    s_lshr_b32 s22, {S_W}, 1
    s_lshl_b32 s22, s22, 9
    s_add_u32 s24, s24, s22
    s_mov_b32 {S_S}, 0
    s_mov_b32 s26, 0
    s_mov_b32 s27, 0
    v_mov_b32 v{V_F}, 16
    v_mov_b32 v248, {S_SENT}
    v_mov_b32 v249, {S_SENT}
    v_mov_b32 v250, {S_SENT}
    v_mov_b32 v251, {S_SENT}
    ''')
    stamps.init(P, opt)
    D20, D28, D32 = 2 * MB - 65536, 32 * MB - 0x100000, 16 * MB - 0x80000
    P(f'''
    s_mov_b32 s33, {NS}
    s_mov_b32 s36, 1
    s_mov_b32 s35, 1
    s_mov_b32 s34, 0
    s_mov_b32 s38, 0
    s_cmp_eq_u32 {S_LAYER}, 0
    s_cbranch_scc1 kv_go
    s_sub_u32 s20, s20, {D20}
    s_sub_u32 s28, s28, {D28}
    s_sub_u32 s32, s32, {D32}
    s_mov_b32 {S_S}, 2
    s_mov_b32 s33, 4
    s_mov_b32 s36, 0
    s_mov_b32 s35, -8
    s_branch kv_go
    ''')
    seg = f'v_lshl_add_u32 v{V_F}, v{V_F}, 1, v{V_TH}'
    P(f'''
    kv_loop:
    s_cmp_eq_u32 s26, 0
    s_cbranch_scc0 kv_have
    s_cmp_eq_u32 s38, 1
    s_cbranch_scc1 kv_try
    kv_poll:
    buffer_load_dword v{V_F}, v{V_FA}, {S_WS}, s24 offen sc1
    s_waitcnt vmcnt(0)
    s_cmp_eq_u32 s27, 0
    s_cbranch_scc1 kv_poll2
    {flush}
    {stamps.tlc(opt, 3, S_S, 41)}
    kv_poll2:
    {seg}
    v_cmp_ge_u32 vcc, {S_S}, v{V_F}
    s_cbranch_vccz kv_go
    {GUARD}
    s_sleep {opt.get('ks', 1)}
    s_branch kv_poll
    kv_go:
    {stamps.tlc(opt, 0, S_S, 40)}
    {marks(opt, 0)}
    ''')
    for i in h_dma(V_HD, 's20', 's21'):
        P(i)
    for i in range(2):
        P(f'buffer_load_dword v{V_T0}, off, {S_WS}, s31 ;nodep')
    P(f'''
    kv_have:
    s_add_u32 s30, {S_S}, 1
    s_cmp_eq_u32 s30, s33
    s_cselect_b32 s30, 1000, s30
    v_cmp_ge_u32 vcc, s30, v{V_F}
    s_cmp_eq_u32 {S_S}, s35
    s_cselect_b32 s37, 3, 1
    s_lshl_b32 s22, s37, 15
    s_add_u32 s20, s20, s22
    s_xor_b32 s21, s21, 32768
    s_cmp_eq_u32 s27, 0
    s_cselect_b32 s29, 0x7fff0000, s31
    v_mov_b32 v2, s34
    s_waitcnt vmcnt(8)
    s_barrier
    {stamps.tlc(opt, 1, S_S, 40)}
    {marks(opt, 1)}
    s_cmp_eq_u32 s38, 1
    s_cbranch_scc1 kv_spec
    s_cbranch_vccnz kv_late
    ''')
    VB = 112

    def verify():
        o = [f'v_add_u32 v{V_TH}, s21, v{V_L16}']
        o += [f'ds_read_b128 {q4(VB + 4 * i)}, v{V_TH} offset:{4096 * i}' for i in range(8)]
        for i in range(8):
            b_ = VB + 4 * i
            o.append(f'v_max3_u32 v{b_}, v{b_}, v{b_ + 1}, v{b_ + 2}')
            o.append(f'v_max3_u32 v{V_F}, v{b_}, v{b_ + 3}, v{V_F if i else b_}')
        o.append(f'v_cmp_eq_u32 vcc, {S_SENT}, v{V_F}')
        return o
    for early in (1, 0, 2):
        tf, tc = opt.get('kvf', 950), (2000 if early else opt.get('kvc', 1650))
        it = []
        for j in range(1, 4):
            it += [f's_waitcnt vmcnt({8 - 2 * j}) ;before:g{j} ;t:{130 + 110 * j}', f'@bar g{j}']
        hd = h_dma(V_HD, 's20' if early else 's23', 's21')
        dma = [[hd[2 * i], hd[2 * i + 1] + ' ;after:g3'] for i in range(8)]
        fl = [[f's_waitcnt vmcnt({8 if early else 0})',
               f'buffer_load_dword v{V_F}, v{V_FA}, {S_WS}, s24 offen sc1',
               f'buffer_store_dword v2, off, {S_WS}, s29 sc1']]
        chk = [seg + f' ;t:{tc}']
        if not early:
            chk += [f'v_cmp_ge_u32 vcc, s30, v{V_F} ;by:{tc + 40}',
                    ['s_nop 0', 's_cmp_eq_u64 vcc, 0', 's_cselect_b32 s26, 1, 0', 's_cselect_b32 s23, s20, 0x7fff0000']] + dma
        sent = [f'buffer_store_dwordx4 v[248:251], v{V_L16}, {S_WS}, s32 offen offset:{1024 * i} sc1' for i in range(2)]
        kby = 1400
        if early == 2:
            t1, t2 = opt.get('kv1', 900), opt.get('kv2', 2000)
            kby = t1 + 650
            dma = [[hd[2 * i], hd[2 * i + 1]] for i in range(8)]
            dma[0][1] += f' ;t:{t1}'
            it = [x + ' ;by:250' for x in sent]
            fa = opt.get('kvfa', 1)
            if fa:
                it += dma + [['s_waitcnt vmcnt(10)', f'buffer_store_dword v2, off, {S_WS}, s29 sc1 ;by:{t1 + 480}']]
            else:
                tq = opt.get('kvq', 600)
                it += [['s_waitcnt vmcnt(2)', f'buffer_store_dword v2, off, {S_WS}, s29 sc1 ;t:{tq} ;by:{tq + 50}']] + dma
            ver = verify()
            chk = [[f's_waitcnt vmcnt({2 + fa})', ver[0] + f' ;t:{t2}', f'buffer_load_dword v{V_T0}, off, {S_WS}, s31 ;nodep']] + ver[1:]
            chk.append(['s_nop 0', 's_cmp_eq_u64 vcc, 0', 's_cselect_b32 s26, 1, 0'])
        else:
            it += (dma + fl + ['s_mov_b32 s26, 1']) if early else fl
            it += [x + ' ;by:1250' for x in sent]
        for X in range(2):
            for kk in range(16):
                b = HB + 8 * (kk & 3)
                it += [h_read(b + 4 * tt, V_R0, V_R1, kk, tt) + (f' ;r:g{kk >> 2}' if kk >= 4 and early < 2 else '') for tt in range(2)]
                for te in range(2):
                    for tt in range(2):
                        if X == 0:
                            d = AK + 8 * tt + 4 * te
                            it.append(f'{MF} {q4(d)}, {a4(4 * (16 * te + kk))}, {q4(b + 4 * tt)}, {q4(d) if kk else 0}')
                        else:
                            d = AV + 8 * te + 4 * tt
                            it.append(f'{MF} {q4(d)}, {q4(b + 4 * tt)}, {a4(128 + 4 * (16 * te + kk))}, {q4(d) if kk else 0}')
            if X:
                it += chk
            for qd in range(2 * X, 2 * X + 2):
                it += [cvt(PK + 4 * qd + i, AK + 8 * qd + 2 * i) for i in range(4)]
                it.append(f'buffer_store_dwordx4 {q4(PK + 4 * qd)}, v{V_L16}, {S_WS}, s28 offen offset:{1024 * qd} sc1' + ('' if X else f' ;by:{kby}'))
        it += [f'v_xor_b32 v{V_R0}, 32768, v{V_R0}', f'v_xor_b32 v{V_R1}, 32768, v{V_R1}']
        code, t = schedule(it, verbose=opt.get('verbose') == 20 + early, anneal=opt.get('an2', 200000))
        for c in stamps.profile(code, opt, 20 + early):
            P(c)
        P(('s_branch kv_next\nkv_spec:', 's_branch kv_next\nkv_late:', 'kv_next:')[early])
    P(f'''
    s_lshl_b32 s22, s37, 19
    s_add_u32 s28, s28, s22
    s_lshl_b32 s22, s37, 18
    s_add_u32 s32, s32, s22
    s_mov_b32 s27, s36
    {stamps.trace(opt, 0, S_S, 2)}
    {stamps.tlc(opt, 2, S_S, 40)}
    {marks(opt, 2)}
    s_add_u32 s34, {S_S}, 1
    s_add_u32 {S_S}, {S_S}, s37
    s_cmp_lt_u32 s34, 6
    s_cbranch_scc1 kv_early
    s_sub_u32 s22, s54, {S_S}
    s_cmp_eq_u32 s22, 2
    s_cbranch_scc1 kv_open
    s_sub_u32 s22, s22, 3
    s_cmp_lt_u32 s22, 2
    s_cbranch_scc1 kv_rows
    s_cmp_lt_u32 {S_S}, {NS}
    s_cbranch_scc1 kv_loop
    s_waitcnt vmcnt(0)
    {flush}
    s_branch kv_end
    kv_early:
    s_cmp_eq_u32 {S_S}, s33
    s_cbranch_scc1 kv_helped
    s_add_u32 s22, s35, 4
    s_cmp_eq_u32 s34, s22
    s_cbranch_scc1 kv_join
    s_cmp_lg_u32 s34, 1
    s_cbranch_scc1 kv_loop
    s_waitcnt vmcnt(0)
    {flush}
    s_branch kv_loop
    kv_join:
    {GUARD}
    buffer_load_dword v{V_T0}, off, {S_WS}, s31 sc1
    s_waitcnt vmcnt(0)
    v_cmp_gt_u32 vcc, 4, v{V_T0}
    s_cbranch_vccnz kv_join
    {flush}
    s_branch kv_loop
    kv_helped:
    s_sub_u32 s22, s31, 16384
    kv_helped2:
    {GUARD}
    buffer_load_dword v{V_T0}, off, {S_WS}, s22 sc1
    s_waitcnt vmcnt(0)
    v_cmp_gt_u32 vcc, 2, v{V_T0}
    s_cbranch_vccnz kv_helped2
    v_mov_b32 v{V_T0}, 4
    buffer_store_dword v{V_T0}, off, {S_WS}, s22 sc1
    s_add_u32 s20, s20, {D20 - 65536}
    s_add_u32 s28, s28, {D28 - 0x100000}
    s_add_u32 s32, s32, {D32 - 0x80000}
    s_mov_b32 {S_S}, 0
    s_mov_b32 s33, {NS}
    s_mov_b32 s36, 1
    s_mov_b32 s38, 1
    v_lshlrev_b32 v11, 7, v0
    ''')
    opt['pre'].wait_lines(P, 2, F_R, 11, 12)
    P('kv_try:')
    for i in h_dma(V_HD, 's20', 's21'):
        P(i)
    P(f'''
    s_waitcnt vmcnt(8)
    s_cmp_eq_u32 s27, 0
    s_cbranch_scc1 kv_try2
    {flush}
    s_waitcnt vmcnt(1)
    s_branch kv_try3
    kv_try2:
    s_waitcnt vmcnt(0)
    kv_try3:
    ''')
    for i in verify():
        P(i)
    P(f'''
    {marks(opt, 0)}
    s_cbranch_vccz kv_have
    {GUARD}
    s_branch kv_try
    kv_end:
    ''')
    stamps.dump(P, opt)
    P('s_waitcnt vmcnt(0)\ns_endpgm')
    pre = opt['pre']
    P(f'''
    kv_rows:
    s_lshl_b32 s50, {S_H}, 4
    s_lshl_b32 s53, s54, 5
    s_add_u32 s50, s50, s53
    s_bitcmp1_b32 {S_S}, 0
    s_cbranch_scc1 kv_rows_b
    ''')
    pre.rows_load(P, 254)
    P('''
    s_branch kv_loop
    kv_rows_b:
    v_lshlrev_b32 v10, 4, v0
    v_lshrrev_b32 v11, 2, v254
    v_lshlrev_b32 v11, 7, v11
    ''')
    pre.rows(P, opt, lambda: pre.wait_lines(P, 2, F_P + 8192, 11, 12), 254, 65536)
    pre.announce(P, 's54')
    P('''
    s_branch kv_loop
    kv_open:
    v_and_b32 v11, 31, v0
    v_lshlrev_b32 v11, 7, v11
    ''')
    pre.wait_lines(P, 's54', F_Q, 11, 12)
    P(f'''
    s_add_u32 s54, s54, 16
    s_lshl_b32 s22, {S_H}, 8
    s_add_u32 s22, s22, {F_H}
    s_lshr_b32 s23, s54, 1
    v_mov_b32 v1, s23
    buffer_store_dword v1, off, {S_WS}, s22 sc1
    buffer_store_dword v1, off, {S_WS}, s22 offset:128 sc1
    s_cmp_eq_u32 s54, {NS}
    s_cselect_b32 s54, -1, s54
    s_branch kv_loop
    ''')


def unpack8(dst, src):
    o = []
    for i in range(4):
        o += [f'v_and_b32 v{dst + 2 * i + 1}, 0xffff0000, v{src + i}', f'v_lshlrev_b32 v{dst + 2 * i}, 16, v{src + i}']
    return o


def ln8(x, n, t):
    a, b, c, d = t, t + 1, t + 2, t + 3
    o = [f'v_pk_add_f32 {q2(n)}, {q2(x)}, {q2(x + 2)}', f'v_pk_mul_f32 {q2(n + 4)}, {q2(x)}, {q2(x)}',
         f'v_pk_add_f32 {q2(n + 2)}, {q2(x + 4)}, {q2(x + 6)}', f'v_pk_mul_f32 {q2(n + 6)}, {q2(x + 2)}, {q2(x + 2)}',
         f'v_pk_fma_f32 {q2(n + 4)}, {q2(x + 4)}, {q2(x + 4)}, {q2(n + 4)}',
         f'v_pk_fma_f32 {q2(n + 6)}, {q2(x + 6)}, {q2(x + 6)}, {q2(n + 6)}',
         f'v_pk_add_f32 {q2(n)}, {q2(n)}, {q2(n + 2)}', f'v_pk_add_f32 {q2(n + 4)}, {q2(n + 4)}, {q2(n + 6)}',
         f'v_add_f32 v{a}, v{n}, v{n + 1}', f'v_add_f32 v{c}, v{n + 4}, v{n + 5}']
    for u, v in zip(wave_sum(a, b), wave_sum(c, d)):
        o += [u, v]
    o += [f'v_mul_f32 v{a}, 0x3b000000, v{a}', f'v_mul_f32 v{c}, 0x3b000000, v{c}', f'v_fma_f32 v{c}, -v{a}, v{a}, v{c}',
          f'v_max_f32 v{c}, 0, v{c}', f'v_add_f32 v{c}, 0x3727c5ac, v{c}', f'v_rsq_f32 v{c}, v{c}']
    o += [f'v_pk_add_f32 {q2(n + i)}, {q2(x + i)}, {q2(a)} op_sel_hi:[1,0] neg_lo:[0,1] neg_hi:[0,1]' for i in range(0, 8, 2)]
    o += [f'v_pk_mul_f32 {q2(n + i)}, {q2(n + i)}, {q2(c)} op_sel_hi:[1,0]' for i in range(0, 8, 2)]
    return o


def row_block(x, y, n, pk, ph, t):
    o = ln8(x, n, t)
    o += [f'v_pk_fma_f32 {q2(x + i)}, {q2(n + i)}, {q2(y + i)}, {q2(x + i)}' for i in range(0, 8, 2)]
    o += [cvt(pk + i, x + 2 * i) for i in range(4)]
    o += unpack8(x, pk)
    o += ln8(x, n, t)
    o += [cvt(ph + i, n + 2 * i) for i in range(4)]
    return o
```

```python
from layout import *
import stamps
from asmtool import schedule
import loader

SENT = 0xFF81FF81

S_WS = 's[8:11]'
S_W = 's12'
S_H = 's13'
S_G = 's14'
S_PURE = 's15'
S_LAYER = 's16'
S_S = 's17'
S_C = 's18'
S_SENT = 's19'

NLDSQ = 34
L_MEM = 0
L_O = 8192
L_SC = 16384
L_WT = 24576
DPPF = 'row_mask:0xf bank_mask:0xf'
MF = 'v_mfma_f32_16x16x32_bf16'
MF16 = 'v_mfma_f32_16x16x16_bf16'
SMF = 'v_smfmac_f32_16x16x64_bf16'
RS = 2048
GUARD = 's_sub_u32 s3, s3, 1\ns_cbranch_scc1 main_timeout'


def q4(b):
    return 'v[%d:%d]' % (b, b + 3)


def q2(b):
    return 'v[%d:%d]' % (b, b + 1)


def q8(b):
    return 'v[%d:%d]' % (b, b + 7)


V_FL = 0
V_L16, V_WL, V_X0, V_X1, V_X2, V_X3, V_WH, V_PST, V_MST, V_T0, V_T1 = range(1, 12)
V_MW = V_X0
V_T2 = 116
V_SEL = 12
MEM = 16
V_IDX, V_PF, V_SELT = 48, 49, 50
AQ, AK, AV, KX, VX = 52, 60, 68, 76, 84
WB = 92
T1, T2, T3, T4, T5 = 116, 120, 124, 128, 132
WV0 = 136


KVL = '\n'.join(f'buffer_load_dwordx4 {q4(KX + 4 * i)}, v{V_L16}, {S_WS}, s28 offen offset:{1024 * i} sc1' for i in range(4))


def streams():
    st = []
    for p in range(2):
        st += [(X, t, p) for X in 'qkv' for t in range(2)]
    for X in 'qkv':
        for p in range(2, 8):
            st += [(X, 0, p), (X, 1, p)]
    ost = [('o', T_, 0) for T_ in range(8)]
    for half in range(2):
        for pp in range(1, 4):
            for T_ in range(4 * half, 4 * half + 4):
                ost.append(('o', T_, pp))
    LX, LP = LDS_CLASS
    groups = [(X, par, u) for X in 'qkv' for par in range(2) if (X, par) != (LX, LP) for u in range(2)]
    groups += [('o', pp, 0) for pp in range(4) if pp not in LDS_WO]
    groups += [(LX, LP, 0), (LX, LP, 1)] + [('o', pp, 0) for pp in LDS_WO]
    home = {}
    octs = [('a', 8 * i) for i in range(32)] + [('v', WV0 + 8 * i) for i in range(8)]
    quads = [('v', WV0 + 64 + 4 * i) for i in range(14)]
    n = 0
    for X, t, p in st:
        if (X, p & 1) == (LX, LP):
            home[(X, t, p)] = ('lds', n, [32768 * u + 1024 * (2 * (p >> 1) + t) for u in range(2)])
            n += 1
        else:
            home[(X, t, p)] = octs.pop(0)
    n = 0
    for _, T_, pp in ost:
        if pp in LDS_WO:
            home[('o', T_, pp)] = ('lds', n, [(1 << 16) + 32768 * LDS_WO.index(pp) + 1024 * T_])
            n += 1
        elif (T_, pp) in LDS_EXTRA:
            home[('o', T_, pp)] = ('lds', n, [(2 << 16) + L_WT + 1024 * LDS_EXTRA.index((T_, pp))])
            n += 1
        else:
            home[('o', T_, pp)] = quads.pop(0)
    assert not octs and not quads
    return st, ost, home, groups


LDS_CLASS = ('q', 1)
LDS_WO = [0, 2]
LDS_EXTRA = [(1, 3), (5, 3)]


def wrd(dst, off):
    return f'ds_read_b128 {q4(dst)}, v{(V_WL, V_WH, V_X0)[off >> 16]} offset:{off & 0xffff}'


def preload():
    st, ost, home, units = streams()
    o = []
    for e in st:
        if home[e][0] == 'lds' and home[e][1] < 3:
            for u in range(2):
                o.append(wrd(WB + 8 * home[e][1] + 4 * u, home[e][2][u]))
    return o


def gen_chain(P, opt):
    stream, ostream, home, units = streams()
    P.label('chain_role')
    P('v_and_b32 v0, 63, v0')
    LR = AQ
    loader.setup(P, LR, True)
    P0 = P
    setup_code = []
    P = setup_code.append
    P(f'''
    v_lshlrev_b32 v{V_L16}, 4, v0
    v_add_u32 v{V_WL}, s42, v{V_L16}
    v_add_u32 v{V_WH}, 65536, v{V_WL}
    s_lshl_b32 s21, {S_W}, 11
    v_add_u32 v{V_MW}, s21, v{V_L16}
    v_xor_b32 v{V_X1}, 2048, v{V_X0}
    v_xor_b32 v{V_X2}, 4096, v{V_X0}
    v_xor_b32 v{V_X3}, 6144, v{V_X0}
    v_bfe_u32 v{V_T1}, v0, 3, 1
    v_mul_u32_u24 v{V_IDX}, 0xaaaa, v{V_T1}
    v_add_u32 v{V_IDX}, 0x4444, v{V_IDX}
    v_and_b32 v{V_PF}, {15 if opt.get('pmode', 0) else 31}, v0
    v_lshlrev_b32 v{V_PF}, 7, v{V_PF}
    v_add_u32 v{V_PF}, 0x80000, v{V_PF}
    v_lshrrev_b32 v{V_T0}, 2, v0
    s_lshl_b32 s22, {S_W}, 5
    v_add_u32 v{V_T0}, s22, v{V_T0}
    v_lshlrev_b32 v{V_T0}, 11, v{V_T0}
    v_and_b32 v{V_T1}, 3, v0
    v_lshlrev_b32 v{V_T1}, 4, v{V_T1}
    s_lshl_b32 s22, {S_H}, 6
    v_add3_u32 v{V_PST}, v{V_T0}, v{V_T1}, s22
    v_lshrrev_b32 v{V_T0}, 4, v0
    v_lshlrev_b32 v{V_T0}, 3, v{V_T0}
    s_lshl_b32 s22, {S_H}, 2
    s_add_u32 s24, s22, {S_W}
    s_lshl_b32 s22, s24, 6
    v_add3_u32 v{V_MST}, v{V_T0}, v{V_T1}, s22
    v_and_b32 v{V_T0}, 15, v0
    ''')

    def onehot(dst, n, src):
        for i in range(n):
            P(f'''
            v_mov_b32 v{dst + i}, 0
            v_mov_b32 v{V_T1}, 0x3f80
            v_cmp_eq_u32 vcc, {2 * i}, v{src}
            v_cndmask_b32 v{dst + i}, v{dst + i}, v{V_T1}, vcc
            v_mov_b32 v{V_T1}, 0x3f800000
            v_cmp_eq_u32 vcc, {2 * i + 1}, v{src}
            v_cndmask_b32 v{dst + i}, v{dst + i}, v{V_T1}, vcc
            ''')
    onehot(V_SEL, 4, V_T0)
    P(f'''
    v_and_b32 v{V_T0}, 7, v0
    v_bfe_u32 v{V_T1}, v0, 4, 1
    v_lshlrev_b32 v{V_T1}, 2, v{V_T1}
    v_sub_u32 v{V_T0}, v{V_T0}, v{V_T1}
    ''')
    onehot(V_SELT, 2, V_T0)
    P(f'''
    s_lshl_b32 s50, {S_LAYER}, 20
    s_add_u32 s50, s50, {CPART}
    s_add_u32 s53, s50, {16 * RS}
    s_lshl_b32 s22, s24, 11
    s_add_u32 s51, s50, s22
    s_xor_b32 s49, s51, 0x80000
    s_lshl_b32 s26, {S_LAYER}, 14
    s_add_u32 s26, s26, {CMEM}
    s_add_u32 s48, s26, 8192
    s_add_u32 s52, s48, s21
    s_lshl_b32 s22, {S_LAYER}, 25
    s_lshl_b32 s23, s24, 12
    s_add_u32 s28, s22, s23
    s_add_u32 s28, s28, {KVIMG}
    s_lshl_b32 s22, {S_LAYER}, 24
    s_lshl_b32 s23, s24, 11
    s_add_u32 s30, s22, s23
    s_add_u32 s30, s30, {KMVM}
    s_lshl_b32 s22, {S_LAYER}, 14
    s_lshl_b32 s23, s24, 7
    s_add_u32 s22, s22, s23
    s_add_u32 s31, s22, {F_KV}
    s_add_u32 s32, s22, {F_KM}
    s_mov_b32 s34, 0x00ff00ff
    s_mov_b32 s35, 0x00ff00ff
    s_mov_b32 s36, 0xff00ff00
    s_mov_b32 s37, 0xff00ff00
    ''')
    init = f'''
    v_mov_b32 v{T4}, {S_SENT}
    v_mov_b32 v{T4 + 1}, {S_SENT}
    v_mov_b32 v{T4 + 2}, {S_SENT}
    v_mov_b32 v{T4 + 3}, {S_SENT}
    buffer_store_dwordx4 {q4(T4)}, v{V_L16}, {S_WS}, s51 offen sc1
    buffer_store_dwordx4 {q4(T4)}, v{V_L16}, {S_WS}, s51 offen offset:1024 sc1
    s_mov_b64 exec, 0x000f000f
    buffer_store_dwordx2 {q2(T4)}, v{V_MST}, {S_WS}, s48 offen sc1
    s_mov_b64 exec, -1
    '''
    P = P0

    def confirm(newer):
        P(stamps.tl(opt, 0, 1))
        opt['ready'](P, newer, '\n'.join(setup_code) + init)
        P(stamps.tl(opt, 1, 1))

    def count(newer):
        opt['count_ready'](P, newer, V_T0)
        P(stamps.tl(opt, 2, 1))
        if opt.get('warmon'):
            P(f's_cmp_eq_u32 {S_LAYER}, 0\ns_cbranch_scc1 chain_nowarm')
            opt['warm'](P, 0)
            P('chain_nowarm:')
        P(stamps.tl(opt, 3, 1))
    gr = []
    for X, a_, u in units:
        if X == 'o':
            code = f's_xor_b32 s43, s39, {a_ * 32768}\ns_add_u32 s43, s43, s41'
            ds = [[home[('o', 2 * Pp + t, a_)] for t in range(2)] for Pp in range(4)]
        else:
            code = f's_add_u32 s43, s40, {a_ * 64 * 8192 + u * 16 * 8192}'
            ds = [[home[(X, t, 2 * pp + a_)] for t in range(2)] for pp in range(4)]
        ds = [[('lds', d[2][u]) if d[0] == 'lds' else (d[0], d[1] + 4 * u) for d in row] for row in ds]
        gr.append((X, code, ds))
    loader.run(P, gr, LR, True, KX, (V_WL, V_WH, V_X0), (confirm, count))
    P(stamps.tl(opt, 5))
    P(f'''
    v_and_b32 v{V_T0}, 7, v0
    v_lshlrev_b32 v{V_T0}, 10, v{V_T0}
    v_bfe_u32 v{V_T1}, v0, 3, 1
    v_lshl_add_u32 v{V_T0}, v{V_T1}, 6, v{V_T0}
    v_lshrrev_b32 v{V_T1}, 4, v0
    v_lshl_add_u32 v{V_T0}, v{V_T1}, 4, v{V_T0}
    s_lshl_b32 s22, {S_W}, 8
    s_load_dwordx2 s[44:45], s[0:1], 56
    s_mov_b32 s46, 8192
    s_mov_b32 s47, 0x00020000
    s_waitcnt lgkmcnt(0)
    buffer_load_dwordx4 {q4(MEM)}, v{V_T0}, s[44:47], s22 offen
    buffer_load_dwordx4 {q4(MEM + 4)}, v{V_T0}, s[44:47], s22 offen offset:128
    ''')
    opt['wait_ready'](P, T1)
    lw = P.uid('ch_kv0')
    P(f'''
    {lw}:
    {GUARD}
    buffer_load_dword v{V_FL}, off, {S_WS}, s31 sc1
    s_waitcnt vmcnt(0)
    v_cmp_gt_u32 vcc, 1, v{V_FL}
    s_cbranch_vccnz {lw}
    ''')
    for i in range(24):
        P(f'v_mov_b32 v{AQ + i}, 0')
    P('s_waitcnt lgkmcnt(0)')
    for i in preload():
        P(i)
    P(f'''
    s_mov_b32 {S_S}, 0
    s_mov_b32 s33, 1
    s_add_u32 s27, s28, 0x80000
    {KVL if opt.get('kl') else ''}
    v_add_u32 v{V_T0}, {2 * RS}, v{V_PST}
    v_mov_b32 v{T4}, {S_SENT}
    v_mov_b32 v{T4 + 1}, {S_SENT}
    v_mov_b32 v{T4 + 2}, {S_SENT}
    v_mov_b32 v{T4 + 3}, {S_SENT}
    ds_write_b128 v{V_MW}, {q4(MEM)}
    ds_write_b128 v{V_MW}, {q4(MEM + 4)} offset:1024
    ''')
    stamps.init(P, opt)
    P(f's_cmp_eq_u32 {S_PURE}, 0\ns_cbranch_scc1 chain_slow_step\ns_branch chain_fast_step')
    chain_loop(P, opt, 'fast')
    chain_loop(P, opt, 'slow')
    P.label('chain_last')
    code, t = schedule(step_items(opt, ' sc1', True))
    for i in code:
        P(i)
    stamps.dump(P, opt)
    P('s_waitcnt vmcnt(0)\ns_endpgm')


def dppadd(d, a, b, ror=8):
    return f'v_add_f32_dpp v{d}, v{a}, v{b} row_ror:{ror} {DPPF}'


def cvt(d, a):
    return f'v_cvt_pk_bf16_f32 v{d}, v{a}, v{a + 1}'


def xl(op, n, x, t):
    return [f'v_mov_b32 v{t}, v{x}', f'v_permlane{n}_swap_b32 v{x}, v{t}', f'{op} v{x}, v{x}, v{t}']


def pk(op, d, a, b):
    return f'v_pk_{op}_f32 {q2(d)}, {q2(a)}, {q2(b)}'


def step_items(opt, XS, last):
    stream, ostream, home, units = streams()
    QOP, KOP, VOP = T1, T2, T3
    XE, ME = AQ, AK
    PX, PM = T4, AK + 2
    MX, NM, SUM, TN = T5, T5 + 1, T5 + 2, T5 + 3
    OX, OOP = KX, T1
    OIN = [AV, AV + 4, T4]
    AO = MEM
    it = []
    A = it.append
    A('s_nop 0 ;w:mem ;t:%d' % opt.get('tb', 70))
    if not last and not opt.get('kl'):
        for i in range(4):
            A(f'buffer_load_dwordx4 {q4(KX + 4 * i)}, v{V_L16}, {S_WS}, s28 offen offset:{1024 * i} sc1')
    A('@bar mem')
    for pr in range(1, 4):
        A(f'ds_read_b128 {q4(MEM + 8 * pr)}, v{V_X0 + pr} ;r:mem')
        A(f'ds_read_b128 {q4(MEM + 8 * pr + 4)}, v{V_X0 + pr} offset:1024 ;r:mem')
    kmode = 1
    pf = [f'v_cmp_lt_u32 vcc, s33, v{V_FL}', f'v_cndmask_b32 v{V_T1}, v{V_L16}, v{V_PF}, vcc']
    if opt.get('pmode', 0) == 0:
        if not last:
            if not opt.get('spec', 1):
                it += pf
            A(f'buffer_load_dword v{V_FL}, v{V_PF if opt.get("spec", 1) else V_T1}, {S_WS}, s28 offen sc1')
        if not last:
            ft = opt.get('ft', 150)
            A(f'buffer_load_dword v{V_FL}, off, {S_WS}, s31 sc1')
    else:
        if not last:
            A(f'buffer_load_dword v{V_FL}, off, {S_WS}, s31 sc1')
        A(f'buffer_store_dword v{V_T0}, off, {S_WS}, s32 sc1 ;by:250')
        if not last:
            it += pf
            A(f'buffer_load_dword v{V_T0}, v{V_T1}, {S_WS}, s28 offen sc1')
    if not last and not opt.get('ra'):
        A(f'buffer_store_dwordx4 {q4(T4)}, v{V_L16}, {S_WS}, s49 offen{XS}')
        A(f'buffer_store_dwordx4 {q4(T4)}, v{V_L16}, {S_WS}, s49 offen offset:1024{XS}')

    for e in stream:
        X, t, p = e
        kind, where = home[e][:2]
        if kind == 'lds':
            slot = WB + 8 * (where % 3)
            if where >= 3:
                A(wrd(slot, home[e][2][0]))
                A(wrd(slot + 4, home[e][2][1]))
            w = q8(slot)
        else:
            w = f'{kind}[{where}:{where + 7}]'
        if last and X == 'q':
            continue
        a = {'q': AQ, 'k': AK, 'v': AV}[X] + 4 * t
        A(f'{SMF} {q4(a)}, {q4(MEM + 4 * p)}, {w}, v{V_IDX}')

    def transpose(acc, op):
        for t in range(2):
            A(cvt(op + 2 * t, acc + 4 * t))
            A(cvt(op + 2 * t + 1, acc + 4 * t + 2))
        for t in range(2):
            A(f'{MF16} {q4(acc + 4 * t)}, {q2(op + 2 * t)}, {q2(V_SELT)}, 0')
        for i in range(4):
            A(cvt(op + i, acc + 2 * i))

    kmst = f'buffer_store_dwordx4 {q4(KOP)}, v{V_L16}, {S_WS}, s30 offen sc1 ;free ;dl:%d' % opt.get('dkk', 1000)
    vmst = f'buffer_store_dwordx4 {q4(VOP)}, v{V_L16}, {S_WS}, s30 offen offset:1024 sc1 ;free ;dl:%d' % opt.get('dk', 800)
    if last:
        transpose(AK, KOP)
        A(kmst)
        for i in range(4):
            A(cvt(VOP + i, AV + 2 * i))
        A(vmst)
        return it
    hi = 'quad_perm:[0,1,2,3] row_mask:0xf bank_mask:0xc'
    transpose(AQ, QOP)
    for t in range(2):
        A(f'{MF} {q4(AQ + 4 * t)}, {q4(KX + 4 * t)}, {q4(QOP)}, 0')
    for r in range(4):
        A(f'v_mov_b32_dpp v{XE + r}, v{AQ + 4 + r} {hi}')
    A(f'ds_write_b128 v{V_X0}, {q4(XE)} offset:{L_SC}')
    transpose(AK, KOP)
    A(f'{MF} {q4(AK)}, {q4(KOP)}, {q4(QOP)}, 0')
    for r in range(2):
        A(f'v_mov_b32_dpp v{ME + r}, v{AK + 2 + r} {hi}')
    A(f'ds_write_b64 v{V_X0}, {q2(ME)} offset:{L_SC + 1024} ;w:sc')
    A('@bar sc')
    RX = [AQ + 4, KX, KX + 4]
    for u in range(3):
        A(f'ds_read_b128 {q4(RX[u])}, v{V_X0 + 1 + u} offset:{L_SC} ;r:sc')
        A(f'ds_read_b64 {q2(ME + 2 + 2 * u)}, v{V_X0 + 1 + u} offset:{L_SC + 1024} ;r:sc')
    for u in range(3):
        for i in (0, 2):
            A(pk('add', XE + i, XE + i, RX[u] + i))
        A(pk('add', ME, ME, ME + 2 + 2 * u))
    A(f'v_max3_f32 v{MX}, v{XE}, v{XE + 1}, v{XE + 2}')
    A(f'v_max3_f32 v{NM}, v{XE + 3}, v{ME}, v{ME + 1}')
    A(f'v_max_f32 v{MX}, v{MX}, v{NM}')
    A(f'v_max_f32_dpp v{MX}, v{MX}, v{MX} row_ror:8 {DPPF}')
    for x in xl('v_max_f32', 16, MX, NM) + xl('v_max_f32', 32, MX, NM):
        A(x)
    A(f'v_mul_f32 v{MX}, {S_C}, v{MX}')
    for x in (XE, XE + 2, ME):
        A(f'v_pk_fma_f32 {q2(x)}, {q2(x)}, s[18:19], {q2(MX)} op_sel_hi:[1,0,0] neg_lo:[0,0,1] neg_hi:[0,0,1]')
    for x in (XE, XE + 1, XE + 2, XE + 3, ME, ME + 1):
        A(f'v_exp_f32 v{x}, v{x}')
    A(cvt(PX, XE))
    A(cvt(PX + 1, XE + 2))
    A(cvt(PM, ME))
    for d in (PX + 2, PX + 3):
        A(f'v_mov_b32_dpp v{d}, v{d - 2} row_ror:8 {DPPF}')
    A(f'v_mov_b32_dpp v{PM + 1}, v{PM} row_ror:8 {DPPF}')
    for i in range(4):
        A(cvt(VOP + i, AV + 2 * i))
    for t in range(2):
        A(f'{MF} {q4(OX + 4 * t)}, {q4(VX + 4 * t)}, {q4(PX)}, 0')
    for t in range(2):
        A(f'{MF16} {q4(OX + 4 * t)}, {q2(VOP + 2 * t)}, {q2(PM)}, {q4(OX + 4 * t)}')
    A(pk('add', XE, XE, XE + 2))
    if opt.get('nopk'):
        for i in range(2):
            A(f'v_fma_f32 v{XE + i}, v{ME + i}, 0.5, v{XE + i}')
    else:
        A(f'v_pk_fma_f32 {q2(XE)}, {q2(ME)}, 0.5, {q2(XE)} op_sel_hi:[1,0,1]')
    A(f'v_add_f32 v{SUM}, v{XE}, v{XE + 1}')
    A(dppadd(SUM, SUM, SUM))
    for x in xl('v_add_f32', 16, SUM, TN) + xl('v_add_f32', 32, SUM, TN):
        A(x)
    A(f'v_rcp_f32 v{SUM}, v{SUM}')
    if opt.get('zc', 1):
        A(f'v_cndmask_b32 v{SUM}, 0, v{SUM}, s[34:35]')
    for i in range(0, 8, 2):
        A(f'v_pk_mul_f32 {q2(OX + i)}, {q2(OX + i)}, {q2(SUM)} op_sel_hi:[1,0]')
    for i in range(4):
        A(cvt(OOP + i, OX + 2 * i))
    A(f'ds_write_b128 v{V_X0}, {q4(OOP)} offset:{L_O} ;w:o')
    if opt.get('kmh'):
        A(['s_mov_b64 exec, s[34:35]', kmst, 's_mov_b64 exec, -1'])
    elif kmode >= 1:
        A(kmst)
    if kmode == 1:
        A(vmst)
    if opt.get('kl'):
        for i in (2, 3, 0, 1):
            A(f'buffer_load_dwordx4 {q4(KX + 4 * i)}, v{V_L16}, {S_WS}, s27 offen offset:{1024 * i} sc1')
    A('@bar o')
    for pp in range(1, 4):
        A(f'ds_read_b128 {q4(OIN[pp - 1])}, v{V_X0 + pp} offset:{L_O} ;r:o')
    PKA, PKB = [AQ, AK], [AQ + 4, AK + 4]

    hs = opt.get('hs', 0)

    def pack(u):
        for i in range(4):
            A(cvt(PKB[u] + i, AO + 16 * u + 8 + 2 * i))
        for i in range(4):
            A(cvt(PKA[u] + i, AO + 16 * u + 2 * i))
        sb = 's53' if u else 's50'
        if hs >= 2 - u:
            g = opt.get('hg', 100)
            for half, r in enumerate((PKA[u], PKB[u])):
                dl = 44 + g * (3 - 2 * u - half)
                A(['s_mov_b64 exec, s[34:35]',
                   f'buffer_store_dwordx4 {q4(r)}, v{V_T0 if half else V_PST}, {S_WS}, {sb} offen{XS}',
                   's_mov_b64 exec, -1'])
            return
        for i in range(4):
            A(f'v_mov_b32_dpp v{PKA[u] + i}, v{PKB[u] + i} row_ror:8 row_mask:0xf bank_mask:0xc')
        A(f'buffer_store_dwordx4 {q4(PKA[u])}, v{V_PST}, {S_WS}, {sb} offen{XS} ;free' + ('' if u else ' ;dl:%d' % opt.get('gap', 240)))
    for k, e in enumerate(ostream):
        _, T_, pp = e
        kind, where = home[e][:2]
        if kind == 'lds':
            slot = WB + 4 * (where % 6)
            A(wrd(slot, home[e][2][0]))
            w = q4(slot)
        else:
            w = q4(where)
        b = q4(OOP) if pp == 0 else q4(OIN[pp - 1])
        c = '0' if pp == 0 else q4(AO + 4 * T_)
        A(f'{MF} {q4(AO + 4 * T_)}, {w}, {b}, {c}' + (' ;p:150' if (pp and T_ < 4) else ''))
        if k == 19:
            pack(0)
    pack(1)
    return it


def chain_loop(P, opt, mode):
    XS = '' if mode == 'fast' else ' sc1'
    tag = 'chain_' + mode
    mk = lambda i: stamps.marks(opt, i)
    RED = MEM + 8
    RDD = T5
    rl = f'''buffer_load_dwordx4 {q4(RED)}, v{V_L16}, {S_WS}, s51 offen sc1 ;nodep
    buffer_load_dwordx4 {q4(RED + 4)}, v{V_L16}, {S_WS}, s51 offen offset:1024 sc1 ;nodep'''
    gl = f'''buffer_load_dwordx4 {q4(MEM)}, v{V_L16}, {S_WS}, s52 offen sc1 ;nodep
    buffer_load_dwordx4 {q4(MEM + 4)}, v{V_L16}, {S_WS}, s52 offen offset:1024 sc1 ;nodep'''

    def chk(b, dst):
        return f'''v_max3_u32 v{V_T2}, v{b}, v{b + 1}, v{b + 2}
        v_max3_u32 v{V_T1}, v{b + 3}, v{b + 4}, v{b + 5}
        v_max3_u32 v{V_T2}, v{V_T2}, v{b + 6}, v{b + 7}
        v_max_u32 v{V_T2}, v{V_T2}, v{V_T1}
        v_cmp_eq_u32 {dst}, {S_SENT}, v{V_T2}'''
    red = f'''{MF} {q4(RDD)}, {q4(V_SEL)}, {q4(RED)}, 0
    {MF} {q4(RDD)}, {q4(V_SEL)}, {q4(RED + 4)}, {q4(RDD)}'''
    fin = '\n'.join([dppadd(RDD + r, RDD + r, RDD + r, ror) for ror in (4, 8) for r in range(4)] +
                    [cvt(RDD, RDD), cvt(RDD + 1, RDD + 2)])
    def pause(c):
        return f's_sleep {c}' if c else ''
    early = opt.get('ef', 0)
    flag = f'buffer_store_dword v{V_T0}, off, {S_WS}, s32 sc1' if early else ''
    wr = f'''ds_write_b128 v{V_MW}, {q4(MEM)}
    ds_write_b128 v{V_MW}, {q4(MEM + 4)} offset:1024'''
    P(f'''
    {tag}_gather:
    {pause(opt.get('b1', 2))}
    {gl}
    {pause(opt.get('b2', 3))}
    {gl}
    {flag}
    s_waitcnt vmcnt({2 + early})
    {chk(MEM, 'vcc')}
    {wr}
    s_cbranch_vccnz {tag}_gretry
    {mk(2)}
    ''')
    P.label(tag + '_step')
    for i in range(4):
        P(stamps.tlc(opt, i, S_S, 39 + i))
    items = step_items(opt, XS, False)
    code, t = schedule(items, verbose=opt.get('verbose') == 1 and mode == 'fast', anneal=opt.get('an', 400000), seed=opt.get('seed', 2))
    k = code.index('s_barrier')
    nds = sum(c.startswith('ds_') for c in code[:k])
    code.insert(k, f's_waitcnt lgkmcnt({nds})')
    code.remove('s_nop 0')
    k = code.index('s_barrier', k + 2)
    code.insert(k, 's_waitcnt vmcnt(%d)' % sum(c.startswith('buffer_') for c in code[:k]))
    if opt.get('stamp') == 5:
        c2 = ['s_memtime s[64:65] ;nodep']
        n = 0
        for j, c in enumerate(code):
            if 'lo' in opt:
                c2.append(c)
                if j >= opt['lo'] and (j - opt['lo']) % opt['st'] == 0 and n < 8:
                    c2.append(f's_memtime s[{82 + 2 * n}:{83 + 2 * n}] ;nodep')
                    if mode == 'fast':
                        print('stamp', n, 'after', j, c)
                    n += 1
            elif c == 's_barrier':
                jj = len(c2)
                while c2[jj - 1].startswith('s_waitcnt'):
                    jj -= 1
                c2.insert(jj, f's_memtime s[{82 + 2 * n}:{83 + 2 * n}] ;nodep')
                c2 += [c, f's_memtime s[{84 + 2 * n}:{85 + 2 * n}] ;nodep']
                n += 2
            else:
                c2.append(c)
        c2 += ['s_memtime s[66:67] ;nodep', 's_waitcnt lgkmcnt(0)', 's_sub_u32 s69, s64, s68', 's_add_u32 s79, s79, s69', 's_mov_b32 s68, s66']
        prev = 's64'
        for j in range(9):
            cur = f's{82 + 2 * j}' if j < 8 else 's66'
            c2 += [f's_sub_u32 s69, {cur}, {prev}', f's_add_u32 s{70 + j}, s{70 + j}, s69']
            prev = cur
        code = c2
    for i in code:
        P(i)
    P(mk(0))
    z = [f'v_mov_b32 v{AQ + i}, 0' for i in range(24)]
    wbr = preload()
    resets = f'''buffer_store_dwordx4 {q4(T4)}, v{V_L16}, {S_WS}, s49 offen{XS}
    buffer_store_dwordx4 {q4(T4)}, v{V_L16}, {S_WS}, s49 offen offset:1024{XS}'''

    P(f'''
    s_xor_b32 s47, s48, 8192
    s_add_u32 s52, s48, s21
    s_add_u32 {S_S}, {S_S}, 1
    s_add_u32 s33, {S_S}, 1
    s_add_u32 s28, s28, 0x80000
    s_add_u32 s27, s28, 0x80000
    s_add_u32 s30, s30, 0x40000
    s_cmp_eq_u32 {S_S}, {NS - 1}
    s_cselect_b32 s29, {NS}, {S_S}
    v_mov_b32 v{T4}, {S_SENT}
    v_mov_b32 v{T4 + 1}, {S_SENT}
    v_mov_b32 v{T4 + 2}, {S_SENT}
    v_mov_b32 v{T4 + 3}, {S_SENT}
    {stamps.trace(opt, 0, S_S, V_T1)}
    {chr(10).join(wbr)}
    {chr(10).join(z[24 - opt.get('za', 0):])}
    {resets if opt.get('ra') else ''}
    {pause(opt.get('a1', 2))}
    {rl}
    {pause(opt.get('a2', 3))}
    {tag}_rpoll:
    {rl}
    s_waitcnt vmcnt(2)
    {red}
    {chk(RED, 's[54:55]')}
    v_cmp_u_f32 vcc, v{RDD}, v{RDD}
    {fin}
    s_cbranch_vccnz {tag}_rretry
    {tag}_rok:
    s_mov_b64 exec, 0x000f000f
    buffer_store_dwordx2 {q2(RDD)}, v{V_MST}, {S_WS}, s48 offen{XS}
    buffer_store_dwordx2 {q2(T4)}, v{V_MST}, {S_WS}, s47 offen{XS}
    s_mov_b64 exec, -1
    {mk(1)}
    v_cmp_ge_u32 vcc, s29, v{V_FL}
    s_xor_b32 s50, s50, 0x80000
    s_xor_b32 s53, s53, 0x80000
    s_xor_b32 s51, s51, 0x80000
    s_xor_b32 s49, s49, 0x80000
    s_xor_b32 s48, s48, 8192
    {chr(10).join(z[:24 - opt.get('za', 0)])}
    s_cbranch_vccz {tag}_gather
    {flag}
    s_branch {tag}_special
    {tag}_gretry:
    {stamps.count(opt, 7)}
    {GUARD}
    {gl}
    s_waitcnt vmcnt({2 + early})
    {chk(MEM, 'vcc')}
    {wr}
    s_cbranch_vccnz {tag}_gretry
    {mk(2)}
    s_branch {tag}_step
    {tag}_rretry:
    {stamps.count(opt, 6)}
    {GUARD}
    s_cmp_lg_u64 s[54:55], 0
    s_cbranch_scc1 {tag}_rpoll
    {red}
    {fin}
    s_branch {tag}_rok
    ; next K/V tile not yet announced, or the last step follows
    {tag}_special:
    {gl}
    buffer_load_dword v{V_FL}, off, {S_WS}, s31 sc1
    s_waitcnt vmcnt(0)
    {GUARD}
    {chk(MEM, 'vcc')}
    s_cbranch_vccnz {tag}_special
    v_cmp_ge_u32 vcc, {S_S}, v{V_FL}
    s_cbranch_vccnz {tag}_special
    {KVL if opt.get('kl') else ''}
    ds_write_b128 v{V_MW}, {q4(MEM)}
    ds_write_b128 v{V_MW}, {q4(MEM + 4)} offset:1024
    {mk(3)}
    s_cmp_eq_u32 {S_S}, {NS - 1}
    s_cbranch_scc0 {tag}_step
    s_waitcnt lgkmcnt(0)
    s_branch chain_last
    ''')
```

```python
from layout import STAMP
NPH = 12


def init(P, opt):
    if not opt.get('stamp'):
        return
    P('s_memtime s[60:61]\ns_memrealtime s[62:63]\ns_waitcnt lgkmcnt(0)')
    for i in range(NPH):
        P(f's_mov_b32 s{70 + i}, 0')
    P('s_mov_b32 s68, s60')


def mark(opt, i, lvl=2):
    if opt.get('stamp', 0) == lvl:
        return ['s_memtime s[64:65]', 's_waitcnt lgkmcnt(0)', 's_sub_u32 s69, s64, s68',
                f's_add_u32 s{70 + i}, s{70 + i}, s69', 's_mov_b32 s68, s64']
    return []


def marks(opt, i, lvl=2):
    return '\n'.join(mark(opt, i, lvl))


def count(opt, i):
    return f's_add_u32 s{70 + i}, s{70 + i}, 1' if opt.get('stamp') in (1, 2) else ''


def tl(opt, i, bank=0):
    if opt.get('stamp') in (1, 2) and opt.get('tlb', 0) == bank:
        return f's_memrealtime s[{86 + 2 * i}:{87 + 2 * i}]\ns_waitcnt lgkmcnt(0)'
    return ''


_n = [0]


def tlc(opt, i, sreg, val):
    if opt.get('tlb') != 3:
        return ''
    _n[0] += 1
    return (f's_cmp_lg_u32 {sreg}, {val}\ns_cbranch_scc1 tlc_{_n[0]}\ns_memrealtime s[{86 + 2 * i}:{87 + 2 * i}]\n'
            f's_waitcnt lgkmcnt(0)\ntlc_{_n[0]}:')


def dump(P, opt):
    if not opt.get('stamp'):
        return
    P(f'''
    s_memtime s[64:65]
    s_memrealtime s[66:67]
    s_waitcnt lgkmcnt(0)
    s_sub_u32 s64, s64, s60
    s_lshl_b32 s22, s14, 5
    s_add_u32 s22, s22, s13
    s_lshl_b32 s22, s22, 2
    s_add_u32 s22, s22, s12
    s_lshl_b32 s22, s22, 7
    s_add_u32 s22, s22, {STAMP}
    v_mov_b32 v16, s64
    v_mov_b32 v17, s66
    v_mov_b32 v18, s98
    v_mov_b32 v19, s62
    buffer_store_dwordx4 v[16:19], off, s[8:11], s22
    ''')
    for j in range(NPH // 4):
        for i in range(4):
            P(f'v_mov_b32 v{20 + 4 * j + i}, s{70 + 4 * j + i}')
        P(f'buffer_store_dwordx4 v[{20 + 4 * j}:{23 + 4 * j}], off, s[8:11], s22 offset:{16 + 16 * j}')
    if opt.get('dbgout'):
        l = P.uid('dbg')
        P(f'''
        s_mov_b64 exec, 1
        s_not_b32 s23, s98
        v_mov_b32 v50, s23
        buffer_atomic_umax v50, off, s[4:7], 0 offset:32
        v_mov_b32 v50, s66
        buffer_atomic_umax v50, off, s[4:7], 0 offset:60
        s_cmp_gt_u32 s14, 2
        s_cbranch_scc1 {l}
        s_lshl_b32 s23, s14, 3
        v_mov_b32 v51, s62
        buffer_atomic_umax v51, off, s[4:7], s23 offset:36
        v_mov_b32 v52, s66
        s_cmp_eq_u32 s14, 2
        s_cbranch_scc1 {l}
        buffer_atomic_umax v52, off, s[4:7], s23 offset:40
        s_cmp_lg_u32 s14, 0
        s_cbranch_scc1 {l}
        v_mov_b32 v53, s96
        buffer_atomic_umax v53, off, s[4:7], 0 offset:56
        {l}:
        s_mov_b64 exec, -1
        ''')
    for i in range(6):
        P(f'v_mov_b32 v{40 + i}, s{86 + 2 * i}')
    P('buffer_store_dwordx4 v[40:43], off, s[8:11], s22 offset:64\nbuffer_store_dwordx2 v[44:45], off, s[8:11], s22 offset:80')


def profile(code, opt, name):
    if opt.get('stamp') != 6 or opt.get('prof') != name:
        return code
    st = opt.get('st', max(1, len(code) // 9))
    lo = opt.get('lo', st)
    c2 = ['s_memtime s[64:65] ;nodep']
    n = 0
    for j, c in enumerate(code):
        c2.append(c)
        if j >= lo and (j - lo) % st == 0 and n < 8 and not c.startswith('s_add_u32 m0') and not c.startswith('s_mov_b32 m0'):
            c2.append(f's_memtime s[{82 + 2 * n}:{83 + 2 * n}] ;nodep')
            print('stamp', n, 'after', j, c)
            n += 1
    c2 += ['s_memtime s[66:67] ;nodep', 's_waitcnt lgkmcnt(0)', 's_sub_u32 s69, s64, s68', 's_add_u32 s79, s79, s69', 's_mov_b32 s68, s66']
    prev = 's64'
    for j in range(n + 1):
        cur = f's{82 + 2 * j}' if j < n else 's66'
        c2 += [f's_sub_u32 s69, {cur}, {prev}', f's_add_u32 s{70 + j}, s{70 + j}, s69']
        prev = cur
    return c2


def trace(opt, plane, sreg, vt):
    if opt.get('tlb') != 4:
        return ''
    return f'''s_memrealtime s[86:87]
    s_lshl_b32 s88, s14, 5
    s_add_u32 s88, s88, s13
    s_lshl_b32 s88, s88, 2
    s_add_u32 s88, s88, s12
    s_lshl_b32 s88, s88, 7
    s_add_u32 s88, s88, {sreg}
    s_lshl_b32 s88, s88, 2
    s_add_u32 s88, s88, {STAMP + (1 << 20) + plane * (1 << 19)}
    s_waitcnt lgkmcnt(0)
    v_mov_b32 v{vt}, s86
    buffer_store_dword v{vt}, off, s[8:11], s88'''
```

```python
from layout import *
import stamps
from stamps import marks
from chain import (S_WS, S_W, S_H, S_G, S_PURE, S_LAYER, S_S, S_C, GUARD, MF, MF16, DPPF, q4, q2)
from asmtool import schedule
from chain import pk, xl
from roles import a4, cvt, xlane, load_weights, h_dma_addr, h_dma, h_wave_part, h_read, unpack8, row_block


def weave(mf_groups, side, per=2, start=0):
    out = []
    side = list(side)
    for i, g in enumerate(mf_groups):
        out += g
        if i >= start:
            out += side[:per]
            side = side[per:]
    return out + side


def gen_at(P, opt):
    L_Q = 32768
    L_OB = L_Q + 8192
    L_ROW = L_OB + 8192
    L_KV = 65536
    L_KM = L_KV + 16384
    (V_L16, V_HD, V_F4, V_FA, V_T0, V_T1, V_OR, V_QW, V_QR, V_OW, V_KMA, V_PST, V_RLD, V_RW, V_RR) = range(1, 16)
    SEL, BIAS, Q, SX, KX, VX, XR, YR = 16, 20, 28, 44, 52, 84, 100, 104
    FLH, FLK, FLM, FLA = 108, 109, 110, 111
    MX, NM, SUM = 112, 113, 114
    V_R0, V_R1, V_VMA, V_TCH = 252, 253, 254, 255
    KM, VM = 116, 132
    SM, PX, PM, O, OP = 140, 68, 148, 52, 168
    M2, AL = 150, 151
    OB, AO, PK = 140, 172, 236
    RED, RD = 140, 172
    HB, AQ, QP = 176, 208, 224
    X, Y, N_, PKX, PH, TT = 176, 184, 192, 200, 204, 208
    P.label('at_role')
    P(f'''
    v_and_b32 v0, 63, v0
    s_and_b32 s22, {S_G}, 3
    s_lshl_b32 s24, s22, 14
    s_lshl_b32 s23, {S_W}, 12
    s_add_u32 s24, s24, s23
    s_lshl_b32 s23, {S_H}, 7
    s_add_u32 s24, s24, s23
    s_add_u32 s24, s24, {F_AP}
    s_lshl_b32 s55, s22, 12
    s_add_u32 s55, s55, s23
    s_add_u32 s55, s55, {F_R}
    s_cmp_eq_u32 {S_LAYER}, 0
    s_cselect_b32 s55, s55, s24
    ''')
    init = f'''v_mov_b32 v1, 0
    buffer_store_dword v1, off, {S_WS}, s24 sc1
    buffer_store_dword v1, off, {S_WS}, s55 sc1'''
    pre = opt['pre']
    P(f'''
    s_and_b32 s50, {S_G}, 1
    s_lshl_b32 s50, s50, 5
    s_add_u32 s50, s50, {S_H}
    s_lshl_b32 s50, s50, 4
    ''')
    pre.rows_load(P, 254)
    load_weights(P, 'qo', 16, (lambda n: opt['ready'](P, n + 4, init), lambda n: opt['count_ready'](P, n, 1, 4)))
    P(stamps.tl(opt, 5))
    P(f'''
    s_cmp_lg_u32 {S_LAYER}, 0
    s_cbranch_scc1 at_setup
    v_lshrrev_b32 v11, 1, v254
    v_lshlrev_b32 v11, 7, v11
    ''')

    def wait():
        P(stamps.tl(opt, 0))
        opt['wait_ready'](P, 16, True)
        pre.wait_lines(P, 1, F_P, 11, 12)
        P(stamps.tl(opt, 1))
    pre.rows(P, opt, wait, 254)
    pre.announce(P, 1)
    P(f'''
    s_and_b32 s22, {S_G}, 1
    s_lshl_b32 s22, s22, 15
    s_lshl_b32 s23, {S_H}, 10
    s_add_u32 s22, s22, s23
    s_lshl_b32 s23, {S_W}, 19
    s_add_u32 s22, s22, s23
    v_mov_b32 v16, s19
    v_mov_b32 v17, s19
    v_mov_b32 v18, s19
    v_mov_b32 v19, s19
    ''')
    for k in range(8):
        for base in (H2, X3):
            P(f's_add_u32 s23, s22, {base + 65536 * k}\nbuffer_store_dwordx4 v[16:19], v10, {S_WS}, s23 offen sc1')
    pre.announce(P, 2)
    P(stamps.tl(opt, 2))
    P('at_setup:')
    opt['wait_ready'](P, 16, False, 8)
    P(f'''
    v_lshlrev_b32 v{V_L16}, 4, v0
    v_and_b32 v{V_FA}, 31, v0
    v_lshlrev_b32 v{V_FA}, 7, v{V_FA}
    s_and_b32 {S_S}, {S_G}, 1
    s_and_b32 s33, {S_W}, 1
    s_lshr_b32 s34, {S_W}, 1
    ''')
    h_dma_addr(P, V_HD, V_R0, V_R1, V_T0)
    P(f'''
    s_lshl_b32 s22, {S_W}, 11
    s_add_u32 s22, s22, {L_Q}
    v_add_u32 v{V_QW}, s22, v{V_L16}
    s_lshl_b32 s22, s33, 10
    s_add_u32 s23, s22, {L_Q}
    v_add_u32 v{V_QR}, s23, v{V_L16}
    s_lshl_b32 s23, s34, 12
    s_add_u32 s22, s22, s23
    s_add_u32 s22, s22, {L_OB}
    v_add_u32 v{V_OW}, s22, v{V_L16}
    v_add_u32 v{V_OR}, {L_OB}, v{V_L16}
    v_add_u32 v{V_KMA}, {L_KV}, v{V_L16}
    s_lshl_b32 s23, s34, 13
    v_add_u32 v{V_F4}, s23, v{V_KMA}
    s_lshl_b32 s23, s34, 12
    v_add_u32 v{V_VMA}, s23, v{V_KMA}
    v_and_b32 v{V_T1}, 15, v0
    v_lshlrev_b32 v{V_PST}, 4, v{V_T1}
    v_lshrrev_b32 v{V_T0}, 4, v0
    v_lshl_add_u32 v{V_PST}, v{V_T0}, 18, v{V_PST}
    s_lshl_b32 s22, {S_H}, 10
    s_lshl_b32 s23, {S_W}, 8
    s_add_u32 s22, s22, s23
    v_add_u32 v{V_PST}, s22, v{V_PST}
    v_and_b32 v{V_T1}, 15, v0
    v_lshlrev_b32 v{V_RLD}, 4, v{V_T1}
    v_lshl_add_u32 v{V_RLD}, v{V_T0}, 10, v{V_RLD}
    s_lshl_b32 s22, {S_H}, 15
    s_add_u32 s22, s22, s23
    v_add_u32 v{V_RLD}, s22, v{V_RLD}
    v_bfe_u32 v{V_RW}, v0, 2, 2
    v_lshlrev_b32 v{V_RW}, 5, v{V_RW}
    v_lshl_add_u32 v{V_RW}, v{V_T0}, 8, v{V_RW}
    v_and_b32 v{V_RR}, 3, v0
    v_lshl_add_u32 v{V_RW}, v{V_RR}, 2, v{V_RW}
    s_lshl_b32 s22, {S_W}, 9
    s_add_u32 s22, s22, {L_ROW}
    v_add_u32 v{V_RW}, s22, v{V_RW}
    v_lshlrev_b32 v{V_RR}, 5, v0
    v_add_u32 v{V_RR}, {L_ROW}, v{V_RR}
    ''')
    for i in range(4):
        P(f'''
        v_mov_b32 v{SEL + i}, 0
        v_mov_b32 v{MX}, 0x3f80
        v_cmp_eq_u32 vcc, {2 * i}, v{V_T1}
        v_cndmask_b32 v{SEL + i}, v{SEL + i}, v{MX}, vcc
        v_mov_b32 v{MX}, 0x3f800000
        v_cmp_eq_u32 vcc, {2 * i + 1}, v{V_T1}
        v_cndmask_b32 v{SEL + i}, v{SEL + i}, v{MX}, vcc
        ''')
    P(f'''
    v_bfe_u32 v{V_T1}, v0, 2, 2
    v_lshlrev_b32 v{V_T1}, 3, v{V_T1}
    v_and_b32 v{MX}, 3, v0
    v_add_u32 v{V_T1}, v{V_T1}, v{MX}
    s_lshl_b32 s22, s33, 2
    v_add_u32 v{V_T1}, s22, v{V_T1}
    v_lshlrev_b32 v{V_T0}, 3, v{V_T0}
    v_sub_u32 v{V_T1}, v{V_T1}, v{V_T0}
    v_mov_b32 v{MX}, 0xf149f2ca
    ''')
    for i in range(8):
        P(f'v_cmp_gt_i32 vcc, {i}, v{V_T1}\nv_cndmask_b32 v{BIAS + i}, 0, v{MX}, vcc')
    for i in range(4):
        P(f'v_mov_b32 v{XR + i}, 0\nv_mov_b32 v{YR + i}, 0')
    P(f'''
    s_lshl_b32 s20, {S_LAYER}, 21
    s_add_u32 s20, s20, {H1}
    {h_wave_part('s20', 's21')}
    s_lshl_b32 s23, {S_S}, 15
    s_add_u32 s20, s20, s23
    s_lshl_b32 s39, {S_H}, 10
    s_add_u32 s39, s39, s23
    s_sub_u32 s39, s39, 65536
    s_lshl_b32 s24, {S_LAYER}, 13
    s_add_u32 s24, s24, {F_H}
    s_lshl_b32 s23, {S_S}, 12
    s_add_u32 s24, s24, s23
    s_mul_i32 s22, {S_LAYER}, {KM_L}
    s_mul_i32 s23, {S_H}, {KM_H}
    s_add_u32 s22, s22, s23
    s_mul_i32 s23, {S_S}, {KM_S}
    s_add_u32 s22, s22, s23
    s_lshl_b32 s23, {S_W}, 11
    s_add_u32 s22, s22, s23
    s_add_u32 s33, s23, {L_KM}
    s_lshl_b32 s29, s23, 1
    s_add_u32 s29, s29, {L_KV}
    s_add_u32 s30, s22, {KMVM}
    s_lshl_b32 s28, s22, 1
    s_add_u32 s28, s28, {KVIMG}
    s_lshl_b32 s22, {S_LAYER}, 14
    s_lshl_b32 s23, {S_H}, 9
    s_add_u32 s22, s22, s23
    s_lshl_b32 s23, {S_W}, 7
    s_add_u32 s22, s22, s23
    s_add_u32 s31, s22, {F_KV}
    s_add_u32 s32, s22, {F_KM}
    s_and_b32 s22, {S_G}, 3
    s_lshl_b32 s35, s22, 21
    s_add_u32 s35, s35, {APART}
    s_lshl_b32 s36, s22, 14
    s_lshl_b32 s23, {S_W}, 12
    s_add_u32 s36, s36, s23
    s_add_u32 s36, s36, {F_AP}
    s_lshl_b32 s23, {S_H}, 7
    s_add_u32 s37, s36, s23
    s_mov_b32 s38, 0
    s_mov_b32 s49, {S_S}
    s_mov_b32 s48, 0
    s_mov_b32 s50, 0
    s_mov_b32 s51, 0
    s_mov_b32 s52, 0
    s_mov_b32 s53, 0
    v_mov_b32 v{FLM}, 0
    ''')
    stamps.init(P, opt)

    an = opt.get('an2', 200000)
    P(f's_bfe_u32 s34, {S_H}, 0x10002\ns_xor_b32 s34, s34, {opt.get("hf", 1)}\ns_and_b32 s34, s34, {opt.get("hf", 1)}')
    kvl = [['s_mov_b32 m0, s29', f'buffer_load_dwordx4 v{V_L16}, {S_WS}, s28 offen offset:{1024 * i} sc1 lds'] for i in range(4)]
    kvr = [f'ds_read_b128 {q4(KX + 4 * i)}, v{V_KMA} offset:{4096 * (i >> 1) + 1024 * (i & 1)}' for i in range(8)]
    kvr += [f'ds_read_b128 {q4(VX + 4 * i)}, v{V_F4} offset:{4096 * (i >> 1) + 2048 + 1024 * (i & 1)} ;before:row' for i in range(4)]

    KT = KM
    kml = [f'buffer_load_dwordx4 {q4(KT + 4 * i)}, v{V_L16}, {S_WS}, s30 offen offset:{1024 * i} sc1' for i in range(2)]
    kmw = '\n'.join(f'ds_write_b128 v{V_TCH}, {q4(KT + 4 * i)} offset:{1024 * i}' for i in range(2))
    P(f'v_add_u32 v{V_TCH}, s33, v{V_L16}')
    kmr = [f'ds_read_b128 {q4(KM + 4 * kk)}, v{V_KMA} offset:{L_KM - L_KV + 2048 * kk}' for kk in range(4)]
    kmr += [f'ds_read_b128 {q4(VM + 4 * i)}, v{V_VMA} offset:{L_KM - L_KV + 2048 * i + 1024}' for i in range(2)]
    both = f'''s_add_u32 s22, s49, 2
    s_min_u32 s22, s22, {NS - 1}
    v_cmp_ge_u32 s[50:51], s22, v{FLH}
    v_cmp_eq_u32 vcc, s19, v{FLM}
    s_or_b64 vcc, vcc, s[50:51]'''
    canary = f'buffer_load_dword v{FLM}, off, {S_WS}, s30 sc1'
    hd = h_dma(V_HD, 's20', 's21')
    hgrp = [hd[2 * i:2 * i + 2] for i in range(8)]

    def emit(items, name):
        code, t = schedule(items, verbose=opt.get('verbose') == name, anneal=an)
        code = stamps.profile(code, opt, name)
        for k, c in enumerate(code):
            if c == 's_waitcnt vmcnt(63)':
                c = 's_waitcnt vmcnt(%d)' % sum(x.startswith('buffer_') for x in code[:k])
            P(c)

    def qproj(lo, hi_):
        it = []
        for kk in range(lo, hi_):
            b = HB + 8 * (kk & 3)
            for tt in range(2):
                it.append(h_read(b + 4 * tt, V_R0, V_R1, kk, tt))
            for te in range(2):
                for tt in range(2):
                    d = AQ + 8 * tt + 4 * te
                    it.append(f'{MF} {q4(d)}, {a4(4 * (16 * te + kk))}, {q4(b + 4 * tt)}, {q4(d) if kk else 0}')
        return it

    def qtail():
        it = []
        for tt in range(2):
            it += [cvt(QP + 4 * tt + i, AQ + 8 * tt + 2 * i) for i in range(4)]
            it.append(f'ds_write_b128 v{V_QW}, {q4(QP + 4 * tt)} offset:{1024 * tt} ;w:q')
        return it

    def sx_items():
        it = [f'ds_read_b128 {q4(Q + 4 * kk)}, v{V_QR} offset:{2048 * kk} ;r:q' for kk in range(4)]
        for kk in range(4):
            for t in range(2):
                c = q4(SX + 4 * t) if kk else q4(BIAS + 4 * t)
                it.append(f'{MF} {q4(SX + 4 * t)}, {q4(KX + 8 * kk + 4 * t)}, {q4(Q + 4 * kk)}, {c}')
        return it

    def sm_items():
        it = []
        it += [f'v_max3_f32 v{MX}, v{SX}, v{SX + 1}, v{SX + 2}', f'v_max3_f32 v{NM}, v{SX + 3}, v{SX + 4}, v{SX + 5}',
               f'v_max3_f32 v{MX}, v{MX}, v{SX + 6}, v{SX + 7}', f'v_max_f32 v{MX}, v{MX}, v{NM}']
        it += xlane('v_max_f32', MX, NM)
        it.append(f'v_mul_f32 v{MX}, {S_C}, v{MX}')
        for x in range(SX, SX + 8, 2):
            it.append(f'v_pk_fma_f32 {q2(x)}, {q2(x)}, s[18:19], {q2(MX)} op_sel_hi:[1,0,0] neg_lo:[0,0,1] neg_hi:[0,0,1]')
        it += [f'v_exp_f32 v{x}, v{x}' for x in range(SX, SX + 8)]
        it += [cvt(PX + i, SX + 2 * i) for i in range(4)]
        it += [f'{MF} {q4(O + 4 * tau)}, {q4(VX + 4 * tau)}, {q4(PX)}, 0' for tau in range(4)]
        it += [pk('add', SX, SX, SX + 2), pk('add', SX + 4, SX + 4, SX + 6), pk('add', SX, SX, SX + 4),
               f'v_add_f32 v{SUM}, v{SX}, v{SX + 1}']
        it += xlane('v_add_f32', SUM, NM)
        return it

    P(f'''
    at_kv0:
    buffer_load_dword v{FLK}, off, {S_WS}, s31 sc1
    s_waitcnt vmcnt(0)
    v_cmp_ge_u32 vcc, s49, v{FLK}
    s_cbranch_vccz at_kv0go
    {GUARD}
    s_sleep 4
    s_branch at_kv0
    at_kv0go:
    ''')
    for i in hd + sum(kvl, []):
        P(i)
    P('s_waitcnt vmcnt(0)\ns_barrier')
    emit(kvr + qproj(0, 16) + qtail() + ['@bar q'] + sx_items() + sm_items(), 10)
    P('s_waitcnt lgkmcnt(0)')

    P(f'''
    at_loop:
    s_cmp_eq_u32 s52, 1
    s_cbranch_scc1 at_kmcheck
    at_kmpoll:
    {canary}
    buffer_load_dword v{FLH}, off, {S_WS}, s31 sc1
    s_waitcnt vmcnt(0)
    {both}
    s_cbranch_vccz at_kmgo
    {GUARD}
    s_sleep {opt.get('as', 2)}
    s_branch at_kmpoll
    at_kmgo:
    {stamps.tlc(opt, 0, 's49', 40)}
    {GUARD}
    {kml[0]}
    {kml[1]}
    s_waitcnt vmcnt(0)
    at_kmcheck:
    v_max3_u32 v{FLM}, v{KM}, v{KM + 1}, v{KM + 2}
    v_max3_u32 v{FLK}, v{KM + 3}, v{KM + 4}, v{KM + 5}
    v_max3_u32 v{FLM}, v{FLM}, v{KM + 6}, v{KM + 7}
    v_max_u32 v{FLM}, v{FLM}, v{FLK}
    v_cmp_eq_u32 vcc, s19, v{FLM}
    {kmw}
    s_cbranch_vccnz at_kmgo
    at_kmdone:
    s_waitcnt lgkmcnt(0)
    s_barrier
    {stamps.trace(opt, 1, 's49', V_T0)}
    {stamps.tlc(opt, 1, 's49', 40)}
    {marks(opt, 0)}
    s_add_u32 s49, s49, 2
    s_cmp_lt_u32 s49, {NS}
    s_cselect_b32 s22, 0x10000, 0
    s_cselect_b32 s23, {4 * KM_S}, 0
    s_add_u32 s20, s20, s22
    s_add_u32 s28, s28, s23
    s_add_u32 s39, s39, 65536
    s_add_u32 s30, s30, {2 * KM_S}
    s_cmp_lt_u32 s49, {NS}
    s_cselect_b32 s30, s30, 0x7fff0000
    s_mov_b32 s52, 0
    s_lshl_b32 s26, {S_LAYER}, 21
    s_add_u32 s26, s26, s39
    s_add_u32 s26, s26, {X1}
    s_add_u32 s27, s39, {YTOT}
    s_cmp_eq_u32 {S_W}, 0
    s_cselect_b32 s26, s26, 0x7fff0000
    s_cbranch_scc0 at_noy
    s_cmp_eq_u32 {S_LAYER}, 0
    at_noy:
    s_cselect_b32 s27, s27, 0x7fff0000
    s_cmp_eq_u32 {S_PURE}, 0
    s_cbranch_scc1 at_b_slow
    ''')

    def b_items(XS):
        it = []
        A = it.append
        it += kmr
        for g in kvl:
            A([g[0], g[1] + ' ;dl:900'])
        for g in hgrp:
            A([g[0], g[1] + ' ;dl:900'])
        A(f'buffer_load_dwordx4 {q4(XR)}, v{V_L16}, {S_WS}, s26 offen sc1 ;dl:900')
        A(f'buffer_load_dwordx4 {q4(YR)}, v{V_L16}, {S_WS}, s27 offen sc1 ;dl:900')
        for kk in range(4):
            A(f'{MF} {q4(SM)}, {q4(KM + 4 * kk)}, {q4(Q + 4 * kk)}, {q4(SM) if kk else 0}')
        it += [f'v_max3_f32 v{M2}, v{SM}, v{SM + 1}, v{SM + 2}', f'v_max_f32 v{M2}, v{M2}, v{SM + 3}']
        it += xl('v_max_f32', 16, M2, NM)
        it += [f'v_mul_f32 v{M2}, {S_C}, v{M2}', f'v_max_f32 v{M2}, v{M2}, v{MX}', f'v_sub_f32 v{MX}, v{MX}, v{M2}']
        for x in (SM, SM + 2):
            A(f'v_pk_fma_f32 {q2(x)}, {q2(x)}, s[18:19], {q2(M2)} op_sel_hi:[1,0,0] neg_lo:[0,0,1] neg_hi:[0,0,1]')
        A(f'v_exp_f32 v{MX}, v{MX}')
        it += [f'v_exp_f32 v{SM + i}, v{SM + i}' for i in range(4)]
        it += [pk('add', M2, SM, SM + 2), f'v_add_f32 v{M2}, v{M2}, v{AL}']
        it += xl('v_add_f32', 16, M2, NM)
        it += [f'v_fma_f32 v{SUM}, v{SUM}, v{MX}, v{M2}', f'v_rcp_f32 v{SUM}, v{SUM}', f'v_mul_f32 v{MX}, v{MX}, v{SUM}']
        for x in (SM, SM + 2):
            A(f'v_pk_mul_f32 {q2(x)}, {q2(x)}, {q2(SUM)} op_sel_hi:[1,0]')
        it += [cvt(PM + i, SM + 2 * i) for i in range(2)]
        for i in range(0, 16, 2):
            A(f'v_pk_mul_f32 {q2(O + i)}, {q2(O + i)}, {q2(MX)} op_sel_hi:[1,0]')
        for tau in range(4):
            A(f'{MF16} {q4(O + 4 * tau)}, {q2(VM + 2 * tau)}, {q2(PM)}, {q4(O + 4 * tau)}')
        for hf in range(2):
            it += [cvt(OP + 4 * hf + i, O + 8 * hf + 2 * i) for i in range(4)]
            A(f'ds_write_b128 v{V_OW}, {q4(OP + 4 * hf)} offset:{2048 * hf} ;w:o')
        A('@bar o')
        for i in (0, 2, 4, 6, 1, 3, 5, 7):
            A(f'ds_read_b128 {q4(OB + 4 * i)}, v{V_OR} offset:{1024 * i} ;r:o')
        for qt in range(2):
            for kk in range(4):
                for T_ in range(8):
                    d = AO + 32 * qt + 4 * T_
                    A(f'{MF} {q4(d)}, {q4(OB + 8 * kk + 4 * qt)}, {a4(128 + 4 * (4 * T_ + kk))}, {q4(d) if kk else 0}')
            for r in range(4):
                p_ = PK + 4 * r
                b_ = AO + 32 * qt + r
                it += [f'v_cvt_pk_bf16_f32 v{p_ + i}, v{b_ + 8 * i}, v{b_ + 8 * i + 4}' for i in range(4)]
                A([f's_add_u32 s23, s35, {(4 * qt + r) * 32768}',
                   f'buffer_store_dwordx4 {q4(p_)}, v{V_PST}, {S_WS}, s23 offen{XS}' + ('' if qt else f' ;dl:{opt.get("apd", 700) - 70 * r}')])
        return it

    n1 = opt.get('n1', 12)
    for mode in ('fast', 'slow'):
        XS = '' if mode == 'fast' else ' sc1'
        if mode == 'slow':
            P.label('at_b_slow')
        emit(b_items(XS), 11 if mode == 'fast' else -1)
        P(f'''
        {marks(opt, 1)}
        s_add_u32 s38, s38, 1
        s_lshl_b32 s22, s38, 1
        v_mov_b32 v{V_T1}, s22
        v_subrev_u32 v{V_T0}, 1, v{V_T1}
        s_sub_u32 s27, s22, s34
        s_waitcnt vmcnt(8)
        s_barrier
        {marks(opt, 2)}
        ''')
        it = [['s_waitcnt vmcnt(0)', f'buffer_store_dword v{V_T1}, off, {S_WS}, s37{XS}'],
              f'buffer_load_dword v{FLA}, v{V_FA}, {S_WS}, s36 offen sc1']
        it[0][0] = 's_waitcnt vmcnt(1)'
        it[1:1] = [canary + ' ;by:640', f'buffer_load_dword v{FLH}, off, {S_WS}, s31 sc1 ;by:660']
        it.insert(0, ['s_waitcnt vmcnt(4)', f'buffer_store_dword v{V_T0}, off, {S_WS}, s37{XS}'])
        emit(it + kvr + qproj(0, 16) + qtail() + ['@bar q'] + sx_items() + (sm_items() if opt.get('sm12') else []),
             12 if mode == 'fast' else -1)
        if mode == 'fast':
            P('s_branch at_r')
    P(f'''
    at_r:
    {stamps.tlc(opt, 2, 's49', 42)}
    {marks(opt, 3)}
    v_cmp_gt_u32 vcc, s27, v{FLA}
    s_cbranch_vccz at_apgo
    at_appoll:
    {GUARD}
    buffer_load_dword v{FLA}, v{V_FA}, {S_WS}, s36 offen sc1
    s_waitcnt vmcnt(0)
    v_cmp_gt_u32 vcc, s27, v{FLA}
    s_cbranch_vccnz at_appoll
    at_apgo:
    {stamps.tlc(opt, 3, 's49', 42)}
    {marks(opt, 4)}
    v_max3_u32 v{FLK}, v{XR}, v{XR + 1}, v{XR + 2}
    v_max_u32 v{FLK}, v{FLK}, v{XR + 3}
    v_cmp_eq_u32 s[40:41], s19, v{FLK}
    {both}
    s_cselect_b32 s52, 0, 1
    s_cselect_b32 s24, 0x7fff0000, s30
    s_cmp_lg_u64 s[40:41], 0
    s_cbranch_scc1 at_xretry
    ''')
    it = []
    for i in range(8):
        it.append([f's_add_u32 s23, s35, {4096 * i}',
                   f'buffer_load_dwordx4 {q4(RED + 4 * i)}, v{V_RLD}, {S_WS}, s23 offen sc1'])
    it += [x.replace('s30', 's24') for x in kml]
    it.append(canary + ' ;dl:450')
    it.append(f'buffer_load_dword v{FLH}, off, {S_WS}, s31 sc1 ;dl:450')
    it += [] if opt.get('sm12') else sm_items()
    for i in range(8):
        it.append(f'{MF} {q4(RD)}, {q4(SEL)}, {q4(RED + 4 * i)}, {q4(RD) if i else 0}')
    it.append(['s_mov_b32 exec_hi, 0', f'ds_write2_b32 v{V_RW}, v{RD}, v{RD + 1} offset0:0 offset1:4 ;w:row',
               f'ds_write2_b32 v{V_RW}, v{RD + 2}, v{RD + 3} offset0:32 offset1:36', 's_mov_b64 exec, -1'])
    it.append('s_xor_b32 s35, s35, 0x100000')
    it.append('@bar row')
    it.append(f'ds_read_b128 {q4(N_)}, v{V_RR} ;r:row')
    it.append(f'ds_read_b128 {q4(N_ + 4)}, v{V_RR} offset:16 ;r:row')
    it += unpack8(X, XR) + [pk('add', X + i, X + i, N_ + i) for i in range(0, 8, 2)]
    it += [cvt(PKX + i, X + 2 * i) for i in range(4)]
    emit(it, 13)
    P('s_waitcnt lgkmcnt(0)')
    P(f'''
    {marks(opt, 5)}
    s_cmp_eq_u32 s52, 1
    s_cbranch_scc1 at_nokm
    {both}
    s_cbranch_scc1 at_nokm
    {kml[0]}
    {kml[1]}
    s_mov_b32 s52, 1
    at_nokm:
    s_cmp_lg_u32 {S_W}, 0
    s_cbranch_scc1 at_rowdone
    s_cmp_eq_u32 {S_LAYER}, 0
    s_cbranch_scc1 at_row1
    buffer_store_dwordx4 {q4(PKX)}, v{V_L16}, s[56:59], s39 offen
    s_waitcnt vmcnt(1)
    s_branch at_next
    at_row1:
    ''')
    emit(unpack8(X, PKX) + unpack8(Y, YR) + row_block(X, Y, N_, PKX, PH, TT), 14)
    P(f'''
    s_add_u32 s22, s39, {X3}
    s_add_u32 s23, s39, {H2}
    buffer_store_dwordx4 {q4(PH)}, v{V_L16}, {S_WS}, s23 offen sc1
    buffer_store_dwordx4 {q4(PKX)}, v{V_L16}, {S_WS}, s22 offen sc1
    s_waitcnt vmcnt(2)
    s_branch at_next
    at_rowdone:
    s_waitcnt vmcnt(0)
    at_next:
    {stamps.trace(opt, 0, 's49', V_T0)}
    {stamps.tlc(opt, 4, 's49', 42)}
    {marks(opt, 6)}
    s_cmp_lt_u32 s49, {NS}
    s_cbranch_scc1 at_loop
    s_branch at_done
    at_xretry:
    {GUARD}
    buffer_load_dwordx4 {q4(XR)}, v{V_L16}, {S_WS}, s26 offen sc1
    s_waitcnt vmcnt(0)
    s_branch at_apgo
    at_done:
    ''')
    stamps.dump(P, opt)
    P('s_waitcnt vmcnt(0)\ns_endpgm')
```

```python
from layout import *
import stamps
from asmtool import schedule
import loader

SENT = 0xFF81FF81

S_WS = 's[8:11]'
S_W = 's12'
S_H = 's13'
S_G = 's14'
S_PURE = 's15'
S_LAYER = 's16'
S_S = 's17'
S_C = 's18'
S_SENT = 's19'

NLDSQ = 34
L_MEM = 0
L_O = 8192
L_SC = 16384
L_WT = 24576
DPPF = 'row_mask:0xf bank_mask:0xf'
MF = 'v_mfma_f32_16x16x32_bf16'
MF16 = 'v_mfma_f32_16x16x16_bf16'
SMF = 'v_smfmac_f32_16x16x64_bf16'
RS = 2048
GUARD = 's_sub_u32 s3, s3, 1\ns_cbranch_scc1 main_timeout'


def q4(b):
    return 'v[%d:%d]' % (b, b + 3)


def q2(b):
    return 'v[%d:%d]' % (b, b + 1)


def q8(b):
    return 'v[%d:%d]' % (b, b + 7)


V_FL = 0
V_L16, V_WL, V_X0, V_X1, V_X2, V_X3, V_WH, V_PST, V_MST, V_T0, V_T1 = range(1, 12)
V_MW = V_X0
V_T2 = 116
V_SEL = 12
MEM = 16
V_IDX, V_PF, V_SELT = 48, 49, 50
AQ, AK, AV, KX, VX = 52, 60, 68, 76, 84
WB = 92
T1, T2, T3, T4, T5 = 116, 120, 124, 128, 132
WV0 = 136


KVL = '\n'.join(f'buffer_load_dwordx4 {q4(KX + 4 * i)}, v{V_L16}, {S_WS}, s28 offen offset:{1024 * i} sc1' for i in range(4))


def streams():
    st = []
    for p in range(2):
        st += [(X, t, p) for X in 'qkv' for t in range(2)]
    for X in 'qkv':
        for p in range(2, 8):
            st += [(X, 0, p), (X, 1, p)]
    ost = [('o', T_, 0) for T_ in range(8)]
    for half in range(2):
        for pp in range(1, 4):
            for T_ in range(4 * half, 4 * half + 4):
                ost.append(('o', T_, pp))
    LX, LP = LDS_CLASS
    groups = [(X, par, u) for X in 'qkv' for par in range(2) if (X, par) != (LX, LP) for u in range(2)]
    groups += [('o', pp, 0) for pp in range(4) if pp not in LDS_WO]
    groups += [(LX, LP, 0), (LX, LP, 1)] + [('o', pp, 0) for pp in LDS_WO]
    home = {}
    octs = [('a', 8 * i) for i in range(32)] + [('v', WV0 + 8 * i) for i in range(8)]
    quads = [('v', WV0 + 64 + 4 * i) for i in range(14)]
    n = 0
    for X, t, p in st:
        if (X, p & 1) == (LX, LP):
            home[(X, t, p)] = ('lds', n, [32768 * u + 1024 * (2 * (p >> 1) + t) for u in range(2)])
            n += 1
        else:
            home[(X, t, p)] = octs.pop(0)
    n = 0
    for _, T_, pp in ost:
        if pp in LDS_WO:
            home[('o', T_, pp)] = ('lds', n, [(1 << 16) + 32768 * LDS_WO.index(pp) + 1024 * T_])
            n += 1
        elif (T_, pp) in LDS_EXTRA:
            home[('o', T_, pp)] = ('lds', n, [(2 << 16) + L_WT + 1024 * LDS_EXTRA.index((T_, pp))])
            n += 1
        else:
            home[('o', T_, pp)] = quads.pop(0)
    assert not octs and not quads
    return st, ost, home, groups


LDS_CLASS = ('q', 1)
LDS_WO = [0, 2]
LDS_EXTRA = [(1, 3), (5, 3)]


def wrd(dst, off):
    return f'ds_read_b128 {q4(dst)}, v{(V_WL, V_WH, V_X0)[off >> 16]} offset:{off & 0xffff}'


def preload():
    st, ost, home, units = streams()
    o = []
    for e in st:
        if home[e][0] == 'lds' and home[e][1] < 3:
            for u in range(2):
                o.append(wrd(WB + 8 * home[e][1] + 4 * u, home[e][2][u]))
    return o


def gen_chain(P, opt):
    stream, ostream, home, units = streams()
    P.label('chain_role')
    P('v_and_b32 v0, 63, v0')
    LR = AQ
    loader.setup(P, LR, True)
    P0 = P
    setup_code = []
    P = setup_code.append
    P(f'''
    v_lshlrev_b32 v{V_L16}, 4, v0
    v_add_u32 v{V_WL}, s42, v{V_L16}
    v_add_u32 v{V_WH}, 65536, v{V_WL}
    s_lshl_b32 s21, {S_W}, 11
    v_add_u32 v{V_MW}, s21, v{V_L16}
    v_xor_b32 v{V_X1}, 2048, v{V_X0}
    v_xor_b32 v{V_X2}, 4096, v{V_X0}
    v_xor_b32 v{V_X3}, 6144, v{V_X0}
    v_bfe_u32 v{V_T1}, v0, 3, 1
    v_mul_u32_u24 v{V_IDX}, 0xaaaa, v{V_T1}
    v_add_u32 v{V_IDX}, 0x4444, v{V_IDX}
    v_and_b32 v{V_PF}, {15 if opt.get('pmode', 0) else 31}, v0
    v_lshlrev_b32 v{V_PF}, 7, v{V_PF}
    v_add_u32 v{V_PF}, {2 * KM_S}, v{V_PF}
    v_lshrrev_b32 v{V_T0}, 2, v0
    s_lshl_b32 s22, {S_W}, 5
    v_add_u32 v{V_T0}, s22, v{V_T0}
    v_lshlrev_b32 v{V_T0}, 11, v{V_T0}
    v_and_b32 v{V_T1}, 3, v0
    v_lshlrev_b32 v{V_T1}, 4, v{V_T1}
    s_lshl_b32 s22, {S_H}, 6
    v_add3_u32 v{V_PST}, v{V_T0}, v{V_T1}, s22
    v_lshrrev_b32 v{V_T0}, 4, v0
    v_lshlrev_b32 v{V_T0}, 3, v{V_T0}
    s_lshl_b32 s22, {S_H}, 2
    s_add_u32 s24, s22, {S_W}
    s_lshl_b32 s22, s24, 6
    v_add3_u32 v{V_MST}, v{V_T0}, v{V_T1}, s22
    v_and_b32 v{V_T0}, 15, v0
    ''')

    def onehot(dst, n, src):
        for i in range(n):
            P(f'''
            v_mov_b32 v{dst + i}, 0
            v_mov_b32 v{V_T1}, 0x3f80
            v_cmp_eq_u32 vcc, {2 * i}, v{src}
            v_cndmask_b32 v{dst + i}, v{dst + i}, v{V_T1}, vcc
            v_mov_b32 v{V_T1}, 0x3f800000
            v_cmp_eq_u32 vcc, {2 * i + 1}, v{src}
            v_cndmask_b32 v{dst + i}, v{dst + i}, v{V_T1}, vcc
            ''')
    onehot(V_SEL, 4, V_T0)
    P(f'''
    v_and_b32 v{V_T0}, 7, v0
    v_bfe_u32 v{V_T1}, v0, 4, 1
    v_lshlrev_b32 v{V_T1}, 2, v{V_T1}
    v_sub_u32 v{V_T0}, v{V_T0}, v{V_T1}
    ''')
    onehot(V_SELT, 2, V_T0)
    P(f'''
    s_lshl_b32 s50, {S_LAYER}, 20
    s_add_u32 s50, s50, {CPART}
    s_add_u32 s53, s50, {16 * RS}
    s_lshl_b32 s22, s24, 11
    s_add_u32 s51, s50, s22
    s_xor_b32 s49, s51, 0x80000
    s_lshl_b32 s26, {S_LAYER}, 14
    s_add_u32 s26, s26, {CMEM}
    s_add_u32 s48, s26, 8192
    s_add_u32 s52, s48, s21
    s_mul_i32 s22, {S_LAYER}, {KM_L}
    s_mul_i32 s23, {S_H}, {KM_H}
    s_add_u32 s22, s22, s23
    s_add_u32 s22, s22, s21
    s_lshl_b32 s28, s22, 1
    s_add_u32 s28, s28, {KVIMG}
    s_add_u32 s30, s22, {KMVM}
    s_lshl_b32 s22, {S_LAYER}, 14
    s_lshl_b32 s23, s24, 7
    s_add_u32 s22, s22, s23
    s_add_u32 s31, s22, {F_KV}
    s_add_u32 s32, s22, {F_KM}
    s_mov_b32 s34, 0x00ff00ff
    s_mov_b32 s35, 0x00ff00ff
    s_mov_b32 s36, 0xff00ff00
    s_mov_b32 s37, 0xff00ff00
    ''')
    init = f'''
    v_mov_b32 v{T4}, {S_SENT}
    v_mov_b32 v{T4 + 1}, {S_SENT}
    v_mov_b32 v{T4 + 2}, {S_SENT}
    v_mov_b32 v{T4 + 3}, {S_SENT}
    buffer_store_dwordx4 {q4(T4)}, v{V_L16}, {S_WS}, s51 offen sc1
    buffer_store_dwordx4 {q4(T4)}, v{V_L16}, {S_WS}, s51 offen offset:1024 sc1
    s_mov_b64 exec, 0x000f000f
    buffer_store_dwordx2 {q2(T4)}, v{V_MST}, {S_WS}, s48 offen sc1
    s_mov_b64 exec, -1
    '''
    P = P0

    def confirm(newer):
        P(stamps.tl(opt, 0, 1))
        opt['ready'](P, newer, '\n'.join(setup_code) + init)
        P(stamps.tl(opt, 1, 1))

    def count(newer):
        opt['count_ready'](P, newer, V_T0)
        P(stamps.tl(opt, 2, 1))
        if opt.get('warmon'):
            P(f's_cmp_eq_u32 {S_LAYER}, 0\ns_cbranch_scc1 chain_nowarm')
            opt['warm'](P, 0)
            P('chain_nowarm:')
        P(stamps.tl(opt, 3, 1))
    gr = []
    for X, a_, u in units:
        if X == 'o':
            code = f's_xor_b32 s43, s39, {a_ * 32768}\ns_add_u32 s43, s43, s41'
            ds = [[home[('o', 2 * Pp + t, a_)] for t in range(2)] for Pp in range(4)]
        else:
            code = f's_add_u32 s43, s40, {a_ * 64 * 8192 + u * 16 * 8192}'
            ds = [[home[(X, t, 2 * pp + a_)] for t in range(2)] for pp in range(4)]
        ds = [[('lds', d[2][u]) if d[0] == 'lds' else (d[0], d[1] + 4 * u) for d in row] for row in ds]
        gr.append((X, code, ds))
    loader.run(P, gr, LR, True, KX, (V_WL, V_WH, V_X0), (confirm, count))
    P(stamps.tl(opt, 5))
    P(f'''
    v_and_b32 v{V_T0}, 7, v0
    v_lshlrev_b32 v{V_T0}, 10, v{V_T0}
    v_bfe_u32 v{V_T1}, v0, 3, 1
    v_lshl_add_u32 v{V_T0}, v{V_T1}, 6, v{V_T0}
    v_lshrrev_b32 v{V_T1}, 4, v0
    v_lshl_add_u32 v{V_T0}, v{V_T1}, 4, v{V_T0}
    s_lshl_b32 s22, {S_W}, 8
    s_load_dwordx2 s[44:45], s[0:1], 56
    s_mov_b32 s46, 8192
    s_mov_b32 s47, 0x00020000
    s_waitcnt lgkmcnt(0)
    buffer_load_dwordx4 {q4(MEM)}, v{V_T0}, s[44:47], s22 offen
    buffer_load_dwordx4 {q4(MEM + 4)}, v{V_T0}, s[44:47], s22 offen offset:128
    ''')
    opt['wait_ready'](P, T1)
    lw = P.uid('ch_kv0')
    P(f'''
    {lw}:
    {GUARD}
    buffer_load_dword v{V_FL}, off, {S_WS}, s31 sc1
    s_waitcnt vmcnt(0)
    v_cmp_gt_u32 vcc, 1, v{V_FL}
    s_cbranch_vccnz {lw}
    ''')
    for i in range(24):
        P(f'v_mov_b32 v{AQ + i}, 0')
    P('s_waitcnt lgkmcnt(0)')
    for i in preload():
        P(i)
    P(f'''
    s_mov_b32 {S_S}, 0
    s_mov_b32 s33, 1
    s_add_u32 s27, s28, {2 * KM_S}
    {KVL if opt.get('kl') else ''}
    v_add_u32 v{V_T0}, {2 * RS}, v{V_PST}
    v_mov_b32 v{T4}, {S_SENT}
    v_mov_b32 v{T4 + 1}, {S_SENT}
    v_mov_b32 v{T4 + 2}, {S_SENT}
    v_mov_b32 v{T4 + 3}, {S_SENT}
    ds_write_b128 v{V_MW}, {q4(MEM)}
    ds_write_b128 v{V_MW}, {q4(MEM + 4)} offset:1024
    ''')
    stamps.init(P, opt)
    P(f's_cmp_eq_u32 {S_PURE}, 0\ns_cbranch_scc1 chain_slow_step\ns_branch chain_fast_step')
    chain_loop(P, opt, 'fast')
    chain_loop(P, opt, 'slow')
    P.label('chain_last')
    code, t = schedule(step_items(opt, ' sc1', True))
    for i in code:
        P(i)
    stamps.dump(P, opt)
    P('s_waitcnt vmcnt(0)\ns_endpgm')


def dppadd(d, a, b, ror=8):
    return f'v_add_f32_dpp v{d}, v{a}, v{b} row_ror:{ror} {DPPF}'


def cvt(d, a):
    return f'v_cvt_pk_bf16_f32 v{d}, v{a}, v{a + 1}'


def xl(op, n, x, t):
    return [f'v_mov_b32 v{t}, v{x}', f'v_permlane{n}_swap_b32 v{x}, v{t}', f'{op} v{x}, v{x}, v{t}']


def pk(op, d, a, b):
    return f'v_pk_{op}_f32 {q2(d)}, {q2(a)}, {q2(b)}'


def step_items(opt, XS, last):
    stream, ostream, home, units = streams()
    QOP, KOP, VOP = T1, T2, T3
    XE, ME = AQ, AK
    PX, PM = T4, AK + 2
    MX, NM, SUM, TN = T5, T5 + 1, T5 + 2, T5 + 3
    OX, OOP = KX, T1
    OIN = [AV, AV + 4, T4]
    AO = MEM
    it = []
    A = it.append
    A('s_nop 0 ;w:mem ;t:%d' % opt.get('tb', 70))
    if not last and not opt.get('kl'):
        for i in range(4):
            A(f'buffer_load_dwordx4 {q4(KX + 4 * i)}, v{V_L16}, {S_WS}, s28 offen offset:{1024 * i} sc1')
    A('@bar mem')
    for pr in range(1, 4):
        A(f'ds_read_b128 {q4(MEM + 8 * pr)}, v{V_X0 + pr} ;r:mem')
        A(f'ds_read_b128 {q4(MEM + 8 * pr + 4)}, v{V_X0 + pr} offset:1024 ;r:mem')
    kmode = 1
    pf = [f'v_cmp_lt_u32 vcc, s33, v{V_FL}', f'v_cndmask_b32 v{V_T1}, v{V_L16}, v{V_PF}, vcc']
    if opt.get('pmode', 0) == 0:
        if not last:
            if not opt.get('spec', 1):
                it += pf
            A(f'buffer_load_dword v{V_FL}, v{V_PF if opt.get("spec", 1) else V_T1}, {S_WS}, s28 offen sc1')
        if not last:
            ft = opt.get('ft', 150)
            A(f'buffer_load_dword v{V_FL}, off, {S_WS}, s31 sc1')
    else:
        if not last:
            A(f'buffer_load_dword v{V_FL}, off, {S_WS}, s31 sc1')
        A(f'buffer_store_dword v{V_T0}, off, {S_WS}, s32 sc1 ;by:250')
        if not last:
            it += pf
            A(f'buffer_load_dword v{V_T0}, v{V_T1}, {S_WS}, s28 offen sc1')
    if not last and not opt.get('ra'):
        A(f'buffer_store_dwordx4 {q4(T4)}, v{V_L16}, {S_WS}, s49 offen{XS}')
        A(f'buffer_store_dwordx4 {q4(T4)}, v{V_L16}, {S_WS}, s49 offen offset:1024{XS}')

    for e in stream:
        X, t, p = e
        kind, where = home[e][:2]
        if kind == 'lds':
            slot = WB + 8 * (where % 3)
            if where >= 3:
                A(wrd(slot, home[e][2][0]))
                A(wrd(slot + 4, home[e][2][1]))
            w = q8(slot)
        else:
            w = f'{kind}[{where}:{where + 7}]'
        if last and X == 'q':
            continue
        a = {'q': AQ, 'k': AK, 'v': AV}[X] + 4 * t
        A(f'{SMF} {q4(a)}, {q4(MEM + 4 * p)}, {w}, v{V_IDX}')

    def transpose(acc, op):
        for t in range(2):
            A(cvt(op + 2 * t, acc + 4 * t))
            A(cvt(op + 2 * t + 1, acc + 4 * t + 2))
        for t in range(2):
            A(f'{MF16} {q4(acc + 4 * t)}, {q2(op + 2 * t)}, {q2(V_SELT)}, 0')
        for i in range(4):
            A(cvt(op + i, acc + 2 * i))

    kmst = f'buffer_store_dwordx4 {q4(KOP)}, v{V_L16}, {S_WS}, s30 offen sc1 ;free ;dl:%d' % opt.get('dkk', 1000)
    vmst = f'buffer_store_dwordx4 {q4(VOP)}, v{V_L16}, {S_WS}, s30 offen offset:1024 sc1 ;free ;dl:%d' % opt.get('dk', 800)
    if last:
        transpose(AK, KOP)
        A(kmst)
        for i in range(4):
            A(cvt(VOP + i, AV + 2 * i))
        A(vmst)
        return it
    hi = 'quad_perm:[0,1,2,3] row_mask:0xf bank_mask:0xc'
    transpose(AQ, QOP)
    for t in range(2):
        A(f'{MF} {q4(AQ + 4 * t)}, {q4(KX + 4 * t)}, {q4(QOP)}, 0')
    for r in range(4):
        A(f'v_mov_b32_dpp v{XE + r}, v{AQ + 4 + r} {hi}')
    A(f'ds_write_b128 v{V_X0}, {q4(XE)} offset:{L_SC}')
    transpose(AK, KOP)
    A(f'{MF} {q4(AK)}, {q4(KOP)}, {q4(QOP)}, 0')
    for r in range(2):
        A(f'v_mov_b32_dpp v{ME + r}, v{AK + 2 + r} {hi}')
    A(f'ds_write_b64 v{V_X0}, {q2(ME)} offset:{L_SC + 1024} ;w:sc')
    A('@bar sc')
    RX = [AQ + 4, KX, KX + 4]
    for u in range(3):
        A(f'ds_read_b128 {q4(RX[u])}, v{V_X0 + 1 + u} offset:{L_SC} ;r:sc')
        A(f'ds_read_b64 {q2(ME + 2 + 2 * u)}, v{V_X0 + 1 + u} offset:{L_SC + 1024} ;r:sc')
    for u in range(3):
        for i in (0, 2):
            A(pk('add', XE + i, XE + i, RX[u] + i))
        A(pk('add', ME, ME, ME + 2 + 2 * u))
    A(f'v_max3_f32 v{MX}, v{XE}, v{XE + 1}, v{XE + 2}')
    A(f'v_max3_f32 v{NM}, v{XE + 3}, v{ME}, v{ME + 1}')
    A(f'v_max_f32 v{MX}, v{MX}, v{NM}')
    A(f'v_max_f32_dpp v{MX}, v{MX}, v{MX} row_ror:8 {DPPF}')
    for x in xl('v_max_f32', 16, MX, NM) + xl('v_max_f32', 32, MX, NM):
        A(x)
    A(f'v_mul_f32 v{MX}, {S_C}, v{MX}')
    for x in (XE, XE + 2, ME):
        A(f'v_pk_fma_f32 {q2(x)}, {q2(x)}, s[18:19], {q2(MX)} op_sel_hi:[1,0,0] neg_lo:[0,0,1] neg_hi:[0,0,1]')
    for x in (XE, XE + 1, XE + 2, XE + 3, ME, ME + 1):
        A(f'v_exp_f32 v{x}, v{x}')
    A(cvt(PX, XE))
    A(cvt(PX + 1, XE + 2))
    A(cvt(PM, ME))
    for d in (PX + 2, PX + 3):
        A(f'v_mov_b32_dpp v{d}, v{d - 2} row_ror:8 {DPPF}')
    A(f'v_mov_b32_dpp v{PM + 1}, v{PM} row_ror:8 {DPPF}')
    for i in range(4):
        A(cvt(VOP + i, AV + 2 * i))
    for t in range(2):
        A(f'{MF} {q4(OX + 4 * t)}, {q4(VX + 4 * t)}, {q4(PX)}, 0')
    for t in range(2):
        A(f'{MF16} {q4(OX + 4 * t)}, {q2(VOP + 2 * t)}, {q2(PM)}, {q4(OX + 4 * t)}')
    A(pk('add', XE, XE, XE + 2))
    if opt.get('nopk'):
        for i in range(2):
            A(f'v_fma_f32 v{XE + i}, v{ME + i}, 0.5, v{XE + i}')
    else:
        A(f'v_pk_fma_f32 {q2(XE)}, {q2(ME)}, 0.5, {q2(XE)} op_sel_hi:[1,0,1]')
    A(f'v_add_f32 v{SUM}, v{XE}, v{XE + 1}')
    A(dppadd(SUM, SUM, SUM))
    for x in xl('v_add_f32', 16, SUM, TN) + xl('v_add_f32', 32, SUM, TN):
        A(x)
    A(f'v_rcp_f32 v{SUM}, v{SUM}')
    if opt.get('zc', 1):
        A(f'v_cndmask_b32 v{SUM}, 0, v{SUM}, s[34:35]')
    for i in range(0, 8, 2):
        A(f'v_pk_mul_f32 {q2(OX + i)}, {q2(OX + i)}, {q2(SUM)} op_sel_hi:[1,0]')
    for i in range(4):
        A(cvt(OOP + i, OX + 2 * i))
    A(f'ds_write_b128 v{V_X0}, {q4(OOP)} offset:{L_O} ;w:o')
    if opt.get('kmh'):
        A(['s_mov_b64 exec, s[34:35]', kmst, 's_mov_b64 exec, -1'])
    elif kmode >= 1:
        A(kmst)
    if kmode == 1:
        A(vmst)
    if opt.get('kl'):
        for i in (2, 3, 0, 1):
            A(f'buffer_load_dwordx4 {q4(KX + 4 * i)}, v{V_L16}, {S_WS}, s27 offen offset:{1024 * i} sc1')
    A('@bar o')
    for pp in range(1, 4):
        A(f'ds_read_b128 {q4(OIN[pp - 1])}, v{V_X0 + pp} offset:{L_O} ;r:o')
    PKA, PKB = [AQ, AK], [AQ + 4, AK + 4]

    hs = opt.get('hs', 0)

    def pack(u):
        for i in range(4):
            A(cvt(PKB[u] + i, AO + 16 * u + 8 + 2 * i))
        for i in range(4):
            A(cvt(PKA[u] + i, AO + 16 * u + 2 * i))
        sb = 's53' if u else 's50'
        if hs >= 2 - u:
            g = opt.get('hg', 100)
            for half, r in enumerate((PKA[u], PKB[u])):
                dl = 44 + g * (3 - 2 * u - half)
                A(['s_mov_b64 exec, s[34:35]',
                   f'buffer_store_dwordx4 {q4(r)}, v{V_T0 if half else V_PST}, {S_WS}, {sb} offen{XS}',
                   's_mov_b64 exec, -1'])
            return
        for i in range(4):
            A(f'v_mov_b32_dpp v{PKA[u] + i}, v{PKB[u] + i} row_ror:8 row_mask:0xf bank_mask:0xc')
        A(f'buffer_store_dwordx4 {q4(PKA[u])}, v{V_PST}, {S_WS}, {sb} offen{XS} ;free' + ('' if u else ' ;dl:%d' % opt.get('gap', 240)))
    for k, e in enumerate(ostream):
        _, T_, pp = e
        kind, where = home[e][:2]
        if kind == 'lds':
            slot = WB + 4 * (where % 6)
            A(wrd(slot, home[e][2][0]))
            w = q4(slot)
        else:
            w = q4(where)
        b = q4(OOP) if pp == 0 else q4(OIN[pp - 1])
        c = '0' if pp == 0 else q4(AO + 4 * T_)
        A(f'{MF} {q4(AO + 4 * T_)}, {w}, {b}, {c}' + (' ;p:150' if (pp and T_ < 4) else ''))
        if k == 19:
            pack(0)
    pack(1)
    return it


def chain_loop(P, opt, mode):
    XS = '' if mode == 'fast' else ' sc1'
    tag = 'chain_' + mode
    mk = lambda i: stamps.marks(opt, i)
    RED = MEM + 8
    RDD = T5
    rl = f'''buffer_load_dwordx4 {q4(RED)}, v{V_L16}, {S_WS}, s51 offen sc1 ;nodep
    buffer_load_dwordx4 {q4(RED + 4)}, v{V_L16}, {S_WS}, s51 offen offset:1024 sc1 ;nodep'''
    gl = f'''buffer_load_dwordx4 {q4(MEM)}, v{V_L16}, {S_WS}, s52 offen sc1 ;nodep
    buffer_load_dwordx4 {q4(MEM + 4)}, v{V_L16}, {S_WS}, s52 offen offset:1024 sc1 ;nodep'''

    def chk(b, dst):
        return f'''v_max3_u32 v{V_T2}, v{b}, v{b + 1}, v{b + 2}
        v_max3_u32 v{V_T1}, v{b + 3}, v{b + 4}, v{b + 5}
        v_max3_u32 v{V_T2}, v{V_T2}, v{b + 6}, v{b + 7}
        v_max_u32 v{V_T2}, v{V_T2}, v{V_T1}
        v_cmp_eq_u32 {dst}, {S_SENT}, v{V_T2}'''
    red = f'''{MF} {q4(RDD)}, {q4(V_SEL)}, {q4(RED)}, 0
    {MF} {q4(RDD)}, {q4(V_SEL)}, {q4(RED + 4)}, {q4(RDD)}'''
    fin = '\n'.join([dppadd(RDD + r, RDD + r, RDD + r, ror) for ror in (4, 8) for r in range(4)] +
                    [cvt(RDD, RDD), cvt(RDD + 1, RDD + 2)])
    def pause(c):
        return f's_sleep {c}' if c else ''
    early = opt.get('ef', 0)
    flag = f'buffer_store_dword v{V_T0}, off, {S_WS}, s32 sc1' if early else ''
    wr = f'''ds_write_b128 v{V_MW}, {q4(MEM)}
    ds_write_b128 v{V_MW}, {q4(MEM + 4)} offset:1024'''
    P(f'''
    {tag}_gather:
    {pause(opt.get('b1', 2))}
    {gl}
    {pause(opt.get('b2', 3))}
    {gl}
    {flag}
    s_waitcnt vmcnt({2 + early})
    {chk(MEM, 'vcc')}
    {wr}
    s_cbranch_vccnz {tag}_gretry
    {mk(2)}
    ''')
    P.label(tag + '_step')
    for i in range(4):
        P(stamps.tlc(opt, i, S_S, 39 + i))
    items = step_items(opt, XS, False)
    code, t = schedule(items, verbose=opt.get('verbose') == 1 and mode == 'fast', anneal=opt.get('an', 2000000), seed=opt.get('seed', 1))
    k = code.index('s_barrier')
    nds = sum(c.startswith('ds_') for c in code[:k])
    code.insert(k, f's_waitcnt lgkmcnt({nds})')
    code.remove('s_nop 0')
    k = code.index('s_barrier', k + 2)
    code.insert(k, 's_waitcnt vmcnt(%d)' % sum(c.startswith('buffer_') for c in code[:k]))
    if opt.get('stamp') == 5:
        c2 = ['s_memtime s[64:65] ;nodep']
        n = 0
        for j, c in enumerate(code):
            if 'lo' in opt:
                c2.append(c)
                if j >= opt['lo'] and (j - opt['lo']) % opt['st'] == 0 and n < 8:
                    c2.append(f's_memtime s[{82 + 2 * n}:{83 + 2 * n}] ;nodep')
                    if mode == 'fast':
                        print('stamp', n, 'after', j, c)
                    n += 1
            elif c == 's_barrier':
                jj = len(c2)
                while c2[jj - 1].startswith('s_waitcnt'):
                    jj -= 1
                c2.insert(jj, f's_memtime s[{82 + 2 * n}:{83 + 2 * n}] ;nodep')
                c2 += [c, f's_memtime s[{84 + 2 * n}:{85 + 2 * n}] ;nodep']
                n += 2
            else:
                c2.append(c)
        c2 += ['s_memtime s[66:67] ;nodep', 's_waitcnt lgkmcnt(0)', 's_sub_u32 s69, s64, s68', 's_add_u32 s79, s79, s69', 's_mov_b32 s68, s66']
        prev = 's64'
        for j in range(9):
            cur = f's{82 + 2 * j}' if j < 8 else 's66'
            c2 += [f's_sub_u32 s69, {cur}, {prev}', f's_add_u32 s{70 + j}, s{70 + j}, s69']
            prev = cur
        code = c2
    for i in code:
        P(i)
    P(mk(0))
    z = [f'v_mov_b32 v{AQ + i}, 0' for i in range(24)]
    wbr = preload()
    resets = f'''buffer_store_dwordx4 {q4(T4)}, v{V_L16}, {S_WS}, s49 offen{XS}
    buffer_store_dwordx4 {q4(T4)}, v{V_L16}, {S_WS}, s49 offen offset:1024{XS}'''

    P(f'''
    s_xor_b32 s47, s48, 8192
    s_add_u32 s52, s48, s21
    s_add_u32 {S_S}, {S_S}, 1
    s_add_u32 s33, {S_S}, 1
    s_add_u32 s28, s28, {2 * KM_S}
    s_add_u32 s27, s28, {2 * KM_S}
    s_add_u32 s30, s30, {KM_S}
    s_cmp_eq_u32 {S_S}, {NS - 1}
    s_cselect_b32 s29, {NS}, {S_S}
    v_mov_b32 v{T4}, {S_SENT}
    v_mov_b32 v{T4 + 1}, {S_SENT}
    v_mov_b32 v{T4 + 2}, {S_SENT}
    v_mov_b32 v{T4 + 3}, {S_SENT}
    {stamps.trace(opt, 0, S_S, V_T1)}
    {chr(10).join(wbr)}
    {chr(10).join(z[24 - opt.get('za', 0):])}
    {resets if opt.get('ra') else ''}
    {pause(opt.get('a1', 2))}
    {rl}
    {pause(opt.get('a2', 3))}
    {tag}_rpoll:
    {rl}
    s_waitcnt vmcnt(2)
    {red}
    {chk(RED, 's[54:55]')}
    v_cmp_u_f32 vcc, v{RDD}, v{RDD}
    {fin}
    s_cbranch_vccnz {tag}_rretry
    {tag}_rok:
    s_mov_b64 exec, 0x000f000f
    buffer_store_dwordx2 {q2(RDD)}, v{V_MST}, {S_WS}, s48 offen{XS}
    buffer_store_dwordx2 {q2(T4)}, v{V_MST}, {S_WS}, s47 offen{XS}
    s_mov_b64 exec, -1
    {mk(1)}
    v_cmp_ge_u32 vcc, s29, v{V_FL}
    s_xor_b32 s50, s50, 0x80000
    s_xor_b32 s53, s53, 0x80000
    s_xor_b32 s51, s51, 0x80000
    s_xor_b32 s49, s49, 0x80000
    s_xor_b32 s48, s48, 8192
    {chr(10).join(z[:24 - opt.get('za', 0)])}
    s_cbranch_vccz {tag}_gather
    {flag}
    s_branch {tag}_special
    {tag}_gretry:
    {stamps.count(opt, 7)}
    {GUARD}
    {gl}
    s_waitcnt vmcnt({2 + early})
    {chk(MEM, 'vcc')}
    {wr}
    s_cbranch_vccnz {tag}_gretry
    {mk(2)}
    s_branch {tag}_step
    {tag}_rretry:
    {stamps.count(opt, 6)}
    {GUARD}
    s_cmp_lg_u64 s[54:55], 0
    s_cbranch_scc1 {tag}_rpoll
    {red}
    {fin}
    s_branch {tag}_rok
    ; next K/V tile not yet announced, or the last step follows
    {tag}_special:
    {gl}
    buffer_load_dword v{V_FL}, off, {S_WS}, s31 sc1
    s_waitcnt vmcnt(0)
    {GUARD}
    {chk(MEM, 'vcc')}
    s_cbranch_vccnz {tag}_special
    v_cmp_ge_u32 vcc, {S_S}, v{V_FL}
    s_cbranch_vccnz {tag}_special
    {KVL if opt.get('kl') else ''}
    ds_write_b128 v{V_MW}, {q4(MEM)}
    ds_write_b128 v{V_MW}, {q4(MEM + 4)} offset:1024
    {mk(3)}
    s_cmp_eq_u32 {S_S}, {NS - 1}
    s_cbranch_scc0 {tag}_step
    s_waitcnt lgkmcnt(0)
    s_branch chain_last
    ''')
```

```python
MB = 1 << 20
KB = 1 << 10
S, D, H, E, M, L, NS = 2048, 512, 32, 128, 8, 32, 64

import os
if not os.environ.get('NEWLAY'):
    KM_S, KM_H, KM_L = 256 * KB, 8 * KB, 16 * MB
else:
    KM_S, KM_H = 8 * KB, 66 * 8 * KB
    KM_L = 32 * KM_H
KVIMG = 0
KMVM = 72 * MB
APART = 112 * MB
KVT = 120 * MB
YT = 122 * MB
YTOT = 124 * MB
X1 = 126 * MB
X3 = 128 * MB
H1 = 130 * MB
H2 = 132 * MB
CPART = 134 * MB
CMEM = 136 * MB
FLAGS = 137 * MB
F_KV = FLAGS
F_KM = FLAGS + 32 * KB
F_H = FLAGS + 64 * KB
F_AP = FLAGS + 80 * KB
F_P = FLAGS + 144 * KB
F_R = FLAGS + 160 * KB
F_Q = FLAGS + 168 * KB
FLAGS_BYTES = 172 * KB
WO2 = 140 * MB
STAMP = 138 * MB
WS_BYTES = 256 * MB


def perm16(t, r):
    return 8 * (r >> 2) + 4 * t + (r & 3)
```

```python
from layout import *
import stamps
import loader
from asmtool import schedule
from stamps import marks
from chain import (S_WS, S_W, S_H, S_G, S_PURE, S_LAYER, S_S, S_C, S_SENT, GUARD, MF, MF16, DPPF, q4, q2)


def a4(b):
    return 'a[%d:%d]' % (b, b + 3)


def cvt(d, a):
    return f'v_cvt_pk_bf16_f32 v{d}, v{a}, v{a + 1}'


def xlane(op, x, t):
    return [f'v_mov_b32 v{t}, v{x}', f'v_permlane16_swap_b32 v{x}, v{t}', f'{op} v{x}, v{x}, v{t}',
            f'v_mov_b32 v{t}, v{x}', f'v_permlane32_swap_b32 v{x}, v{t}', f'{op} v{x}, v{x}, v{t}']


def wave_sum(x, t):
    o = [f'v_add_f32_dpp v{x}, v{x}, v{x} row_ror:{r} {DPPF}' for r in (1, 2, 4, 8)]
    return o + xlane('v_add_f32', x, t)


def load_weights(P, mats, r, hooks=None):
    loader.setup(P, r, False)
    gr = []
    for mi, X in enumerate(mats):
        for G in range(4):
            if X == 'o':
                gr.append((X, f's_add_u32 s43, s41, {G * 32768}',
                           [[('a', 128 * mi + 4 * (4 * (2 * Pp + t) + G)) for t in range(2)] for Pp in range(4)]))
            else:
                gr.append((X, f's_add_u32 s43, s40, {G * 128 * 8192}',
                           [[('a', 128 * mi + 4 * (16 * t + 4 * G + pp)) for t in range(2)] for pp in range(4)]))
    loader.run(P, gr, r, False, None, None, hooks)
    P('s_barrier')


def h_dma_addr(P, vd, r0, r1, t0):
    P(f'''
    v_lshrrev_b32 v{t0}, 5, v0
    v_lshlrev_b32 v{vd}, 13, v{t0}
    v_bfe_u32 v{t0}, v0, 3, 2
    v_lshl_add_u32 v{vd}, v{t0}, 10, v{vd}
    v_lshrrev_b32 v{t0}, 3, v0
    v_and_b32 v{t0}, 6, v{t0}
    v_xor_b32 v{t0}, v{t0}, v0
    v_and_b32 v{t0}, 7, v{t0}
    v_lshl_add_u32 v{vd}, v{t0}, 4, v{vd}
    v_and_b32 v{r0}, 15, v0
    v_lshlrev_b32 v{r0}, 7, v{r0}
    v_lshrrev_b32 v{t0}, 4, v0
    v_and_b32 v{r1}, 6, v0
    v_xor_b32 v{t0}, v{t0}, v{r1}
    v_lshl_add_u32 v{r0}, v{t0}, 4, v{r0}
    v_xor_b32 v{r1}, 64, v{r0}
    ''')


def h_dma(vd, s_src, s_lds):
    o = []
    for i in range(8):
        o += [f's_add_u32 m0, {s_lds}, {4096 * i - 128 * i}',
              f'buffer_load_dwordx4 v{vd}, {S_WS}, {s_src} offen offset:{128 * i} sc1 lds']
    return o


def h_wave_part(src, lds):
    return f'''s_lshr_b32 s23, {S_W}, 1
    s_lshl_b32 s23, s23, 12
    s_add_u32 {src}, {src}, s23
    s_and_b32 s23, {S_W}, 1
    s_lshl_b32 s23, s23, 14
    s_add_u32 {src}, {src}, s23
    s_lshl_b32 {lds}, {S_W}, 10'''


def h_read(dst, r0, r1, kk, t):
    return f'ds_read_b128 {q4(dst)}, v{r1 if kk & 1 else r0} offset:{(kk >> 1) * 4096 + t * 2048}'


def gen_kv(P, opt):
    V_L16, V_HD, V_F, V_FA, V_T0, V_R0, V_R1, V_TH = range(240, 248)
    HB = 80
    AK = 32
    AV = 48
    PK = 64
    P.label('kv_role')
    P(f'''
    v_and_b32 v0, 63, v0
    v_lshlrev_b32 v{V_L16}, 4, v0
    v_lshlrev_b32 v{V_FA}, 7, v0
    v_lshrrev_b32 v{V_TH}, 5, v0
    ''')
    h_dma_addr(P, V_HD, V_R0, V_R1, V_T0)
    flush = f'''v_mov_b32 v{V_T0}, s34
    buffer_store_dword v{V_T0}, off, {S_WS}, s31 sc1
    s_mov_b32 s27, 0'''
    P(f'''
    s_lshl_b32 s20, {S_LAYER}, 21
    s_add_u32 s20, s20, {H1}
    {h_wave_part('s20', 's21')}
    s_mov_b32 s24, {F_H}
    s_lshl_b32 s25, {S_H}, 2
    s_add_u32 s25, s25, {S_W}
    s_mul_i32 s22, {S_LAYER}, {2 * KM_L}
    s_mul_i32 s23, {S_H}, {2 * KM_H}
    s_add_u32 s22, s22, s23
    s_lshl_b32 s23, {S_W}, 12
    s_add_u32 s22, s22, s23
    s_add_u32 s28, s22, {KVIMG}
    s_lshr_b32 s32, s22, 1
    s_add_u32 s32, s32, {KMVM}
    s_lshl_b32 s22, {S_LAYER}, 14
    s_lshl_b32 s23, s25, 7
    s_add_u32 s22, s22, s23
    s_add_u32 s31, s22, {F_KV}
    ''')
    P(f's_lshl_b32 s55, {S_H}, 7\ns_add_u32 s55, s55, {F_Q}\ns_cmp_eq_u32 {S_LAYER}, 0\ns_cselect_b32 s55, s55, s31\ns_cselect_b32 s54, 32, -1')
    init = f'v_mov_b32 v{V_T0}, 0\nbuffer_store_dword v{V_T0}, off, {S_WS}, s31 sc1\nbuffer_store_dword v{V_T0}, off, {S_WS}, s55 sc1'
    load_weights(P, 'kv', 16, (lambda n: opt['ready'](P, n, init), lambda n: opt['count_ready'](P, n, V_T0)))
    P(stamps.tl(opt, 5))
    opt['wait_ready'](P, 16)
    P(f'v_and_b32 v{V_FA}, 0xfff, v{V_FA}')
    opt['pre'].wait_lines(P, 1, F_R, V_FA, 17)
    P(f'''
    v_and_b32 v{V_FA}, 0x2b, v0
    v_lshlrev_b32 v{V_FA}, 7, v{V_FA}
    s_and_b32 s22, {S_W}, 1
    s_lshl_b32 s22, s22, 11
    s_add_u32 s24, s24, s22
    s_lshr_b32 s22, {S_W}, 1
    s_lshl_b32 s22, s22, 9
    s_add_u32 s24, s24, s22
    s_mov_b32 {S_S}, 0
    s_mov_b32 s26, 0
    s_mov_b32 s27, 0
    v_mov_b32 v{V_F}, 16
    v_mov_b32 v248, {S_SENT}
    v_mov_b32 v249, {S_SENT}
    v_mov_b32 v250, {S_SENT}
    v_mov_b32 v251, {S_SENT}
    ''')
    stamps.init(P, opt)
    D20, D28, D32 = 2 * MB - 65536, 2 * KM_L - 4 * KM_S, KM_L - 2 * KM_S
    P(f'''
    s_mov_b32 s33, {NS}
    s_mov_b32 s36, 1
    s_mov_b32 s35, 1
    s_mov_b32 s34, 0
    s_mov_b32 s38, 0
    s_cmp_eq_u32 {S_LAYER}, 0
    s_cbranch_scc1 kv_go
    s_sub_u32 s20, s20, {D20}
    s_sub_u32 s28, s28, {D28}
    s_sub_u32 s32, s32, {D32}
    s_mov_b32 {S_S}, 2
    s_mov_b32 s33, 4
    s_mov_b32 s36, 0
    s_mov_b32 s35, -8
    s_branch kv_go
    ''')
    seg = f'v_lshl_add_u32 v{V_F}, v{V_F}, 1, v{V_TH}'
    P(f'''
    kv_loop:
    s_cmp_eq_u32 s26, 0
    s_cbranch_scc0 kv_have
    s_cmp_eq_u32 s38, 1
    s_cbranch_scc1 kv_try
    kv_poll:
    buffer_load_dword v{V_F}, v{V_FA}, {S_WS}, s24 offen sc1
    s_waitcnt vmcnt(0)
    s_cmp_eq_u32 s27, 0
    s_cbranch_scc1 kv_poll2
    {flush}
    {stamps.tlc(opt, 3, S_S, 41)}
    kv_poll2:
    {seg}
    v_cmp_ge_u32 vcc, {S_S}, v{V_F}
    s_cbranch_vccz kv_go
    {GUARD}
    s_sleep {opt.get('ks', 1)}
    s_branch kv_poll
    kv_go:
    {stamps.tlc(opt, 0, S_S, 40)}
    {marks(opt, 0)}
    ''')
    for i in h_dma(V_HD, 's20', 's21'):
        P(i)
    for i in range(2):
        P(f'buffer_load_dword v{V_T0}, off, {S_WS}, s31 ;nodep')
    P(f'''
    kv_have:
    s_add_u32 s30, {S_S}, 1
    s_cmp_eq_u32 s30, s33
    s_cselect_b32 s30, 1000, s30
    v_cmp_ge_u32 vcc, s30, v{V_F}
    s_cmp_eq_u32 {S_S}, s35
    s_cselect_b32 s37, 3, 1
    s_lshl_b32 s22, s37, 15
    s_add_u32 s20, s20, s22
    s_xor_b32 s21, s21, 32768
    s_cmp_eq_u32 s27, 0
    s_cselect_b32 s29, 0x7fff0000, s31
    v_mov_b32 v2, s34
    s_waitcnt vmcnt(8)
    s_barrier
    {stamps.tlc(opt, 1, S_S, 40)}
    {marks(opt, 1)}
    s_cmp_eq_u32 s38, 1
    s_cbranch_scc1 kv_spec
    s_cbranch_vccnz kv_late
    ''')
    VB = 112

    def verify():
        o = [f'v_add_u32 v{V_TH}, s21, v{V_L16}']
        o += [f'ds_read_b128 {q4(VB + 4 * i)}, v{V_TH} offset:{4096 * i}' for i in range(8)]
        for i in range(8):
            b_ = VB + 4 * i
            o.append(f'v_max3_u32 v{b_}, v{b_}, v{b_ + 1}, v{b_ + 2}')
            o.append(f'v_max3_u32 v{V_F}, v{b_}, v{b_ + 3}, v{V_F if i else b_}')
        o.append(f'v_cmp_eq_u32 vcc, {S_SENT}, v{V_F}')
        return o
    for early in (1, 0, 2):
        tf, tc = opt.get('kvf', 950), (2000 if early else opt.get('kvc', 1650))
        it = []
        for j in range(1, 4):
            it += [f's_waitcnt vmcnt({8 - 2 * j}) ;before:g{j} ;t:{130 + 110 * j}', f'@bar g{j}']
        hd = h_dma(V_HD, 's20' if early else 's23', 's21')
        dma = [[hd[2 * i], hd[2 * i + 1] + ' ;after:g3'] for i in range(8)]
        fl = [[f's_waitcnt vmcnt({8 if early else 0})',
               f'buffer_load_dword v{V_F}, v{V_FA}, {S_WS}, s24 offen sc1',
               f'buffer_store_dword v2, off, {S_WS}, s29 sc1']]
        chk = [seg + f' ;t:{tc}']
        if not early:
            chk += [f'v_cmp_ge_u32 vcc, s30, v{V_F} ;by:{tc + 40}',
                    ['s_nop 0', 's_cmp_eq_u64 vcc, 0', 's_cselect_b32 s26, 1, 0', 's_cselect_b32 s23, s20, 0x7fff0000']] + dma
        sent = [f'buffer_store_dwordx4 v[248:251], v{V_L16}, {S_WS}, s32 offen offset:{1024 * i} sc1' for i in range(2)]
        kby = 1400
        if early == 2:
            t1, t2 = opt.get('kv1', 900), opt.get('kv2', 2000)
            kby = t1 + 650
            dma = [[hd[2 * i], hd[2 * i + 1]] for i in range(8)]
            dma[0][1] += f' ;t:{t1}'
            it = [x + ' ;by:250' for x in sent]
            fa = opt.get('kvfa', 1)
            if fa:
                it += dma + [['s_waitcnt vmcnt(10)', f'buffer_store_dword v2, off, {S_WS}, s29 sc1 ;by:{t1 + 480}']]
            else:
                tq = opt.get('kvq', 600)
                it += [['s_waitcnt vmcnt(2)', f'buffer_store_dword v2, off, {S_WS}, s29 sc1 ;t:{tq} ;by:{tq + 50}']] + dma
            ver = verify()
            chk = [[f's_waitcnt vmcnt({2 + fa})', ver[0] + f' ;t:{t2}', f'buffer_load_dword v{V_T0}, off, {S_WS}, s31 ;nodep']] + ver[1:]
            chk.append(['s_nop 0', 's_cmp_eq_u64 vcc, 0', 's_cselect_b32 s26, 1, 0'])
        else:
            it += (dma + fl + ['s_mov_b32 s26, 1']) if early else fl
            it += [x + ' ;by:1250' for x in sent]
        for X in range(2):
            for kk in range(16):
                b = HB + 8 * (kk & 3)
                it += [h_read(b + 4 * tt, V_R0, V_R1, kk, tt) + (f' ;r:g{kk >> 2}' if kk >= 4 and early < 2 else '') for tt in range(2)]
                for te in range(2):
                    for tt in range(2):
                        if X == 0:
                            d = AK + 8 * tt + 4 * te
                            it.append(f'{MF} {q4(d)}, {a4(4 * (16 * te + kk))}, {q4(b + 4 * tt)}, {q4(d) if kk else 0}')
                        else:
                            d = AV + 8 * te + 4 * tt
                            it.append(f'{MF} {q4(d)}, {q4(b + 4 * tt)}, {a4(128 + 4 * (16 * te + kk))}, {q4(d) if kk else 0}')
            if X:
                it += chk
            for qd in range(2 * X, 2 * X + 2):
                it += [cvt(PK + 4 * qd + i, AK + 8 * qd + 2 * i) for i in range(4)]
                it.append(f'buffer_store_dwordx4 {q4(PK + 4 * qd)}, v{V_L16}, {S_WS}, s28 offen offset:{1024 * qd} sc1' + ('' if X else f' ;by:{kby}'))
        it += [f'v_xor_b32 v{V_R0}, 32768, v{V_R0}', f'v_xor_b32 v{V_R1}, 32768, v{V_R1}']
        code, t = schedule(it, verbose=opt.get('verbose') == 20 + early, anneal=opt.get('an2', 200000))
        for c in stamps.profile(code, opt, 20 + early):
            P(c)
        P(('s_branch kv_next\nkv_spec:', 's_branch kv_next\nkv_late:', 'kv_next:')[early])
    P(f'''
    s_mul_i32 s22, s37, {2 * KM_S}
    s_add_u32 s28, s28, s22
    s_mul_i32 s22, s37, {KM_S}
    s_add_u32 s32, s32, s22
    s_mov_b32 s27, s36
    {stamps.trace(opt, 0, S_S, 2)}
    {stamps.tlc(opt, 2, S_S, 40)}
    {marks(opt, 2)}
    s_add_u32 s34, {S_S}, 1
    s_add_u32 {S_S}, {S_S}, s37
    s_cmp_lt_u32 s34, 6
    s_cbranch_scc1 kv_early
    s_sub_u32 s22, s54, {S_S}
    s_cmp_eq_u32 s22, 2
    s_cbranch_scc1 kv_open
    s_sub_u32 s22, s22, 3
    s_cmp_lt_u32 s22, 2
    s_cbranch_scc1 kv_rows
    s_cmp_lt_u32 {S_S}, {NS}
    s_cbranch_scc1 kv_loop
    s_waitcnt vmcnt(0)
    {flush}
    s_branch kv_end
    kv_early:
    s_cmp_eq_u32 {S_S}, s33
    s_cbranch_scc1 kv_helped
    s_add_u32 s22, s35, 4
    s_cmp_eq_u32 s34, s22
    s_cbranch_scc1 kv_join
    s_cmp_lg_u32 s34, 1
    s_cbranch_scc1 kv_loop
    s_waitcnt vmcnt(0)
    {flush}
    s_branch kv_loop
    kv_join:
    {GUARD}
    buffer_load_dword v{V_T0}, off, {S_WS}, s31 sc1
    s_waitcnt vmcnt(0)
    v_cmp_gt_u32 vcc, 4, v{V_T0}
    s_cbranch_vccnz kv_join
    {flush}
    s_branch kv_loop
    kv_helped:
    s_sub_u32 s22, s31, 16384
    kv_helped2:
    {GUARD}
    buffer_load_dword v{V_T0}, off, {S_WS}, s22 sc1
    s_waitcnt vmcnt(0)
    v_cmp_gt_u32 vcc, 2, v{V_T0}
    s_cbranch_vccnz kv_helped2
    v_mov_b32 v{V_T0}, 4
    buffer_store_dword v{V_T0}, off, {S_WS}, s22 sc1
    s_add_u32 s20, s20, {D20 - 65536}
    s_add_u32 s28, s28, {D28 - 4 * KM_S}
    s_add_u32 s32, s32, {D32 - 2 * KM_S}
    s_mov_b32 {S_S}, 0
    s_mov_b32 s33, {NS}
    s_mov_b32 s36, 1
    s_mov_b32 s38, 1
    v_lshlrev_b32 v11, 7, v0
    ''')
    opt['pre'].wait_lines(P, 2, F_R, 11, 12)
    P('kv_try:')
    for i in h_dma(V_HD, 's20', 's21'):
        P(i)
    P(f'''
    s_waitcnt vmcnt(8)
    s_cmp_eq_u32 s27, 0
    s_cbranch_scc1 kv_try2
    {flush}
    s_waitcnt vmcnt(1)
    s_branch kv_try3
    kv_try2:
    s_waitcnt vmcnt(0)
    kv_try3:
    ''')
    for i in verify():
        P(i)
    P(f'''
    {marks(opt, 0)}
    s_cbranch_vccz kv_have
    {GUARD}
    s_branch kv_try
    kv_end:
    ''')
    stamps.dump(P, opt)
    P('s_waitcnt vmcnt(0)\ns_endpgm')
    pre = opt['pre']
    P(f'''
    kv_rows:
    s_lshl_b32 s50, {S_H}, 4
    s_lshl_b32 s53, s54, 5
    s_add_u32 s50, s50, s53
    s_bitcmp1_b32 {S_S}, 0
    s_cbranch_scc1 kv_rows_b
    ''')
    pre.rows_load(P, 254)
    P('''
    s_branch kv_loop
    kv_rows_b:
    v_lshlrev_b32 v10, 4, v0
    v_lshrrev_b32 v11, 2, v254
    v_lshlrev_b32 v11, 7, v11
    ''')
    pre.rows(P, opt, lambda: pre.wait_lines(P, 2, F_P + 8192, 11, 12), 254, 65536)
    pre.announce(P, 's54')
    P('''
    s_branch kv_loop
    kv_open:
    v_and_b32 v11, 31, v0
    v_lshlrev_b32 v11, 7, v11
    ''')
    pre.wait_lines(P, 's54', F_Q, 11, 12)
    P(f'''
    s_add_u32 s54, s54, 16
    s_lshl_b32 s22, {S_H}, 8
    s_add_u32 s22, s22, {F_H}
    s_lshr_b32 s23, s54, 1
    v_mov_b32 v1, s23
    buffer_store_dword v1, off, {S_WS}, s22 sc1
    buffer_store_dword v1, off, {S_WS}, s22 offset:128 sc1
    s_cmp_eq_u32 s54, {NS}
    s_cselect_b32 s54, -1, s54
    s_branch kv_loop
    ''')


def unpack8(dst, src):
    o = []
    for i in range(4):
        o += [f'v_and_b32 v{dst + 2 * i + 1}, 0xffff0000, v{src + i}', f'v_lshlrev_b32 v{dst + 2 * i}, 16, v{src + i}']
    return o


def ln8(x, n, t):
    a, b, c, d = t, t + 1, t + 2, t + 3
    o = [f'v_pk_add_f32 {q2(n)}, {q2(x)}, {q2(x + 2)}', f'v_pk_mul_f32 {q2(n + 4)}, {q2(x)}, {q2(x)}',
         f'v_pk_add_f32 {q2(n + 2)}, {q2(x + 4)}, {q2(x + 6)}', f'v_pk_mul_f32 {q2(n + 6)}, {q2(x + 2)}, {q2(x + 2)}',
         f'v_pk_fma_f32 {q2(n + 4)}, {q2(x + 4)}, {q2(x + 4)}, {q2(n + 4)}',
         f'v_pk_fma_f32 {q2(n + 6)}, {q2(x + 6)}, {q2(x + 6)}, {q2(n + 6)}',
         f'v_pk_add_f32 {q2(n)}, {q2(n)}, {q2(n + 2)}', f'v_pk_add_f32 {q2(n + 4)}, {q2(n + 4)}, {q2(n + 6)}',
         f'v_add_f32 v{a}, v{n}, v{n + 1}', f'v_add_f32 v{c}, v{n + 4}, v{n + 5}']
    for u, v in zip(wave_sum(a, b), wave_sum(c, d)):
        o += [u, v]
    o += [f'v_mul_f32 v{a}, 0x3b000000, v{a}', f'v_mul_f32 v{c}, 0x3b000000, v{c}', f'v_fma_f32 v{c}, -v{a}, v{a}, v{c}',
          f'v_max_f32 v{c}, 0, v{c}', f'v_add_f32 v{c}, 0x3727c5ac, v{c}', f'v_rsq_f32 v{c}, v{c}']
    o += [f'v_pk_add_f32 {q2(n + i)}, {q2(x + i)}, {q2(a)} op_sel_hi:[1,0] neg_lo:[0,1] neg_hi:[0,1]' for i in range(0, 8, 2)]
    o += [f'v_pk_mul_f32 {q2(n + i)}, {q2(n + i)}, {q2(c)} op_sel_hi:[1,0]' for i in range(0, 8, 2)]
    return o


def row_block(x, y, n, pk, ph, t):
    o = ln8(x, n, t)
    o += [f'v_pk_fma_f32 {q2(x + i)}, {q2(n + i)}, {q2(y + i)}, {q2(x + i)}' for i in range(0, 8, 2)]
    o += [cvt(pk + i, x + 2 * i) for i in range(4)]
    o += unpack8(x, pk)
    o += ln8(x, n, t)
    o += [cvt(ph + i, n + 2 * i) for i in range(4)]
    return o
```

```python
from layout import STAMP
NPH = 12


def init(P, opt):
    if not opt.get('stamp'):
        return
    P('s_memtime s[60:61]\ns_memrealtime s[62:63]\ns_waitcnt lgkmcnt(0)')
    for i in range(NPH):
        P(f's_mov_b32 s{70 + i}, 0')
    P('s_mov_b32 s68, s60')


def mark(opt, i, lvl=2):
    if opt.get('stamp', 0) == lvl:
        return ['s_memtime s[64:65]', 's_waitcnt lgkmcnt(0)', 's_sub_u32 s69, s64, s68',
                f's_add_u32 s{70 + i}, s{70 + i}, s69', 's_mov_b32 s68, s64']
    return []


def marks(opt, i, lvl=2):
    return '\n'.join(mark(opt, i, lvl))


def count(opt, i):
    return f's_add_u32 s{70 + i}, s{70 + i}, 1' if opt.get('stamp') in (1, 2) else ''


def tl(opt, i, bank=0):
    if opt.get('stamp') in (1, 2) and opt.get('tlb', 0) == bank:
        return f's_memrealtime s[{86 + 2 * i}:{87 + 2 * i}]\ns_waitcnt lgkmcnt(0)'
    return ''


_n = [0]


def tlc(opt, i, sreg, val):
    if opt.get('tlb') != 3:
        return ''
    _n[0] += 1
    return (f's_cmp_lg_u32 {sreg}, {val}\ns_cbranch_scc1 tlc_{_n[0]}\ns_memrealtime s[{86 + 2 * i}:{87 + 2 * i}]\n'
            f's_waitcnt lgkmcnt(0)\ntlc_{_n[0]}:')


def dump(P, opt):
    if not opt.get('stamp'):
        return
    if opt.get('amp') is not None:
        l, e = P.uid('amp'), P.uid('amp')
        term = {0: 's_mov_b32 s22, 0', 1: 's_sub_u32 s22, s62, s98\ns_lshl_b32 s22, s22, 2',
                2: 's_sub_u32 s22, s66, s62', 3: 's_sub_u32 s22, s64, s60\ns_lshr_b32 s22, s22, 4'}[opt['amp']]
        P(f'''
        s_cmp_lg_u32 s14, {opt.get('ampg', 0)}
        s_cbranch_scc1 {e}
        s_memtime s[64:65]
        s_memrealtime s[66:67]
        s_waitcnt lgkmcnt(0)
        {term}
        s_add_u32 s22, s22, 30000
        {l}:
        s_sleep 8
        s_memrealtime s[66:67]
        s_waitcnt lgkmcnt(0)
        s_sub_u32 s23, s66, s98
        s_cmp_lt_u32 s23, s22
        s_cbranch_scc1 {l}
        {e}:
        ''')
        return
    P(f'''
    s_memtime s[64:65]
    s_memrealtime s[66:67]
    s_waitcnt lgkmcnt(0)
    s_sub_u32 s64, s64, s60
    s_lshl_b32 s22, s14, 5
    s_add_u32 s22, s22, s13
    s_lshl_b32 s22, s22, 2
    s_add_u32 s22, s22, s12
    s_lshl_b32 s22, s22, 7
    s_add_u32 s22, s22, {STAMP}
    v_mov_b32 v16, s64
    v_mov_b32 v17, s66
    v_mov_b32 v18, s98
    v_mov_b32 v19, s62
    buffer_store_dwordx4 v[16:19], off, s[8:11], s22
    ''')
    for j in range(NPH // 4):
        for i in range(4):
            P(f'v_mov_b32 v{20 + 4 * j + i}, s{70 + 4 * j + i}')
        P(f'buffer_store_dwordx4 v[{20 + 4 * j}:{23 + 4 * j}], off, s[8:11], s22 offset:{16 + 16 * j}')
    if opt.get('dbgout'):
        l = P.uid('dbg')
        P(f'''
        s_mov_b64 exec, 1
        s_not_b32 s23, s98
        v_mov_b32 v50, s23
        buffer_atomic_umax v50, off, s[4:7], 0 offset:32
        v_mov_b32 v50, s66
        buffer_atomic_umax v50, off, s[4:7], 0 offset:60
        s_cmp_gt_u32 s14, 2
        s_cbranch_scc1 {l}
        s_lshl_b32 s23, s14, 3
        v_mov_b32 v51, s62
        buffer_atomic_umax v51, off, s[4:7], s23 offset:36
        v_mov_b32 v52, s66
        s_cmp_eq_u32 s14, 2
        s_cbranch_scc1 {l}
        buffer_atomic_umax v52, off, s[4:7], s23 offset:40
        s_cmp_lg_u32 s14, 0
        s_cbranch_scc1 {l}
        v_mov_b32 v53, s96
        buffer_atomic_umax v53, off, s[4:7], 0 offset:56
        {l}:
        s_mov_b64 exec, -1
        ''')
    for i in range(6):
        P(f'v_mov_b32 v{40 + i}, s{86 + 2 * i}')
    P('buffer_store_dwordx4 v[40:43], off, s[8:11], s22 offset:64\nbuffer_store_dwordx2 v[44:45], off, s[8:11], s22 offset:80')


def profile(code, opt, name):
    if opt.get('stamp') != 6 or opt.get('prof') != name:
        return code
    st = opt.get('st', max(1, len(code) // 9))
    lo = opt.get('lo', st)
    c2 = ['s_memtime s[64:65] ;nodep']
    n = 0
    for j, c in enumerate(code):
        c2.append(c)
        if j >= lo and (j - lo) % st == 0 and n < 8 and not c.startswith('s_add_u32 m0') and not c.startswith('s_mov_b32 m0'):
            c2.append(f's_memtime s[{82 + 2 * n}:{83 + 2 * n}] ;nodep')
            print('stamp', n, 'after', j, c)
            n += 1
    c2 += ['s_memtime s[66:67] ;nodep', 's_waitcnt lgkmcnt(0)', 's_sub_u32 s69, s64, s68', 's_add_u32 s79, s79, s69', 's_mov_b32 s68, s66']
    prev = 's64'
    for j in range(n + 1):
        cur = f's{82 + 2 * j}' if j < n else 's66'
        c2 += [f's_sub_u32 s69, {cur}, {prev}', f's_add_u32 s{70 + j}, s{70 + j}, s69']
        prev = cur
    return c2


def trace(opt, plane, sreg, vt):
    if opt.get('tlb') != 4:
        return ''
    return f'''s_memrealtime s[86:87]
    s_lshl_b32 s88, s14, 5
    s_add_u32 s88, s88, s13
    s_lshl_b32 s88, s88, 2
    s_add_u32 s88, s88, s12
    s_lshl_b32 s88, s88, 7
    s_add_u32 s88, s88, {sreg}
    s_lshl_b32 s88, s88, 2
    s_add_u32 s88, s88, {STAMP + (1 << 20) + plane * (1 << 19)}
    s_waitcnt lgkmcnt(0)
    v_mov_b32 v{vt}, s86
    buffer_store_dword v{vt}, off, s[8:11], s88'''
```

```python
from layout import *
import stamps
from stamps import marks
from chain import (S_WS, S_W, S_H, S_G, S_PURE, S_LAYER, S_S, S_C, GUARD, MF, MF16, DPPF, q4, q2)
from asmtool import schedule
from chain import pk, xl
from roles import a4, cvt, xlane, load_weights, h_dma_addr, h_dma, h_wave_part, h_read, unpack8, row_block


def weave(mf_groups, side, per=2, start=0):
    out = []
    side = list(side)
    for i, g in enumerate(mf_groups):
        out += g
        if i >= start:
            out += side[:per]
            side = side[per:]
    return out + side


def gen_at(P, opt):
    L_Q = 32768
    L_OB = L_Q + 8192
    L_ROW = L_OB + 8192
    L_KV = 65536
    L_KM = L_KV + 16384
    (V_L16, V_HD, V_F4, V_FA, V_T0, V_T1, V_OR, V_QW, V_QR, V_OW, V_KMA, V_PST, V_RLD, V_RW, V_RR) = range(1, 16)
    SEL, BIAS, Q, SX, KX, VX, XR, YR = 16, 20, 28, 44, 52, 84, 100, 104
    FLH, FLK, FLM, FLA = 108, 109, 110, 111
    MX, NM, SUM = 112, 113, 114
    V_R0, V_R1, V_VMA, V_TCH = 252, 253, 254, 255
    KM, VM = 116, 132
    SM, PX, PM, O, OP = 140, 68, 148, 52, 168
    M2, AL = 150, 151
    OB, AO, PK = 140, 172, 236
    RED, RD = 140, 172
    HB, AQ, QP = 176, 208, 224
    X, Y, N_, PKX, PH, TT = 176, 184, 192, 200, 204, 208
    P.label('at_role')
    P(f'''
    v_and_b32 v0, 63, v0
    s_and_b32 s22, {S_G}, 3
    s_lshl_b32 s24, s22, 14
    s_lshl_b32 s23, {S_W}, 12
    s_add_u32 s24, s24, s23
    s_lshl_b32 s23, {S_H}, 7
    s_add_u32 s24, s24, s23
    s_add_u32 s24, s24, {F_AP}
    s_lshl_b32 s55, s22, 12
    s_add_u32 s55, s55, s23
    s_add_u32 s25, s55, {F_R}
    s_add_u32 s55, s55, {F_P}
    s_cmp_eq_u32 {S_LAYER}, 0
    s_cselect_b32 s55, s25, s55
    s_cselect_b32 s25, s25, s24
    ''')
    init = f'''v_mov_b32 v1, 0
    buffer_store_dword v1, off, {S_WS}, s24 sc1
    buffer_store_dword v1, off, {S_WS}, s25 sc1'''
    pre = opt['pre']
    P(f'''
    s_and_b32 s50, {S_G}, 3
    s_lshl_b32 s50, s50, 5
    s_add_u32 s50, s50, {S_H}
    s_lshl_b32 s50, s50, 4
    ''')
    pre.rows_load(P, 254)
    load_weights(P, 'qo', 16, (lambda n: opt['ready'](P, n + 4, init), lambda n: opt['count_ready'](P, n, 1, 4)))
    P(stamps.tl(opt, 5))
    P(f'''
    s_add_u32 s52, {S_LAYER}, 1
    s_lshl_b32 s22, {S_LAYER}, 13
    v_lshrrev_b32 v11, s52, v254
    v_lshl_add_u32 v11, v11, 7, s22
    s_add_u32 s53, s52, 1
    ''')

    def wait():
        P(stamps.tl(opt, 0))
        opt['wait_ready'](P, 16, True)
        pre.wait_lines(P, 's52', F_P, 11, 12)
        P(stamps.tl(opt, 1))
    pre.rows(P, opt, wait, 254)
    P(f's_cmp_lg_u32 {S_LAYER}, 0\ns_cbranch_scc1 at_rest')
    pre.announce(P, 1)
    P(f'''
    s_and_b32 s22, {S_G}, 1
    s_lshl_b32 s22, s22, 15
    s_lshl_b32 s23, {S_H}, 10
    s_add_u32 s22, s22, s23
    s_lshl_b32 s23, {S_W}, 19
    s_add_u32 s22, s22, s23
    v_mov_b32 v16, s19
    v_mov_b32 v17, s19
    v_mov_b32 v18, s19
    v_mov_b32 v19, s19
    ''')
    for k in range(8):
        for base in (H2, X3):
            P(f's_add_u32 s23, s22, {base + 65536 * k}\nbuffer_store_dwordx4 v[16:19], v10, {S_WS}, s23 offen sc1')
    P('at_rest:')
    pre.rows_rest(P)
    pre.announce(P, 's53')
    P(stamps.tl(opt, 2))
    opt['wait_ready'](P, 16, False, 8)
    P(f'''
    v_lshlrev_b32 v{V_L16}, 4, v0
    v_and_b32 v{V_FA}, 31, v0
    v_lshlrev_b32 v{V_FA}, 7, v{V_FA}
    s_and_b32 {S_S}, {S_G}, 1
    s_and_b32 s33, {S_W}, 1
    s_lshr_b32 s34, {S_W}, 1
    ''')
    h_dma_addr(P, V_HD, V_R0, V_R1, V_T0)
    P(f'''
    s_lshl_b32 s22, {S_W}, 11
    s_add_u32 s22, s22, {L_Q}
    v_add_u32 v{V_QW}, s22, v{V_L16}
    s_lshl_b32 s22, s33, 10
    s_add_u32 s23, s22, {L_Q}
    v_add_u32 v{V_QR}, s23, v{V_L16}
    s_lshl_b32 s23, s34, 12
    s_add_u32 s22, s22, s23
    s_add_u32 s22, s22, {L_OB}
    v_add_u32 v{V_OW}, s22, v{V_L16}
    v_add_u32 v{V_OR}, {L_OB}, v{V_L16}
    v_add_u32 v{V_KMA}, {L_KV}, v{V_L16}
    s_lshl_b32 s23, s34, 13
    v_add_u32 v{V_F4}, s23, v{V_KMA}
    s_lshl_b32 s23, s34, 12
    v_add_u32 v{V_VMA}, s23, v{V_KMA}
    v_and_b32 v{V_T1}, 15, v0
    v_lshlrev_b32 v{V_PST}, 4, v{V_T1}
    v_lshrrev_b32 v{V_T0}, 4, v0
    v_lshl_add_u32 v{V_PST}, v{V_T0}, 18, v{V_PST}
    s_lshl_b32 s22, {S_H}, 10
    s_lshl_b32 s23, {S_W}, 8
    s_add_u32 s22, s22, s23
    v_add_u32 v{V_PST}, s22, v{V_PST}
    v_and_b32 v{V_T1}, 15, v0
    v_lshlrev_b32 v{V_RLD}, 4, v{V_T1}
    v_lshl_add_u32 v{V_RLD}, v{V_T0}, 10, v{V_RLD}
    s_lshl_b32 s22, {S_H}, 15
    s_add_u32 s22, s22, s23
    v_add_u32 v{V_RLD}, s22, v{V_RLD}
    v_bfe_u32 v{V_RW}, v0, 2, 2
    v_lshlrev_b32 v{V_RW}, 5, v{V_RW}
    v_lshl_add_u32 v{V_RW}, v{V_T0}, 8, v{V_RW}
    v_and_b32 v{V_RR}, 3, v0
    v_lshl_add_u32 v{V_RW}, v{V_RR}, 2, v{V_RW}
    s_lshl_b32 s22, {S_W}, 9
    s_add_u32 s22, s22, {L_ROW}
    v_add_u32 v{V_RW}, s22, v{V_RW}
    v_lshlrev_b32 v{V_RR}, 5, v0
    v_add_u32 v{V_RR}, {L_ROW}, v{V_RR}
    ''')
    for i in range(4):
        P(f'''
        v_mov_b32 v{SEL + i}, 0
        v_mov_b32 v{MX}, 0x3f80
        v_cmp_eq_u32 vcc, {2 * i}, v{V_T1}
        v_cndmask_b32 v{SEL + i}, v{SEL + i}, v{MX}, vcc
        v_mov_b32 v{MX}, 0x3f800000
        v_cmp_eq_u32 vcc, {2 * i + 1}, v{V_T1}
        v_cndmask_b32 v{SEL + i}, v{SEL + i}, v{MX}, vcc
        ''')
    P(f'''
    v_bfe_u32 v{V_T1}, v0, 2, 2
    v_lshlrev_b32 v{V_T1}, 3, v{V_T1}
    v_and_b32 v{MX}, 3, v0
    v_add_u32 v{V_T1}, v{V_T1}, v{MX}
    s_lshl_b32 s22, s33, 2
    v_add_u32 v{V_T1}, s22, v{V_T1}
    v_lshlrev_b32 v{V_T0}, 3, v{V_T0}
    v_sub_u32 v{V_T1}, v{V_T1}, v{V_T0}
    v_mov_b32 v{MX}, 0xf149f2ca
    ''')
    for i in range(8):
        P(f'v_cmp_gt_i32 vcc, {i}, v{V_T1}\nv_cndmask_b32 v{BIAS + i}, 0, v{MX}, vcc')
    for i in range(4):
        P(f'v_mov_b32 v{XR + i}, 0\nv_mov_b32 v{YR + i}, 0')
    P(f'''
    s_lshl_b32 s20, {S_LAYER}, 21
    s_add_u32 s20, s20, {H1}
    {h_wave_part('s20', 's21')}
    s_lshl_b32 s23, {S_S}, 15
    s_add_u32 s20, s20, s23
    s_lshl_b32 s39, {S_H}, 10
    s_add_u32 s39, s39, s23
    s_sub_u32 s39, s39, 65536
    s_lshl_b32 s24, {S_LAYER}, 13
    s_add_u32 s24, s24, {F_H}
    s_lshl_b32 s23, {S_S}, 12
    s_add_u32 s24, s24, s23
    s_mul_i32 s22, {S_LAYER}, {KM_L}
    s_mul_i32 s23, {S_H}, {KM_H}
    s_add_u32 s22, s22, s23
    s_mul_i32 s23, {S_S}, {KM_S}
    s_add_u32 s22, s22, s23
    s_lshl_b32 s23, {S_W}, 11
    s_add_u32 s22, s22, s23
    s_add_u32 s33, s23, {L_KM}
    s_lshl_b32 s29, s23, 1
    s_add_u32 s29, s29, {L_KV}
    s_add_u32 s30, s22, {KMVM}
    s_lshl_b32 s28, s22, 1
    s_add_u32 s28, s28, {KVIMG}
    s_lshl_b32 s22, {S_LAYER}, 14
    s_lshl_b32 s23, {S_H}, 9
    s_add_u32 s22, s22, s23
    s_lshl_b32 s23, {S_W}, 7
    s_add_u32 s22, s22, s23
    s_add_u32 s31, s22, {F_KV}
    s_add_u32 s32, s22, {F_KM}
    s_and_b32 s22, {S_G}, 3
    s_lshl_b32 s35, s22, 21
    s_add_u32 s35, s35, {APART}
    s_lshl_b32 s36, s22, 14
    s_lshl_b32 s23, {S_W}, 12
    s_add_u32 s36, s36, s23
    s_add_u32 s36, s36, {F_AP}
    s_lshl_b32 s23, {S_H}, 7
    s_add_u32 s37, s36, s23
    s_mov_b32 s38, 0
    s_mov_b32 s49, {S_S}
    s_mov_b32 s48, 0
    s_mov_b32 s50, 0
    s_mov_b32 s51, 0
    s_mov_b32 s52, 0
    s_mov_b32 s53, 0
    v_mov_b32 v{FLM}, 0
    ''')
    stamps.init(P, opt)

    an = opt.get('an2', 200000)
    P(f's_bfe_u32 s34, {S_H}, 0x10002\ns_xor_b32 s34, s34, {opt.get("hf", 1)}\ns_and_b32 s34, s34, {opt.get("hf", 1)}')
    kvl = [['s_mov_b32 m0, s29', f'buffer_load_dwordx4 v{V_L16}, {S_WS}, s28 offen offset:{1024 * i} sc1 lds'] for i in range(4)]
    kvr = [f'ds_read_b128 {q4(KX + 4 * i)}, v{V_KMA} offset:{4096 * (i >> 1) + 1024 * (i & 1)}' for i in range(8)]
    kvr += [f'ds_read_b128 {q4(VX + 4 * i)}, v{V_F4} offset:{4096 * (i >> 1) + 2048 + 1024 * (i & 1)} ;before:row' for i in range(4)]

    KT = KM
    kml = [f'buffer_load_dwordx4 {q4(KT + 4 * i)}, v{V_L16}, {S_WS}, s30 offen offset:{1024 * i} sc1' for i in range(2)]
    kmw = '\n'.join(f'ds_write_b128 v{V_TCH}, {q4(KT + 4 * i)} offset:{1024 * i}' for i in range(2))
    P(f'v_add_u32 v{V_TCH}, s33, v{V_L16}')
    kmr = [f'ds_read_b128 {q4(KM + 4 * kk)}, v{V_KMA} offset:{L_KM - L_KV + 2048 * kk}' for kk in range(4)]
    kmr += [f'ds_read_b128 {q4(VM + 4 * i)}, v{V_VMA} offset:{L_KM - L_KV + 2048 * i + 1024}' for i in range(2)]
    both = f'''s_add_u32 s22, s49, 2
    s_min_u32 s22, s22, {NS - 1}
    v_cmp_ge_u32 s[50:51], s22, v{FLH}
    v_cmp_eq_u32 vcc, s19, v{FLM}
    s_or_b64 vcc, vcc, s[50:51]'''
    canary = f'buffer_load_dword v{FLM}, off, {S_WS}, s30 sc1'
    hd = h_dma(V_HD, 's20', 's21')
    hgrp = [hd[2 * i:2 * i + 2] for i in range(8)]

    def emit(items, name):
        code, t = schedule(items, verbose=opt.get('verbose') == name, anneal=an)
        code = stamps.profile(code, opt, name)
        for k, c in enumerate(code):
            if c == 's_waitcnt vmcnt(63)':
                c = 's_waitcnt vmcnt(%d)' % sum(x.startswith('buffer_') for x in code[:k])
            P(c)

    def qproj(lo, hi_):
        it = []
        for kk in range(lo, hi_):
            b = HB + 8 * (kk & 3)
            for tt in range(2):
                it.append(h_read(b + 4 * tt, V_R0, V_R1, kk, tt))
            for te in range(2):
                for tt in range(2):
                    d = AQ + 8 * tt + 4 * te
                    it.append(f'{MF} {q4(d)}, {a4(4 * (16 * te + kk))}, {q4(b + 4 * tt)}, {q4(d) if kk else 0}')
        return it

    def qtail():
        it = []
        for tt in range(2):
            it += [cvt(QP + 4 * tt + i, AQ + 8 * tt + 2 * i) for i in range(4)]
            it.append(f'ds_write_b128 v{V_QW}, {q4(QP + 4 * tt)} offset:{1024 * tt} ;w:q')
        return it

    def sx_items():
        it = [f'ds_read_b128 {q4(Q + 4 * kk)}, v{V_QR} offset:{2048 * kk} ;r:q' for kk in range(4)]
        for kk in range(4):
            for t in range(2):
                c = q4(SX + 4 * t) if kk else q4(BIAS + 4 * t)
                it.append(f'{MF} {q4(SX + 4 * t)}, {q4(KX + 8 * kk + 4 * t)}, {q4(Q + 4 * kk)}, {c}')
        return it

    def sm_items():
        it = []
        it += [f'v_max3_f32 v{MX}, v{SX}, v{SX + 1}, v{SX + 2}', f'v_max3_f32 v{NM}, v{SX + 3}, v{SX + 4}, v{SX + 5}',
               f'v_max3_f32 v{MX}, v{MX}, v{SX + 6}, v{SX + 7}', f'v_max_f32 v{MX}, v{MX}, v{NM}']
        it += xlane('v_max_f32', MX, NM)
        it.append(f'v_mul_f32 v{MX}, {S_C}, v{MX}')
        for x in range(SX, SX + 8, 2):
            it.append(f'v_pk_fma_f32 {q2(x)}, {q2(x)}, s[18:19], {q2(MX)} op_sel_hi:[1,0,0] neg_lo:[0,0,1] neg_hi:[0,0,1]')
        it += [f'v_exp_f32 v{x}, v{x}' for x in range(SX, SX + 8)]
        it += [cvt(PX + i, SX + 2 * i) for i in range(4)]
        it += [f'{MF} {q4(O + 4 * tau)}, {q4(VX + 4 * tau)}, {q4(PX)}, 0' for tau in range(4)]
        it += [pk('add', SX, SX, SX + 2), pk('add', SX + 4, SX + 4, SX + 6), pk('add', SX, SX, SX + 4),
               f'v_add_f32 v{SUM}, v{SX}, v{SX + 1}']
        it += xlane('v_add_f32', SUM, NM)
        return it

    P(f'''
    at_kv0:
    buffer_load_dword v{FLK}, off, {S_WS}, s31 sc1
    s_waitcnt vmcnt(0)
    v_cmp_ge_u32 vcc, s49, v{FLK}
    s_cbranch_vccz at_kv0go
    {GUARD}
    s_sleep 4
    s_branch at_kv0
    at_kv0go:
    ''')
    for i in hd + sum(kvl, []):
        P(i)
    P('s_waitcnt vmcnt(0)\ns_barrier')
    emit(kvr + qproj(0, 16) + qtail() + ['@bar q'] + sx_items() + sm_items(), 10)
    P(f's_waitcnt lgkmcnt(0)\nv_lshlrev_b32 v{FLK}, 7, v0')
    pre.wait_lines(P, 2, F_R, FLK, FLH)

    P(f'''
    at_loop:
    s_cmp_eq_u32 s52, 1
    s_cbranch_scc1 at_kmcheck
    at_kmpoll:
    {canary}
    buffer_load_dword v{FLH}, off, {S_WS}, s31 sc1
    s_waitcnt vmcnt(0)
    {both}
    s_cbranch_vccz at_kmgo
    {GUARD}
    s_sleep {opt.get('as', 2)}
    s_branch at_kmpoll
    at_kmgo:
    {stamps.tlc(opt, 0, 's49', 40)}
    {GUARD}
    {kml[0]}
    {kml[1]}
    s_waitcnt vmcnt(0)
    at_kmcheck:
    v_max3_u32 v{FLM}, v{KM}, v{KM + 1}, v{KM + 2}
    v_max3_u32 v{FLK}, v{KM + 3}, v{KM + 4}, v{KM + 5}
    v_max3_u32 v{FLM}, v{FLM}, v{KM + 6}, v{KM + 7}
    v_max_u32 v{FLM}, v{FLM}, v{FLK}
    v_cmp_eq_u32 vcc, s19, v{FLM}
    {kmw}
    s_cbranch_vccnz at_kmgo
    at_kmdone:
    s_waitcnt lgkmcnt(0)
    s_barrier
    {stamps.trace(opt, 1, 's49', V_T0)}
    {stamps.tlc(opt, 1, 's49', 40)}
    {marks(opt, 0)}
    s_add_u32 s49, s49, 2
    s_cmp_lt_u32 s49, {NS}
    s_cselect_b32 s22, 0x10000, 0
    s_cselect_b32 s23, {4 * KM_S}, 0
    s_add_u32 s20, s20, s22
    s_add_u32 s28, s28, s23
    s_add_u32 s39, s39, 65536
    s_add_u32 s30, s30, {2 * KM_S}
    s_cmp_lt_u32 s49, {NS}
    s_cselect_b32 s30, s30, 0x7fff0000
    s_mov_b32 s52, 0
    s_lshl_b32 s26, {S_LAYER}, 21
    s_add_u32 s26, s26, s39
    s_add_u32 s26, s26, {X1}
    s_add_u32 s27, s39, {YTOT}
    s_cmp_eq_u32 {S_W}, 0
    s_cselect_b32 s26, s26, 0x7fff0000
    s_cbranch_scc0 at_noy
    s_cmp_eq_u32 {S_LAYER}, 0
    at_noy:
    s_cselect_b32 s27, s27, 0x7fff0000
    s_cmp_eq_u32 {S_PURE}, 0
    s_cbranch_scc1 at_b_slow
    ''')

    def b_items(XS):
        it = []
        A = it.append
        it += kmr
        for g in kvl:
            A([g[0], g[1] + ' ;dl:900'])
        for g in hgrp:
            A([g[0], g[1] + ' ;dl:900'])
        A(f'buffer_load_dwordx4 {q4(XR)}, v{V_L16}, {S_WS}, s26 offen sc1 ;dl:900')
        A(f'buffer_load_dwordx4 {q4(YR)}, v{V_L16}, {S_WS}, s27 offen sc1 ;dl:900')
        for kk in range(4):
            A(f'{MF} {q4(SM)}, {q4(KM + 4 * kk)}, {q4(Q + 4 * kk)}, {q4(SM) if kk else 0}')
        it += [f'v_max3_f32 v{M2}, v{SM}, v{SM + 1}, v{SM + 2}', f'v_max_f32 v{M2}, v{M2}, v{SM + 3}']
        it += xl('v_max_f32', 16, M2, NM)
        it += [f'v_mul_f32 v{M2}, {S_C}, v{M2}', f'v_max_f32 v{M2}, v{M2}, v{MX}', f'v_sub_f32 v{MX}, v{MX}, v{M2}']
        for x in (SM, SM + 2):
            A(f'v_pk_fma_f32 {q2(x)}, {q2(x)}, s[18:19], {q2(M2)} op_sel_hi:[1,0,0] neg_lo:[0,0,1] neg_hi:[0,0,1]')
        A(f'v_exp_f32 v{MX}, v{MX}')
        it += [f'v_exp_f32 v{SM + i}, v{SM + i}' for i in range(4)]
        it += [pk('add', M2, SM, SM + 2), f'v_add_f32 v{M2}, v{M2}, v{AL}']
        it += xl('v_add_f32', 16, M2, NM)
        it += [f'v_fma_f32 v{SUM}, v{SUM}, v{MX}, v{M2}', f'v_rcp_f32 v{SUM}, v{SUM}', f'v_mul_f32 v{MX}, v{MX}, v{SUM}']
        for x in (SM, SM + 2):
            A(f'v_pk_mul_f32 {q2(x)}, {q2(x)}, {q2(SUM)} op_sel_hi:[1,0]')
        it += [cvt(PM + i, SM + 2 * i) for i in range(2)]
        for i in range(0, 16, 2):
            A(f'v_pk_mul_f32 {q2(O + i)}, {q2(O + i)}, {q2(MX)} op_sel_hi:[1,0]')
        for tau in range(4):
            A(f'{MF16} {q4(O + 4 * tau)}, {q2(VM + 2 * tau)}, {q2(PM)}, {q4(O + 4 * tau)}')
        for hf in range(2):
            it += [cvt(OP + 4 * hf + i, O + 8 * hf + 2 * i) for i in range(4)]
            A(f'ds_write_b128 v{V_OW}, {q4(OP + 4 * hf)} offset:{2048 * hf} ;w:o')
        A('@bar o')
        for i in (0, 2, 4, 6, 1, 3, 5, 7):
            A(f'ds_read_b128 {q4(OB + 4 * i)}, v{V_OR} offset:{1024 * i} ;r:o')
        for qt in range(2):
            for kk in range(4):
                for T_ in range(8):
                    d = AO + 32 * qt + 4 * T_
                    A(f'{MF} {q4(d)}, {q4(OB + 8 * kk + 4 * qt)}, {a4(128 + 4 * (4 * T_ + kk))}, {q4(d) if kk else 0}')
            for r in range(4):
                p_ = PK + 4 * r
                b_ = AO + 32 * qt + r
                it += [f'v_cvt_pk_bf16_f32 v{p_ + i}, v{b_ + 8 * i}, v{b_ + 8 * i + 4}' for i in range(4)]
                A([f's_add_u32 s23, s35, {(4 * qt + r) * 32768}',
                   f'buffer_store_dwordx4 {q4(p_)}, v{V_PST}, {S_WS}, s23 offen{XS}' + ('' if qt else f' ;dl:{opt.get("apd", 700) - 70 * r}')])
        return it

    n1 = opt.get('n1', 12)
    for mode in ('fast', 'slow'):
        XS = '' if mode == 'fast' else ' sc1'
        if mode == 'slow':
            P.label('at_b_slow')
        emit(b_items(XS), 11 if mode == 'fast' else -1)
        P(f'''
        {marks(opt, 1)}
        s_add_u32 s38, s38, 1
        s_lshl_b32 s22, s38, 1
        v_mov_b32 v{V_T1}, s22
        v_subrev_u32 v{V_T0}, 1, v{V_T1}
        s_sub_u32 s27, s22, s34
        s_waitcnt vmcnt(8)
        s_barrier
        {marks(opt, 2)}
        ''')
        it = [['s_waitcnt vmcnt(0)', f'buffer_store_dword v{V_T1}, off, {S_WS}, s37{XS}'],
              f'buffer_load_dword v{FLA}, v{V_FA}, {S_WS}, s36 offen sc1']
        it[0][0] = 's_waitcnt vmcnt(1)'
        it[1:1] = [canary + ' ;by:640', f'buffer_load_dword v{FLH}, off, {S_WS}, s31 sc1 ;by:660']
        it.insert(0, ['s_waitcnt vmcnt(4)', f'buffer_store_dword v{V_T0}, off, {S_WS}, s37{XS}'])
        emit(it + kvr + qproj(0, 16) + qtail() + ['@bar q'] + sx_items() + (sm_items() if opt.get('sm12') else []),
             12 if mode == 'fast' else -1)
        if mode == 'fast':
            P('s_branch at_r')
    P(f'''
    at_r:
    {stamps.tlc(opt, 2, 's49', 42)}
    {marks(opt, 3)}
    v_cmp_gt_u32 vcc, s27, v{FLA}
    s_cbranch_vccz at_apgo
    at_appoll:
    {GUARD}
    buffer_load_dword v{FLA}, v{V_FA}, {S_WS}, s36 offen sc1
    s_waitcnt vmcnt(0)
    v_cmp_gt_u32 vcc, s27, v{FLA}
    s_cbranch_vccnz at_appoll
    at_apgo:
    {stamps.tlc(opt, 3, 's49', 42)}
    {marks(opt, 4)}
    v_max3_u32 v{FLK}, v{XR}, v{XR + 1}, v{XR + 2}
    v_max_u32 v{FLK}, v{FLK}, v{XR + 3}
    v_cmp_eq_u32 s[40:41], s19, v{FLK}
    {both}
    s_cselect_b32 s52, 0, 1
    s_cselect_b32 s24, 0x7fff0000, s30
    s_cmp_lg_u64 s[40:41], 0
    s_cbranch_scc1 at_xretry
    ''')
    it = []
    for i in range(8):
        it.append([f's_add_u32 s23, s35, {4096 * i}',
                   f'buffer_load_dwordx4 {q4(RED + 4 * i)}, v{V_RLD}, {S_WS}, s23 offen sc1'])
    it += [x.replace('s30', 's24') for x in kml]
    it.append(canary + ' ;dl:450')
    it.append(f'buffer_load_dword v{FLH}, off, {S_WS}, s31 sc1 ;dl:450')
    it += [] if opt.get('sm12') else sm_items()
    for i in range(8):
        it.append(f'{MF} {q4(RD)}, {q4(SEL)}, {q4(RED + 4 * i)}, {q4(RD) if i else 0}')
    it.append(['s_mov_b32 exec_hi, 0', f'ds_write2_b32 v{V_RW}, v{RD}, v{RD + 1} offset0:0 offset1:4 ;w:row',
               f'ds_write2_b32 v{V_RW}, v{RD + 2}, v{RD + 3} offset0:32 offset1:36', 's_mov_b64 exec, -1'])
    it.append('s_xor_b32 s35, s35, 0x100000')
    it.append('@bar row')
    it.append(f'ds_read_b128 {q4(N_)}, v{V_RR} ;r:row')
    it.append(f'ds_read_b128 {q4(N_ + 4)}, v{V_RR} offset:16 ;r:row')
    it += unpack8(X, XR) + [pk('add', X + i, X + i, N_ + i) for i in range(0, 8, 2)]
    it += [cvt(PKX + i, X + 2 * i) for i in range(4)]
    emit(it, 13)
    P('s_waitcnt lgkmcnt(0)')
    P(f'''
    {marks(opt, 5)}
    s_cmp_eq_u32 s52, 1
    s_cbranch_scc1 at_nokm
    {both}
    s_cbranch_scc1 at_nokm
    {kml[0]}
    {kml[1]}
    s_mov_b32 s52, 1
    at_nokm:
    s_cmp_lg_u32 {S_W}, 0
    s_cbranch_scc1 at_rowdone
    s_cmp_eq_u32 {S_LAYER}, 0
    s_cbranch_scc1 at_row1
    buffer_store_dwordx4 {q4(PKX)}, v{V_L16}, s[56:59], s39 offen
    s_waitcnt vmcnt(1)
    s_branch at_next
    at_row1:
    ''')
    emit(unpack8(X, PKX) + unpack8(Y, YR) + row_block(X, Y, N_, PKX, PH, TT), 14)
    P(f'''
    s_add_u32 s22, s39, {X3}
    s_add_u32 s23, s39, {H2}
    buffer_store_dwordx4 {q4(PH)}, v{V_L16}, {S_WS}, s23 offen sc1
    buffer_store_dwordx4 {q4(PKX)}, v{V_L16}, {S_WS}, s22 offen sc1
    s_waitcnt vmcnt(2)
    s_branch at_next
    at_rowdone:
    s_waitcnt vmcnt(0)
    at_next:
    {stamps.trace(opt, 0, 's49', V_T0)}
    {stamps.tlc(opt, 4, 's49', 42)}
    {marks(opt, 6)}
    s_cmp_lt_u32 s49, {NS}
    s_cbranch_scc1 at_loop
    s_branch at_done
    at_xretry:
    {GUARD}
    buffer_load_dwordx4 {q4(XR)}, v{V_L16}, {S_WS}, s26 offen sc1
    s_waitcnt vmcnt(0)
    s_branch at_apgo
    at_done:
    ''')
    stamps.dump(P, opt)
    P('s_waitcnt vmcnt(0)\ns_endpgm')
```

```python
from layout import *
import stamps
from asmtool import schedule
import loader

SENT = 0xFF81FF81

S_WS = 's[8:11]'
S_W = 's12'
S_H = 's13'
S_G = 's14'
S_PURE = 's15'
S_LAYER = 's16'
S_S = 's17'
S_C = 's18'
S_SENT = 's19'

NLDSQ = 34
L_MEM = 0
L_O = 8192
L_SC = 16384
L_WT = 24576
DPPF = 'row_mask:0xf bank_mask:0xf'
MF = 'v_mfma_f32_16x16x32_bf16'
MF16 = 'v_mfma_f32_16x16x16_bf16'
SMF = 'v_smfmac_f32_16x16x64_bf16'
RS = 2048
GUARD = 's_sub_u32 s3, s3, 1\ns_cbranch_scc1 main_timeout'


def q4(b):
    return 'v[%d:%d]' % (b, b + 3)


def q2(b):
    return 'v[%d:%d]' % (b, b + 1)


def q8(b):
    return 'v[%d:%d]' % (b, b + 7)


V_FL = 0
V_L16, V_WL, V_X0, V_X1, V_X2, V_X3, V_WH, V_PST, V_MST, V_T0, V_T1 = range(1, 12)
V_MW = V_X0
V_T2 = 116
V_SEL = 12
MEM = 16
V_IDX, V_PF, V_SELT = 48, 49, 50
AQ, AK, AV, KX, VX = 52, 60, 68, 76, 84
WB = 92
T1, T2, T3, T4, T5 = 116, 120, 124, 128, 132
WV0 = 136


KVL = '\n'.join(f'buffer_load_dwordx4 {q4(KX + 4 * i)}, v{V_L16}, {S_WS}, s28 offen offset:{1024 * i} sc1' for i in range(4))


def streams():
    st = []
    for p in range(2):
        st += [(X, t, p) for X in 'qkv' for t in range(2)]
    for X in 'qkv':
        for p in range(2, 8):
            st += [(X, 0, p), (X, 1, p)]
    ost = [('o', T_, 0) for T_ in range(8)]
    for half in range(2):
        for pp in range(1, 4):
            for T_ in range(4 * half, 4 * half + 4):
                ost.append(('o', T_, pp))
    LX, LP = LDS_CLASS
    groups = [(X, par, u) for X in 'qkv' for par in range(2) if (X, par) != (LX, LP) for u in range(2)]
    groups += [('o', pp, 0) for pp in range(4) if pp not in LDS_WO]
    groups += [(LX, LP, 0), (LX, LP, 1)] + [('o', pp, 0) for pp in LDS_WO]
    home = {}
    octs = [('a', 8 * i) for i in range(32)] + [('v', WV0 + 8 * i) for i in range(8)]
    quads = [('v', WV0 + 64 + 4 * i) for i in range(14)]
    n = 0
    for X, t, p in st:
        if (X, p & 1) == (LX, LP):
            home[(X, t, p)] = ('lds', n, [32768 * u + 1024 * (2 * (p >> 1) + t) for u in range(2)])
            n += 1
        else:
            home[(X, t, p)] = octs.pop(0)
    n = 0
    for _, T_, pp in ost:
        if pp in LDS_WO:
            home[('o', T_, pp)] = ('lds', n, [(1 << 16) + 32768 * LDS_WO.index(pp) + 1024 * T_])
            n += 1
        elif (T_, pp) in LDS_EXTRA:
            home[('o', T_, pp)] = ('lds', n, [(2 << 16) + L_WT + 1024 * LDS_EXTRA.index((T_, pp))])
            n += 1
        else:
            home[('o', T_, pp)] = quads.pop(0)
    assert not octs and not quads
    return st, ost, home, groups


LDS_CLASS = ('q', 1)
LDS_WO = [0, 2]
LDS_EXTRA = [(1, 3), (5, 3)]


def wrd(dst, off):
    return f'ds_read_b128 {q4(dst)}, v{(V_WL, V_WH, V_X0)[off >> 16]} offset:{off & 0xffff}'


def preload():
    st, ost, home, units = streams()
    o = []
    for e in st:
        if home[e][0] == 'lds' and home[e][1] < 3:
            for u in range(2):
                o.append(wrd(WB + 8 * home[e][1] + 4 * u, home[e][2][u]))
    return o


def gen_chain(P, opt):
    stream, ostream, home, units = streams()
    P.label('chain_role')
    P('v_and_b32 v0, 63, v0')
    LR = AQ
    loader.setup(P, LR, True)
    P0 = P
    setup_code = []
    P = setup_code.append
    P(f'''
    v_lshlrev_b32 v{V_L16}, 4, v0
    v_add_u32 v{V_WL}, s42, v{V_L16}
    v_add_u32 v{V_WH}, 65536, v{V_WL}
    s_lshl_b32 s21, {S_W}, 11
    v_add_u32 v{V_MW}, s21, v{V_L16}
    v_xor_b32 v{V_X1}, 2048, v{V_X0}
    v_xor_b32 v{V_X2}, 4096, v{V_X0}
    v_xor_b32 v{V_X3}, 6144, v{V_X0}
    v_bfe_u32 v{V_T1}, v0, 3, 1
    v_mul_u32_u24 v{V_IDX}, 0xaaaa, v{V_T1}
    v_add_u32 v{V_IDX}, 0x4444, v{V_IDX}
    v_and_b32 v{V_PF}, {15 if opt.get('pmode', 0) else 31}, v0
    v_lshlrev_b32 v{V_PF}, 7, v{V_PF}
    v_add_u32 v{V_PF}, {2 * KM_S}, v{V_PF}
    v_lshrrev_b32 v{V_T0}, 2, v0
    s_lshl_b32 s22, {S_W}, 5
    v_add_u32 v{V_T0}, s22, v{V_T0}
    v_lshlrev_b32 v{V_T0}, 11, v{V_T0}
    v_and_b32 v{V_T1}, 3, v0
    v_lshlrev_b32 v{V_T1}, 4, v{V_T1}
    s_lshl_b32 s22, {S_H}, 6
    v_add3_u32 v{V_PST}, v{V_T0}, v{V_T1}, s22
    v_lshrrev_b32 v{V_T0}, 4, v0
    v_lshlrev_b32 v{V_T0}, 3, v{V_T0}
    s_lshl_b32 s22, {S_H}, 2
    s_add_u32 s24, s22, {S_W}
    s_lshl_b32 s22, s24, 6
    v_add3_u32 v{V_MST}, v{V_T0}, v{V_T1}, s22
    v_and_b32 v{V_T0}, 15, v0
    ''')

    def onehot(dst, n, src):
        for i in range(n):
            P(f'''
            v_mov_b32 v{dst + i}, 0
            v_mov_b32 v{V_T1}, 0x3f80
            v_cmp_eq_u32 vcc, {2 * i}, v{src}
            v_cndmask_b32 v{dst + i}, v{dst + i}, v{V_T1}, vcc
            v_mov_b32 v{V_T1}, 0x3f800000
            v_cmp_eq_u32 vcc, {2 * i + 1}, v{src}
            v_cndmask_b32 v{dst + i}, v{dst + i}, v{V_T1}, vcc
            ''')
    onehot(V_SEL, 4, V_T0)
    P(f'''
    v_and_b32 v{V_T0}, 7, v0
    v_bfe_u32 v{V_T1}, v0, 4, 1
    v_lshlrev_b32 v{V_T1}, 2, v{V_T1}
    v_sub_u32 v{V_T0}, v{V_T0}, v{V_T1}
    ''')
    onehot(V_SELT, 2, V_T0)
    P(f'''
    s_lshl_b32 s50, {S_LAYER}, 20
    s_add_u32 s50, s50, {CPART}
    s_add_u32 s53, s50, {16 * RS}
    s_lshl_b32 s22, s24, 11
    s_add_u32 s51, s50, s22
    s_xor_b32 s49, s51, 0x80000
    s_lshl_b32 s26, {S_LAYER}, 14
    s_add_u32 s26, s26, {CMEM}
    s_add_u32 s48, s26, 8192
    s_add_u32 s52, s48, s21
    s_mul_i32 s22, {S_LAYER}, {KM_L}
    s_mul_i32 s23, {S_H}, {KM_H}
    s_add_u32 s22, s22, s23
    s_add_u32 s22, s22, s21
    s_lshl_b32 s28, s22, 1
    s_add_u32 s28, s28, {KVIMG}
    s_add_u32 s30, s22, {KMVM}
    s_lshl_b32 s22, {S_LAYER}, 14
    s_lshl_b32 s23, s24, 7
    s_add_u32 s22, s22, s23
    s_add_u32 s31, s22, {F_KV}
    s_add_u32 s32, s22, {F_KM}
    s_mov_b32 s34, 0x00ff00ff
    s_mov_b32 s35, 0x00ff00ff
    s_mov_b32 s36, 0xff00ff00
    s_mov_b32 s37, 0xff00ff00
    ''')
    init = f'''
    v_mov_b32 v{T4}, {S_SENT}
    v_mov_b32 v{T4 + 1}, {S_SENT}
    v_mov_b32 v{T4 + 2}, {S_SENT}
    v_mov_b32 v{T4 + 3}, {S_SENT}
    buffer_store_dwordx4 {q4(T4)}, v{V_L16}, {S_WS}, s51 offen sc1
    buffer_store_dwordx4 {q4(T4)}, v{V_L16}, {S_WS}, s51 offen offset:1024 sc1
    s_mov_b64 exec, 0x000f000f
    buffer_store_dwordx2 {q2(T4)}, v{V_MST}, {S_WS}, s48 offen sc1
    s_mov_b64 exec, -1
    '''
    P = P0

    def confirm(newer):
        P(stamps.tl(opt, 0, 1))
        opt['ready'](P, newer, '\n'.join(setup_code) + init)
        P(stamps.tl(opt, 1, 1))

    def count(newer):
        opt['count_ready'](P, newer, V_T0)
        P(stamps.tl(opt, 2, 1))
        if opt.get('warmon'):
            P(f's_cmp_eq_u32 {S_LAYER}, 0\ns_cbranch_scc1 chain_nowarm')
            opt['warm'](P, 0)
            P('chain_nowarm:')
        P(stamps.tl(opt, 3, 1))
    gr = []
    for X, a_, u in units:
        if X == 'o':
            code = f's_xor_b32 s43, s39, {a_ * 32768}\ns_add_u32 s43, s43, s41'
            ds = [[home[('o', 2 * Pp + t, a_)] for t in range(2)] for Pp in range(4)]
        else:
            code = f's_add_u32 s43, s40, {a_ * 64 * 8192 + u * 16 * 8192}'
            ds = [[home[(X, t, 2 * pp + a_)] for t in range(2)] for pp in range(4)]
        ds = [[('lds', d[2][u]) if d[0] == 'lds' else (d[0], d[1] + 4 * u) for d in row] for row in ds]
        gr.append((X, code, ds))
    RW = MEM + 8
    at = {4: f'''
    v_and_b32 v{V_T0}, 7, v0
    v_lshlrev_b32 v{V_T0}, 10, v{V_T0}
    v_bfe_u32 v{V_T1}, v0, 3, 1
    v_lshl_add_u32 v{V_T0}, v{V_T1}, 6, v{V_T0}
    v_lshrrev_b32 v{V_T1}, 4, v0
    v_lshl_add_u32 v{V_T0}, v{V_T1}, 4, v{V_T0}
    s_lshl_b32 s22, {S_W}, 8
    s_load_dwordx2 s[44:45], s[0:1], 56
    s_mov_b32 s46, 8192
    s_mov_b32 s47, 0x00020000
    s_waitcnt lgkmcnt(0)
    buffer_load_dwordx4 {q4(MEM)}, v{V_T0}, s[44:47], s22 offen
    buffer_load_dwordx4 {q4(MEM + 4)}, v{V_T0}, s[44:47], s22 offen offset:128
    ''', 11: f'buffer_load_dwordx4 {q4(RW)}, off, s[4:7], 0 offset:128 sc1',
          14: f'v_mov_b32 v{RW + 5}, v{RW}\nbuffer_load_dword v{RW + 4}, off, s[4:7], 0 offset:132 sc1'}
    loader.run(P, gr, LR, True, KX, (V_WL, V_WH, V_X0), (confirm, count), at)
    P(stamps.tl(opt, 5))
    opt['wait_ready'](P, RW, False, 0, True)
    P(f'buffer_load_dword v{V_FL}, off, {S_WS}, s31 sc1')
    for i in range(24):
        P(f'v_mov_b32 v{AQ + i}, 0')
    P('s_waitcnt lgkmcnt(0)')
    for i in preload():
        P(i)
    P(f'''
    s_mov_b32 {S_S}, 0
    s_mov_b32 s33, 1
    s_add_u32 s27, s28, {2 * KM_S}
    {KVL if opt.get('kl') else ''}
    v_add_u32 v{V_T0}, {2 * RS}, v{V_PST}
    v_mov_b32 v{T4}, {S_SENT}
    v_mov_b32 v{T4 + 1}, {S_SENT}
    v_mov_b32 v{T4 + 2}, {S_SENT}
    v_mov_b32 v{T4 + 3}, {S_SENT}
    ds_write_b128 v{V_MW}, {q4(MEM)}
    ds_write_b128 v{V_MW}, {q4(MEM + 4)} offset:1024
    ''')
    P(f'v_cmp_gt_u32 vcc, 1, v{V_FL}\ns_cbranch_vccz ch_go')
    lw = P.uid('ch_kv0')
    P(f'''
    {lw}:
    {GUARD}
    buffer_load_dword v{V_FL}, off, {S_WS}, s31 sc1
    s_waitcnt vmcnt(0)
    v_cmp_gt_u32 vcc, 1, v{V_FL}
    s_cbranch_vccnz {lw}
    ''')
    P('ch_go:')
    stamps.init(P, opt)
    P(f's_cmp_eq_u32 {S_PURE}, 0\ns_cbranch_scc1 chain_slow_step\ns_branch chain_fast_step')
    chain_loop(P, opt, 'fast')
    chain_loop(P, opt, 'slow')
    P.label('chain_last')
    code, t = schedule(step_items(opt, ' sc1', True))
    for i in code:
        P(i)
    stamps.dump(P, opt)
    P('s_waitcnt vmcnt(0)\ns_endpgm')


def dppadd(d, a, b, ror=8):
    return f'v_add_f32_dpp v{d}, v{a}, v{b} row_ror:{ror} {DPPF}'


def cvt(d, a):
    return f'v_cvt_pk_bf16_f32 v{d}, v{a}, v{a + 1}'


def xl(op, n, x, t):
    return [f'v_mov_b32 v{t}, v{x}', f'v_permlane{n}_swap_b32 v{x}, v{t}', f'{op} v{x}, v{x}, v{t}']


def pk(op, d, a, b):
    return f'v_pk_{op}_f32 {q2(d)}, {q2(a)}, {q2(b)}'


def step_items(opt, XS, last):
    stream, ostream, home, units = streams()
    QOP, KOP, VOP = T1, T2, T3
    XE, ME = AQ, AK
    PX, PM = T4, AK + 2
    MX, NM, SUM, TN = T5, T5 + 1, T5 + 2, T5 + 3
    OX, OOP = KX, T1
    OIN = [AV, AV + 4, T4]
    AO = MEM
    it = []
    A = it.append
    A('s_nop 0 ;w:mem ;t:%d' % opt.get('tb', 70))
    if not last and not opt.get('kl'):
        for i in range(4):
            A(f'buffer_load_dwordx4 {q4(KX + 4 * i)}, v{V_L16}, {S_WS}, s28 offen offset:{1024 * i} sc1')
    A('@bar mem')
    for pr in range(1, 4):
        A(f'ds_read_b128 {q4(MEM + 8 * pr)}, v{V_X0 + pr} ;r:mem')
        A(f'ds_read_b128 {q4(MEM + 8 * pr + 4)}, v{V_X0 + pr} offset:1024 ;r:mem')
    kmode = 1
    pf = [f'v_cmp_lt_u32 vcc, s33, v{V_FL}', f'v_cndmask_b32 v{V_T1}, v{V_L16}, v{V_PF}, vcc']
    if opt.get('pmode', 0) == 0:
        if not last:
            if not opt.get('spec', 1):
                it += pf
            A(f'buffer_load_dword v{V_FL}, v{V_PF if opt.get("spec", 1) else V_T1}, {S_WS}, s28 offen sc1')
        if not last:
            ft = opt.get('ft', 150)
            A(f'buffer_load_dword v{V_FL}, off, {S_WS}, s31 sc1')
    else:
        if not last:
            A(f'buffer_load_dword v{V_FL}, off, {S_WS}, s31 sc1')
        A(f'buffer_store_dword v{V_T0}, off, {S_WS}, s32 sc1 ;by:250')
        if not last:
            it += pf
            A(f'buffer_load_dword v{V_T0}, v{V_T1}, {S_WS}, s28 offen sc1')
    if not last and not opt.get('ra'):
        A(f'buffer_store_dwordx4 {q4(T4)}, v{V_L16}, {S_WS}, s49 offen{XS}')
        A(f'buffer_store_dwordx4 {q4(T4)}, v{V_L16}, {S_WS}, s49 offen offset:1024{XS}')

    for e in stream:
        X, t, p = e
        kind, where = home[e][:2]
        if kind == 'lds':
            slot = WB + 8 * (where % 3)
            if where >= 3:
                A(wrd(slot, home[e][2][0]))
                A(wrd(slot + 4, home[e][2][1]))
            w = q8(slot)
        else:
            w = f'{kind}[{where}:{where + 7}]'
        if last and X == 'q':
            continue
        a = {'q': AQ, 'k': AK, 'v': AV}[X] + 4 * t
        A(f'{SMF} {q4(a)}, {q4(MEM + 4 * p)}, {w}, v{V_IDX}')

    def transpose(acc, op):
        for t in range(2):
            A(cvt(op + 2 * t, acc + 4 * t))
            A(cvt(op + 2 * t + 1, acc + 4 * t + 2))
        for t in range(2):
            A(f'{MF16} {q4(acc + 4 * t)}, {q2(op + 2 * t)}, {q2(V_SELT)}, 0')
        for i in range(4):
            A(cvt(op + i, acc + 2 * i))

    kmst = f'buffer_store_dwordx4 {q4(KOP)}, v{V_L16}, {S_WS}, s30 offen sc1 ;free ;dl:%d' % opt.get('dkk', 1000)
    vmst = f'buffer_store_dwordx4 {q4(VOP)}, v{V_L16}, {S_WS}, s30 offen offset:1024 sc1 ;free ;dl:%d' % opt.get('dk', 800)
    if last:
        transpose(AK, KOP)
        A(kmst)
        for i in range(4):
            A(cvt(VOP + i, AV + 2 * i))
        A(vmst)
        return it
    hi = 'quad_perm:[0,1,2,3] row_mask:0xf bank_mask:0xc'
    transpose(AQ, QOP)
    for t in range(2):
        A(f'{MF} {q4(AQ + 4 * t)}, {q4(KX + 4 * t)}, {q4(QOP)}, 0')
    for r in range(4):
        A(f'v_mov_b32_dpp v{XE + r}, v{AQ + 4 + r} {hi}')
    A(f'ds_write_b128 v{V_X0}, {q4(XE)} offset:{L_SC}')
    transpose(AK, KOP)
    A(f'{MF} {q4(AK)}, {q4(KOP)}, {q4(QOP)}, 0')
    for r in range(2):
        A(f'v_mov_b32_dpp v{ME + r}, v{AK + 2 + r} {hi}')
    A(f'ds_write_b64 v{V_X0}, {q2(ME)} offset:{L_SC + 1024} ;w:sc')
    A('@bar sc')
    RX = [AQ + 4, KX, KX + 4]
    for u in range(3):
        A(f'ds_read_b128 {q4(RX[u])}, v{V_X0 + 1 + u} offset:{L_SC} ;r:sc')
        A(f'ds_read_b64 {q2(ME + 2 + 2 * u)}, v{V_X0 + 1 + u} offset:{L_SC + 1024} ;r:sc')
    for u in range(3):
        for i in (0, 2):
            A(pk('add', XE + i, XE + i, RX[u] + i))
        A(pk('add', ME, ME, ME + 2 + 2 * u))
    A(f'v_max3_f32 v{MX}, v{XE}, v{XE + 1}, v{XE + 2}')
    A(f'v_max3_f32 v{NM}, v{XE + 3}, v{ME}, v{ME + 1}')
    A(f'v_max_f32 v{MX}, v{MX}, v{NM}')
    A(f'v_max_f32_dpp v{MX}, v{MX}, v{MX} row_ror:8 {DPPF}')
    for x in xl('v_max_f32', 16, MX, NM) + xl('v_max_f32', 32, MX, NM):
        A(x)
    A(f'v_mul_f32 v{MX}, {S_C}, v{MX}')
    for x in (XE, XE + 2, ME):
        A(f'v_pk_fma_f32 {q2(x)}, {q2(x)}, s[18:19], {q2(MX)} op_sel_hi:[1,0,0] neg_lo:[0,0,1] neg_hi:[0,0,1]')
    for x in (XE, XE + 1, XE + 2, XE + 3, ME, ME + 1):
        A(f'v_exp_f32 v{x}, v{x}')
    A(cvt(PX, XE))
    A(cvt(PX + 1, XE + 2))
    A(cvt(PM, ME))
    for d in (PX + 2, PX + 3):
        A(f'v_mov_b32_dpp v{d}, v{d - 2} row_ror:8 {DPPF}')
    A(f'v_mov_b32_dpp v{PM + 1}, v{PM} row_ror:8 {DPPF}')
    for i in range(4):
        A(cvt(VOP + i, AV + 2 * i))
    for t in range(2):
        A(f'{MF} {q4(OX + 4 * t)}, {q4(VX + 4 * t)}, {q4(PX)}, 0')
    for t in range(2):
        A(f'{MF16} {q4(OX + 4 * t)}, {q2(VOP + 2 * t)}, {q2(PM)}, {q4(OX + 4 * t)}')
    A(pk('add', XE, XE, XE + 2))
    if opt.get('nopk'):
        for i in range(2):
            A(f'v_fma_f32 v{XE + i}, v{ME + i}, 0.5, v{XE + i}')
    else:
        A(f'v_pk_fma_f32 {q2(XE)}, {q2(ME)}, 0.5, {q2(XE)} op_sel_hi:[1,0,1]')
    A(f'v_add_f32 v{SUM}, v{XE}, v{XE + 1}')
    A(dppadd(SUM, SUM, SUM))
    for x in xl('v_add_f32', 16, SUM, TN) + xl('v_add_f32', 32, SUM, TN):
        A(x)
    A(f'v_rcp_f32 v{SUM}, v{SUM}')
    if opt.get('zc', 1):
        A(f'v_cndmask_b32 v{SUM}, 0, v{SUM}, s[34:35]')
    for i in range(0, 8, 2):
        A(f'v_pk_mul_f32 {q2(OX + i)}, {q2(OX + i)}, {q2(SUM)} op_sel_hi:[1,0]')
    for i in range(4):
        A(cvt(OOP + i, OX + 2 * i))
    A(f'ds_write_b128 v{V_X0}, {q4(OOP)} offset:{L_O} ;w:o')
    if opt.get('kmh'):
        A(['s_mov_b64 exec, s[34:35]', kmst, 's_mov_b64 exec, -1'])
    elif kmode >= 1:
        A(kmst)
    if kmode == 1:
        A(vmst)
    if opt.get('kl'):
        for i in (2, 3, 0, 1):
            A(f'buffer_load_dwordx4 {q4(KX + 4 * i)}, v{V_L16}, {S_WS}, s27 offen offset:{1024 * i} sc1')
    A('@bar o')
    for pp in range(1, 4):
        A(f'ds_read_b128 {q4(OIN[pp - 1])}, v{V_X0 + pp} offset:{L_O} ;r:o')
    PKA, PKB = [AQ, AK], [AQ + 4, AK + 4]

    hs = opt.get('hs', 0)

    def pack(u):
        for i in range(4):
            A(cvt(PKB[u] + i, AO + 16 * u + 8 + 2 * i))
        for i in range(4):
            A(cvt(PKA[u] + i, AO + 16 * u + 2 * i))
        sb = 's53' if u else 's50'
        if hs >= 2 - u:
            g = opt.get('hg', 100)
            for half, r in enumerate((PKA[u], PKB[u])):
                dl = 44 + g * (3 - 2 * u - half)
                A(['s_mov_b64 exec, s[34:35]',
                   f'buffer_store_dwordx4 {q4(r)}, v{V_T0 if half else V_PST}, {S_WS}, {sb} offen{XS}',
                   's_mov_b64 exec, -1'])
            return
        for i in range(4):
            A(f'v_mov_b32_dpp v{PKA[u] + i}, v{PKB[u] + i} row_ror:8 row_mask:0xf bank_mask:0xc')
        A(f'buffer_store_dwordx4 {q4(PKA[u])}, v{V_PST}, {S_WS}, {sb} offen{XS} ;free' + ('' if u else ' ;dl:%d' % opt.get('gap', 240)))
    for k, e in enumerate(ostream):
        _, T_, pp = e
        kind, where = home[e][:2]
        if kind == 'lds':
            slot = WB + 4 * (where % 6)
            A(wrd(slot, home[e][2][0]))
            w = q4(slot)
        else:
            w = q4(where)
        b = q4(OOP) if pp == 0 else q4(OIN[pp - 1])
        c = '0' if pp == 0 else q4(AO + 4 * T_)
        A(f'{MF} {q4(AO + 4 * T_)}, {w}, {b}, {c}' + (' ;p:150' if (pp and T_ < 4) else ''))
        if k == 19:
            pack(0)
    pack(1)
    return it


def chain_loop(P, opt, mode):
    XS = '' if mode == 'fast' else ' sc1'
    tag = 'chain_' + mode
    mk = lambda i: stamps.marks(opt, i)
    RED = MEM + 8
    RDD = T5
    rl = f'''buffer_load_dwordx4 {q4(RED)}, v{V_L16}, {S_WS}, s51 offen sc1 ;nodep
    buffer_load_dwordx4 {q4(RED + 4)}, v{V_L16}, {S_WS}, s51 offen offset:1024 sc1 ;nodep'''
    gl = f'''buffer_load_dwordx4 {q4(MEM)}, v{V_L16}, {S_WS}, s52 offen sc1 ;nodep
    buffer_load_dwordx4 {q4(MEM + 4)}, v{V_L16}, {S_WS}, s52 offen offset:1024 sc1 ;nodep'''

    def chk(b, dst):
        return f'''v_max3_u32 v{V_T2}, v{b}, v{b + 1}, v{b + 2}
        v_max3_u32 v{V_T1}, v{b + 3}, v{b + 4}, v{b + 5}
        v_max3_u32 v{V_T2}, v{V_T2}, v{b + 6}, v{b + 7}
        v_max_u32 v{V_T2}, v{V_T2}, v{V_T1}
        v_cmp_eq_u32 {dst}, {S_SENT}, v{V_T2}'''
    red = f'''{MF} {q4(RDD)}, {q4(V_SEL)}, {q4(RED)}, 0
    {MF} {q4(RDD)}, {q4(V_SEL)}, {q4(RED + 4)}, {q4(RDD)}'''
    fin = '\n'.join([dppadd(RDD + r, RDD + r, RDD + r, ror) for ror in (4, 8) for r in range(4)] +
                    [cvt(RDD, RDD), cvt(RDD + 1, RDD + 2)])
    def pause(c):
        return f's_sleep {c}' if c else ''
    early = opt.get('ef', 0)
    flag = f'buffer_store_dword v{V_T0}, off, {S_WS}, s32 sc1' if early else ''
    wr = f'''ds_write_b128 v{V_MW}, {q4(MEM)}
    ds_write_b128 v{V_MW}, {q4(MEM + 4)} offset:1024'''
    P(f'''
    {tag}_gather:
    {pause(opt.get('b1', 1))}
    {gl}
    {pause(opt.get('b2', 3))}
    {gl}
    {flag}
    s_waitcnt vmcnt({2 + early})
    {chk(MEM, 'vcc')}
    {wr}
    s_cbranch_vccnz {tag}_gretry
    {mk(2)}
    ''')
    P.label(tag + '_step')
    for i in range(4):
        P(stamps.tlc(opt, i, S_S, 39 + i))
    items = step_items(opt, XS, False)
    code, t = schedule(items, verbose=opt.get('verbose') == 1 and mode == 'fast', anneal=opt.get('an', 2000000), seed=opt.get('seed', 1))
    k = code.index('s_barrier')
    nds = sum(c.startswith('ds_') for c in code[:k])
    code.insert(k, f's_waitcnt lgkmcnt({nds})')
    code.remove('s_nop 0')
    k = code.index('s_barrier', k + 2)
    code.insert(k, 's_waitcnt vmcnt(%d)' % sum(c.startswith('buffer_') for c in code[:k]))
    if opt.get('stamp') == 5:
        c2 = ['s_memtime s[64:65] ;nodep']
        n = 0
        for j, c in enumerate(code):
            if 'lo' in opt:
                c2.append(c)
                if j >= opt['lo'] and (j - opt['lo']) % opt['st'] == 0 and n < 8:
                    c2.append(f's_memtime s[{82 + 2 * n}:{83 + 2 * n}] ;nodep')
                    if mode == 'fast':
                        print('stamp', n, 'after', j, c)
                    n += 1
            elif c == 's_barrier':
                jj = len(c2)
                while c2[jj - 1].startswith('s_waitcnt'):
                    jj -= 1
                c2.insert(jj, f's_memtime s[{82 + 2 * n}:{83 + 2 * n}] ;nodep')
                c2 += [c, f's_memtime s[{84 + 2 * n}:{85 + 2 * n}] ;nodep']
                n += 2
            else:
                c2.append(c)
        c2 += ['s_memtime s[66:67] ;nodep', 's_waitcnt lgkmcnt(0)', 's_sub_u32 s69, s64, s68', 's_add_u32 s79, s79, s69', 's_mov_b32 s68, s66']
        prev = 's64'
        for j in range(9):
            cur = f's{82 + 2 * j}' if j < 8 else 's66'
            c2 += [f's_sub_u32 s69, {cur}, {prev}', f's_add_u32 s{70 + j}, s{70 + j}, s69']
            prev = cur
        code = c2
    for i in code:
        P(i)
    P(mk(0))
    z = [f'v_mov_b32 v{AQ + i}, 0' for i in range(24)]
    wbr = preload()
    resets = f'''buffer_store_dwordx4 {q4(T4)}, v{V_L16}, {S_WS}, s49 offen{XS}
    buffer_store_dwordx4 {q4(T4)}, v{V_L16}, {S_WS}, s49 offen offset:1024{XS}'''

    P(f'''
    s_xor_b32 s47, s48, 8192
    s_add_u32 s52, s48, s21
    s_add_u32 {S_S}, {S_S}, 1
    s_add_u32 s33, {S_S}, 1
    s_add_u32 s28, s28, {2 * KM_S}
    s_add_u32 s27, s28, {2 * KM_S}
    s_add_u32 s30, s30, {KM_S}
    s_cmp_eq_u32 {S_S}, {NS - 1}
    s_cselect_b32 s29, {NS}, {S_S}
    v_mov_b32 v{T4}, {S_SENT}
    v_mov_b32 v{T4 + 1}, {S_SENT}
    v_mov_b32 v{T4 + 2}, {S_SENT}
    v_mov_b32 v{T4 + 3}, {S_SENT}
    {stamps.trace(opt, 0, S_S, V_T1)}
    {chr(10).join(wbr)}
    {chr(10).join(z[24 - opt.get('za', 0):])}
    {resets if opt.get('ra') else ''}
    {pause(opt.get('a1', 3))}
    {rl}
    {pause(opt.get('a2', 3))}
    {tag}_rpoll:
    {rl}
    s_waitcnt vmcnt(2)
    {red}
    {chk(RED, 's[54:55]')}
    v_cmp_u_f32 vcc, v{RDD}, v{RDD}
    {fin}
    s_cbranch_vccnz {tag}_rretry
    {tag}_rok:
    s_mov_b64 exec, 0x000f000f
    buffer_store_dwordx2 {q2(RDD)}, v{V_MST}, {S_WS}, s48 offen{XS}
    buffer_store_dwordx2 {q2(T4)}, v{V_MST}, {S_WS}, s47 offen{XS}
    s_mov_b64 exec, -1
    {mk(1)}
    v_cmp_ge_u32 vcc, s29, v{V_FL}
    s_xor_b32 s50, s50, 0x80000
    s_xor_b32 s53, s53, 0x80000
    s_xor_b32 s51, s51, 0x80000
    s_xor_b32 s49, s49, 0x80000
    s_xor_b32 s48, s48, 8192
    {chr(10).join(z[:24 - opt.get('za', 0)])}
    s_cbranch_vccz {tag}_gather
    {flag}
    s_branch {tag}_special
    {tag}_gretry:
    {stamps.count(opt, 7)}
    {GUARD}
    {gl}
    s_waitcnt vmcnt({2 + early})
    {chk(MEM, 'vcc')}
    {wr}
    s_cbranch_vccnz {tag}_gretry
    {mk(2)}
    s_branch {tag}_step
    {tag}_rretry:
    {stamps.count(opt, 6)}
    {GUARD}
    s_cmp_lg_u64 s[54:55], 0
    s_cbranch_scc1 {tag}_rpoll
    {red}
    {fin}
    s_branch {tag}_rok
    ; next K/V tile not yet announced, or the last step follows
    {tag}_special:
    {gl}
    buffer_load_dword v{V_FL}, off, {S_WS}, s31 sc1
    s_waitcnt vmcnt(0)
    {GUARD}
    {chk(MEM, 'vcc')}
    s_cbranch_vccnz {tag}_special
    v_cmp_ge_u32 vcc, {S_S}, v{V_FL}
    s_cbranch_vccnz {tag}_special
    {KVL if opt.get('kl') else ''}
    ds_write_b128 v{V_MW}, {q4(MEM)}
    ds_write_b128 v{V_MW}, {q4(MEM + 4)} offset:1024
    {mk(3)}
    s_cmp_eq_u32 {S_S}, {NS - 1}
    s_cbranch_scc0 {tag}_step
    s_waitcnt lgkmcnt(0)
    s_branch chain_last
    ''')
```

```python
from layout import *
import stamps
from chain import q4, q2, GUARD, S_WS, S_W, S_H, S_G
from roles import cvt, unpack8, ln8

WAVE_LDS = 40960


def srd(P, base, karg, nbytes):
    P(f's_load_dwordx2 s[{base}:{base + 1}], s[0:1], {karg}')
    P(f's_mov_b32 s{base + 2}, {nbytes}')
    P(f's_mov_b32 s{base + 3}, 0x00020000')


def announce(P, stage):
    l = P.uid('ann')
    P(f'''
    s_waitcnt vmcnt(0)
    s_barrier
    s_cmp_lg_u32 {S_W}, 0
    s_cbranch_scc1 {l}
    v_mov_b32 v1, {stage}
    buffer_store_dword v1, off, {S_WS}, s55 sc1
    {l}:
    ''')


def wait_lines(P, stage, base, va, v1):
    l, d = P.uid('wa'), P.uid('wa')
    P(f'''
    s_mov_b32 s22, {base}
    {l}:
    buffer_load_dword v{v1}, v{va}, {S_WS}, s22 offen sc1
    s_waitcnt vmcnt(0)
    v_cmp_gt_u32 vcc, {stage}, v{v1}
    s_cbranch_vccz {d}
    {GUARD}
    s_sleep 1
    s_branch {l}
    {d}:
    ''')


B = (32, 72, 144, 184)


def rows_load(P, tid):
    srd(P, 44, 0, S * D * 2)
    P(f'''
    v_and_b32 v10, 63, v{tid}
    v_lshlrev_b32 v10, 4, v10
    s_lshl_b32 s48, s50, 10
    s_lshl_b32 s49, {S_W}, 12
    s_add_u32 s48, s48, s49
    s_waitcnt lgkmcnt(0)
    ''')
    for r in range(4):
        P(f'buffer_load_dwordx4 {q4(112 + 4 * r)}, v10, s[44:47], s48 offen offset:{1024 * r}')


def rows(P, opt, wait, tid, lds=0):
    for tup in zip(*[unpack8(b, 112 + 4 * rr) + ln8(b, b + 16, b + 32) for rr, b in enumerate(B)]):
        for x in tup:
            P(x)
    wait()
    P(f'''
    v_lshlrev_b32 v3, 13, v{tid}
    s_lshl_b32 s50, s50, 1
    s_add_u32 s50, s50, {YT}
    s_add_u32 s51, s50, 4096
    s_mov_b32 s22, 0x05040100
    s_mov_b32 s23, 0x07060302
    v_lshlrev_b32 v5, 2, v{tid}
    v_add_u32 v5, {lds}, v5
    ''')
    for j in range(2):
        P(f'buffer_load_dwordx4 {q4(16 + 4 * j)}, v3, {S_WS}, s50 offen offset:{16 * j} sc1')
        P(f'buffer_load_dwordx4 {q4(24 + 4 * j)}, v3, {S_WS}, s51 offen offset:{16 * j} sc1')
    for t in range(16):
        P(f'v_perm_b32 v{6 + (t & 1)}, v{24 + (t >> 1)}, v{16 + (t >> 1)}, s{22 + (t & 1)}')
        P(f'ds_write_b32 v5, v{6 + (t & 1)} offset:{1024 * t}')
    P(f'''
    v_add_u32 v5, s49, v10
    v_add_u32 v5, {lds}, v5
    s_add_u32 s50, s48, {YTOT}
    s_add_u32 s51, s48, {X1}
    s_add_u32 s49, s48, {H1}
    s_waitcnt lgkmcnt(0)
    s_barrier
    ''')
    for r in range(4):
        P(f'ds_read_b128 {q4(128 + 4 * r)}, v5 offset:{1024 * r}')
    seqs = []
    for rr, b in enumerate(B):
        X, Yv, N_, PKX, PH, TT = b, b + 8, b + 16, b + 24, b + 28, b + 32
        sq = unpack8(Yv, 128 + 4 * rr)
        sq += [f'v_pk_fma_f32 {q2(X + i)}, {q2(N_ + i)}, {q2(Yv + i)}, {q2(X + i)}' for i in range(0, 8, 2)]
        sq += [cvt(PKX + i, X + 2 * i) for i in range(4)]
        sq += unpack8(X, PKX) + ln8(X, N_, TT) + [cvt(PH + i, N_ + 2 * i) for i in range(4)]
        sq += [f'buffer_store_dwordx4 {q4(PH)}, v10, {S_WS}, s49 offen offset:{1024 * rr} sc1']
        seqs.append(sq)
    for tup in zip(*seqs):
        for x in tup:
            P(x)


def rows_rest(P):
    for rr, b in enumerate(B):
        P(f'buffer_store_dwordx4 {q4(128 + 4 * rr)}, v10, {S_WS}, s50 offen offset:{1024 * rr} sc1')
        P(f'buffer_store_dwordx4 {q4(b + 24)}, v10, {S_WS}, s51 offen offset:{1024 * rr} sc1')


def gen_pre_role(P, opt):
    MF32 = 'v_mfma_f32_32x32x16_bf16'
    P('; ================= preparation =================\npre_role:')
    srd(P, 24, 8, S * D * 2)
    srd(P, 28, 16, S * D * 2)
    srd(P, 32, 32, D * S * 2)
    srd(P, 36, 40, D * 2)
    srd(P, 40, 24, D * 4 * 2)
    P(f'''
    s_lshr_b32 s22, {S_G}, 1
    s_cmp_eq_u32 {S_G}, 6
    s_cselect_b32 s22, 2, s22
    s_lshl_b32 s54, s22, 5
    s_add_u32 s54, s54, {S_H}
    s_lshl_b32 s55, s54, 7
    s_add_u32 s55, s55, {F_P}
    s_and_b32 s85, s54, 63
    s_lshl_b32 s85, s85, 7
    s_add_u32 s85, s85, {F_H}
    s_lshl_b32 s52, s54, 2
    v_and_b32 v15, 63, v0
    v_lshlrev_b32 v10, 4, v15
    v_subrev_u32 v11, 16, v10
    v_cmp_eq_u32 vcc, 0, v15
    v_mov_b32 v12, 0x7ffffff0
    v_cndmask_b32 v9, v11, v12, vcc
    s_waitcnt lgkmcnt(0)
    ''')
    FK, KR, VR, SH, DD = 112, 144, 188, 220, 108
    Y, OPS, NB = 64, 16, 4
    y = f'v[{Y}:{Y + 15}]'

    def geometry(half):
        nu = 2 << half
        stride = (64 * nu + 4) * 16
        return nu, stride, 8 * stride

    def loads(half):
        nu = 2 << half
        nt = 2 * nu

        def rg(b):
            return f'v[{b}:{b + nu - 1}]'
        P(f'''
        v_mul_u32_u24 v8, {1024 * nt}, v0
        s_lshl_b32 s51, s52, 1
        v_add_u32 v8, s51, v8
        s_lshl_b32 s50, s52, 3
        s_movk_i32 s51, 4096
        ''')
        if opt.get('halo', 1):
            P('s_mov_b64 exec, 1')
        for i in range(3):
            P(f'v_subrev_u32 v7, {1024 * (3 - i)}, v8')
            P(f'buffer_load_dwordx{nu} {rg(KR + nu * i)}, v7, s[24:27], 0 offen')
        P('s_mov_b64 exec, -1')
        for j in range(nt):
            so = 's51' if j >= 4 else '0'
            P(f'buffer_load_dwordx{nu} {rg(KR + nu * (3 + j))}, v8, s[24:27], {so} offen offset:{1024 * (j & 3)}')
            P(f'buffer_load_dwordx{nu} {rg(VR + nu * j)}, v8, s[28:31], {so} offen offset:{1024 * (j & 3)}')
        for i in range(nu):
            P(f'buffer_load_dwordx4 {q4(SH + 4 * i)}, off, s[40:43], s50 offset:{16 * i}')
        return 3 + 2 * nt + nu

    def filt(half):
        nu = 2 << half
        P(f's_add_u32 s53, s52, {S_W}\ns_lshl_b32 s49, s53, 1\ns_lshl_b32 s53, s53, 12')
        for j in range(nu):
            prev = 'v9, s[32:35], s53 offen' if j == 0 else f'v10, s[32:35], s53 offen offset:{1024 * j - 16}'
            P(f'buffer_load_dwordx4 {q4(FK + 8 * j)}, {prev}')
            P(f'buffer_load_dwordx4 {q4(FK + 8 * j + 4)}, v10, s[32:35], s53 offen offset:{1024 * j}')
        P(f'buffer_load_ushort v{DD}, off, s[36:39], s49')
        return 2 * nu + 1

    def prepare(half):
        nu, stride, boff = geometry(half)
        sh = 3 - half
        P(f'''
        s_mul_i32 s48, {S_W}, {WAVE_LDS}
        v_mov_b32 v40, 0
        v_mov_b32 v41, 0
        v_mov_b32 v42, 0
        v_mov_b32 v43, 0
        v_add_u32 v14, s48, v10
        ds_write_b128 v14, v[40:43] offset:{boff + 16 * nu * 80}
        ds_write_b128 v14, v[40:43] offset:{boff + 16 * nu * 80 + 1024}
        ds_write_b128 v14, v[40:43] offset:{boff + 16 * nu * 80 + 31 * 80 - 1024}
        v_and_b32 v12, 7, v15
        v_mul_u32_u24 v12, {stride}, v12
        v_add_u32 v12, s48, v12
        ds_write_b128 v12, v[40:43]
        ds_write_b128 v12, v[40:43] offset:16
        ds_write_b128 v12, v[40:43] offset:32
        v_sub_u32 v11, 255, v0
        v_lshrrev_b32 v13, {sh}, v11
        v_mul_u32_u24 v13, 80, v13
        v_and_b32 v11, {(1 << sh) - 1}, v11
        v_lshl_add_u32 v13, v11, {6 - sh}, v13
        v_add_u32 v13, {boff}, v13
        v_add_u32 v11, {2 * WAVE_LDS}, v13
        v_and_b32 v3, 31, v15
        v_lshrrev_b32 v4, 5, v15
        v_lshrrev_b32 v6, 3, v3
        v_add_u32 v6, v6, v4
        v_lshl_add_u32 v5, v6, 4, v12
        v_sub_u32 v6, 31, v3
        v_mul_u32_u24 v6, 80, v6
        v_lshl_add_u32 v6, v4, 4, v6
        v_add_u32 v6, s48, v6
        v_lshlrev_b32 v3, 6, v3
        v_lshl_add_u32 v3, v4, 4, v3
        ''')
        assert boff + (16 * nu + 31) * 80 <= WAVE_LDS

    def build(half):
        nu, stride, boff = geometry(half)
        nt = 2 * nu
        P(f'''
        v_lshlrev_b32 v8, 16, v{DD}
        v_lshlrev_b32 v7, 16, v{FK + 4}
        v_add_f32 v7, v7, v8
        v_cvt_pk_bf16_f32 v7, v7, v7
        v_mov_b32 v8, 0xffff
        v_bfi_b32 v7, v8, v7, v{FK + 4}
        v_cmp_eq_u32 vcc, 0, v15
        v_cndmask_b32 v{FK + 4}, v{FK + 4}, v7, vcc
        ''')
        for j in range(nu):
            b = FK + 8 * j
            for c in range(8):
                sh = 1 + c
                o = 48 + 4 * (c & 1)
                if sh & 3:
                    for i in range(4):
                        lo = b + (sh >> 1) + i
                        P(f'v_alignbit_b32 v{o + i}, v{lo + 1}, v{lo}, 16' if sh & 1 else f'v_mov_b32 v{o + i}, v{lo}')
                    src = q4(o)
                else:
                    src = q4(b + (sh >> 1))
                P(f'ds_write_b128 v14, {src} offset:{c * stride + 48 + 1024 * j}')
        C, KF, AC, PKV = 16, 20, 32, 40
        if opt.get('halo', 1):
            for i in range(3):
                for u in range(2):
                    P(f'v_mov_b32_dpp v{KR + nu * i + u}, v{KR + nu * (nt + i) + u} wave_shr:1 row_mask:0xf bank_mask:0xf')
        for ch in range(4):
            def un(d, src):
                return f'v_and_b32 v{d}, 0xffff0000, v{src}' if ch & 1 else f'v_lshlrev_b32 v{d}, 16, v{src}'
            for i in range(2):
                P(f'v_lshlrev_b32 v{C + 2 * i}, 16, v{SH + 2 * ch + i}')
                P(f'v_and_b32 v{C + 2 * i + 1}, 0xffff0000, v{SH + 2 * ch + i}')
            for i in range(nt + 3):
                P(un(KF + i, KR + nu * i + (ch >> 1)))
            for j in range(nt):
                P(f'v_mul_f32 v{AC + j}, v{KF + j + 3}, v{C}')
            for tap in range(1, 4):
                for j in range(nt):
                    P(f'v_fmac_f32 v{AC + j}, v{KF + j + 3 - tap}, v{C + tap}')
            for j in range(nt):
                P(un(KF + j, VR + nu * j + (ch >> 1)))
            for j in range(0, nt, 2):
                P(f'v_pk_mul_f32 {q2(AC + j)}, {q2(AC + j)}, {q2(KF + j)}')
            o = PKV + 4 * (ch & 1)
            for i in range(nu):
                P(f'v_cvt_pk_bf16_f32 v{o + i}, v{AC + nt - 1 - 2 * i}, v{AC + nt - 2 - 2 * i}')
            P(f'ds_write_b{32 * nu} v{11 if ch >> 1 else 13}, v[{o}:{o + nu - 1}] offset:{WAVE_LDS * (ch & 1)}')
        P(f's_add_u32 s21, s53, {YT + 2048 * half}\ns_waitcnt vmcnt(0) lgkmcnt(0)\ns_barrier')

    def convolve(half):
        nu, stride, boff = geometry(half)
        n = 32 * nu

        def reads(st):
            m, be = st >> 1, st & 1
            b = OPS + 8 * (st % NB)
            return [f'ds_read_b128 {q4(b)}, v5 offset:{64 * m + 32 * be}',
                    f'ds_read_b128 {q4(b + 4)}, v6 offset:{boff + 80 * m + 32 * be}']
        for st in range(NB - 1):
            for i in reads(st):
                P(i)
        for st in range(n):
            b = OPS + 8 * (st % NB)
            P(f'{MF32} {y}, {q4(b)}, {q4(b + 4)}, {y if st else 0}')
            if st + NB - 1 < n:
                for i in reads(st + NB - 1):
                    P(i)
        o = 96
        for i in range(8):
            P(cvt(o + i, Y + 2 * i))
        for pr in range(2):
            P(f'v_permlane32_swap_b32 v{o + 4 * pr}, v{o + 4 * pr + 2}')
            P(f'v_permlane32_swap_b32 v{o + 4 * pr + 1}, v{o + 4 * pr + 3}')
            P(f'buffer_store_dwordx4 {q4(o + 4 * pr)}, v3, {S_WS}, s21 offen offset:{32 * pr} sc1')

    n = filt(0) + loads(0)
    P(stamps.tl(opt, 0))
    opt['ready'](P, n, f'''
    v_mov_b32 v1, 0
    v_mov_b32 v2, 8
    buffer_store_dword v2, off, {S_WS}, s85 sc1
    buffer_store_dword v1, off, {S_WS}, s55 sc1
    ''')
    prepare(0)
    build(0)
    P(f'''
    s_cmp_lg_u32 {S_W}, 0
    s_cbranch_scc1 pw_cnt
    s_mov_b64 exec, 1
    v_mov_b32 v1, 1
    buffer_atomic_add v1, off, s[4:7], 0 offset:140
    s_mov_b64 exec, -1
    pw_cnt:
    {stamps.tl(opt, 2)}
    ''')
    convolve(0)
    announce(P, 1)
    P(stamps.tl(opt, 3))
    P(f'''
    s_cmp_lt_u32 s54, 64
    s_cbranch_scc1 pw_done
    s_and_b32 s52, s54, 63
    s_lshl_b32 s52, s52, 3
    ''')
    filt(1)
    loads(1)
    P(stamps.tl(opt, 0, 2))
    prepare(1)
    P('pw_b:')
    build(1)
    P(stamps.tl(opt, 2, 2))
    P('s_xor_b32 s52, s52, 4\ns_bitcmp0_b32 s52, 2\ns_cbranch_scc1 pw_b2')
    filt(1)
    for i in range(19):
        P(f'v_mov_b32 v{KR + 4 * i}, v{KR + 4 * i + 2}\nv_mov_b32 v{KR + 4 * i + 1}, v{KR + 4 * i + 3}')
    for i in range(8):
        P(f'v_mov_b32 v{SH + i}, v{SH + 8 + i}')
    opt['wait_ready'](P, 16, 2)
    P('v_lshlrev_b32 v16, 7, v15')
    wait_lines(P, 1, F_R, 16, 17)
    P(f'v_mov_b32 v1, 16\nbuffer_store_dword v1, off, {S_WS}, s85 sc1')
    P(stamps.tl(opt, 1, 2))
    P('pw_b2:')
    convolve(1)
    P('s_barrier\ns_bitcmp1_b32 s52, 2\ns_cbranch_scc1 pw_b')
    P(stamps.tl(opt, 3, 2))
    announce(P, 2)
    P(f'''
    {stamps.tl(opt, 4)}
    pw_done:
    v_mov_b32 v255, 0
    s_branch main_roles
    ''')
```

```python
from layout import *
import stamps
import loader
from asmtool import schedule
from stamps import marks
from chain import (S_WS, S_W, S_H, S_G, S_PURE, S_LAYER, S_S, S_C, S_SENT, GUARD, MF, MF16, DPPF, q4, q2)


def a4(b):
    return 'a[%d:%d]' % (b, b + 3)


def cvt(d, a):
    return f'v_cvt_pk_bf16_f32 v{d}, v{a}, v{a + 1}'


def xlane(op, x, t):
    return [f'v_mov_b32 v{t}, v{x}', f'v_permlane16_swap_b32 v{x}, v{t}', f'{op} v{x}, v{x}, v{t}',
            f'v_mov_b32 v{t}, v{x}', f'v_permlane32_swap_b32 v{x}, v{t}', f'{op} v{x}, v{x}, v{t}']


def wave_sum(x, t):
    o = [f'v_add_f32_dpp v{x}, v{x}, v{x} row_ror:{r} {DPPF}' for r in (1, 2, 4, 8)]
    return o + xlane('v_add_f32', x, t)


def load_weights(P, mats, r, hooks=None):
    loader.setup(P, r, False)
    gr = []
    for mi, X in enumerate(mats):
        for G in range(4):
            if X == 'o':
                gr.append((X, f's_add_u32 s43, s41, {G * 32768}',
                           [[('a', 128 * mi + 4 * (4 * (2 * Pp + t) + G)) for t in range(2)] for Pp in range(4)]))
            else:
                gr.append((X, f's_add_u32 s43, s40, {G * 128 * 8192}',
                           [[('a', 128 * mi + 4 * (16 * t + 4 * G + pp)) for t in range(2)] for pp in range(4)]))
    loader.run(P, gr, r, False, None, None, hooks)
    P('s_barrier')


def h_dma_addr(P, vd, r0, r1, t0):
    P(f'''
    v_lshrrev_b32 v{t0}, 5, v0
    v_lshlrev_b32 v{vd}, 13, v{t0}
    v_bfe_u32 v{t0}, v0, 3, 2
    v_lshl_add_u32 v{vd}, v{t0}, 10, v{vd}
    v_lshrrev_b32 v{t0}, 3, v0
    v_and_b32 v{t0}, 6, v{t0}
    v_xor_b32 v{t0}, v{t0}, v0
    v_and_b32 v{t0}, 7, v{t0}
    v_lshl_add_u32 v{vd}, v{t0}, 4, v{vd}
    v_and_b32 v{r0}, 15, v0
    v_lshlrev_b32 v{r0}, 7, v{r0}
    v_lshrrev_b32 v{t0}, 4, v0
    v_and_b32 v{r1}, 6, v0
    v_xor_b32 v{t0}, v{t0}, v{r1}
    v_lshl_add_u32 v{r0}, v{t0}, 4, v{r0}
    v_xor_b32 v{r1}, 64, v{r0}
    ''')


def h_dma(vd, s_src, s_lds):
    o = []
    for i in range(8):
        o += [f's_add_u32 m0, {s_lds}, {4096 * i - 128 * i}',
              f'buffer_load_dwordx4 v{vd}, {S_WS}, {s_src} offen offset:{128 * i} sc1 lds']
    return o


def h_wave_part(src, lds):
    return f'''s_lshr_b32 s23, {S_W}, 1
    s_lshl_b32 s23, s23, 12
    s_add_u32 {src}, {src}, s23
    s_and_b32 s23, {S_W}, 1
    s_lshl_b32 s23, s23, 14
    s_add_u32 {src}, {src}, s23
    s_lshl_b32 {lds}, {S_W}, 10'''


def h_read(dst, r0, r1, kk, t):
    return f'ds_read_b128 {q4(dst)}, v{r1 if kk & 1 else r0} offset:{(kk >> 1) * 4096 + t * 2048}'


def gen_kv(P, opt):
    V_L16, V_HD, V_F, V_FA, V_T0, V_R0, V_R1, V_TH = range(240, 248)
    HB = 80
    AK = 32
    AV = 48
    PK = 64
    P.label('kv_role')
    P(f'''
    v_and_b32 v0, 63, v0
    v_lshlrev_b32 v{V_L16}, 4, v0
    v_lshlrev_b32 v{V_FA}, 7, v0
    v_lshrrev_b32 v{V_TH}, 5, v0
    ''')
    h_dma_addr(P, V_HD, V_R0, V_R1, V_T0)
    flush = f'''v_mov_b32 v{V_T0}, s34
    buffer_store_dword v{V_T0}, off, {S_WS}, s31 sc1
    s_mov_b32 s27, 0'''
    P(f'''
    s_lshl_b32 s20, {S_LAYER}, 21
    s_add_u32 s20, s20, {H1}
    {h_wave_part('s20', 's21')}
    s_mov_b32 s24, {F_H}
    s_lshl_b32 s25, {S_H}, 2
    s_add_u32 s25, s25, {S_W}
    s_mul_i32 s22, {S_LAYER}, {2 * KM_L}
    s_mul_i32 s23, {S_H}, {2 * KM_H}
    s_add_u32 s22, s22, s23
    s_lshl_b32 s23, {S_W}, 12
    s_add_u32 s22, s22, s23
    s_add_u32 s28, s22, {KVIMG}
    s_lshr_b32 s32, s22, 1
    s_add_u32 s32, s32, {KMVM}
    s_lshl_b32 s22, {S_LAYER}, 14
    s_lshl_b32 s23, s25, 7
    s_add_u32 s22, s22, s23
    s_add_u32 s31, s22, {F_KV}
    ''')
    P(f's_cmp_eq_u32 {S_LAYER}, 0\ns_cselect_b32 s54, 28, -1')
    init = f'v_mov_b32 v{V_T0}, 0\nbuffer_store_dword v{V_T0}, off, {S_WS}, s31 sc1'
    load_weights(P, 'kv', 16, (lambda n: opt['ready'](P, n, init), lambda n: opt['count_ready'](P, n, V_T0)))
    P(stamps.tl(opt, 5))
    opt['wait_ready'](P, 16)
    P(f'v_and_b32 v{V_FA}, 0xfff, v{V_FA}')
    opt['pre'].wait_lines(P, 1, F_R, V_FA, 17)
    P(f'''
    v_and_b32 v{V_FA}, 0x2b, v0
    v_lshlrev_b32 v{V_FA}, 7, v{V_FA}
    s_and_b32 s22, {S_W}, 1
    s_lshl_b32 s22, s22, 11
    s_add_u32 s24, s24, s22
    s_lshr_b32 s22, {S_W}, 1
    s_lshl_b32 s22, s22, 9
    s_add_u32 s24, s24, s22
    s_mov_b32 {S_S}, 0
    s_mov_b32 s26, 0
    s_mov_b32 s27, 0
    v_mov_b32 v{V_F}, 16
    v_mov_b32 v248, {S_SENT}
    v_mov_b32 v249, {S_SENT}
    v_mov_b32 v250, {S_SENT}
    v_mov_b32 v251, {S_SENT}
    ''')
    stamps.init(P, opt)
    D20, D28, D32 = 2 * MB - 65536, 2 * KM_L - 4 * KM_S, KM_L - 2 * KM_S
    P(f'''
    s_mov_b32 s33, {NS}
    s_mov_b32 s36, 1
    s_mov_b32 s35, 1
    s_mov_b32 s34, 0
    s_mov_b32 s38, 0
    s_cmp_eq_u32 {S_LAYER}, 0
    s_cbranch_scc1 kv_go
    s_sub_u32 s20, s20, {D20}
    s_sub_u32 s28, s28, {D28}
    s_sub_u32 s32, s32, {D32}
    s_mov_b32 {S_S}, 2
    s_mov_b32 s33, 4
    s_mov_b32 s36, 0
    s_mov_b32 s35, -8
    s_branch kv_go
    ''')
    seg = f'v_lshl_add_u32 v{V_F}, v{V_F}, 1, v{V_TH}'
    P(f'''
    kv_loop:
    s_cmp_eq_u32 s26, 0
    s_cbranch_scc0 kv_have
    s_cmp_eq_u32 s38, 1
    s_cbranch_scc1 kv_try
    kv_poll:
    buffer_load_dword v{V_F}, v{V_FA}, {S_WS}, s24 offen sc1
    s_waitcnt vmcnt(0)
    s_cmp_eq_u32 s27, 0
    s_cbranch_scc1 kv_poll2
    {flush}
    {stamps.tlc(opt, 3, S_S, 41)}
    kv_poll2:
    {seg}
    v_cmp_ge_u32 vcc, {S_S}, v{V_F}
    s_cbranch_vccz kv_go
    {GUARD}
    s_sleep {opt.get('ks', 1)}
    s_branch kv_poll
    kv_go:
    {stamps.tlc(opt, 0, S_S, 40)}
    {marks(opt, 0)}
    ''')
    for i in h_dma(V_HD, 's20', 's21'):
        P(i)
    for i in range(2):
        P(f'buffer_load_dword v{V_T0}, off, {S_WS}, s31 ;nodep')
    P(f'''
    kv_have:
    s_add_u32 s30, {S_S}, 1
    s_cmp_eq_u32 s30, s33
    s_cselect_b32 s30, 1000, s30
    v_cmp_ge_u32 vcc, s30, v{V_F}
    s_cmp_eq_u32 {S_S}, s35
    s_cselect_b32 s37, 3, 1
    s_lshl_b32 s22, s37, 15
    s_add_u32 s20, s20, s22
    s_xor_b32 s21, s21, 32768
    s_cmp_eq_u32 s27, 0
    s_cselect_b32 s29, 0x7fff0000, s31
    v_mov_b32 v2, s34
    s_waitcnt vmcnt(8)
    s_barrier
    {stamps.tlc(opt, 1, S_S, 40)}
    {marks(opt, 1)}
    s_cmp_eq_u32 s38, 1
    s_cbranch_scc1 kv_spec
    s_cbranch_vccnz kv_late
    ''')
    VB = 112

    def verify():
        o = [f'v_add_u32 v{V_TH}, s21, v{V_L16}']
        o += [f'ds_read_b128 {q4(VB + 4 * i)}, v{V_TH} offset:{4096 * i}' for i in range(8)]
        for i in range(8):
            b_ = VB + 4 * i
            o.append(f'v_max3_u32 v{b_}, v{b_}, v{b_ + 1}, v{b_ + 2}')
            o.append(f'v_max3_u32 v{V_F}, v{b_}, v{b_ + 3}, v{V_F if i else b_}')
        o.append(f'v_cmp_eq_u32 vcc, {S_SENT}, v{V_F}')
        return o
    for early in (1, 0, 2):
        tf, tc = opt.get('kvf', 950), (2000 if early else opt.get('kvc', 1650))
        it = []
        for j in range(1, 4):
            it += [f's_waitcnt vmcnt({8 - 2 * j}) ;before:g{j} ;t:{130 + 110 * j}', f'@bar g{j}']
        hd = h_dma(V_HD, 's20' if early else 's23', 's21')
        dma = [[hd[2 * i], hd[2 * i + 1] + ' ;after:g3'] for i in range(8)]
        fl = [[f's_waitcnt vmcnt({8 if early else 0})',
               f'buffer_load_dword v{V_F}, v{V_FA}, {S_WS}, s24 offen sc1',
               f'buffer_store_dword v2, off, {S_WS}, s29 sc1']]
        chk = [seg + f' ;t:{tc}']
        if not early:
            chk += [f'v_cmp_ge_u32 vcc, s30, v{V_F} ;by:{tc + 40}',
                    ['s_nop 0', 's_cmp_eq_u64 vcc, 0', 's_cselect_b32 s26, 1, 0', 's_cselect_b32 s23, s20, 0x7fff0000']] + dma
        sent = [f'buffer_store_dwordx4 v[248:251], v{V_L16}, {S_WS}, s32 offen offset:{1024 * i} sc1' for i in range(2)]
        kby = 1400
        if early == 2:
            t1, t2 = opt.get('kv1', 900), opt.get('kv2', 2000)
            kby = t1 + 650
            dma = [[hd[2 * i], hd[2 * i + 1]] for i in range(8)]
            dma[0][1] += f' ;t:{t1}'
            it = [x + ' ;by:250' for x in sent]
            fa = opt.get('kvfa', 1)
            if fa:
                it += dma + [['s_waitcnt vmcnt(10)', f'buffer_store_dword v2, off, {S_WS}, s29 sc1 ;by:{t1 + 480}']]
            else:
                tq = opt.get('kvq', 600)
                it += [['s_waitcnt vmcnt(2)', f'buffer_store_dword v2, off, {S_WS}, s29 sc1 ;t:{tq} ;by:{tq + 50}']] + dma
            ver = verify()
            chk = [[f's_waitcnt vmcnt({2 + fa})', ver[0] + f' ;t:{t2}', f'buffer_load_dword v{V_T0}, off, {S_WS}, s31 ;nodep']] + ver[1:]
            chk.append(['s_nop 0', 's_cmp_eq_u64 vcc, 0', 's_cselect_b32 s26, 1, 0'])
        else:
            it += (dma + fl + ['s_mov_b32 s26, 1']) if early else fl
            it += [x + ' ;by:1250' for x in sent]
        for X in range(2):
            for kk in range(16):
                b = HB + 8 * (kk & 3)
                it += [h_read(b + 4 * tt, V_R0, V_R1, kk, tt) + (f' ;r:g{kk >> 2}' if kk >= 4 and early < 2 else '') for tt in range(2)]
                for te in range(2):
                    for tt in range(2):
                        if X == 0:
                            d = AK + 8 * tt + 4 * te
                            it.append(f'{MF} {q4(d)}, {a4(4 * (16 * te + kk))}, {q4(b + 4 * tt)}, {q4(d) if kk else 0}')
                        else:
                            d = AV + 8 * te + 4 * tt
                            it.append(f'{MF} {q4(d)}, {q4(b + 4 * tt)}, {a4(128 + 4 * (16 * te + kk))}, {q4(d) if kk else 0}')
            if X:
                it += chk
            for qd in range(2 * X, 2 * X + 2):
                it += [cvt(PK + 4 * qd + i, AK + 8 * qd + 2 * i) for i in range(4)]
                it.append(f'buffer_store_dwordx4 {q4(PK + 4 * qd)}, v{V_L16}, {S_WS}, s28 offen offset:{1024 * qd} sc1' + ('' if X else f' ;by:{kby}'))
        it += [f'v_xor_b32 v{V_R0}, 32768, v{V_R0}', f'v_xor_b32 v{V_R1}, 32768, v{V_R1}']
        code, t = schedule(it, verbose=opt.get('verbose') == 20 + early, anneal=opt.get('an2', 200000))
        for c in stamps.profile(code, opt, 20 + early):
            P(c)
        P(('s_branch kv_next\nkv_spec:', 's_branch kv_next\nkv_late:', 'kv_next:')[early])
    P(f'''
    s_mul_i32 s22, s37, {2 * KM_S}
    s_add_u32 s28, s28, s22
    s_mul_i32 s22, s37, {KM_S}
    s_add_u32 s32, s32, s22
    s_mov_b32 s27, s36
    {stamps.trace(opt, 0, S_S, 2)}
    {stamps.tlc(opt, 2, S_S, 40)}
    {marks(opt, 2)}
    s_add_u32 s34, {S_S}, 1
    s_add_u32 {S_S}, {S_S}, s37
    s_cmp_lt_u32 s34, 6
    s_cbranch_scc1 kv_early
    s_cmp_eq_u32 {S_S}, s54
    s_cbranch_scc1 kv_open
    s_cmp_lt_u32 {S_S}, {NS}
    s_cbranch_scc1 kv_loop
    s_waitcnt vmcnt(0)
    {flush}
    s_branch kv_end
    kv_early:
    s_cmp_eq_u32 s36, 0
    s_cbranch_scc1 kv_helped
    s_add_u32 s22, s35, 4
    s_cmp_eq_u32 s34, s22
    s_cbranch_scc1 kv_join
    s_lshl_b32 s22, s38, 1
    s_add_u32 s22, s22, s34
    s_cmp_gt_u32 s22, 2
    s_cbranch_scc1 kv_loop
    s_waitcnt vmcnt(0)
    {flush}
    s_branch kv_loop
    kv_join:
    {GUARD}
    buffer_load_dword v{V_T0}, off, {S_WS}, s31 sc1
    s_waitcnt vmcnt(0)
    v_cmp_gt_u32 vcc, 4, v{V_T0}
    s_cbranch_vccnz kv_join
    {flush}
    s_branch kv_loop
    kv_helped:
    s_sub_u32 s22, s31, 16384
    kv_helped2:
    {GUARD}
    buffer_load_dword v{V_T0}, off, {S_WS}, s22 sc1
    s_waitcnt vmcnt(0)
    v_cmp_gt_u32 vcc, 2, v{V_T0}
    s_cbranch_vccnz kv_helped2
    v_mov_b32 v{V_T0}, s34
    buffer_store_dword v{V_T0}, off, {S_WS}, s22 sc1
    s_cmp_lg_u32 {S_S}, s33
    s_cbranch_scc1 kv_loop
    s_add_u32 s20, s20, {D20 - 65536}
    s_add_u32 s28, s28, {D28 - 4 * KM_S}
    s_add_u32 s32, s32, {D32 - 2 * KM_S}
    s_mov_b32 {S_S}, 0
    s_mov_b32 s33, {NS}
    s_mov_b32 s36, 1
    s_mov_b32 s38, 1
    v_lshlrev_b32 v11, 7, v0
    ''')
    opt['pre'].wait_lines(P, 2, F_R, 11, 12)
    P('kv_try:')
    for i in h_dma(V_HD, 's20', 's21'):
        P(i)
    P(f'''
    s_waitcnt vmcnt(8)
    s_cmp_eq_u32 s27, 0
    s_cbranch_scc1 kv_try2
    {flush}
    s_waitcnt vmcnt(1)
    s_branch kv_try3
    kv_try2:
    s_waitcnt vmcnt(0)
    kv_try3:
    ''')
    for i in verify():
        P(i)
    P(f'''
    {marks(opt, 0)}
    s_cbranch_vccz kv_have
    {GUARD}
    s_branch kv_try
    kv_end:
    ''')
    stamps.dump(P, opt)
    P('s_waitcnt vmcnt(0)\ns_endpgm')
    pre = opt['pre']
    P(f'''
    kv_open:
    v_lshlrev_b32 v11, 7, v0
    ''')
    pre.wait_lines(P, 3, F_P + 8192, 11, 12)
    P(f'''
    s_lshl_b32 s22, {S_H}, 8
    s_add_u32 s22, s22, {F_H}
    v_mov_b32 v1, {NS}
    buffer_store_dword v1, off, {S_WS}, s22 sc1
    buffer_store_dword v1, off, {S_WS}, s22 offset:128 sc1
    s_branch kv_loop
    ''')


def unpack8(dst, src):
    o = []
    for i in range(4):
        o += [f'v_and_b32 v{dst + 2 * i + 1}, 0xffff0000, v{src + i}', f'v_lshlrev_b32 v{dst + 2 * i}, 16, v{src + i}']
    return o


def ln8(x, n, t):
    a, b, c, d = t, t + 1, t + 2, t + 3
    o = [f'v_pk_add_f32 {q2(n)}, {q2(x)}, {q2(x + 2)}', f'v_pk_mul_f32 {q2(n + 4)}, {q2(x)}, {q2(x)}',
         f'v_pk_add_f32 {q2(n + 2)}, {q2(x + 4)}, {q2(x + 6)}', f'v_pk_mul_f32 {q2(n + 6)}, {q2(x + 2)}, {q2(x + 2)}',
         f'v_pk_fma_f32 {q2(n + 4)}, {q2(x + 4)}, {q2(x + 4)}, {q2(n + 4)}',
         f'v_pk_fma_f32 {q2(n + 6)}, {q2(x + 6)}, {q2(x + 6)}, {q2(n + 6)}',
         f'v_pk_add_f32 {q2(n)}, {q2(n)}, {q2(n + 2)}', f'v_pk_add_f32 {q2(n + 4)}, {q2(n + 4)}, {q2(n + 6)}',
         f'v_add_f32 v{a}, v{n}, v{n + 1}', f'v_add_f32 v{c}, v{n + 4}, v{n + 5}']
    for u, v in zip(wave_sum(a, b), wave_sum(c, d)):
        o += [u, v]
    o += [f'v_mul_f32 v{a}, 0x3b000000, v{a}', f'v_mul_f32 v{c}, 0x3b000000, v{c}', f'v_fma_f32 v{c}, -v{a}, v{a}, v{c}',
          f'v_max_f32 v{c}, 0, v{c}', f'v_add_f32 v{c}, 0x3727c5ac, v{c}', f'v_rsq_f32 v{c}, v{c}']
    o += [f'v_pk_add_f32 {q2(n + i)}, {q2(x + i)}, {q2(a)} op_sel_hi:[1,0] neg_lo:[0,1] neg_hi:[0,1]' for i in range(0, 8, 2)]
    o += [f'v_pk_mul_f32 {q2(n + i)}, {q2(n + i)}, {q2(c)} op_sel_hi:[1,0]' for i in range(0, 8, 2)]
    return o


def row_block(x, y, n, pk, ph, t):
    o = ln8(x, n, t)
    o += [f'v_pk_fma_f32 {q2(x + i)}, {q2(n + i)}, {q2(y + i)}, {q2(x + i)}' for i in range(0, 8, 2)]
    o += [cvt(pk + i, x + 2 * i) for i in range(4)]
    o += unpack8(x, pk)
    o += ln8(x, n, t)
    o += [cvt(ph + i, n + 2 * i) for i in range(4)]
    return o
```

```python
import sys
import math
import struct
from asmtool import Prog
from layout import *
import chain
import roles
import at
import prework
import loader
from chain import S_WS, S_W, S_H, S_G, S_PURE, S_LAYER, S_S, S_C, S_SENT, SENT, GUARD

NAME = 'interleave_layers__ssm_conv_h3__memory_aug_recurrent_mem_tr__prompt'
KNAME = NAME + '_kernel'
LDS_MAIN = 160 * 1024
HEADER = ''


def f32bits(x):
    return struct.unpack('<I', struct.pack('<f', x))[0]


def kd(name, vgpr, accum, sgpr=102):
    return f'''.amdhsa_kernel {name}
  .amdhsa_next_free_vgpr {vgpr}
  .amdhsa_next_free_sgpr {sgpr}
  .amdhsa_accum_offset {accum}
  .amdhsa_group_segment_fixed_size 0
  .amdhsa_kernarg_size 128
  .amdhsa_user_sgpr_count 2
  .amdhsa_user_sgpr_kernarg_segment_ptr 1
  .amdhsa_system_sgpr_workgroup_id_x 1
.end_amdhsa_kernel
'''


V_CLAIM = 255


def ready(P, newer, init):
    m = P.uid('rdy')
    P(f'''
    s_waitcnt vmcnt({newer})
    v_mov_b32 v3, 0
    s_cmp_lg_u32 {S_W}, 0
    s_cbranch_scc1 {m}
    s_mov_b64 exec, 1
    ds_write_b32 v3, v{V_CLAIM}
    s_mov_b64 exec, -1
    s_waitcnt lgkmcnt(0)
    {m}:
    s_barrier
    ds_read_b32 v2, v3
    s_waitcnt lgkmcnt(0)
    v_readfirstlane_b32 s22, v2
    s_barrier
    s_bitcmp1_b32 s22, {S_H}
    s_cbranch_scc1 main_late
    {init}
    ''')


def count_ready(P, newer, t, shift=3):
    l = P.uid('cnt')
    P(f'''
    s_waitcnt vmcnt({newer})
    s_barrier
    s_cmp_lg_u32 {S_W}, 0
    s_cbranch_scc1 {l}
    s_mov_b64 exec, 1
    s_add_u32 s22, {S_LAYER}, 1
    v_mov_b32 v{t}, s22
    s_lshl_b32 s22, {S_LAYER}, {shift}
    buffer_atomic_add v{t}, off, s[4:7], s22 offset:128
    s_mov_b64 exec, -1
    {l}:
    ''')


def warm(P, part):
    P(f'''
    s_lshl_b32 s22, {S_H}, 2
    s_add_u32 s22, s22, {S_W}
    s_lshl_b32 s22, s22, 13
    s_add_u32 s22, s22, {part * MB}
    v_lshlrev_b32 v250, 7, v0
    ''')
    for X in 'qkvo':
        for hf in range(2):
            P(f'buffer_load_dword v251, v250, {loader.SRD[X]}, s22 offen ;nodep')
            P(f's_xor_b32 s22, s22, {2 * MB}')
    P('s_waitcnt vmcnt(0)')


def wait_ready(P, t0, pre=False, step=0, early=False):
    a, b = P.uid('wr'), P.uid('wr')
    sel = (f'v_min_u32 v{t0}, v{t0}, v{t0 + 3}' if pre == 2 else f'v_mov_b32 v{t0}, v{t0 + 3}') if pre else f'''s_cmp_eq_u32 {S_LAYER}, 0
    s_cselect_b64 vcc, -1, 0
    v_cndmask_b32 v{t0 + 2}, v{t0 + 2}, v{t0 + 3}, vcc
    v_min_u32 v{t0}, v{t0}, v{t0 + 2}'''
    c = P.uid('wr')
    if early:
        P(f'''
        {sel}
        v_cmp_gt_u32 vcc, 0x80, v{t0}
        v_mov_b32 v{t0 + 1}, v{t0 + 4}
        s_cbranch_vccz {c}
        ''')
    P(f'''
    s_mul_i32 s23, {S_LAYER}, {step}
    {a}:
    buffer_load_dwordx4 v[{t0}:{t0 + 3}], off, s[4:7], s23 offset:128 sc1
    s_waitcnt vmcnt(0)
    {sel}
    v_cmp_gt_u32 vcc, 0x80, v{t0}
    s_cbranch_vccz {b}
    {GUARD}
    s_sleep 4
    s_branch {a}
    {b}:
    ''')
    if not pre:
        P(f'''
        buffer_load_dword v{t0 + 1}, off, s[4:7], 0 offset:132 sc1
        s_waitcnt vmcnt(0)
        {c}:
        v_readfirstlane_b32 s22, v{t0 + 1}
        s_bitcmp0_b32 s22, {S_G}
        s_cselect_b32 {S_PURE}, 1, 0
        ''')


def gen_main(P, opt):
    P(f'''
    {KNAME}:
    s_cmp_ge_u32 s2, 256
    s_cbranch_scc1 main_exit
    s_getpc_b64 s[20:21]
    main_pc:
    s_mov_b32 s22, main_end - main_pc
    s_mov_b32 s23, 0x00020000
    s_mov_b32 s24, 32768
    v_lshlrev_b32 v1, 7, v0
    buffer_load_dword v253, v1, s[20:23], 0 offen ;nodep
    buffer_load_dword v253, v1, s[20:23], s24 offen ;nodep
    s_load_dwordx2 s[4:5], s[0:1], 112
    s_load_dwordx2 s[8:9], s[0:1], 120
    s_load_dwordx2 s[56:57], s[0:1], 104
    s_load_dwordx2 s[68:69], s[0:1], 64
    s_load_dwordx2 s[72:73], s[0:1], 72
    s_load_dwordx2 s[76:77], s[0:1], 80
    s_load_dwordx2 s[80:81], s[0:1], 88
    s_mov_b32 s70, {4 * MB}
    s_mov_b32 s71, 0x00020000
    s_mov_b32 s74, {4 * MB}
    s_mov_b32 s75, 0x00020000
    s_mov_b32 s78, {4 * MB}
    s_mov_b32 s79, 0x00020000
    s_mov_b32 s82, {4 * MB}
    s_mov_b32 s83, 0x00020000
    s_mov_b32 s3, 1000000
    s_mov_b32 s6, 256
    s_mov_b32 s7, 0x00020000
    s_mov_b32 s10, {WS_BYTES}
    s_mov_b32 s11, 0x00020000
    s_mov_b32 s58, {S * D * 2}
    s_mov_b32 s59, 0x00020000
    v_lshrrev_b32 v1, 6, v0
    s_nop 0
    v_readfirstlane_b32 {S_W}, v1
    s_mov_b32 {S_C}, {f32bits(E ** -0.5 * math.log2(math.e))}
    s_mov_b32 {S_SENT}, {SENT}
    s_getreg_b32 s84, hwreg(HW_REG_XCC_ID, 0, 4)
    {'s_memrealtime s[98:99]' if opt.get('stamp') else ''}
    s_waitcnt lgkmcnt(0)
    ''')
    P(f'''
    s_lshl_b32 s22, s84, 2
    s_lshr_b32 s22, {opt.get('map', 0x71253640)}, s22
    s_and_b32 s22, s22, 7
    s_cmp_lt_u32 s84, 8
    s_cselect_b32 s84, s22, s84
    ''')
    if opt.get('scramble') == 1:
        P('s_mov_b32 s84, 15')
    P(f'''
    v_mov_b32 v254, v0
    s_lshr_b32 {S_H}, s2, {4 if opt.get('scramble') == 2 else 3}
    s_and_b32 {S_G}, s84, 7
    v_mov_b32 v{V_CLAIM}, -1
    s_cmp_ge_u32 s84, 8
    s_cbranch_scc1 main_dispatch
    s_cmp_lg_u32 {S_W}, 0
    s_cbranch_scc1 main_dispatch
    s_lshl_b32 s21, 1, {S_H}
    v_mov_b32 v{V_CLAIM}, s21
    s_lshl_b32 s22, {S_G}, 2
    s_mov_b64 exec, 1
    buffer_atomic_or v{V_CLAIM}, off, s[4:7], s22 sc0 ;nodep
    s_mov_b64 exec, -1
    s_branch main_dispatch
    main_late:
    {(chr(10).join(['s_sleep 127'] * 16)) if opt.get('latedelay') else ''}
    s_waitcnt vmcnt(0) lgkmcnt(0)
    s_cmp_lg_u32 {S_W}, 0
    s_cbranch_scc1 main_late_wait
    s_mov_b64 exec, 1
    s_mov_b32 s24, 64
    s_cmp_ge_u32 s84, 8
    s_cbranch_scc1 main_late_tot
    v_mov_b32 v2, 1
    s_lshl_b32 s22, s84, 2
    buffer_atomic_add v2, off, s[4:7], s22 offset:32 sc0
    s_waitcnt vmcnt(0)
    v_readfirstlane_b32 s24, v2
    main_late_tot:
    v_mov_b32 v2, 1
    buffer_atomic_add v2, off, s[4:7], 0 offset:64
    s_mov_b64 exec, 0x1ffff
    v_and_b32 v3, 63, v254
    v_lshlrev_b32 v3, 2, v3
    main_late_poll:
    {GUARD}
    buffer_load_dword v2, v3, s[4:7], 0 offen sc1
    s_waitcnt vmcnt(0)
    v_readlane_b32 s25, v2, 16
    ''')
    for i in range(8):
        P(f'v_readlane_b32 s{32 + i}, v2, {i}\ns_bcnt1_i32_b32 s22, s{32 + i}\ns_add_u32 s25, s25, s22')
    P(f'''
    s_cmp_lt_u32 s25, 256
    s_cbranch_scc1 main_late_poll
    buffer_load_dword v2, v3, s[4:7], 0 offen sc1
    s_waitcnt vmcnt(0)
    s_mov_b64 exec, 1
    s_and_b32 s26, s84, 7
    s_nop 3
    v_readlane_b32 s27, v2, s26
    s_bcnt0_i32_b32 s22, s27
    s_cmp_lt_u32 s24, s22
    s_cbranch_scc1 main_late_pick
    v_mov_b32 v4, 1
    buffer_atomic_add v4, off, s[4:7], 0 offset:68 sc0
    s_waitcnt vmcnt(0)
    v_readfirstlane_b32 s28, v4
    s_mov_b32 s26, 0
    main_late_scan:
    s_add_u32 s29, s26, 8
    s_nop 3
    v_readlane_b32 s27, v2, s26
    v_readlane_b32 s24, v2, s29
    s_bcnt0_i32_b32 s22, s27
    s_min_u32 s24, s24, s22
    s_sub_u32 s22, s22, s24
    s_cmp_lt_u32 s28, s22
    s_cbranch_scc1 main_late_found
    s_sub_u32 s28, s28, s22
    s_add_u32 s26, s26, 1
    s_cmp_lt_u32 s26, 8
    s_cbranch_scc1 main_late_scan
    s_branch main_timeout
    main_late_found:
    s_add_u32 s24, s24, s28
    s_lshl_b32 s22, 1, s26
    v_mov_b32 v4, s22
    buffer_atomic_or v4, off, s[4:7], 0 offset:132
    main_late_pick:
    s_ff0_i32_b32 s22, s27
    s_bitset1_b32 s27, s22
    s_sub_u32 s24, s24, 1
    s_cbranch_scc0 main_late_pick
    v_mov_b32 v2, s26
    v_mov_b32 v3, s22
    v_mov_b32 v4, 0
    ds_write_b64 v4, v[2:3]
    s_waitcnt vmcnt(0) lgkmcnt(0)
    s_mov_b64 exec, -1
    main_late_wait:
    s_barrier
    v_mov_b32 v4, 0
    ds_read_b64 v[2:3], v4
    s_waitcnt lgkmcnt(0)
    v_readfirstlane_b32 {S_G}, v2
    v_readfirstlane_b32 {S_H}, v3
    s_barrier
    s_and_b32 {S_G}, {S_G}, 7
    s_and_b32 {S_H}, {S_H}, 31
    v_mov_b32 v{V_CLAIM}, 0
    v_mov_b32 v0, v254
    main_dispatch:
    {'s_cmp_lg_u32 s14, 0' + chr(10) + 's_cbranch_scc1 main_exit' if opt.get('chainonly') else ''}
    s_lshr_b32 {S_LAYER}, 0xca, {S_G}
    s_and_b32 {S_LAYER}, {S_LAYER}, 1
    s_cbranch_scc1 pre_role
    main_roles:
    s_cmp_lt_u32 {S_G}, 2
    s_cbranch_scc1 chain_role
    {'s_endpgm' if opt.get('chainonly') else ''}
    s_cmp_lt_u32 {S_G}, 4
    s_cbranch_scc1 kv_role
    s_branch at_role
    main_exit:
    s_endpgm
    main_timeout:
    s_mov_b64 exec, 1
    v_mov_b32 v2, 1
    buffer_atomic_add v2, off, s[4:7], 0 offset:72
    s_waitcnt vmcnt(0)
    s_endpgm
    ''')
    opt['ready'] = ready
    opt['count_ready'] = count_ready
    opt['warm'] = warm
    opt['pre'] = prework
    opt['wait_ready'] = wait_ready
    chain.gen_chain(P, opt)
    roles.gen_kv(P, opt)
    at.gen_at(P, opt)
    prework.gen_pre_role(P, opt)
    P.label('main_end')


def build(opt):
    P = Prog()
    gen_main(P, opt)
    head = HEADER
    if opt.get('list', 1):
        head += f'; @launch kernel={KNAME} grid=(256,1,1) block=(256,1,1) lds={LDS_MAIN}\n'
    else:
        head += f'; @launch grid=(256,1,1) block=(256,1,1) lds={LDS_MAIN}\n'
    head += '.amdgcn_target "amdgcn-amd-amdhsa--gfx950"\n.text\n'
    body = f'.globl {KNAME}\n.p2align 8\n.type {KNAME},@function\n' + P.finish()
    tail = '.section .rodata,"a"\n.p2align 6\n' + kd(KNAME, 512, 256)
    return head + body + tail


if __name__ == '__main__':
    opt = {}
    for a in sys.argv[2:]:
        k, v = a.split('=')
        opt[k] = int(v)
    open(sys.argv[1], 'w').write(build(opt))
```
